```python
import torch

def _softmax(x, axis=-1):
    return torch.softmax(x, dim=axis)
def _gelu(x):
    return torch.nn.functional.gelu(x, approximate="tanh")
def _silu(x):
    return torch.nn.functional.silu(x)
def _sigmoid(x):
    return torch.sigmoid(x)
def _layernorm(x, axis=-1, eps=1e-5):
    m = x.mean(dim=axis, keepdim=True)
    v = x.var(dim=axis, keepdim=True, unbiased=False)
    return (x - m) / torch.sqrt(v + eps)
def _scatter_add(tgt, idx, src, axis=0):
    return tgt.clone().index_add_(axis, idx, src)
def _segment_sum(src, seg, n):
    out = torch.zeros((n,) + src.shape[1:], dtype=src.dtype)
    return out.index_add_(0, seg, src)
def _pad(x, pw):
    flat = tuple(v for pair in reversed(pw) for v in pair)
    return torch.nn.functional.pad(x, flat)

kernel_name = 'parallel_sum__gqa_block_cached__swiglu_ffn__decode'

def setup_inputs():

    _w = (lambda a: (lambda t: t.to(torch.bfloat16) if t.is_floating_point() else t)(torch.as_tensor(a)))
    def _A_setup():
        B, Sq, D = 2, 1, 576
        Hq, Hkv, Sk, Dh = 32, 16, 4096, 128
        assert Hq % Hkv == 0, (Hq, Hkv)
        return {
            "x": _w((lambda *s: torch.randn(*s, dtype=torch.bfloat16) * 0.05)(B, Sq, D)),
            "k_cache": _w((lambda *s: torch.randn(*s, dtype=torch.bfloat16) * 3.2)(B, Hkv, Sk, Dh)),
            "v_cache": _w((lambda *s: torch.randn(*s, dtype=torch.bfloat16) * 1.6)(B, Hkv, Sk, Dh)),
            "wq": _w((lambda *s: torch.randn(*s, dtype=torch.bfloat16) * 3.2)(D, Hq * Dh) * (D ** -0.5)),
            "wo": _w((lambda *s: torch.randn(*s, dtype=torch.bfloat16) * 1.6)(Hq * Dh, D) * ((Hq * Dh) ** -0.5)),
        }
    _A_in = _A_setup()

    def _B_setup():
        B, S, D, F = 2, 1, 576, 4608
        return {
            "x": _w((lambda *s: torch.randn(*s, dtype=torch.bfloat16) * 0.05)(B, S, D)),
            "w_gate": _w((lambda *s: torch.randn(*s, dtype=torch.bfloat16) * 0.05)(D, F)),
            "w_up": _w((lambda *s: torch.randn(*s, dtype=torch.bfloat16) * 0.05)(D, F)),
            "w_down": _w((lambda *s: torch.randn(*s, dtype=torch.bfloat16) * 0.05)(F, D)),
        }
    _B_in = _B_setup()

    return {
        "A_x": _A_in["x"],
        "A_k_cache": _A_in["k_cache"],
        "A_v_cache": _A_in["v_cache"],
        "A_wq": _A_in["wq"],
        "A_wo": _A_in["wo"],
        "B_x": _B_in["x"],
        "B_w_gate": _B_in["w_gate"],
        "B_w_up": _B_in["w_up"],
        "B_w_down": _B_in["w_down"],
    }

def reference(A_x, A_k_cache, A_v_cache, A_wq, A_wo, B_x, B_w_gate, B_w_up, B_w_down):
    def _A_ref(x, k_cache, v_cache, wq, wo):
        B, Sq, D = x.shape
        Hq, Dh = 32, 128
        Hkv = k_cache.shape[1]
        rep = Hq // Hkv
        q = (lambda x, *d: x.permute(*d))((x @ wq).reshape(B, Sq, Hq, Dh), 0, 2, 1, 3)
        k = (lambda x, n, axis: torch.repeat_interleave(x, n, dim=axis))(k_cache, rep, axis=1)
        v = (lambda x, n, axis: torch.repeat_interleave(x, n, dim=axis))(v_cache, rep, axis=1)
        scores = torch.einsum("bhqd,bhkd->bhqk", q, k) * (Dh ** -0.5)
        p = _softmax(scores, axis=-1)
        o = torch.einsum("bhqk,bhkd->bhqd", p, v)
        return (lambda x, *d: x.permute(*d))(o, 0, 2, 1, 3).reshape(B, Sq, Hq * Dh) @ wo

    def _B_ref(x, w_gate, w_up, w_down):
        g = _silu(x @ w_gate)
        u = x @ w_up
        return (g * u) @ w_down

    x = A_x
    xn = _layernorm(x, axis=-1)
    return x + _A_ref(xn, A_k_cache, A_v_cache, A_wq, A_wo) + _B_ref(xn, B_w_gate, B_w_up, B_w_down)
```

```python
NAME = 'parallel_sum__gqa_block_cached__swiglu_ffn__decode'
REFHDR = open('cdna_kernels/' + NAME + '.s.ref').read().split('\n')

def header(grid, block, lds):
    out = []
    for l in REFHDR:
        if l.startswith('; @launch'):
            out.append(f'; @launch grid=({grid},1,1) block=({block},1,1) lds={lds}')
        elif l.startswith(';'):
            out.append(l)
        else:
            break
    out += ['.amdgcn_target "amdgcn-amd-amdhsa--gfx950"', '.text',
            f'.globl {NAME}_kernel', '.p2align 8', f'.type {NAME}_kernel,@function', f'{NAME}_kernel:']
    return '\n'.join(out) + '\n'

def footer(nvgpr, nsgpr=102, accum=None):
    if accum is None:
        accum = min(256, (nvgpr + 3) // 4 * 4)
    return f'''
.section .rodata,"a"
.p2align 6
.amdhsa_kernel {NAME}_kernel
  .amdhsa_next_free_vgpr {nvgpr}
  .amdhsa_next_free_sgpr {nsgpr}
  .amdhsa_accum_offset {accum}
  .amdhsa_group_segment_fixed_size 0
  .amdhsa_kernarg_size 96
  .amdhsa_user_sgpr_count 2
  .amdhsa_user_sgpr_kernarg_segment_ptr 1
  .amdhsa_system_sgpr_workgroup_id_x 1
.end_amdhsa_kernel
'''
```

```python
import sys, argparse
from common import *

WS_GEN = 0
WS_L1  = 0x1000
WS_A   = 0x100000
WS_S   = 0x140000
WS_F   = 0x180000
WS_B   = 0x240000
WS_STAMP = 0x8000000

L_CTRL = 0
C_TAGF, C_TAG, C_QF, C_HF, C_ACNT, C_YCNT, C_RAWG, C_L1CNT, C_VISS = 0, 4, 8, 12, 16, 20, 28, 32, 36
L_Y    = 21504
L_XD   = 5120
L_QL   = 9728
L_AS   = 10496
L_AO   = 10752
L_OD   = 18944
L_HD   = L_OD
L_Y1 = L_Y + 12288
LDS_SIZE = L_Y1 + 4096

LOG2E = 0x3fb8aa3b
SCALE = 0x3db504f3
INV576 = 0x3ae38e39
EPS = 0x3727c5ac
SPIN_LIMIT = 0x20000

class G:
    def __init__(self, stamps=False, pol='nt', opts=None):
        self.o = opts or {}
        self.L = []
        self.stamps = stamps
        self.pol = pol
        self.nst = 0
        self.uid = 0
    def __call__(self, s):
        for line in s.split('\n'):
            line = line.strip()
            if line: self.L.append('  ' + line)
    def label(self, l): self.L.append(l + ':')
    def c(self, s): self.L.append('  ; ' + s)
    def u(self, p):
        self.uid += 1
        return f'L_{p}_{self.uid}'
    def nop(self, n):
        while n > 0:
            k = min(n, 16)
            self(f's_nop {k-1}')
            n -= k
    def stamp(self, i):
        if self.stamps:
            self(f's_memrealtime s[{64+2*i}:{65+2*i}]')

S_X, S_K, S_V, S_WQ, S_WO, S_GATE, S_UP = 4, 6, 8, 10, 12, 16, 18
S_DOWN, S_OUT, S_DBG, S_WS = 20, 22, 24, 26
S_WAVE, S_XCD, S_SLOT = 28, 29, 30
S_T0, S_T1, S_T2, S_T3 = 31, 32, 33, 34
S_B = 36
S_B2 = 38
S_TAG = 40
S_SEL0 = 41
S_SELA, S_SELB = 45, 46
S_ID = 47
S_RS = 48
S_CNT = 49
S_OK = 50
S_SV = 52
S_STR = 54
S_TILE = 55
S_HKV = 56
S_BB = 57
S_SP = 58
S_CB = 59
S_F = 60
S_L2E = 61
S_T4, S_PEND = 62, 63

def pr(r): return f's[{r}:{r+1}]'
def vr(r, n=4): return f'v[{r}:{r+n-1}]'

def add_base(g, r, val_sreg):
    g(f's_add_u32 s{r}, s{r}, s{val_sreg}')
    g(f's_addc_u32 s{r+1}, s{r+1}, 0')
def add_base_imm(g, r, imm):
    g(f's_add_u32 s{r}, s{r}, {imm}')
    g(f's_addc_u32 s{r+1}, s{r+1}, 0')

def tag_consts(g):
    for r in range(4):
        g(f's_mov_b32 s{S_SEL0+r}, 0x{0x07060500 | r:08x}')
    g(f's_mov_b32 s{S_SELA}, 0x0c0c0400')
    g(f's_mov_b32 s{S_SELB}, 0x04000c0c')

def tag_insert(g, dst, src, vtag):
    for r in range(4):
        g(f'v_perm_b32 v{dst+r}, v{src+r}, v{vtag}, s{S_SEL0+r}')

def tag_check(g, d, t0, t1, first):
    g(f'v_perm_b32 v{t0}, v{d+1}, v{d}, s{S_SELA}')
    g(f'v_perm_b32 v{t1}, v{d+3}, v{d+2}, s{S_SELB}')
    g(f'v_or_b32 v{t0}, v{t0}, v{t1}')
    if first:
        g(f'v_cmp_eq_u32_e64 {pr(S_OK)}, s{S_TAG}, v{t0}')
    else:
        g(f'v_cmp_eq_u32_e32 vcc, s{S_TAG}, v{t0}')
        g(f's_and_b64 {pr(S_OK)}, {pr(S_OK)}, vcc')

def poll_loop(g, name, issue, ngran, dreg, t0, t1, sleep=4, errcode=1, st_first=None, st_cnt=None):
    if name in g.o.get('nopoll', ()):
        return
    lp = g.u(name + '_lp'); ok = g.u(name + '_ok')
    g(f's_mov_b32 s{S_CNT}, {SPIN_LIMIT}')
    g.label(lp)
    issue()
    for i in range(ngran):
        g(f's_waitcnt vmcnt({ngran-1-i})')
        tag_check(g, dreg + 4*i, t0, t1, i == 0)
    if g.stamps and st_first is not None:
        sk = g.u('sk')
        g(f's_cmp_lg_u32 s{S_CNT}, {SPIN_LIMIT}')
        g(f's_cbranch_scc1 {sk}')
        g.stamp(st_first)
        g.label(sk)
    g(f's_cmp_eq_u64 {pr(S_OK)}, -1')
    g(f's_cbranch_scc1 {ok}')
    g(f's_sub_u32 s{S_CNT}, s{S_CNT}, 1')
    g(f's_cbranch_scc1 {ok}')
    g(f's_sleep {sleep}')
    g(f's_branch {lp}')
    g.label(ok)
    if g.stamps and st_cnt is not None:
        g('s_waitcnt lgkmcnt(0)')
        g(f's_sub_u32 s{64+2*st_cnt}, {SPIN_LIMIT}, s{S_CNT}')
        g(f's_mov_b32 s{65+2*st_cnt}, 0x7fffffff')

def poll_retry(g, name, loads, dreg, t0, t1, sleep=1, st_first=None, st_cnt=None, pre_iter=None):
    if name in g.o.get('nopoll', ()):
        return
    n = len(loads)
    lp = g.u(name + '_lp'); ok = g.u(name + '_ok')
    g(f's_mov_b32 s{S_CNT}, {SPIN_LIMIT}')
    g(f's_mov_b32 s{S_PEND}, {(1 << n) - 1}')
    g.label(lp)
    if pre_iter: pre_iter()
    for k in range(n):
        sk = g.u('sk')
        g(f's_bitcmp1_b32 s{S_PEND}, {k}')
        g(f's_cbranch_scc0 {sk}')
        g(loads[k])
        g.label(sk)
    g('s_waitcnt vmcnt(0)')
    for k in range(n):
        sk = g.u('sk')
        g(f's_bitcmp1_b32 s{S_PEND}, {k}')
        g(f's_cbranch_scc0 {sk}')
        tag_check(g, dreg + 4*k, t0, t1, True)
        g(f's_cmp_eq_u64 {pr(S_OK)}, -1')
        g(f's_cbranch_scc0 {sk}')
        g(f's_bitset0_b32 s{S_PEND}, {k}')
        g.label(sk)
    if g.stamps and st_first is not None:
        sk = g.u('sk')
        g(f's_cmp_lg_u32 s{S_CNT}, {SPIN_LIMIT}')
        g(f's_cbranch_scc1 {sk}')
        g.stamp(st_first)
        g.label(sk)
    g(f's_cmp_eq_u32 s{S_PEND}, 0')
    g(f's_cbranch_scc1 {ok}')
    g(f's_sub_u32 s{S_CNT}, s{S_CNT}, 1')
    g(f's_cbranch_scc1 {ok}')
    if sleep: g(f's_sleep {sleep}')
    g(f's_branch {lp}')
    g.label(ok)
    if g.stamps and st_cnt is not None:
        g('s_waitcnt lgkmcnt(0)')
        g(f's_sub_u32 s{64+2*st_cnt}, {SPIN_LIMIT}, s{S_CNT}')
        g(f's_mov_b32 s{65+2*st_cnt}, 0x7fffffff')

def lds_wait_ge(g, name, off, val, vt, sleep=2):
    lp = g.u(name + '_lp'); ok = g.u(name + '_ok')
    g(f's_mov_b32 s{S_CNT}, {SPIN_LIMIT*8}')
    g(f'v_mov_b32 v{vt}, 0')
    g.label(lp)
    g(f'ds_read_b32 v{vt+1}, v{vt} offset:{off}')
    g('s_waitcnt lgkmcnt(0)')
    g(f'v_readfirstlane_b32 s{S_T0}, v{vt+1}')
    g(f's_cmp_ge_u32 s{S_T0}, {val}')
    g(f's_cbranch_scc1 {ok}')
    g(f's_sub_u32 s{S_CNT}, s{S_CNT}, 1')
    g(f's_cbranch_scc1 {ok}')
    g(f's_sleep {sleep}')
    g(f's_branch {lp}')
    g.label(ok)

def get_tag_from_lds(g, vt, vtag):
    lds_wait_ge(g, 'tag', C_TAGF, 1, vt)
    g(f'ds_read_b32 v{vtag}, v{vt} offset:{C_TAG}')
    g('s_waitcnt lgkmcnt(0)')
    g(f'v_readfirstlane_b32 s{S_TAG}, v{vtag}')

def bf16_round(g, dst, src, tmp=None):
    g(f'v_cvt_pk_bf16_f32 v{dst}, v{src}, v{src}')
    g(f'v_and_b32 v{dst}, 0xffff0000, v{dst}')

def make_masks(g, m, vn, t):
    g(f'v_and_b32 v{t}, 7, v{vn}')
    g(f'v_and_b32 v{t+1}, 1, v{t}')
    g(f'v_lshrrev_b32 v{t}, 1, v{t}')
    g(f'v_mov_b32 v{t+2}, 0xffff')
    g(f'v_lshlrev_b32 v{t+1}, 4, v{t+1}')
    g(f'v_lshlrev_b32 v{t+1}, v{t+1}, v{t+2}')
    for r in range(4):
        g(f'v_cmp_eq_u32_e32 vcc, {r}, v{t}')
        g.nop(2)
        g(f'v_cndmask_b32_e32 v{m+r}, 0, v{t+1}, vcc')

def xor16_op(g, op, a, t):
    g(f'v_mov_b32 v{t}, v{a}')
    g.nop(2)
    g(f'v_permlane16_swap_b32 v{a}, v{t}')
    g.nop(1)
    g(f'{op} v{a}, v{a}, v{t}')
def xor32_op(g, op, a, t):
    g(f'v_mov_b32 v{t}, v{a}')
    g.nop(2)
    g(f'v_permlane32_swap_b32 v{a}, v{t}')
    g.nop(1)
    g(f'{op} v{a}, v{a}, v{t}')
def row_reduce(g, op, a):
    for s in (8, 4, 2, 1):
        g.nop(2)
        g(f'{op}_dpp v{a}, v{a}, v{a} row_ror:{s} row_mask:0xf bank_mask:0xf')

def build():
    pass
```

```python
import sys, argparse
from genlib import *

V_LANE, V_N, V_G = 0, 1, 2
WS_ALT = 0x300000 - WS_A
MK = 8
VTAG = 14

def arrive_last(g, cnt_off, last_val, skip_label):
    g('s_waitcnt lgkmcnt(0)')
    g('v_mov_b32 v12, 0')
    g('v_mov_b32 v13, 1')
    g(f's_mov_b64 {pr(S_SV)}, exec')
    g('s_mov_b64 exec, 1')
    g(f'ds_add_rtn_u32 v13, v12, v13 offset:{cnt_off}')
    g('s_waitcnt lgkmcnt(0)')
    g(f'v_readfirstlane_b32 s{S_T0}, v13')
    g(f's_mov_b64 exec, {pr(S_SV)}')
    g(f's_cmp_lg_u32 s{S_T0}, {last_val}')
    g(f's_cbranch_scc1 {skip_label}')

def set_ws_base(g, dst, off_sreg, const):
    g(f's_add_u32 s{off_sreg}, s{off_sreg}, {const}')
    g(f's_mov_b64 {pr(dst)}, {pr(S_WS)}')
    add_base(g, dst, off_sreg)

def pub_store(g, addr, data, base, local):
    if local and g.o.get('dbl'):
        g(f'global_store_dwordx4 {addr}, {data}, {base}')
    g(f'global_store_dwordx4 {addr}, {data}, {base} sc1')

def count_in(g):
    sk = g.u('ci')
    g(f's_cmp_lg_u32 s{S_WAVE}, 3')
    g(f's_cbranch_scc1 {sk}')
    lds_wait_ge(g, 'vi8', C_VISS, 8, 12, sleep=4)
    g('v_mov_b32 v12, 0')
    g('v_mov_b32 v13, 1')
    g(f's_mov_b64 {pr(S_SV)}, exec')
    g('s_mov_b64 exec, 1')
    g(f'global_atomic_add v12, v13, {pr(S_DBG)} sc1')
    g(f's_mov_b64 exec, {pr(S_SV)}')
    g.label(sk)

def global_gate(g, thr):
    lp = g.u('gg_lp'); ok = g.u('gg_ok')
    g(f's_mov_b32 s{S_CNT}, {SPIN_LIMIT}')
    g.label(lp)
    g(f's_load_dword s{S_T0}, {pr(S_DBG)}, 0 glc')
    g('s_waitcnt lgkmcnt(0)')
    g(f's_cmp_ge_u32 s{S_T0}, {thr}')
    g(f's_cbranch_scc1 {ok}')
    g(f's_sub_u32 s{S_CNT}, s{S_CNT}, 1')
    g(f's_cbranch_scc1 {ok}')
    g('s_sleep 2')
    g(f's_branch {lp}')
    g.label(ok)

def emit_tag_publish(g):
    g('s_waitcnt lgkmcnt(0)')
    g(f's_add_u32 s{S_TAG}, s{S_TAG}, 1')
    g(f's_and_b32 s{S_T0}, s{S_TAG}, 0xff')
    g(f's_mul_i32 s{S_T0}, s{S_T0}, 0x01010100')
    g(f's_mov_b32 s{S_T1}, s{S_TAG}')
    g(f's_xor_b32 s{S_TAG}, s{S_TAG}, s{S_T0}')
    g('v_mov_b32 v4, 0')
    g(f'v_mov_b32 v5, s{S_TAG}')
    g(f'v_mov_b32 v6, s{S_T1}')
    g(f'ds_write_b32 v4, v5 offset:{C_TAG}')
    g(f'ds_write_b32 v4, v6 offset:{C_RAWG}')
    g('s_waitcnt lgkmcnt(0)')
    g('v_mov_b32 v5, 1')
    g(f'ds_write_b32 v4, v5 offset:{C_TAGF}')

def emit_layernorm(g, XR, XF):
    for k in range(9):
        g(f'v_lshlrev_b32 v{XF+2*k}, 16, v{XR+k}')
        g(f'v_and_b32 v{XF+2*k+1}, 0xffff0000, v{XR+k}')
    S, T = 154, 155
    g(f'v_add_f32 v{S}, v{XF}, v{XF+1}')
    for k in range(2, 18): g(f'v_add_f32 v{S}, v{S}, v{XF+k}')
    row_reduce(g, 'v_add_f32', S)
    xor16_op(g, 'v_add_f32', S, T)
    g(f'v_mul_f32 v{S}, 0x{INV576:08x}, v{S}')
    Q, D = 156, 157
    g(f'v_sub_f32 v{D}, v{XF}, v{S}')
    g(f'v_mul_f32 v{Q}, v{D}, v{D}')
    for k in range(1, 18):
        g(f'v_sub_f32 v{D}, v{XF+k}, v{S}')
        g(f'v_fmac_f32 v{Q}, v{D}, v{D}')
    row_reduce(g, 'v_add_f32', Q)
    xor16_op(g, 'v_add_f32', Q, T)
    g(f'v_mul_f32 v{Q}, 0x{INV576:08x}, v{Q}')
    bf16_round(g, Q, Q)
    g(f'v_add_f32 v{Q}, 0x{EPS:08x}, v{Q}')
    bf16_round(g, Q, Q)
    g(f'v_sqrt_f32 v{Q}, v{Q}')
    g.nop(1)
    bf16_round(g, Q, Q)
    g(f'v_rcp_f32 v{Q}, v{Q}')
    bf16_round(g, S, S)
    for k in range(18):
        g(f'v_sub_f32 v{XF+k}, v{XF+k}, v{S}')
    for k in range(0, 18, 2):
        g(f'v_cvt_pk_bf16_f32 v{XR+k//2}, v{XF+k}, v{XF+k+1}')
    for k in range(9):
        g(f'v_lshlrev_b32 v{XF+2*k}, 16, v{XR+k}')
        g(f'v_and_b32 v{XF+2*k+1}, 0xffff0000, v{XR+k}')
    for k in range(18):
        g(f'v_mul_f32 v{XF+k}, v{XF+k}, v{Q}')
    for k in range(18):
        g(f'v_cvt_pk_bf16_f32 v{XF+k}, v{XF+k}, v{XF+k}')
    g('v_lshrrev_b32 v3, 5, v0')
    g('v_and_b32 v4, 31, v0')
    g('v_mul_u32_u24 v3, 576, v3')
    g('v_mad_u32_u24 v3, v4, 18, v3')
    g('v_lshlrev_b32 v3, 2, v3')
    for k in range(0, 18, 2):
        g(f'ds_write_b64 v3, v[{XF+k}:{XF+k+1}] offset:{L_XD + 4*k}')
    g('s_waitcnt lgkmcnt(0)')

def emit_qpoll(g, presleep=0):
    g(f's_lshl_b32 s{S_T0}, s{S_HKV}, 12')
    g(f's_lshl_b32 s{S_T1}, s{S_BB}, 7')
    g(f's_add_u32 s{S_T0}, s{S_T0}, s{S_T1}')
    set_ws_base(g, S_B2, S_T0, WS_L1 + 144*1024)
    g('v_lshrrev_b32 v3, 5, v0')
    g('v_lshlrev_b32 v3, 11, v3')
    g('v_bfe_u32 v4, v0, 3, 2')
    g('v_lshl_add_u32 v3, v4, 8, v3')
    g('v_and_b32 v4, 7, v0')
    g('v_lshl_add_u32 v3, v4, 4, v3')
    D = 124
    if presleep:
        n = presleep
        while n > 0:
            g(f's_sleep {min(n,127)}'); n -= 127
    loads = [f'global_load_dwordx4 {vr(D+4*h)}, v3, {pr(S_B2)} offset:{1024*h} sc1' for h in range(2)]
    poll_retry(g, 'q', loads, D, 5, 6, sleep=g.o.get('qsleep', 4), st_first=5, st_cnt=1)
    g.stamp(6)
    for r in range(4):
        g(f'v_add_f32 v{D+r}, v{D+r}, v{D+4+r}')
    g(f'v_cvt_pk_bf16_f32 v{D}, v{D}, v{D+1}')
    g(f'v_cvt_pk_bf16_f32 v{D+2}, v{D+2}, v{D+3}')
    g('v_lshrrev_b32 v3, 5, v0')
    g('v_lshlrev_b32 v3, 8, v3')
    g('v_bfe_u32 v4, v0, 3, 2')
    g('v_lshl_add_u32 v3, v4, 6, v3')
    g('v_and_b32 v4, 7, v0')
    g('v_lshl_add_u32 v3, v4, 1, v3')
    g(f'ds_write_b16 v3, v{D} offset:{L_QL}')
    g(f'ds_write_b16_d16_hi v3, v{D} offset:{L_QL+16}')
    g(f'ds_write_b16 v3, v{D+2} offset:{L_QL+32}')
    g(f'ds_write_b16_d16_hi v3, v{D+2} offset:{L_QL+48}')
    g('s_waitcnt lgkmcnt(0)')
    g('v_mov_b32 v4, 0')
    g('v_mov_b32 v5, 1')
    g(f'ds_write_b32 v4, v5 offset:{C_QF}')

def emit_hpoll(g, S_RB):
    set_off = []
    g(f's_mul_i32 s{S_T2}, s{S_RB}, 3')
    g('v_lshrrev_b32 v3, 5, v0')
    g(f'v_mul_u32_u24 v3, {72*1024}, v3')
    g('v_bfe_u32 v4, v0, 4, 1')
    g('v_lshl_add_u32 v3, v4, 10, v3')
    g('v_lshl_add_u32 v3, v1, 4, v3')
    for k in range(3):
        g(f's_add_u32 s{S_T0}, s{S_T2}, {k}')
        g(f's_lshr_b32 s{S_T1}, s{S_T0}, 2')
        g(f's_lshl_b32 s{S_T1}, s{S_T1}, 11')
        g(f's_and_b32 s{S_T0}, s{S_T0}, 3')
        g(f's_lshl_b32 s{S_T0}, s{S_T0}, 8')
        g(f's_add_u32 s{S_T0}, s{S_T0}, s{S_T1}')
        g(f'v_add_u32 v{156+k}, s{S_T0}, v3')
    g(f's_mov_b64 {pr(S_B2)}, {pr(S_WS)}')
    add_base_imm(g, S_B2, WS_L1)
    D = 124
    loads = [f'global_load_dwordx4 {vr(D+4*k)}, v{156+k}, {pr(S_B2)} sc1' for k in range(3)]
    poll_retry(g, 'h', loads, D, 5, 6, sleep=g.o.get('hsleep', 8), st_first=5, st_cnt=1)
    g.stamp(6)
    N = 12
    T = D + 12
    U = D + 24
    for j in range(N): g(f'v_mov_b32 v{T+j}, v{D+j}')
    g.nop(2)
    for j in range(N): g(f'v_permlane16_swap_b32 v{D+j}, v{T+j}')
    g.nop(1)
    for j in range(N): g(f'v_add_f32 v{D+j}, v{D+j}, v{T+j}')
    for j in range(N): bf16_round(g, D+j, D+j)
    for j in range(N): g(f'v_mov_b32 v{U+j}, v{D+j}')
    g.nop(2)
    for j in range(N): g(f'v_permlane32_swap_b32 v{D+j}, v{U+j}')
    g.nop(1)
    for j in range(N): g(f'v_mul_f32 v{T+j}, s{S_L2E}, v{D+j}')
    for j in range(N): g(f'v_exp_f32 v{T+j}, -v{T+j}')
    g.nop(1)
    for j in range(N): g(f'v_add_f32 v{T+j}, 1.0, v{T+j}')
    for j in range(N): g(f'v_rcp_f32 v{T+j}, v{T+j}')
    g.nop(1)
    for j in range(N): g(f'v_mul_f32 v{T+j}, v{D+j}, v{T+j}')
    for j in range(N): bf16_round(g, T+j, T+j)
    for j in range(N): g(f'v_mul_f32 v{T+j}, v{T+j}, v{U+j}')
    for j in range(N): g(f'v_cvt_pk_bf16_f32 v{T+j}, v{T+j}, v{T+j}')
    g('v_lshrrev_b32 v3, 3, v1')
    g('v_mul_u32_u24 v3, 96, v3')
    g('v_and_b32 v4, 7, v1')
    g('v_add_u32 v3, v3, v4')
    g('v_lshlrev_b32 v3, 2, v3')
    for k in range(3):
        for r in range(4):
            g(f'ds_write_b32 v3, v{T+4*k+r} offset:{L_HD + 128*k + 32*r}')
    g('s_waitcnt lgkmcnt(0)')
    g('v_mov_b32 v4, 0')
    g('v_mov_b32 v5, 1')
    g(f'ds_write_b32 v4, v5 offset:{C_HF}')

def l2_lane_offsets(g):
    g('v_mul_u32_u24 v5, 2304, v2')
    g('v_lshl_add_u32 v5, v1, 4, v5')
    g('v_add_u32 v6, 256, v5')
    g('v_add_u32 v7, 1024, v5')
    g('v_cmp_gt_u32_e32 vcc, 8, v1')
    g.nop(2)
    g('v_cndmask_b32_e32 v6, v7, v6, vcc')

def l2_issue(g, W0, ng, base=None, a0=5, a1=6, last_adv=False):
    pol = g.pol
    base = S_B if base is None else base
    for i in range(ng):
        g(f'global_load_dwordx4 {vr(W0+12*i)}, v{a0}, {pr(base)} {pol}')
        g(f'global_load_dwordx4 {vr(W0+12*i+4)}, v{a1}, {pr(base)} {pol}')
        g(f'global_load_dwordx4 {vr(W0+12*i+8)}, v{a0}, {pr(base)} offset:1280 {pol}')
        if i < ng-1 or last_adv: add_base_imm(g, base, 9216)

def l2_compute(g, W0, ng, P, AC, BE0, waitvm=None):
    for i in range(ng):
        g(f's_waitcnt lgkmcnt({ng-1-i})')
        be = BE0 + 8*(i & 1); bo = be + 4
        for r in range(4): g(f'v_and_b32 v{be+r}, v{P+2*i}, v{MK+r}')
        for r in range(4): g(f'v_and_b32 v{bo+r}, v{P+2*i+1}, v{MK+r}')
        if waitvm is not None:
            g(f's_waitcnt vmcnt({waitvm(i)})')
        c = (lambda k: '0') if i == 0 else (lambda k: vr(AC+k))
        if waitvm is None: g.nop(1) if False else None
        g(f'v_mfma_f32_16x16x32_bf16 {vr(AC)}, {vr(W0+12*i)}, {vr(be)}, {c(0)}')
        g(f'v_mfma_f32_16x16x32_bf16 {vr(AC+4)}, {vr(W0+12*i+4)}, {vr(be)}, {c(4)}')
        g(f'v_mfma_f32_16x16x32_bf16 {vr(AC+8)}, {vr(W0+12*i+4)}, {vr(bo)}, {c(8)}')
        g(f'v_mfma_f32_16x16x32_bf16 {vr(AC+12)}, {vr(W0+12*i+8)}, {vr(bo)}, {c(12)}')

S_PB = 80
def l2_prep(g, nprod, prod_sreg, ws_const, VI, VP):
    fs = nprod*128
    g(f's_mul_i32 s{S_T0}, s{S_WAVE}, 3072')
    g(f'v_lshlrev_b32 v{VI}, 4, v0')
    g(f'v_add_u32 v{VI}, s{S_T0}, v{VI}')
    g(f's_mul_i32 s{S_T0}, s{S_WAVE}, 24')
    g(f'v_add_u32 v{VP}, s{S_T0}, v0')
    g(f'v_lshlrev_b32 v{VI+1}, 4, v{VP}')
    g(f'v_lshrrev_b32 v6, 4, v{VP}')
    g(f'v_bfe_u32 v7, v{VP}, 3, 1')
    g('v_mad_u32_u24 v6, v7, 18, v6')
    g(f'v_mul_u32_u24 v6, {fs}, v6')
    g(f'v_and_b32 v7, 7, v{VP}')
    g(f'v_lshl_add_u32 v{VP}, v7, 4, v6')
    g(f's_mul_i32 s{S_T0}, s{S_CB}, {6*fs}')
    g(f's_lshl_b32 s{S_T1}, s{prod_sreg}, 7')
    g(f's_add_u32 s{S_T0}, s{S_T0}, s{S_T1}')
    set_ws_base(g, S_PB, S_T0, ws_const)

def l2_finish(g, AC, VI, VP, R0, st_a=None, st_b=None):
    g('v_cmp_gt_u32_e32 vcc, 2, v2')
    g('v_mov_b32 v12, 0')
    g('v_mov_b32 v13, 1')
    g.nop(5)
    g(f'ds_write_b128 v{VI}, {vr(AC)} offset:{L_Y}')
    for r in range(4):
        g(f'v_cndmask_b32_e32 v{AC+4+r}, v{AC+8+r}, v{AC+4+r}, vcc')
    g(f'ds_write_b128 v{VI}, {vr(AC+12)} offset:{L_Y + 2048}')
    g(f'ds_write_b128 v{VI}, {vr(AC+4)} offset:{L_Y + 1024}')
    if st_a is not None: g.stamp(st_a)
    g(f's_mov_b64 {pr(S_SV)}, exec')
    g('s_waitcnt lgkmcnt(0)')
    g('s_mov_b64 exec, 1')
    g(f'ds_add_u32 v12, v13 offset:{C_YCNT}')
    g(f's_mov_b64 exec, 0xffffff')
    lp = g.u('ys'); ok = g.u('yok')
    g(f's_mov_b32 s{S_CNT}, {SPIN_LIMIT*8}')
    g.label(lp)
    g(f'ds_read_b32 v13, v12 offset:{C_YCNT}')
    g('s_waitcnt lgkmcnt(0)')
    g(f'v_readfirstlane_b32 s{S_T0}, v13')
    g(f's_cmp_ge_u32 s{S_T0}, 4')
    g(f's_cbranch_scc1 {ok}')
    g(f's_sub_u32 s{S_CNT}, s{S_CNT}, 1')
    g(f's_cbranch_scc0 {lp}')
    g.label(ok)
    for w in range(4):
        g(f'ds_read_b128 {vr(R0+8*w)}, v{VI+1} offset:{L_Y + 3072*w}')
        g(f'ds_read_b128 {vr(R0+4+8*w)}, v{VI+1} offset:{L_Y + 3072*w + 6*256}')
    for stage in range(4):
        g(f's_waitcnt lgkmcnt({6-2*stage})')
        for r in range(4):
            if stage == 0:
                g(f'v_add_f32 v{R0+r}, v{R0+r}, v{R0+4+r}')
            else:
                g(f'v_add_f32 v{R0+8*stage+r}, v{R0+8*stage+r}, v{R0+8*stage+4+r}')
                g(f'v_add_f32 v{R0+r}, v{R0+r}, v{R0+8*stage+r}')
    tag_insert(g, R0+4, R0, VTAG)
    g(f'global_store_dwordx4 v{VP}, {vr(R0+4)}, {pr(S_PB)} sc1')
    g(f's_mov_b64 exec, {pr(S_SV)}')
    if st_b is not None: g.stamp(st_b)

def reduce_hh(g, d, t):
    g.nop(2)
    for r in range(4):
        g(f'v_add_f32_dpp v{d+r}, v{d+r}, v{d+r} row_ror:8 row_mask:0xf bank_mask:0xf')
    for r in range(4): g(f'v_mov_b32 v{t+r}, v{d+r}')
    g.nop(2)
    for r in range(4): g(f'v_permlane16_swap_b32 v{d+r}, v{t+r}')
    g.nop(1)
    for r in range(4): g(f'v_add_f32 v{d+r}, v{d+r}, v{t+r}')
    for r in range(4): g(f'v_mov_b32 v{t+r}, v{d+r}')
    g.nop(2)
    for r in range(4): g(f'v_permlane32_swap_b32 v{d+r}, v{t+r}')
    g.nop(1)
    for r in range(4): g(f'v_add_f32 v{d+r}, v{d+r}, v{t+r}')

def emit_final(g):
    g('v_and_b32 v3, 7, v0')
    g('v_lshlrev_b32 v3, 1, v3')
    g(f's_lshl_b32 s{S_T0}, s{S_F}, 6')
    g(f'v_add_u32 v3, s{S_T0}, v3')
    for r in range(4):
        g(f'global_load_ushort v{124+r}, v3, {pr(S_X)} offset:{16*r}')
    g('v_lshlrev_b32 v4, 4, v0')
    g('v_add_u32 v5, 4096, v4')
    g(f's_mul_i32 s{S_T0}, s{S_F}, 6144')
    set_ws_base(g, S_B, S_T0, WS_F)
    g(f's_lshl_b32 s{S_T0}, s{S_F}, 11')
    set_ws_base(g, S_B2, S_T0, WS_B)
    lds_wait_ge(g, 'own', C_ACNT, 8, 12, sleep=8)
    g.stamp(5)
    D = 16
    loads = [f'global_load_dwordx4 {vr(D+4*k)}, v{4 if k < 4 else 5}, {pr(S_B)} offset:{1024*(k%4)} sc1' for k in range(6)]
    if 'fin' in g.o.get('nopoll', ()): g.o['finpipe'] = 0
    if not g.o.get('finpipe'):
        loads += [f'global_load_dwordx4 {vr(D+24+4*k)}, v4, {pr(S_B2)} offset:{1024*k} sc1' for k in range(2)]
        poll_retry(g, 'fin', loads, D, 13, 15, sleep=0, st_cnt=1)
    else:
        poll_retry(g, 'fin', loads, D, 13, 15, sleep=2)
        g.stamp(4)
        for k in range(1, 6):
            for r in range(4): g(f'v_add_f32 v{D+r}, v{D+r}, v{D+4*k+r}')
        reduce_hh(g, D, 96)
        for r in range(4): bf16_round(g, D+r, D+r)
        for r in range(4): g(f'v_lshlrev_b32 v{124+r}, 16, v{124+r}')
        NS = g.o.get('finpipe')
        SETS = [64 + 8*j for j in range(NS)]
        def iss(j):
            for k in range(2):
                g(f'global_load_dwordx4 {vr(SETS[j]+4*k)}, v4, {pr(S_B2)} offset:{1024*k} sc1')
        lp = g.u('fp_lp'); done = g.u('fp_done')
        oks = [g.u('fp_ok') for _ in range(NS)]
        g(f's_mov_b32 s{S_CNT}, {SPIN_LIMIT}')
        for j in range(NS-1): iss(j)
        g.label(lp)
        for j in range(NS):
            iss((j + NS - 1) % NS)
            g(f's_waitcnt vmcnt({2*(NS-1)})')
            tag_check(g, SETS[j], 13, 15, True)
            tag_check(g, SETS[j]+4, 13, 15, False)
            g(f's_cmp_eq_u64 {pr(S_OK)}, -1')
            g(f's_cbranch_scc1 {oks[j]}')
        g(f's_sub_u32 s{S_CNT}, s{S_CNT}, 1')
        g(f's_cbranch_scc0 {lp}')
        for j in range(NS):
            g.label(oks[j])
            for r in range(4): g(f'v_add_f32 v{D+24+r}, v{SETS[j]+r}, v{SETS[j]+4+r}')
            if j < NS-1: g(f's_branch {done}')
        g.label(done)
    g.stamp(6)
    FF = D; AT = D + 24
    if not g.o.get('finpipe'):
        for k in range(1, 6):
            for r in range(4): g(f'v_add_f32 v{FF+r}, v{FF+r}, v{FF+4*k+r}')
        for r in range(4): g(f'v_add_f32 v{AT+r}, v{AT+r}, v{AT+4+r}')
    if g.o.get('finpipe'):
        reduce_hh(g, AT, 96)
        for r in range(4): bf16_round(g, AT+r, AT+r)
    else:
        vals = [FF+r for r in range(4)] + [AT+r for r in range(4)]
        T = 96
        g.nop(2)
        for v in vals: g(f'v_add_f32_dpp v{v}, v{v}, v{v} row_ror:8 row_mask:0xf bank_mask:0xf')
        for j, v in enumerate(vals): g(f'v_mov_b32 v{T+j}, v{v}')
        g.nop(2)
        for j, v in enumerate(vals): g(f'v_permlane16_swap_b32 v{v}, v{T+j}')
        g.nop(1)
        for j, v in enumerate(vals): g(f'v_add_f32 v{v}, v{v}, v{T+j}')
        for j, v in enumerate(vals): g(f'v_mov_b32 v{T+j}, v{v}')
        g.nop(2)
        for j, v in enumerate(vals): g(f'v_permlane32_swap_b32 v{v}, v{T+j}')
        g.nop(1)
        for j, v in enumerate(vals): g(f'v_add_f32 v{v}, v{v}, v{T+j}')
        for v in vals: bf16_round(g, v, v)
        for r in range(4): g(f'v_lshlrev_b32 v{124+r}, 16, v{124+r}')
    for r in range(4): g(f'v_add_f32 v{AT+r}, v{124+r}, v{AT+r}')
    for r in range(4): bf16_round(g, AT+r, AT+r)
    for r in range(4): g(f'v_add_f32 v{AT+r}, v{AT+r}, v{FF+r}')
    g(f'v_cvt_pk_bf16_f32 v28, v{AT}, v{AT+1}')
    g(f'v_cvt_pk_bf16_f32 v29, v{AT+2}, v{AT+3}')
    g('v_cmp_gt_u32_e32 vcc, 8, v0')
    g(f's_and_saveexec_b64 {pr(S_SV)}, vcc')
    g(f'global_store_short v3, v28, {pr(S_OUT)}')
    g(f'global_store_short_d16_hi v3, v28, {pr(S_OUT)} offset:16')
    g(f'global_store_short v3, v29, {pr(S_OUT)} offset:32')
    g(f'global_store_short_d16_hi v3, v29, {pr(S_OUT)} offset:48')
    g(f's_cmp_lg_u32 s{S_F}, 0')
    g('s_cbranch_scc1 L_nobump')
    g('s_mov_b64 exec, 1')
    g('v_mov_b32 v4, 0')
    g(f'ds_read_b32 v5, v4 offset:{C_RAWG}')
    g('s_waitcnt lgkmcnt(0)')
    g(f'global_store_dword v4, v5, {pr(S_WS)} sc1')
    g.label('L_nobump')
    g(f's_mov_b64 exec, {pr(S_SV)}')

def emit_roleO(g):
    S_HO = S_ID
    g(f's_sub_u32 s{S_CB}, s{S_SLOT}, 26')
    g(f's_cmp_ge_u32 s{S_CB}, 3')
    g(f's_cselect_b32 s{S_T0}, 1, 0')
    g(f's_mul_i32 s{S_T1}, s{S_T0}, 3')
    g(f's_sub_u32 s{S_CB}, s{S_CB}, s{S_T1}')
    g(f's_lshl_b32 s{S_HO}, s{S_XCD}, 1')
    g(f's_add_u32 s{S_HO}, s{S_HO}, s{S_T0}')
    NE = g.o.get('oearly', 0)
    W0 = 16
    g(f's_mul_i32 s{S_T0}, s{S_HO}, {256*1152}')
    g(f's_mul_i32 s{S_T1}, s{S_CB}, 384')
    g(f's_add_u32 s{S_T0}, s{S_T0}, s{S_T1}')
    g(f's_mul_i32 s{S_T1}, s{S_WAVE}, {64*1152}')
    g(f's_add_u32 s{S_T0}, s{S_T0}, s{S_T1}')
    g(f's_mov_b64 s[82:83], {pr(S_WO)}')
    add_base(g, 82, S_T0)
    l2_lane_offsets(g)
    g('v_mov_b32 v165, v5'); g('v_mov_b32 v166, v6')
    l2_issue(g, W0, NE, base=82, a0=165, a1=166, last_adv=True)
    g('s_barrier')
    g.stamp(2)
    g(f's_cmp_lg_u32 s{S_WAVE}, 1')
    g('s_cbranch_scc1 L_Onoq')
    emit_tag_publish(g)
    emit_qpoll(g, g.o.get('qdelayO', 0))
    g.label('L_Onoq')
    get_tag_from_lds(g, 12, VTAG)
    make_masks(g, MK, 1, 112)
    if NE < 8:
        if not g.o.get('early'):
            lds_wait_ge(g, 'viss', C_VISS, g.o.get('ogate', 8), 12, sleep=4)
        if g.o.get('ogg'):
            global_gate(g, g.o.get('ogg'))
        l2_issue(g, W0 + 12*NE, 8 - NE, base=82, a0=165, a1=166)
        if g.o.get('ggate'): count_in(g)
    else:
        lds_wait_ge(g, 'own', C_ACNT, 8, 12, sleep=4)
    if not g.o.get('stO'): g.stamp(3)
    g(f's_lshl_b32 s{S_T0}, s{S_HO}, 14')
    g(f's_and_b32 s{S_T1}, s{S_WAVE}, 1')
    g(f's_lshl_b32 s{S_T1}, s{S_T1}, 9')
    g(f's_add_u32 s{S_T0}, s{S_T0}, s{S_T1}')
    g(f's_lshr_b32 s{S_T1}, s{S_WAVE}, 1')
    g(f's_lshl_b32 s{S_T1}, s{S_T1}, 7')
    g(f's_add_u32 s{S_T0}, s{S_T0}, s{S_T1}')
    set_ws_base(g, S_B, S_T0, WS_A)
    g(f's_lshl_b32 s{S_T0}, s{S_HO}, 11')
    g(f's_lshr_b32 s{S_T1}, s{S_WAVE}, 1')
    g(f's_lshl_b32 s{S_T1}, s{S_T1}, 4')
    g(f's_add_u32 s{S_T0}, s{S_T0}, s{S_T1}')
    set_ws_base(g, S_B2, S_T0, WS_S)
    g('v_lshrrev_b32 v3, 5, v0')
    g('v_bfe_u32 v5, v0, 3, 1')
    g('v_lshl_add_u32 v4, v3, 1, v5')
    g('v_lshlrev_b32 v3, 12, v4')
    g('v_lshlrev_b32 v4, 9, v4')
    g('v_bfe_u32 v5, v0, 4, 1')
    g('v_lshl_add_u32 v3, v5, 8, v3')
    g('v_and_b32 v5, 7, v0')
    g('v_lshl_add_u32 v3, v5, 4, v3')
    g('v_lshrrev_b32 v160, 5, v0')
    g('v_lshlrev_b32 v160, 6, v160')
    g('v_bfe_u32 v5, v0, 4, 1')
    g('v_lshl_add_u32 v160, v5, 5, v160')
    g('v_and_b32 v5, 7, v0')
    g('v_add_u32 v160, v160, v5')
    g(f's_lshl_b32 s{S_T0}, s{S_WAVE}, 7')
    g(f'v_add_u32 v160, s{S_T0}, v160')
    g('v_lshlrev_b32 v160, 2, v160')
    g('v_lshrrev_b32 v161, 3, v1')
    g('v_lshlrev_b32 v161, 6, v161')
    g('v_lshl_add_u32 v161, v2, 1, v161')
    g(f'v_add_u32 v161, s{S_T0}, v161')
    g('v_lshlrev_b32 v161, 2, v161')
    l2_prep(g, 16, S_HO, WS_B, 162, 164)
    D = 112
    if g.o.get('fastA'):
        g(f'v_add_u32 v156, {WS_ALT}, v3')
        g(f'v_add_u32 v157, {WS_ALT}, v4')
        g('v_mov_b32 v158, v3'); g('v_mov_b32 v159, v4')
        def pre():
            g(f's_and_b32 s{S_T0}, s{S_CNT}, 3')
            g(f's_cmp_eq_u32 s{S_T0}, 1')
            g(f's_cselect_b64 vcc, -1, 0')
            g('v_cndmask_b32_e32 v3, v156, v158, vcc')
            g('v_cndmask_b32_e32 v4, v157, v159, vcc')
    else:
        pre = None
    if g.stamps and g.o.get('stO'):
        pre0 = pre
        def pre():
            g('s_waitcnt lgkmcnt(0)')
            g('s_mov_b64 s[68:69], s[70:71]')
            g('s_mov_b64 s[70:71], s[74:75]')
            g('s_memrealtime s[74:75]')
            if pre0: pre0()
    loads = [f'global_load_dwordx4 {vr(D+4*i)}, v3, {pr(S_B)} offset:{1024*i} sc1' for i in range(4)]
    loads += [f'global_load_dwordx4 {vr(D+16+4*i)}, v4, {pr(S_B2)} offset:{128*i} sc1' for i in range(4)]
    if g.o.get('warm') and g.o.get('fastA'):
        for i in range(4): g(f'global_load_dwordx4 {vr(D+4*i)}, v156, {pr(S_B)} offset:{1024*i} sc1')
        for i in range(4): g(f'global_load_dwordx4 {vr(D+16+4*i)}, v157, {pr(S_B2)} offset:{128*i} sc1')
    if NE < 8 and g.o.get('ogate', 8) < 8 and g.o.get('ownwait', 8):
        lds_wait_ge(g, 'own', C_ACNT, g.o.get('ownwait', 8), 12, sleep=4)
    poll_retry(g, 'ha', loads, D, 5, 6, sleep=0, st_cnt=1, pre_iter=pre)
    g.stamp(4)
    ST = D + 16
    M = 144; LL = 145; O = 148
    for i in range(4):
        g(f'v_and_b32 v{ST+4*i}, 0xffffff00, v{ST+4*i}')
    g(f'v_max_f32 v{M}, v{ST}, v{ST+4}')
    g(f'v_max3_f32 v{M}, v{M}, v{ST+8}, v{ST+12}')
    g.nop(2)
    g(f'v_max_f32_dpp v{M}, v{M}, v{M} row_ror:8 row_mask:0xf bank_mask:0xf')
    for i in range(4): g(f'v_sub_f32 v{ST+4*i}, v{ST+4*i}, v{M}')
    for i in range(4): g(f'v_exp_f32 v{ST+4*i}, v{ST+4*i}')
    g.nop(1)
    g(f'v_mul_f32 v{LL}, v{ST}, v{ST+1}')
    for r in range(4): g(f'v_mul_f32 v{O+r}, v{ST}, v{D+r}')
    for i in range(1, 4):
        g(f'v_fmac_f32 v{LL}, v{ST+4*i}, v{ST+4*i+1}')
        for r in range(4): g(f'v_fmac_f32 v{O+r}, v{ST+4*i}, v{D+4*i+r}')
    g.nop(1)
    g(f'v_add_f32_dpp v{LL}, v{LL}, v{LL} row_ror:8 row_mask:0xf bank_mask:0xf')
    for r in range(4):
        g(f'v_add_f32_dpp v{O+r}, v{O+r}, v{O+r} row_ror:8 row_mask:0xf bank_mask:0xf')
    g(f'v_rcp_f32 v{LL}, v{LL}')
    g.nop(1)
    for r in range(4): g(f'v_mul_f32 v{O+r}, v{O+r}, v{LL}')
    for r in range(4): g(f'v_cvt_pk_bf16_f32 v{O+r}, v{O+r}, v{O+r}')
    for r in range(4): g(f'ds_write_b32 v160, v{O+r} offset:{L_OD + 32*r}')
    g('s_waitcnt lgkmcnt(0)')
    P = 112
    for i in range(8):
        g(f'ds_read_b64 v[{P+2*i}:{P+2*i+1}], v161 offset:{L_OD + 32*i}')
    l2_compute(g, W0, 8, P, 128, 144)
    l2_finish(g, 128, 162, 164, 16, st_a=None if g.o.get('stO') else 5, st_b=6)

def emit_qk_softmax(g, extra):
    K0, V0 = 16, 80
    QF = 144
    g('v_lshrrev_b32 v4, 3, v1')
    g('v_lshlrev_b32 v4, 8, v4')
    g('v_lshl_add_u32 v4, v2, 4, v4')
    for s in range(4):
        g(f'ds_read_b128 {vr(QF+4*s)}, v4 offset:{L_QL + 64*s}')
    SCR = [8, 12, 160, 164]
    for T in range(4):
        for r in range(4): g(f'v_mov_b32 v{SCR[T]+r}, 0')
    g('s_waitcnt lgkmcnt(0)')
    for T in range(4):
        g(f's_waitcnt vmcnt({12 - 4*T + extra})')
        for s in range(4):
            g(f'v_mfma_f32_16x16x32_bf16 {vr(SCR[T])}, {vr(K0+16*T+4*s)}, {vr(QF+4*s)}, {vr(SCR[T])}')
    g.nop(8)
    g.stamp(4)
    sc = [SCR[T]+r for T in range(4) for r in range(4)]
    TP = 144
    for k in range(0, 16, 2):
        g(f'v_cvt_pk_bf16_f32 v{TP+k//2}, v{sc[k]}, v{sc[k+1]}')
    for k in range(0, 16, 2):
        g(f'v_lshlrev_b32 v{sc[k]}, 16, v{TP+k//2}')
        g(f'v_and_b32 v{sc[k+1]}, 0xffff0000, v{TP+k//2}')
    for k in range(16):
        g(f'v_mul_f32 v{sc[k]}, 0x{SCALE:08x}, v{sc[k]}')
    for k in range(0, 16, 2):
        g(f'v_cvt_pk_bf16_f32 v{TP+k//2}, v{sc[k]}, v{sc[k+1]}')
    for k in range(0, 16, 2):
        g(f'v_lshlrev_b32 v{sc[k]}, 16, v{TP+k//2}')
        g(f'v_and_b32 v{sc[k+1]}, 0xffff0000, v{TP+k//2}')
    M = 152; T1 = 153; LS = 154
    g(f'v_max3_f32 v{M}, v{sc[0]}, v{sc[1]}, v{sc[2]}')
    for k in range(3, 15, 2):
        g(f'v_max3_f32 v{M}, v{M}, v{sc[k]}, v{sc[k+1]}')
    g(f'v_max_f32 v{M}, v{M}, v{sc[15]}')
    xor16_op(g, 'v_max_f32', M, T1)
    xor32_op(g, 'v_max_f32', M, T1)
    g(f'v_mul_f32 v{M}, s{S_L2E}, v{M}')
    for k in range(16):
        g(f'v_fma_f32 v{sc[k]}, v{sc[k]}, s{S_L2E}, -v{M}')
    for k in range(16):
        g(f'v_exp_f32 v{sc[k]}, v{sc[k]}')
    g.nop(1)
    g(f'v_add_f32 v{LS}, v{sc[0]}, v{sc[1]}')
    for k in range(2, 16):
        g(f'v_add_f32 v{LS}, v{LS}, v{sc[k]}')
    for k in range(16):
        g(f'v_cvt_pk_bf16_f32 v{sc[k]}, v{sc[k]}, v{sc[k]}')
    xor16_op(g, 'v_add_f32', LS, T1)
    xor32_op(g, 'v_add_f32', LS, T1)
    AMK = 156
    make_masks(g, AMK, 1, 4)
    for T in range(4):
        for i in range(4):
            for r in range(4):
                g(f'v_and_b32 v{K0+16*T+4*i+r}, v{sc[4*T+i]}, v{AMK+r}')
    AC = 144
    for r in range(8): g(f'v_mov_b32 v{AC+r}, 0')
    g.stamp(5)

def issue_v(g, V0):
    pol = g.pol
    for T in range(4):
        for i in range(4):
            g(f'global_load_dwordx4 {vr(V0+16*T+4*i)}, v3, {pr(S_V)} offset:{256*i} {pol}')
        if T < 3: add_base_imm(g, S_V, 4096)
    g('v_mov_b32 v4, 0')
    g('v_mov_b32 v5, 1')
    g(f's_mov_b64 {pr(S_SV)}, exec')
    g('s_mov_b64 exec, 1')
    g(f'ds_add_u32 v4, v5 offset:{C_VISS}')
    g(f's_mov_b64 exec, {pr(S_SV)}')

def emit_attn(g):
    pol = g.pol
    K0, V0 = 16, 80
    QF = 144
    g('s_waitcnt lgkmcnt(0)')
    g(f's_lshl_b32 s{S_T0}, s{S_BB}, 4')
    g(f's_add_u32 s{S_T0}, s{S_T0}, s{S_HKV}')
    g(f's_lshl_b32 s{S_T0}, s{S_T0}, 20')
    il = g.o.get('kvil', True)
    g(f's_lshl_b32 s{S_T1}, s{S_SP}, {14 if il else 17}')
    g(f's_add_u32 s{S_T0}, s{S_T0}, s{S_T1}')
    g(f's_sub_u32 s{S_T1}, s{S_WAVE}, 4')
    g(f's_lshl_b32 s{S_T1}, s{S_T1}, {17 if il else 14}')
    g(f's_add_u32 s{S_T0}, s{S_T0}, s{S_T1}')
    add_base(g, S_K, S_T0)
    add_base(g, S_V, S_T0)
    g('v_lshlrev_b32 v4, 8, v1')
    g('v_lshl_add_u32 v4, v2, 4, v4')
    g('v_lshlrev_b32 v3, 10, v2')
    g('v_lshl_add_u32 v3, v1, 4, v3')
    g('s_barrier')
    g.stamp(1)
    g('s_setprio 2')
    for T in range(4):
        for s in range(4):
            g(f'global_load_dwordx4 {vr(K0+16*T+4*s)}, v4, {pr(S_K)} offset:{64*s} {pol}')
        if T < 3: add_base_imm(g, S_K, 4096)
    g('s_setprio 1')
    g(f's_cmp_ge_u32 s{S_WAVE}, 8')
    g('s_cbranch_scc1 L_grp2')
    issue_v(g, V0)
    g.stamp(2)
    lds_wait_ge(g, 'qf', C_QF, 1, 4, sleep=4)
    g.stamp(3)
    emit_qk_softmax(g, 16)
    g('s_branch L_pv')
    g.label('L_grp2')
    g.stamp(2)
    lds_wait_ge(g, 'qf', C_QF, 1, 4, sleep=4)
    g.stamp(3)
    emit_qk_softmax(g, 0)
    issue_v(g, V0)
    g.label('L_pv')
    M = 152; LS = 154; AC = 144
    for T in range(4):
        g(f's_waitcnt vmcnt({12 - 4*T})')
        for i in range(4):
            a = AC + 4*(i & 1)
            g(f'v_mfma_f32_16x16x32_bf16 {vr(a)}, {vr(V0+16*T+4*i)}, {vr(K0+16*T+4*i)}, {vr(a)}')
    g.stamp(6)
    g(f's_sub_u32 s{S_T2}, s{S_WAVE}, 4')
    g(f's_lshl_b32 s{S_T0}, s{S_T2}, 10')
    g('v_lshlrev_b32 v4, 4, v0')
    g(f'v_add_u32 v4, s{S_T0}, v4')
    g('v_lshrrev_b32 v5, 3, v1')
    g('v_lshlrev_b32 v5, 3, v5')
    g(f's_lshl_b32 s{S_T0}, s{S_T2}, 4')
    g(f'v_add_u32 v5, s{S_T0}, v5')
    g(f'v_mov_b32 v6, v{M}')
    g(f'v_mov_b32 v7, v{LS}')
    g(f'ds_write_b64 v5, v[6:7] offset:{L_AS}')
    g.nop(2)
    for r in range(4): g(f'v_add_f32 v{AC+r}, v{AC+r}, v{AC+4+r}')
    g(f'ds_write_b128 v4, {vr(AC)} offset:{L_AO}')
    arrive_last(g, C_ACNT, 7, 'L_end_stamp')
    g(f'ds_read_b32 v14, v12 offset:{C_TAG}')
    g('v_lshlrev_b32 v4, 4, v0')
    g('v_lshrrev_b32 v5, 3, v1')
    g('v_lshlrev_b32 v5, 3, v5')
    ST = 16; OV = 32
    for w in range(8):
        g(f'ds_read_b64 v[{ST+2*w}:{ST+2*w+1}], v5 offset:{L_AS + 16*w}')
    for w in range(8):
        g(f'ds_read_b128 {vr(OV+4*w)}, v4 offset:{L_AO + 1024*w}')
    g(f's_lshl_b32 s{S_T0}, s{S_HKV}, 1')
    g(f's_add_u32 s{S_T0}, s{S_T0}, s{S_BB}')
    g(f's_lshl_b32 s{S_T0}, s{S_T0}, 3')
    g(f's_add_u32 s{S_T0}, s{S_T0}, s{S_SP}')
    g(f's_lshl_b32 s{S_T1}, s{S_T0}, 10')
    set_ws_base(g, S_B, S_T1, WS_A)
    g(f's_lshl_b32 s{S_T1}, s{S_T0}, 7')
    set_ws_base(g, S_B2, S_T1, WS_S)
    g('s_waitcnt lgkmcnt(8)')
    g(f'v_max3_f32 v8, v{ST}, v{ST+2}, v{ST+4}')
    g(f'v_max3_f32 v8, v8, v{ST+6}, v{ST+8}')
    g(f'v_max3_f32 v8, v8, v{ST+10}, v{ST+12}')
    g(f'v_max_f32 v8, v8, v{ST+14}')
    g('v_and_b32 v8, 0xffffff00, v8')
    for w in range(8): g(f'v_sub_f32 v{ST+2*w}, v{ST+2*w}, v8')
    for w in range(8): g(f'v_exp_f32 v{ST+2*w}, v{ST+2*w}')
    g.nop(1)
    g(f'v_mul_f32 v9, v{ST}, v{ST+1}')
    for w in range(1, 8): g(f'v_fmac_f32 v9, v{ST+2*w}, v{ST+2*w+1}')
    g('v_mov_b32 v10, 0'); g('v_mov_b32 v11, 0')
    tag_insert(g, 72, 8, 14)
    g('s_waitcnt lgkmcnt(0)')
    for r in range(4):
        g(f'v_mul_f32 v{64+r}, v{ST}, v{OV+r}')
    for w in range(1, 8):
        for r in range(4):
            g(f'v_fmac_f32 v{64+r}, v{ST+2*w}, v{OV+4*w+r}')
    tag_insert(g, 68, 64, 14)
    if g.o.get('fastA'):
        g(f'v_add_u32 v6, {WS_ALT}, v4')
        g(f'global_store_dwordx4 v6, {vr(68)}, {pr(S_B)}')
    g(f'global_store_dwordx4 v4, {vr(68)}, {pr(S_B)} sc1')
    g('v_lshlrev_b32 v5, 1, v5')
    g('v_and_b32 v6, 0x37, v0')
    g('v_cmp_eq_u32_e32 vcc, 0, v6')
    g(f's_and_saveexec_b64 {pr(S_SV)}, vcc')
    if g.o.get('fastA'):
        g(f'v_add_u32 v6, {WS_ALT}, v5')
        g(f'global_store_dwordx4 v6, {vr(72)}, {pr(S_B2)}')
    g(f'global_store_dwordx4 v5, {vr(72)}, {pr(S_B2)} sc1')
    g(f's_mov_b64 exec, {pr(S_SV)}')

def generate(stamps=False, pol='nt', opts=None):
    g = G(stamps, pol, opts)
    g('s_cmp_ge_u32 s2, 256')
    g('s_cbranch_scc1 L_end')
    g.stamp(0)
    g('s_load_dwordx16 s[4:19], s[0:1], 0')
    g('s_load_dwordx8 s[20:27], s[0:1], 64')
    g('v_lshrrev_b32 v3, 6, v0')
    g('v_and_b32 v0, 63, v0')
    g(f'v_readfirstlane_b32 s{S_WAVE}, v3')
    g(f'v_and_b32 v{V_N}, 15, v0')
    g(f'v_lshrrev_b32 v{V_G}, 4, v0')
    g(f's_and_b32 s{S_XCD}, s2, 7')
    g(f's_lshr_b32 s{S_SLOT}, s2, 3')
    g(f's_lshr_b32 s{S_HKV}, s{S_SLOT}, 4')
    g(f's_lshl_b32 s{S_T0}, s{S_XCD}, 1')
    g(f's_add_u32 s{S_HKV}, s{S_HKV}, s{S_T0}')
    g(f's_bfe_u32 s{S_BB}, s{S_SLOT}, 0x10003')
    g(f's_and_b32 s{S_SP}, s{S_SLOT}, 7')
    g(f's_mov_b32 s{S_L2E}, 0x{LOG2E:08x}')
    tag_consts(g)
    g(f's_cmp_ge_u32 s{S_WAVE}, 4')
    g('s_cbranch_scc1 L_attn')
    g('s_setprio 3')
    g(f's_cmp_lg_u32 s{S_WAVE}, 0')
    g('s_cbranch_scc1 L_noinit')
    g('v_lshlrev_b32 v3, 4, v0')
    for r in range(4, 8): g(f'v_mov_b32 v{r}, 0')
    g('ds_write_b128 v3, v[4:7]')
    g.label('L_noinit')
    g('s_waitcnt lgkmcnt(0)')
    g.stamp(1)
    g(f's_cmp_lg_u32 s{S_WAVE}, 1')
    g('s_cbranch_scc1 L_nogen')
    g(f's_load_dword s{S_TAG}, {pr(S_WS)}, {WS_GEN}')
    g.label('L_nogen')
    g(f's_cmp_ge_u32 s{S_SLOT}, 26')
    g('s_cbranch_scc1 L_roleO')
    XR = 124; XF = 136
    g('v_lshrrev_b32 v3, 5, v0')
    g('v_and_b32 v4, 31, v0')
    g('v_mul_u32_u24 v3, 1152, v3')
    g('v_mad_u32_u24 v3, v4, 36, v3')
    g(f'global_load_dwordx4 {vr(XR)}, v3, {pr(S_X)}')
    g(f'global_load_dwordx4 {vr(XR+4)}, v3, {pr(S_X)} offset:16')
    g(f'global_load_dword v{XR+8}, v3, {pr(S_X)} offset:32')
    S_HALF = S_RS
    S_A, S_R = S_T2, S_T3
    if g.o.get('remap', True):
        g(f's_cmp_ge_u32 s{S_SLOT}, 18')
        g('s_cbranch_scc1 L_tileLight')
        g(f's_mul_i32 s{S_ID}, s{S_XCD}, 18')
        g(f's_add_u32 s{S_ID}, s{S_ID}, s{S_SLOT}')
        g(f's_and_b32 s{S_HALF}, s{S_ID}, 1')
        g(f's_lshr_b32 s{S_A}, s{S_ID}, 2')
        g(f's_and_b32 s{S_R}, s{S_ID}, 2')
        g(f's_sub_u32 s{S_T0}, s{S_ID}, 104')
        g(f's_lshr_b32 s{S_T0}, s{S_T0}, 1')
        g(f's_add_u32 s{S_T0}, s{S_T0}, 6')
        g(f's_cmp_ge_u32 s{S_ID}, 104')
        g(f's_cselect_b32 s{S_A}, s{S_T0}, s{S_A}')
        g(f's_cselect_b32 s{S_R}, 3, s{S_R}')
        g('s_branch L_tileCT')
        g.label('L_tileLight')
        g(f's_sub_u32 s{S_T0}, s{S_SLOT}, 18')
        g(f's_lshl_b32 s{S_T0}, s{S_T0}, 3')
        g(f's_add_u32 s{S_T0}, s{S_T0}, s{S_XCD}')
        g(f's_and_b32 s{S_HALF}, s{S_T0}, 1')
        g(f's_lshr_b32 s{S_A}, s{S_T0}, 1')
        g(f's_sub_u32 s{S_T1}, s{S_A}, 26')
        g(f's_cmp_ge_u32 s{S_T0}, 52')
        g(f's_cselect_b32 s{S_A}, s{S_T1}, s{S_A}')
        g(f's_cselect_b32 s{S_R}, 3, 1')
        g.label('L_tileCT')
        g(f's_lshl_b32 s{S_T0}, s{S_A}, 2')
        g(f's_add_u32 s{S_T0}, s{S_T0}, s{S_R}')
    else:
        g(f's_cmp_ge_u32 s{S_SLOT}, 18')
        g('s_cbranch_scc1 L_tileLight')
        g(f's_mul_i32 s{S_ID}, s{S_XCD}, 18')
        g(f's_add_u32 s{S_ID}, s{S_ID}, s{S_SLOT}')
        g(f's_and_b32 s{S_HALF}, s{S_ID}, 1')
        g(f's_lshr_b32 s{S_T0}, s{S_ID}, 1')
        g('s_branch L_tileCT')
        g.label('L_tileLight')
        g(f's_sub_u32 s{S_T1}, s{S_SLOT}, 18')
        g(f's_and_b32 s{S_HALF}, s{S_T1}, 1')
        g(f's_lshl_b32 s{S_T0}, s{S_XCD}, 3')
        g(f's_add_u32 s{S_T0}, s{S_T0}, s{S_T1}')
        g(f's_lshr_b32 s{S_T0}, s{S_T0}, 1')
        g(f's_add_u32 s{S_T0}, s{S_T0}, 72')
        g.label('L_tileCT')
    g(f's_lshl_b32 s{S_TILE}, s{S_T0}, 1')
    g(f's_add_u32 s{S_TILE}, s{S_TILE}, s{S_HALF}')
    g(f's_mov_b64 {pr(S_B)}, {pr(S_GATE)}')
    g(f's_mov_b32 s{S_STR}, 9216')
    g(f's_mov_b32 s{S_T1}, 0')
    g(f's_cmp_ge_u32 s{S_T0}, 36')
    g(f's_cselect_b64 {pr(S_B)}, {pr(S_UP)}, {pr(S_B)}')
    g(f's_cselect_b32 s{S_T1}, 36, s{S_T1}')
    g(f's_cmp_ge_u32 s{S_T0}, 72')
    g(f's_cselect_b64 {pr(S_B)}, {pr(S_WQ)}, {pr(S_B)}')
    g(f's_cselect_b32 s{S_T1}, 72, s{S_T1}')
    g(f's_cselect_b32 s{S_STR}, 8192, s{S_STR}')
    g(f's_sub_u32 s{S_T0}, s{S_T0}, s{S_T1}')
    g(f's_mul_i32 s{S_T1}, s{S_HALF}, 288')
    g(f's_mul_i32 s{S_T2}, s{S_WAVE}, 72')
    g(f's_add_u32 s{S_RS}, s{S_T1}, s{S_T2}')
    g(f's_mul_i32 s{S_T1}, s{S_RS}, s{S_STR}')
    g(f's_lshl_b32 s{S_T0}, s{S_T0}, 8')
    g(f's_add_u32 s{S_T1}, s{S_T1}, s{S_T0}')
    add_base(g, S_B, S_T1)
    g(f'v_mul_lo_u32 v3, v{V_G}, s{S_STR}')
    g(f'v_lshl_add_u32 v3, v{V_N}, 4, v3')
    g(f's_lshl_b32 s{S_STR}, s{S_STR}, 2')
    W0 = 16
    for i in range(18):
        g(f'global_load_dwordx4 {vr(W0+4*i)}, v3, {pr(S_B)} {pol}')
        if i < 17: add_base(g, S_B, S_STR)
    g('s_barrier')
    g.stamp(2)
    g(f's_cmp_lg_u32 s{S_WAVE}, 1')
    g('s_cbranch_scc1 L_notag1')
    emit_tag_publish(g)
    g.label('L_notag1')
    g('s_waitcnt vmcnt(18)')
    emit_layernorm(g, XR, XF)
    make_masks(g, MK, V_N, 12)
    g(f'v_lshrrev_b32 v3, 3, v{V_N}')
    g('v_mul_u32_u24 v3, 576, v3')
    g(f'v_add_u32 v3, v3, v{V_G}')
    g(f'v_add_u32 v3, s{S_RS}, v3')
    g('v_lshlrev_b32 v3, 2, v3')
    XV = 136
    for i in range(18):
        g(f'ds_read_b32 v{XV+i}, v3 offset:{L_XD + 16*i}')
    ACC = 156; BT = 160
    for r in range(4): g(f'v_mov_b32 v{ACC+r}, 0')
    g('s_waitcnt lgkmcnt(0)')
    for i in range(18):
        b = BT + 4*(i & 1)
        for r in range(4):
            g(f'v_and_b32 v{b+r}, v{XV+i}, v{MK+r}')
        g(f's_waitcnt vmcnt({17 - i})')
        g.nop(1)
        g(f'v_mfma_f32_16x16x32_bf16 {vr(ACC)}, {vr(W0+4*i)}, {vr(b)}, {vr(ACC)}')
    g.stamp(3)
    get_tag_from_lds(g, 12, VTAG)
    g(f's_lshl_b32 s{S_T0}, s{S_WAVE}, 10')
    g('v_lshlrev_b32 v3, 4, v0')
    g(f'v_add_u32 v4, s{S_T0}, v3')
    g(f'ds_write_b128 v4, {vr(ACC)} offset:{L_Y1}')
    arrive_last(g, C_L1CNT, 3, 'L_l1pubdone')
    g('v_lshlrev_b32 v3, 4, v0')
    for w in range(4):
        g(f'ds_read_b128 {vr(124+4*w)}, v3 offset:{L_Y1 + 1024*w}')
    g(f's_lshl_b32 s{S_T0}, s{S_TILE}, 10')
    set_ws_base(g, S_B, S_T0, WS_L1)
    g('s_waitcnt lgkmcnt(0)')
    for j in range(1, 4):
        for r in range(4): g(f'v_add_f32 v{124+r}, v{124+r}, v{124+4*j+r}')
    tag_insert(g, 160, 124, VTAG)
    pub_store(g, 'v3', vr(160), pr(S_B), True)
    g.label('L_l1pubdone')
    g.stamp(4)
    g(f's_cmp_lg_u32 s{S_WAVE}, 1')
    g('s_cbranch_scc1 L_noq1')
    emit_qpoll(g, g.o.get('qdelay', 0))
    g.label('L_noq1')
    g(f's_cmp_ge_u32 s{S_SLOT}, 18')
    g('s_cbranch_scc1 L_roleQtail')
    S_RB = S_TILE
    g(f's_mul_i32 s{S_T0}, s{S_SLOT}, 43')
    g(f's_lshr_b32 s{S_T0}, s{S_T0}, 7')
    g(f's_mul_i32 s{S_T1}, s{S_T0}, 3')
    g(f's_sub_u32 s{S_CB}, s{S_SLOT}, s{S_T1}')
    g(f's_mul_i32 s{S_RB}, s{S_XCD}, 6')
    g(f's_add_u32 s{S_RB}, s{S_RB}, s{S_T0}')
    g(f's_cmp_lg_u32 s{S_WAVE}, 0')
    g('s_cbranch_scc1 L_noh')
    emit_hpoll(g, S_RB)
    g.label('L_noh')
    g(f's_mul_i32 s{S_T0}, s{S_RB}, 96')
    g(f's_mul_i32 s{S_T1}, s{S_WAVE}, 24')
    g(f's_add_u32 s{S_T0}, s{S_T0}, s{S_T1}')
    g(f's_mul_i32 s{S_T0}, s{S_T0}, 1152')
    g(f's_mul_i32 s{S_T1}, s{S_CB}, 384')
    g(f's_add_u32 s{S_T0}, s{S_T0}, s{S_T1}')
    g(f's_mov_b64 {pr(S_B)}, {pr(S_DOWN)}')
    add_base(g, S_B, S_T0)
    l2_lane_offsets(g)
    WD = 88
    if not g.o.get('early'):
        if g.o.get('fgateA'):
            lds_wait_ge(g, 'facnt', C_ACNT, g.o.get('fgateA'), 12, sleep=2)
        else:
            lds_wait_ge(g, 'viss', C_VISS, g.o.get('fgate', 8), 12, sleep=4)
    if g.o.get('ggate'):
        count_in(g)
        global_gate(g, g.o.get('ggate'))
    l2_issue(g, WD, 3)
    l2_prep(g, 48, S_RB, WS_F, 60, 62)
    lds_wait_ge(g, 'hf', C_HF, 1, 12)
    g(f'v_lshrrev_b32 v3, 3, v{V_N}')
    g('v_mul_u32_u24 v3, 96, v3')
    g(f'v_lshl_add_u32 v3, v{V_G}, 1, v3')
    g(f's_mul_i32 s{S_T0}, s{S_WAVE}, 24')
    g(f'v_add_u32 v3, s{S_T0}, v3')
    g('v_lshlrev_b32 v3, 2, v3')
    P = 16
    for i in range(3):
        g(f'ds_read_b64 v[{P+2*i}:{P+2*i+1}], v3 offset:{L_HD + 32*i}')
    l2_compute(g, WD, 3, P, 24, 40, waitvm=lambda i: 6 - 3*i)
    l2_finish(g, 24, 60, 62, 64)
    g('s_branch L_end_stamp')
    g.label('L_roleQtail')
    if g.o.get('ggate'): count_in(g)
    g(f's_cmp_lg_u32 s{S_WAVE}, 0')
    g('s_cbranch_scc1 L_end_stamp')
    g(f's_sub_u32 s{S_F}, s{S_SLOT}, 18')
    g(f's_lshl_b32 s{S_F}, s{S_F}, 3')
    g(f's_add_u32 s{S_F}, s{S_F}, s{S_XCD}')
    g(f's_cmp_ge_u32 s{S_F}, 36')
    g('s_cbranch_scc1 L_end_stamp')
    emit_final(g)
    g('s_branch L_end_stamp')
    g.label('L_roleO')
    emit_roleO(g)
    g('s_branch L_end_stamp')
    g.label('L_attn')
    emit_attn(g)
    g.label('L_end_stamp')
    if stamps:
        g.stamp(7)
        g('s_waitcnt lgkmcnt(0) vmcnt(0)')
        g('s_mov_b64 exec, -1')
        g('v_cmp_eq_u32_e32 vcc, 0, v0')
        g(f's_and_saveexec_b64 {pr(S_SV)}, vcc')
        g('s_cbranch_execz L_end')
        g(f's_mul_i32 s{S_T0}, s2, 12')
        g(f's_add_u32 s{S_T0}, s{S_T0}, s{S_WAVE}')
        g(f's_lshl_b32 s{S_T0}, s{S_T0}, 6')
        g(f's_add_u32 s{S_T0}, s{S_T0}, 0x{WS_STAMP:x}')
        add_base(g, S_WS, S_T0)
        g('v_mov_b32 v1, 0')
        for j in range(8):
            g(f'v_mov_b32 v2, s{64+2*j}'); g(f'v_mov_b32 v3, s{65+2*j}')
            g(f'global_store_dwordx2 v1, v[2:3], {pr(S_WS)} offset:{8*j}')
            g.nop(2)
    g.label('L_end')
    g('s_endpgm')
    return g

if __name__ == '__main__':
    ap = argparse.ArgumentParser()
    ap.add_argument('-o', default='k.s')
    ap.add_argument('--stamps', action='store_true')
    ap.add_argument('--pol', default='nt')
    ap.add_argument('--nopoll', default='')
    ap.add_argument('--nopub', action='store_true')
    ap.add_argument('--early', action='store_true')
    ap.add_argument('--dbl', action='store_true')
    ap.add_argument('--noremap', action='store_true')
    ap.add_argument('--fastA', action='store_true')
    ap.add_argument('--fgateA', type=int, default=0)
    ap.add_argument('--ggate', type=int, default=0)
    ap.add_argument('--ogg', type=int, default=0)
    ap.add_argument('--warm', action='store_true')
    ap.add_argument('--ownwait', type=int, default=8)
    ap.add_argument('--ogate', type=int, default=8)
    ap.add_argument('--fgate', type=int, default=8)
    ap.add_argument('--oearly', type=int, default=0)
    ap.add_argument('--stO', action='store_true')
    ap.add_argument('--finpipe', type=int, default=0)
    ap.add_argument('--nokvil', action='store_true')
    ap.add_argument('--qdelay', type=int, default=0)
    ap.add_argument('--qdelayO', type=int, default=0)
    a = ap.parse_args()
    opts = {}
    if a.nopoll: opts['nopoll'] = a.nopoll.split(',')
    if a.early: opts['early'] = True
    opts['remap'] = not a.noremap; opts['fastA'] = a.fastA; opts['fgateA'] = a.fgateA; opts['ggate'] = a.ggate; opts['ogg'] = a.ogg; opts['warm'] = a.warm; opts['ownwait'] = a.ownwait; opts['ogate'] = a.ogate; opts['fgate'] = a.fgate; opts['oearly'] = a.oearly; opts['stO'] = a.stO; opts['finpipe'] = a.finpipe; opts['kvil'] = not a.nokvil
    opts['dbl'] = a.dbl; opts['qdelay'] = a.qdelay; opts['qdelayO'] = a.qdelayO
    pol = a.pol
    g = generate(a.stamps, a.pol, opts)
    if a.nopub:
        g.L = [l for l in g.L if not ('global_store_dwordx4' in l and 'sc1' in l)]
    open(a.o, 'w').write(header(256, 768, LDS_SIZE) + '\n'.join(g.L) + '\n' + footer(168))
    print(a.o, len(g.L), 'lines')
```

```python
import sys, argparse
from genlib import *

V_LANE, V_N, V_G = 0, 1, 2
WS_ALT = 0x300000 - WS_A
MK = 8
VTAG = 14

def arrive_last(g, cnt_off, last_val, skip_label):
    g('s_waitcnt lgkmcnt(0)')
    g('v_mov_b32 v12, 0')
    g('v_mov_b32 v13, 1')
    g(f's_mov_b64 {pr(S_SV)}, exec')
    g('s_mov_b64 exec, 1')
    g(f'ds_add_rtn_u32 v13, v12, v13 offset:{cnt_off}')
    g('s_waitcnt lgkmcnt(0)')
    g(f'v_readfirstlane_b32 s{S_T0}, v13')
    g(f's_mov_b64 exec, {pr(S_SV)}')
    g(f's_cmp_lg_u32 s{S_T0}, {last_val}')
    g(f's_cbranch_scc1 {skip_label}')

def set_ws_base(g, dst, off_sreg, const):
    g(f's_add_u32 s{off_sreg}, s{off_sreg}, {const}')
    g(f's_mov_b64 {pr(dst)}, {pr(S_WS)}')
    add_base(g, dst, off_sreg)

def pub_store(g, addr, data, base, local):
    if local and g.o.get('dbl'):
        g(f'global_store_dwordx4 {addr}, {data}, {base}')
    g(f'global_store_dwordx4 {addr}, {data}, {base} sc1')

def count_in(g):
    sk = g.u('ci')
    g(f's_cmp_lg_u32 s{S_WAVE}, 3')
    g(f's_cbranch_scc1 {sk}')
    lds_wait_ge(g, 'vi8', C_VISS, 8, 12, sleep=4)
    g('v_mov_b32 v12, 0')
    g('v_mov_b32 v13, 1')
    g(f's_mov_b64 {pr(S_SV)}, exec')
    g('s_mov_b64 exec, 1')
    g(f'global_atomic_add v12, v13, {pr(S_DBG)} sc1')
    g(f's_mov_b64 exec, {pr(S_SV)}')
    g.label(sk)

WS_G = 0x380000
C_GO = 44
def detector(g, thr):
    lp = g.u('dt_lp'); ok = g.u('dt_ok')
    g(f's_mov_b32 s{S_CNT}, {SPIN_LIMIT}')
    g.label(lp)
    g(f's_load_dword s{S_T0}, {pr(S_DBG)}, 0 glc')
    g('s_waitcnt lgkmcnt(0)')
    g(f's_cmp_ge_u32 s{S_T0}, {thr}')
    g(f's_cbranch_scc1 {ok}')
    g(f's_sub_u32 s{S_CNT}, s{S_CNT}, 1')
    g(f's_cbranch_scc1 {ok}')
    g('s_sleep 2')
    g(f's_branch {lp}')
    g.label(ok)
    g('v_lshlrev_b32 v4, 7, v0')
    g(f'v_mov_b32 v5, s{S_TAG}')
    g(f's_mov_b64 {pr(S_B2)}, {pr(S_WS)}')
    add_base_imm(g, S_B2, WS_G)
    g(f's_mov_b64 {pr(S_SV)}, exec')
    g('s_mov_b64 exec, 0xff')
    g(f'global_store_dword v4, v5, {pr(S_B2)} sc1')
    g(f's_mov_b64 exec, {pr(S_SV)}')

def go_wait(g):
    sk = g.u('gw_sk'); lp = g.u('gw_lp'); ok = g.u('gw_ok')
    g(f's_cmp_lg_u32 s{S_WAVE}, 2')
    g(f's_cbranch_scc1 {sk}')
    g(f's_lshl_b32 s{S_T0}, s{S_XCD}, 7')
    set_ws_base(g, S_B2, S_T0, WS_G)
    g(f's_mov_b32 s{S_CNT}, {SPIN_LIMIT}')
    g.label(lp)
    g(f's_load_dword s{S_T0}, {pr(S_B2)}, 0 glc')
    g('s_waitcnt lgkmcnt(0)')
    g(f's_cmp_eq_u32 s{S_T0}, s{S_TAG}')
    g(f's_cbranch_scc1 {ok}')
    g(f's_sub_u32 s{S_CNT}, s{S_CNT}, 1')
    g(f's_cbranch_scc1 {ok}')
    g('s_sleep 6')
    g(f's_branch {lp}')
    g.label(ok)
    g('v_mov_b32 v12, 0'); g('v_mov_b32 v13, 1')
    g(f'ds_write_b32 v12, v13 offset:{C_GO}')
    g.label(sk)
    lds_wait_ge(g, 'go', C_GO, 1, 12, sleep=2)

def global_gate(g, thr):
    lp = g.u('gg_lp'); ok = g.u('gg_ok')
    g(f's_mov_b32 s{S_CNT}, {SPIN_LIMIT}')
    g.label(lp)
    g(f's_load_dword s{S_T0}, {pr(S_DBG)}, 0 glc')
    g('s_waitcnt lgkmcnt(0)')
    g(f's_cmp_ge_u32 s{S_T0}, {thr}')
    g(f's_cbranch_scc1 {ok}')
    g(f's_sub_u32 s{S_CNT}, s{S_CNT}, 1')
    g(f's_cbranch_scc1 {ok}')
    g('s_sleep 2')
    g(f's_branch {lp}')
    g.label(ok)

def emit_tag_publish(g):
    g('s_waitcnt lgkmcnt(0)')
    g(f's_add_u32 s{S_TAG}, s{S_TAG}, 1')
    g(f's_and_b32 s{S_T0}, s{S_TAG}, 0xff')
    g(f's_mul_i32 s{S_T0}, s{S_T0}, 0x01010100')
    g(f's_mov_b32 s{S_T1}, s{S_TAG}')
    g(f's_xor_b32 s{S_TAG}, s{S_TAG}, s{S_T0}')
    g('v_mov_b32 v4, 0')
    g(f'v_mov_b32 v5, s{S_TAG}')
    g(f'v_mov_b32 v6, s{S_T1}')
    g(f'ds_write_b32 v4, v5 offset:{C_TAG}')
    g(f'ds_write_b32 v4, v6 offset:{C_RAWG}')
    g('s_waitcnt lgkmcnt(0)')
    g('v_mov_b32 v5, 1')
    g(f'ds_write_b32 v4, v5 offset:{C_TAGF}')

def emit_layernorm(g, XR, XF):
    for k in range(9):
        g(f'v_lshlrev_b32 v{XF+2*k}, 16, v{XR+k}')
        g(f'v_and_b32 v{XF+2*k+1}, 0xffff0000, v{XR+k}')
    S, T = 154, 155
    g(f'v_add_f32 v{S}, v{XF}, v{XF+1}')
    for k in range(2, 18): g(f'v_add_f32 v{S}, v{S}, v{XF+k}')
    row_reduce(g, 'v_add_f32', S)
    xor16_op(g, 'v_add_f32', S, T)
    g(f'v_mul_f32 v{S}, 0x{INV576:08x}, v{S}')
    Q, D = 156, 157
    g(f'v_sub_f32 v{D}, v{XF}, v{S}')
    g(f'v_mul_f32 v{Q}, v{D}, v{D}')
    for k in range(1, 18):
        g(f'v_sub_f32 v{D}, v{XF+k}, v{S}')
        g(f'v_fmac_f32 v{Q}, v{D}, v{D}')
    row_reduce(g, 'v_add_f32', Q)
    xor16_op(g, 'v_add_f32', Q, T)
    g(f'v_mul_f32 v{Q}, 0x{INV576:08x}, v{Q}')
    bf16_round(g, Q, Q)
    g(f'v_add_f32 v{Q}, 0x{EPS:08x}, v{Q}')
    bf16_round(g, Q, Q)
    g(f'v_sqrt_f32 v{Q}, v{Q}')
    g.nop(1)
    bf16_round(g, Q, Q)
    g(f'v_rcp_f32 v{Q}, v{Q}')
    bf16_round(g, S, S)
    for k in range(18):
        g(f'v_sub_f32 v{XF+k}, v{XF+k}, v{S}')
    for k in range(0, 18, 2):
        g(f'v_cvt_pk_bf16_f32 v{XR+k//2}, v{XF+k}, v{XF+k+1}')
    for k in range(9):
        g(f'v_lshlrev_b32 v{XF+2*k}, 16, v{XR+k}')
        g(f'v_and_b32 v{XF+2*k+1}, 0xffff0000, v{XR+k}')
    for k in range(18):
        g(f'v_mul_f32 v{XF+k}, v{XF+k}, v{Q}')
    for k in range(18):
        g(f'v_cvt_pk_bf16_f32 v{XF+k}, v{XF+k}, v{XF+k}')
    g('v_lshrrev_b32 v3, 5, v0')
    g('v_and_b32 v4, 31, v0')
    g('v_mul_u32_u24 v3, 576, v3')
    g('v_mad_u32_u24 v3, v4, 18, v3')
    g('v_lshlrev_b32 v3, 2, v3')
    for k in range(0, 18, 2):
        g(f'ds_write_b64 v3, v[{XF+k}:{XF+k+1}] offset:{L_XD + 4*k}')
    g('s_waitcnt lgkmcnt(0)')

def emit_qpoll(g, presleep=0):
    g(f's_lshl_b32 s{S_T0}, s{S_HKV}, 12')
    g(f's_lshl_b32 s{S_T1}, s{S_BB}, 7')
    g(f's_add_u32 s{S_T0}, s{S_T0}, s{S_T1}')
    set_ws_base(g, S_B2, S_T0, WS_L1 + 144*1024)
    g('v_lshrrev_b32 v3, 5, v0')
    g('v_lshlrev_b32 v3, 11, v3')
    g('v_bfe_u32 v4, v0, 3, 2')
    g('v_lshl_add_u32 v3, v4, 8, v3')
    g('v_and_b32 v4, 7, v0')
    g('v_lshl_add_u32 v3, v4, 4, v3')
    D = 124
    if g.o.get('qprobe'):
        lp = g.u('qp_lp'); ok = g.u('qp_ok')
        g(f's_and_b32 s{S_T4}, s{S_TAG}, 0xff')
        g(f's_mov_b32 s{S_CNT}, {SPIN_LIMIT}')
        g.label(lp)
        for k in range(4):
            g(f's_load_dword s{84+k}, {pr(S_B2)}, {1024*k} glc')
        g('s_waitcnt lgkmcnt(0)')
        for k in range(4):
            g(f's_and_b32 s{84+k}, s{84+k}, 0xff')
            g(f's_xor_b32 s{84+k}, s{84+k}, s{S_T4}')
        g('s_or_b32 s84, s84, s85')
        g('s_or_b32 s86, s86, s87')
        g('s_or_b32 s84, s84, s86')
        g('s_cmp_eq_u32 s84, 0')
        g(f's_cbranch_scc1 {ok}')
        g(f's_sub_u32 s{S_CNT}, s{S_CNT}, 1')
        g(f's_cbranch_scc1 {ok}')
        g(f's_sleep {g.o.get("qprobe")}')
        g(f's_branch {lp}')
        g.label(ok)
        presleep = 0
    if presleep:
        n = presleep
        while n > 0:
            g(f's_sleep {min(n,127)}'); n -= 127
    loads = [f'global_load_dwordx4 {vr(D+4*h)}, v3, {pr(S_B2)} offset:{1024*h} sc1' for h in range(2)]
    poll_retry(g, 'q', loads, D, 5, 6, sleep=g.o.get('qsleep', 4), st_first=5, st_cnt=1)
    g.stamp(6)
    for r in range(4):
        g(f'v_add_f32 v{D+r}, v{D+r}, v{D+4+r}')
    g(f'v_cvt_pk_bf16_f32 v{D}, v{D}, v{D+1}')
    g(f'v_cvt_pk_bf16_f32 v{D+2}, v{D+2}, v{D+3}')
    g('v_lshrrev_b32 v3, 5, v0')
    g('v_lshlrev_b32 v3, 8, v3')
    g('v_bfe_u32 v4, v0, 3, 2')
    g('v_lshl_add_u32 v3, v4, 6, v3')
    g('v_and_b32 v4, 7, v0')
    g('v_lshl_add_u32 v3, v4, 1, v3')
    g(f'ds_write_b16 v3, v{D} offset:{L_QL}')
    g(f'ds_write_b16_d16_hi v3, v{D} offset:{L_QL+16}')
    g(f'ds_write_b16 v3, v{D+2} offset:{L_QL+32}')
    g(f'ds_write_b16_d16_hi v3, v{D+2} offset:{L_QL+48}')
    g('s_waitcnt lgkmcnt(0)')
    g('v_mov_b32 v4, 0')
    g('v_mov_b32 v5, 1')
    g(f'ds_write_b32 v4, v5 offset:{C_QF}')

def emit_hpoll(g, S_RB):
    set_off = []
    g(f's_mul_i32 s{S_T2}, s{S_RB}, 3')
    g('v_lshrrev_b32 v3, 5, v0')
    g(f'v_mul_u32_u24 v3, {72*1024}, v3')
    g('v_bfe_u32 v4, v0, 4, 1')
    g('v_lshl_add_u32 v3, v4, 10, v3')
    g('v_lshl_add_u32 v3, v1, 4, v3')
    for k in range(3):
        g(f's_add_u32 s{S_T0}, s{S_T2}, {k}')
        g(f's_lshr_b32 s{S_T1}, s{S_T0}, 2')
        g(f's_lshl_b32 s{S_T1}, s{S_T1}, 11')
        g(f's_and_b32 s{S_T0}, s{S_T0}, 3')
        g(f's_lshl_b32 s{S_T0}, s{S_T0}, 8')
        g(f's_add_u32 s{S_T0}, s{S_T0}, s{S_T1}')
        g(f'v_add_u32 v{156+k}, s{S_T0}, v3')
    g(f's_mov_b64 {pr(S_B2)}, {pr(S_WS)}')
    add_base_imm(g, S_B2, WS_L1)
    D = 124
    loads = [f'global_load_dwordx4 {vr(D+4*k)}, v{156+k}, {pr(S_B2)} sc1' for k in range(3)]
    poll_retry(g, 'h', loads, D, 5, 6, sleep=g.o.get('hsleep', 8), st_first=5, st_cnt=1)
    g.stamp(6)
    N = 12
    T = D + 12
    U = D + 24
    for j in range(N): g(f'v_mov_b32 v{T+j}, v{D+j}')
    g.nop(2)
    for j in range(N): g(f'v_permlane16_swap_b32 v{D+j}, v{T+j}')
    g.nop(1)
    for j in range(N): g(f'v_add_f32 v{D+j}, v{D+j}, v{T+j}')
    for j in range(N): bf16_round(g, D+j, D+j)
    for j in range(N): g(f'v_mov_b32 v{U+j}, v{D+j}')
    g.nop(2)
    for j in range(N): g(f'v_permlane32_swap_b32 v{D+j}, v{U+j}')
    g.nop(1)
    for j in range(N): g(f'v_mul_f32 v{T+j}, s{S_L2E}, v{D+j}')
    for j in range(N): g(f'v_exp_f32 v{T+j}, -v{T+j}')
    g.nop(1)
    for j in range(N): g(f'v_add_f32 v{T+j}, 1.0, v{T+j}')
    for j in range(N): g(f'v_rcp_f32 v{T+j}, v{T+j}')
    g.nop(1)
    for j in range(N): g(f'v_mul_f32 v{T+j}, v{D+j}, v{T+j}')
    for j in range(N): bf16_round(g, T+j, T+j)
    for j in range(N): g(f'v_mul_f32 v{T+j}, v{T+j}, v{U+j}')
    for j in range(N): g(f'v_cvt_pk_bf16_f32 v{T+j}, v{T+j}, v{T+j}')
    g('v_lshrrev_b32 v3, 3, v1')
    g('v_mul_u32_u24 v3, 96, v3')
    g('v_and_b32 v4, 7, v1')
    g('v_add_u32 v3, v3, v4')
    g('v_lshlrev_b32 v3, 2, v3')
    for k in range(3):
        for r in range(4):
            g(f'ds_write_b32 v3, v{T+4*k+r} offset:{L_HD + 128*k + 32*r}')
    g('s_waitcnt lgkmcnt(0)')
    g('v_mov_b32 v4, 0')
    g('v_mov_b32 v5, 1')
    g(f'ds_write_b32 v4, v5 offset:{C_HF}')

def l2_lane_offsets(g):
    g('v_mul_u32_u24 v5, 2304, v2')
    g('v_lshl_add_u32 v5, v1, 4, v5')
    g('v_add_u32 v6, 256, v5')
    g('v_add_u32 v7, 1024, v5')
    g('v_cmp_gt_u32_e32 vcc, 8, v1')
    g.nop(2)
    g('v_cndmask_b32_e32 v6, v7, v6, vcc')

def l2_issue(g, W0, ng, base=None, a0=5, a1=6, last_adv=False):
    pol = g.pol
    base = S_B if base is None else base
    for i in range(ng):
        g(f'global_load_dwordx4 {vr(W0+12*i)}, v{a0}, {pr(base)} {pol}')
        g(f'global_load_dwordx4 {vr(W0+12*i+4)}, v{a1}, {pr(base)} {pol}')
        g(f'global_load_dwordx4 {vr(W0+12*i+8)}, v{a0}, {pr(base)} offset:1280 {pol}')
        if i < ng-1 or last_adv: add_base_imm(g, base, 9216)

def l2_compute(g, W0, ng, P, AC, BE0, waitvm=None):
    for i in range(ng):
        g(f's_waitcnt lgkmcnt({ng-1-i})')
        be = BE0 + 8*(i & 1); bo = be + 4
        for r in range(4): g(f'v_and_b32 v{be+r}, v{P+2*i}, v{MK+r}')
        for r in range(4): g(f'v_and_b32 v{bo+r}, v{P+2*i+1}, v{MK+r}')
        if waitvm is not None:
            g(f's_waitcnt vmcnt({waitvm(i)})')
        c = (lambda k: '0') if i == 0 else (lambda k: vr(AC+k))
        if waitvm is None: g.nop(1) if False else None
        g(f'v_mfma_f32_16x16x32_bf16 {vr(AC)}, {vr(W0+12*i)}, {vr(be)}, {c(0)}')
        g(f'v_mfma_f32_16x16x32_bf16 {vr(AC+4)}, {vr(W0+12*i+4)}, {vr(be)}, {c(4)}')
        g(f'v_mfma_f32_16x16x32_bf16 {vr(AC+8)}, {vr(W0+12*i+4)}, {vr(bo)}, {c(8)}')
        g(f'v_mfma_f32_16x16x32_bf16 {vr(AC+12)}, {vr(W0+12*i+8)}, {vr(bo)}, {c(12)}')

S_PB = 80
def l2_prep(g, nprod, prod_sreg, ws_const, VI, VP):
    fs = nprod*128
    g(f's_mul_i32 s{S_T0}, s{S_WAVE}, 3072')
    g(f'v_lshlrev_b32 v{VI}, 4, v0')
    g(f'v_add_u32 v{VI}, s{S_T0}, v{VI}')
    g(f's_mul_i32 s{S_T0}, s{S_WAVE}, 24')
    g(f'v_add_u32 v{VP}, s{S_T0}, v0')
    g(f'v_lshlrev_b32 v{VI+1}, 4, v{VP}')
    g(f'v_lshrrev_b32 v6, 4, v{VP}')
    g(f'v_bfe_u32 v7, v{VP}, 3, 1')
    g('v_mad_u32_u24 v6, v7, 18, v6')
    g(f'v_mul_u32_u24 v6, {fs}, v6')
    g(f'v_and_b32 v7, 7, v{VP}')
    g(f'v_lshl_add_u32 v{VP}, v7, 4, v6')
    g(f's_mul_i32 s{S_T0}, s{S_CB}, {6*fs}')
    g(f's_lshl_b32 s{S_T1}, s{prod_sreg}, 7')
    g(f's_add_u32 s{S_T0}, s{S_T0}, s{S_T1}')
    set_ws_base(g, S_PB, S_T0, ws_const)

def l2_finish(g, AC, VI, VP, R0, st_a=None, st_b=None):
    g('v_cmp_gt_u32_e32 vcc, 2, v2')
    g('v_mov_b32 v12, 0')
    g('v_mov_b32 v13, 1')
    g.nop(5)
    g(f'ds_write_b128 v{VI}, {vr(AC)} offset:{L_Y}')
    for r in range(4):
        g(f'v_cndmask_b32_e32 v{AC+4+r}, v{AC+8+r}, v{AC+4+r}, vcc')
    g(f'ds_write_b128 v{VI}, {vr(AC+12)} offset:{L_Y + 2048}')
    g(f'ds_write_b128 v{VI}, {vr(AC+4)} offset:{L_Y + 1024}')
    if st_a is not None: g.stamp(st_a)
    g(f's_mov_b64 {pr(S_SV)}, exec')
    g('s_waitcnt lgkmcnt(0)')
    g('s_mov_b64 exec, 1')
    g(f'ds_add_u32 v12, v13 offset:{C_YCNT}')
    g(f's_mov_b64 exec, 0xffffff')
    lp = g.u('ys'); ok = g.u('yok')
    g(f's_mov_b32 s{S_CNT}, {SPIN_LIMIT*8}')
    g.label(lp)
    g(f'ds_read_b32 v13, v12 offset:{C_YCNT}')
    g('s_waitcnt lgkmcnt(0)')
    g(f'v_readfirstlane_b32 s{S_T0}, v13')
    g(f's_cmp_ge_u32 s{S_T0}, 4')
    g(f's_cbranch_scc1 {ok}')
    g(f's_sub_u32 s{S_CNT}, s{S_CNT}, 1')
    g(f's_cbranch_scc0 {lp}')
    g.label(ok)
    for w in range(4):
        g(f'ds_read_b128 {vr(R0+8*w)}, v{VI+1} offset:{L_Y + 3072*w}')
        g(f'ds_read_b128 {vr(R0+4+8*w)}, v{VI+1} offset:{L_Y + 3072*w + 6*256}')
    for stage in range(4):
        g(f's_waitcnt lgkmcnt({6-2*stage})')
        for r in range(4):
            if stage == 0:
                g(f'v_add_f32 v{R0+r}, v{R0+r}, v{R0+4+r}')
            else:
                g(f'v_add_f32 v{R0+8*stage+r}, v{R0+8*stage+r}, v{R0+8*stage+4+r}')
                g(f'v_add_f32 v{R0+r}, v{R0+r}, v{R0+8*stage+r}')
    tag_insert(g, R0+4, R0, VTAG)
    g(f'global_store_dwordx4 v{VP}, {vr(R0+4)}, {pr(S_PB)} sc1')
    g(f's_mov_b64 exec, {pr(S_SV)}')
    if st_b is not None: g.stamp(st_b)

def reduce_hh(g, d, t):
    g.nop(2)
    for r in range(4):
        g(f'v_add_f32_dpp v{d+r}, v{d+r}, v{d+r} row_ror:8 row_mask:0xf bank_mask:0xf')
    for r in range(4): g(f'v_mov_b32 v{t+r}, v{d+r}')
    g.nop(2)
    for r in range(4): g(f'v_permlane16_swap_b32 v{d+r}, v{t+r}')
    g.nop(1)
    for r in range(4): g(f'v_add_f32 v{d+r}, v{d+r}, v{t+r}')
    for r in range(4): g(f'v_mov_b32 v{t+r}, v{d+r}')
    g.nop(2)
    for r in range(4): g(f'v_permlane32_swap_b32 v{d+r}, v{t+r}')
    g.nop(1)
    for r in range(4): g(f'v_add_f32 v{d+r}, v{d+r}, v{t+r}')

def emit_final_old(g):
    g('v_and_b32 v3, 7, v0')
    g('v_lshlrev_b32 v3, 1, v3')
    g(f's_lshl_b32 s{S_T0}, s{S_F}, 6')
    g(f'v_add_u32 v3, s{S_T0}, v3')
    for r in range(4):
        g(f'global_load_ushort v{124+r}, v3, {pr(S_X)} offset:{16*r}')
    g('v_lshlrev_b32 v4, 4, v0')
    g('v_add_u32 v5, 4096, v4')
    g(f's_mul_i32 s{S_T0}, s{S_F}, 6144')
    set_ws_base(g, S_B, S_T0, WS_F)
    g(f's_lshl_b32 s{S_T0}, s{S_F}, 11')
    set_ws_base(g, S_B2, S_T0, WS_B)
    lds_wait_ge(g, 'own', C_ACNT, 8, 12, sleep=8)
    g.stamp(5)
    D = 16
    loads = [f'global_load_dwordx4 {vr(D+4*k)}, v{4 if k < 4 else 5}, {pr(S_B)} offset:{1024*(k%4)} sc1' for k in range(6)]
    if 'fin' in g.o.get('nopoll', ()): g.o['finpipe'] = 0
    if not g.o.get('finpipe'):
        loads += [f'global_load_dwordx4 {vr(D+24+4*k)}, v4, {pr(S_B2)} offset:{1024*k} sc1' for k in range(2)]
        poll_retry(g, 'fin', loads, D, 13, 15, sleep=0, st_cnt=1)
    else:
        poll_retry(g, 'fin', loads, D, 13, 15, sleep=2)
        g.stamp(4)
        for k in range(1, 6):
            for r in range(4): g(f'v_add_f32 v{D+r}, v{D+r}, v{D+4*k+r}')
        reduce_hh(g, D, 96)
        for r in range(4): bf16_round(g, D+r, D+r)
        for r in range(4): g(f'v_lshlrev_b32 v{124+r}, 16, v{124+r}')
        NS = g.o.get('finpipe')
        SETS = [64 + 8*j for j in range(NS)]
        def iss(j):
            for k in range(2):
                g(f'global_load_dwordx4 {vr(SETS[j]+4*k)}, v4, {pr(S_B2)} offset:{1024*k} sc1')
        lp = g.u('fp_lp'); done = g.u('fp_done')
        oks = [g.u('fp_ok') for _ in range(NS)]
        g(f's_mov_b32 s{S_CNT}, {SPIN_LIMIT}')
        for j in range(NS-1): iss(j)
        g.label(lp)
        for j in range(NS):
            iss((j + NS - 1) % NS)
            g(f's_waitcnt vmcnt({2*(NS-1)})')
            tag_check(g, SETS[j], 13, 15, True)
            tag_check(g, SETS[j]+4, 13, 15, False)
            g(f's_cmp_eq_u64 {pr(S_OK)}, -1')
            g(f's_cbranch_scc1 {oks[j]}')
        g(f's_sub_u32 s{S_CNT}, s{S_CNT}, 1')
        g(f's_cbranch_scc0 {lp}')
        for j in range(NS):
            g.label(oks[j])
            for r in range(4): g(f'v_add_f32 v{D+24+r}, v{SETS[j]+r}, v{SETS[j]+4+r}')
            if j < NS-1: g(f's_branch {done}')
        g.label(done)
    g.stamp(6)
    FF = D; AT = D + 24
    if not g.o.get('finpipe'):
        for k in range(1, 6):
            for r in range(4): g(f'v_add_f32 v{FF+r}, v{FF+r}, v{FF+4*k+r}')
        for r in range(4): g(f'v_add_f32 v{AT+r}, v{AT+r}, v{AT+4+r}')
    if g.o.get('finpipe'):
        reduce_hh(g, AT, 96)
        for r in range(4): bf16_round(g, AT+r, AT+r)
    else:
        vals = [FF+r for r in range(4)] + [AT+r for r in range(4)]
        T = 96
        g.nop(2)
        for v in vals: g(f'v_add_f32_dpp v{v}, v{v}, v{v} row_ror:8 row_mask:0xf bank_mask:0xf')
        for j, v in enumerate(vals): g(f'v_mov_b32 v{T+j}, v{v}')
        g.nop(2)
        for j, v in enumerate(vals): g(f'v_permlane16_swap_b32 v{v}, v{T+j}')
        g.nop(1)
        for j, v in enumerate(vals): g(f'v_add_f32 v{v}, v{v}, v{T+j}')
        for j, v in enumerate(vals): g(f'v_mov_b32 v{T+j}, v{v}')
        g.nop(2)
        for j, v in enumerate(vals): g(f'v_permlane32_swap_b32 v{v}, v{T+j}')
        g.nop(1)
        for j, v in enumerate(vals): g(f'v_add_f32 v{v}, v{v}, v{T+j}')
        for v in vals: bf16_round(g, v, v)
        for r in range(4): g(f'v_lshlrev_b32 v{124+r}, 16, v{124+r}')
    for r in range(4): g(f'v_add_f32 v{AT+r}, v{124+r}, v{AT+r}')
    for r in range(4): bf16_round(g, AT+r, AT+r)
    for r in range(4): g(f'v_add_f32 v{AT+r}, v{AT+r}, v{FF+r}')
    g(f'v_cvt_pk_bf16_f32 v28, v{AT}, v{AT+1}')
    g(f'v_cvt_pk_bf16_f32 v29, v{AT+2}, v{AT+3}')
    g('v_cmp_gt_u32_e32 vcc, 8, v0')
    g(f's_and_saveexec_b64 {pr(S_SV)}, vcc')
    g(f'global_store_short v3, v28, {pr(S_OUT)}')
    g(f'global_store_short_d16_hi v3, v28, {pr(S_OUT)} offset:16')
    g(f'global_store_short v3, v29, {pr(S_OUT)} offset:32')
    g(f'global_store_short_d16_hi v3, v29, {pr(S_OUT)} offset:48')
    g(f's_cmp_lg_u32 s{S_F}, 0')
    g('s_cbranch_scc1 L_nobump')
    g('s_mov_b64 exec, 1')
    g('v_mov_b32 v4, 0')
    g(f'ds_read_b32 v5, v4 offset:{C_RAWG}')
    g('s_waitcnt lgkmcnt(0)')
    g(f'global_store_dword v4, v5, {pr(S_WS)} sc1')
    g.label('L_nobump')
    g(f's_mov_b64 exec, {pr(S_SV)}')

C_FFF = 40
L_FF = L_QL + 0
def emit_ffgather(g):
    g('v_lshlrev_b32 v4, 4, v0')
    g('v_add_u32 v5, 4096, v4')
    g(f's_mul_i32 s{S_T0}, s{S_F}, 6144')
    set_ws_base(g, S_B, S_T0, WS_F)
    lds_wait_ge(g, 'own', C_ACNT, g.o.get('ffown', 4), 12, sleep=8)
    g.stamp(5)
    D = 16
    loads = [f'global_load_dwordx4 {vr(D+4*k)}, v{4 if k < 4 else 5}, {pr(S_B)} offset:{1024*(k%4)} sc1' for k in range(6)]
    poll_retry(g, 'fin', loads, D, 13, 15, sleep=g.o.get('ffsleep', 1), st_cnt=1)
    g.stamp(4)
    for k in range(1, 6):
        for r in range(4): g(f'v_add_f32 v{D+r}, v{D+r}, v{D+4*k+r}')
    reduce_hh(g, D, 96)
    for r in range(4): bf16_round(g, D+r, D+r)
    g('v_lshlrev_b32 v4, 4, v0')
    g('v_cmp_gt_u32_e32 vcc, 8, v0')
    g(f's_and_saveexec_b64 {pr(S_SV)}, vcc')
    g(f'ds_write_b128 v4, {vr(D)} offset:{L_Y}')
    g('s_waitcnt lgkmcnt(0)')
    g('v_mov_b32 v12, 0'); g('v_mov_b32 v13, 1')
    g(f'ds_write_b32 v12, v13 offset:{C_FFF}')
    g(f's_mov_b64 exec, {pr(S_SV)}')
    g.stamp(6)

def emit_final(g):
    g('v_and_b32 v3, 7, v0')
    g('v_lshlrev_b32 v3, 1, v3')
    g(f's_lshl_b32 s{S_T0}, s{S_F}, 6')
    g(f'v_add_u32 v3, s{S_T0}, v3')
    for r in range(4):
        g(f'global_load_ushort v{124+r}, v3, {pr(S_X)} offset:{16*r}')
    g('v_lshlrev_b32 v4, 4, v0')
    g(f's_lshl_b32 s{S_T0}, s{S_F}, 11')
    set_ws_base(g, S_B2, S_T0, WS_B)
    g('v_mov_b32 v12, 0')
    g(f'ds_read_b32 v30, v12 offset:{C_RAWG}')
    lds_wait_ge(g, 'own', C_ACNT, 8, 12, sleep=8)
    g.stamp(5)
    g('s_waitcnt vmcnt(0)')
    for r in range(4): g(f'v_lshlrev_b32 v{124+r}, 16, v{124+r}')
    AT = 40
    NS = g.o.get('finpipe') or 3
    SETS = [64 + 8*j for j in range(NS)]
    def iss(j):
        for k in range(2):
            g(f'global_load_dwordx4 {vr(SETS[j]+4*k)}, v4, {pr(S_B2)} offset:{1024*k} sc1')
    if 'fin' not in g.o.get('nopoll', ()):
        lp = g.u('fp_lp'); done = g.u('fp_done')
        oks = [g.u('fp_ok') for _ in range(NS)]
        g(f's_mov_b32 s{S_CNT}, {SPIN_LIMIT}')
        for j in range(NS-1): iss(j)
        g.label(lp)
        for j in range(NS):
            iss((j + NS - 1) % NS)
            g(f's_waitcnt vmcnt({2*(NS-1)})')
            tag_check(g, SETS[j], 13, 15, True)
            tag_check(g, SETS[j]+4, 13, 15, False)
            g(f's_cmp_eq_u64 {pr(S_OK)}, -1')
            g(f's_cbranch_scc1 {oks[j]}')
        g(f's_sub_u32 s{S_CNT}, s{S_CNT}, 1')
        g(f's_cbranch_scc0 {lp}')
        for j in range(NS):
            g.label(oks[j])
            for r in range(4): g(f'v_add_f32 v{AT+r}, v{SETS[j]+r}, v{SETS[j]+4+r}')
            if j < NS-1: g(f's_branch {done}')
        g.label(done)
    g.stamp(6)
    reduce_hh(g, AT, 48)
    for r in range(4): bf16_round(g, AT+r, AT+r)
    for r in range(4): g(f'v_add_f32 v{AT+r}, v{124+r}, v{AT+r}')
    for r in range(4): bf16_round(g, AT+r, AT+r)
    if 'fin' not in g.o.get('nopoll', ()):
        lds_wait_ge(g, 'fff', C_FFF, 1, 12, sleep=0)
    g('v_lshlrev_b32 v4, 4, v0')
    g(f'ds_read_b128 {vr(52)}, v4 offset:{L_Y}')
    g('v_cmp_gt_u32_e32 vcc, 8, v0')
    g('s_waitcnt lgkmcnt(0)')
    for r in range(4): g(f'v_add_f32 v{AT+r}, v{AT+r}, v{52+r}')
    g(f'v_cvt_pk_bf16_f32 v28, v{AT}, v{AT+1}')
    g(f'v_cvt_pk_bf16_f32 v29, v{AT+2}, v{AT+3}')
    g(f's_and_saveexec_b64 {pr(S_SV)}, vcc')
    g(f'global_store_short v3, v28, {pr(S_OUT)}')
    g(f'global_store_short_d16_hi v3, v28, {pr(S_OUT)} offset:16')
    g(f'global_store_short v3, v29, {pr(S_OUT)} offset:32')
    g(f'global_store_short_d16_hi v3, v29, {pr(S_OUT)} offset:48')
    g(f's_cmp_lg_u32 s{S_F}, 0')
    g('s_cbranch_scc1 L_nobump')
    g('s_mov_b64 exec, 1')
    g('v_mov_b32 v4, 0')
    g(f'global_store_dword v4, v30, {pr(S_WS)} sc1')
    g.label('L_nobump')
    g(f's_mov_b64 exec, {pr(S_SV)}')

def emit_roleO(g):
    S_HO = S_ID
    g(f's_sub_u32 s{S_CB}, s{S_SLOT}, 26')
    g(f's_cmp_ge_u32 s{S_CB}, 3')
    g(f's_cselect_b32 s{S_T0}, 1, 0')
    g(f's_mul_i32 s{S_T1}, s{S_T0}, 3')
    g(f's_sub_u32 s{S_CB}, s{S_CB}, s{S_T1}')
    g(f's_lshl_b32 s{S_HO}, s{S_XCD}, 1')
    g(f's_add_u32 s{S_HO}, s{S_HO}, s{S_T0}')
    NE = g.o.get('oearly', 0)
    W0 = 16
    g(f's_mul_i32 s{S_T0}, s{S_HO}, {256*1152}')
    g(f's_mul_i32 s{S_T1}, s{S_CB}, 384')
    g(f's_add_u32 s{S_T0}, s{S_T0}, s{S_T1}')
    g(f's_mul_i32 s{S_T1}, s{S_WAVE}, {64*1152}')
    g(f's_add_u32 s{S_T0}, s{S_T0}, s{S_T1}')
    g(f's_mov_b64 s[82:83], {pr(S_WO)}')
    add_base(g, 82, S_T0)
    l2_lane_offsets(g)
    g('v_mov_b32 v165, v5'); g('v_mov_b32 v166, v6')
    l2_issue(g, W0, NE, base=82, a0=165, a1=166, last_adv=True)
    g('s_barrier')
    g.stamp(2)
    g(f's_cmp_lg_u32 s{S_WAVE}, 1')
    g('s_cbranch_scc1 L_Onoq')
    emit_tag_publish(g)
    emit_qpoll(g, g.o.get('qdelayO', 0))
    g.label('L_Onoq')
    get_tag_from_lds(g, 12, VTAG)
    make_masks(g, MK, 1, 112)
    if g.o.get('nolate', 0) > 1:
        g('s_branch L_end_stamp')
    if NE < 8:
        if not g.o.get('early'):
            lds_wait_ge(g, 'viss', C_VISS, g.o.get('ogate', 8), 12, sleep=4)
        if g.o.get('ogg'):
            global_gate(g, g.o.get('ogg'))
        osp = g.o.get('osplit', 0)
        if g.o.get('gg2') and g.o.get('ogg2'):
            if osp: l2_issue(g, W0 + 12*NE, osp - NE, base=82, a0=165, a1=166, last_adv=True)
            lds_wait_ge(g, 'viss8', C_VISS, 8, 12, sleep=4)
            count_in(g)
            go_wait(g)
            l2_issue(g, W0 + 12*max(osp,NE), 8 - max(osp,NE), base=82, a0=165, a1=166)
        elif osp:
            l2_issue(g, W0 + 12*NE, osp - NE, base=82, a0=165, a1=166, last_adv=True)
            lds_wait_ge(g, 'viss8', C_VISS, 8, 12, sleep=4)
            l2_issue(g, W0 + 12*osp, 8 - osp, base=82, a0=165, a1=166)
            if g.o.get('gg2'): count_in(g)
        else:
            l2_issue(g, W0 + 12*NE, 8 - NE, base=82, a0=165, a1=166)
        if g.o.get('ggate'): count_in(g)
    else:
        lds_wait_ge(g, 'own', C_ACNT, 8, 12, sleep=4)
    if not g.o.get('stO'): g.stamp(3)
    g(f's_lshl_b32 s{S_T0}, s{S_HO}, 14')
    g(f's_and_b32 s{S_T1}, s{S_WAVE}, 1')
    g(f's_lshl_b32 s{S_T1}, s{S_T1}, 9')
    g(f's_add_u32 s{S_T0}, s{S_T0}, s{S_T1}')
    g(f's_lshr_b32 s{S_T1}, s{S_WAVE}, 1')
    g(f's_lshl_b32 s{S_T1}, s{S_T1}, 7')
    g(f's_add_u32 s{S_T0}, s{S_T0}, s{S_T1}')
    set_ws_base(g, S_B, S_T0, WS_A)
    g(f's_lshl_b32 s{S_T0}, s{S_HO}, 11')
    g(f's_lshr_b32 s{S_T1}, s{S_WAVE}, 1')
    g(f's_lshl_b32 s{S_T1}, s{S_T1}, 4')
    g(f's_add_u32 s{S_T0}, s{S_T0}, s{S_T1}')
    set_ws_base(g, S_B2, S_T0, WS_S)
    g('v_lshrrev_b32 v3, 5, v0')
    g('v_bfe_u32 v5, v0, 3, 1')
    g('v_lshl_add_u32 v4, v3, 1, v5')
    g('v_lshlrev_b32 v3, 12, v4')
    g('v_lshlrev_b32 v4, 9, v4')
    g('v_bfe_u32 v5, v0, 4, 1')
    g('v_lshl_add_u32 v3, v5, 8, v3')
    g('v_and_b32 v5, 7, v0')
    g('v_lshl_add_u32 v3, v5, 4, v3')
    g('v_lshrrev_b32 v160, 5, v0')
    g('v_lshlrev_b32 v160, 6, v160')
    g('v_bfe_u32 v5, v0, 4, 1')
    g('v_lshl_add_u32 v160, v5, 5, v160')
    g('v_and_b32 v5, 7, v0')
    g('v_add_u32 v160, v160, v5')
    g(f's_lshl_b32 s{S_T0}, s{S_WAVE}, 7')
    g(f'v_add_u32 v160, s{S_T0}, v160')
    g('v_lshlrev_b32 v160, 2, v160')
    g('v_lshrrev_b32 v161, 3, v1')
    g('v_lshlrev_b32 v161, 6, v161')
    g('v_lshl_add_u32 v161, v2, 1, v161')
    g(f'v_add_u32 v161, s{S_T0}, v161')
    g('v_lshlrev_b32 v161, 2, v161')
    l2_prep(g, 16, S_HO, WS_B, 162, 164)
    D = 112
    if g.o.get('fastA'):
        g(f'v_add_u32 v156, {WS_ALT}, v3')
        g(f'v_add_u32 v157, {WS_ALT}, v4')
        g('v_mov_b32 v158, v3'); g('v_mov_b32 v159, v4')
        def pre():
            g(f's_and_b32 s{S_T0}, s{S_CNT}, 3')
            g(f's_cmp_eq_u32 s{S_T0}, 1')
            g(f's_cselect_b64 vcc, -1, 0')
            g('v_cndmask_b32_e32 v3, v156, v158, vcc')
            g('v_cndmask_b32_e32 v4, v157, v159, vcc')
    else:
        pre = None
    if g.stamps and g.o.get('stO'):
        pre0 = pre
        def pre():
            g('s_waitcnt lgkmcnt(0)')
            g('s_mov_b64 s[68:69], s[70:71]')
            g('s_mov_b64 s[70:71], s[74:75]')
            g('s_memrealtime s[74:75]')
            if pre0: pre0()
    loads = [f'global_load_dwordx4 {vr(D+4*i)}, v3, {pr(S_B)} offset:{1024*i} sc1' for i in range(4)]
    loads += [f'global_load_dwordx4 {vr(D+16+4*i)}, v4, {pr(S_B2)} offset:{128*i} sc1' for i in range(4)]
    if g.o.get('warm') and g.o.get('fastA'):
        for i in range(4): g(f'global_load_dwordx4 {vr(D+4*i)}, v156, {pr(S_B)} offset:{1024*i} sc1')
        for i in range(4): g(f'global_load_dwordx4 {vr(D+16+4*i)}, v157, {pr(S_B2)} offset:{128*i} sc1')
    if NE < 8 and g.o.get('ogate', 8) < 8 and g.o.get('ownwait', 8):
        lds_wait_ge(g, 'own', C_ACNT, g.o.get('ownwait', 8), 12, sleep=4)
    poll_retry(g, 'ha', loads, D, 5, 6, sleep=0, st_cnt=1, pre_iter=pre)
    g.stamp(4)
    ST = D + 16
    M = 144; LL = 145; O = 148
    for i in range(4):
        g(f'v_and_b32 v{ST+4*i}, 0xffffff00, v{ST+4*i}')
    g(f'v_max_f32 v{M}, v{ST}, v{ST+4}')
    g(f'v_max3_f32 v{M}, v{M}, v{ST+8}, v{ST+12}')
    g.nop(2)
    g(f'v_max_f32_dpp v{M}, v{M}, v{M} row_ror:8 row_mask:0xf bank_mask:0xf')
    for i in range(4): g(f'v_sub_f32 v{ST+4*i}, v{ST+4*i}, v{M}')
    for i in range(4): g(f'v_exp_f32 v{ST+4*i}, v{ST+4*i}')
    g.nop(1)
    g(f'v_mul_f32 v{LL}, v{ST}, v{ST+1}')
    for r in range(4): g(f'v_mul_f32 v{O+r}, v{ST}, v{D+r}')
    for i in range(1, 4):
        g(f'v_fmac_f32 v{LL}, v{ST+4*i}, v{ST+4*i+1}')
        for r in range(4): g(f'v_fmac_f32 v{O+r}, v{ST+4*i}, v{D+4*i+r}')
    g.nop(1)
    g(f'v_add_f32_dpp v{LL}, v{LL}, v{LL} row_ror:8 row_mask:0xf bank_mask:0xf')
    for r in range(4):
        g(f'v_add_f32_dpp v{O+r}, v{O+r}, v{O+r} row_ror:8 row_mask:0xf bank_mask:0xf')
    g(f'v_rcp_f32 v{LL}, v{LL}')
    g.nop(1)
    for r in range(4): g(f'v_mul_f32 v{O+r}, v{O+r}, v{LL}')
    for r in range(4): g(f'v_cvt_pk_bf16_f32 v{O+r}, v{O+r}, v{O+r}')
    for r in range(4): g(f'ds_write_b32 v160, v{O+r} offset:{L_OD + 32*r}')
    g('s_waitcnt lgkmcnt(0)')
    P = 112
    for i in range(8):
        g(f'ds_read_b64 v[{P+2*i}:{P+2*i+1}], v161 offset:{L_OD + 32*i}')
    l2_compute(g, W0, 8, P, 128, 144)
    l2_finish(g, 128, 162, 164, 16, st_a=None if g.o.get('stO') else 5, st_b=6)

def emit_qk_softmax(g, extra):
    K0, V0 = 16, 80
    QF = 144
    g('v_lshrrev_b32 v4, 3, v1')
    g('v_lshlrev_b32 v4, 8, v4')
    g('v_lshl_add_u32 v4, v2, 4, v4')
    for s in range(4):
        g(f'ds_read_b128 {vr(QF+4*s)}, v4 offset:{L_QL + 64*s}')
    SCR = [8, 12, 160, 164]
    for T in range(4):
        for r in range(4): g(f'v_mov_b32 v{SCR[T]+r}, 0')
    g('s_waitcnt lgkmcnt(0)')
    for T in range(4):
        g(f's_waitcnt vmcnt({12 - 4*T + extra})')
        for s in range(4):
            g(f'v_mfma_f32_16x16x32_bf16 {vr(SCR[T])}, {vr(K0+16*T+4*s)}, {vr(QF+4*s)}, {vr(SCR[T])}')
    g.nop(8)
    g.stamp(4)
    sc = [SCR[T]+r for T in range(4) for r in range(4)]
    TP = 144
    for k in range(0, 16, 2):
        g(f'v_cvt_pk_bf16_f32 v{TP+k//2}, v{sc[k]}, v{sc[k+1]}')
    for k in range(0, 16, 2):
        g(f'v_lshlrev_b32 v{sc[k]}, 16, v{TP+k//2}')
        g(f'v_and_b32 v{sc[k+1]}, 0xffff0000, v{TP+k//2}')
    for k in range(16):
        g(f'v_mul_f32 v{sc[k]}, 0x{SCALE:08x}, v{sc[k]}')
    for k in range(0, 16, 2):
        g(f'v_cvt_pk_bf16_f32 v{TP+k//2}, v{sc[k]}, v{sc[k+1]}')
    for k in range(0, 16, 2):
        g(f'v_lshlrev_b32 v{sc[k]}, 16, v{TP+k//2}')
        g(f'v_and_b32 v{sc[k+1]}, 0xffff0000, v{TP+k//2}')
    M = 152; T1 = 153; LS = 154
    g(f'v_max3_f32 v{M}, v{sc[0]}, v{sc[1]}, v{sc[2]}')
    for k in range(3, 15, 2):
        g(f'v_max3_f32 v{M}, v{M}, v{sc[k]}, v{sc[k+1]}')
    g(f'v_max_f32 v{M}, v{M}, v{sc[15]}')
    xor16_op(g, 'v_max_f32', M, T1)
    xor32_op(g, 'v_max_f32', M, T1)
    g(f'v_mul_f32 v{M}, s{S_L2E}, v{M}')
    for k in range(16):
        g(f'v_fma_f32 v{sc[k]}, v{sc[k]}, s{S_L2E}, -v{M}')
    for k in range(16):
        g(f'v_exp_f32 v{sc[k]}, v{sc[k]}')
    g.nop(1)
    g(f'v_add_f32 v{LS}, v{sc[0]}, v{sc[1]}')
    for k in range(2, 16):
        g(f'v_add_f32 v{LS}, v{LS}, v{sc[k]}')
    for k in range(16):
        g(f'v_cvt_pk_bf16_f32 v{sc[k]}, v{sc[k]}, v{sc[k]}')
    xor16_op(g, 'v_add_f32', LS, T1)
    xor32_op(g, 'v_add_f32', LS, T1)
    AMK = 156
    make_masks(g, AMK, 1, 4)
    for T in range(4):
        for i in range(4):
            for r in range(4):
                g(f'v_and_b32 v{K0+16*T+4*i+r}, v{sc[4*T+i]}, v{AMK+r}')
    AC = 144
    for r in range(8): g(f'v_mov_b32 v{AC+r}, 0')
    g.stamp(5)

def issue_v(g, V0):
    pol = g.pol
    for T in range(4):
        for i in range(4):
            g(f'global_load_dwordx4 {vr(V0+16*T+4*i)}, v3, {pr(S_V)} offset:{256*i} {pol}')
        if T < 3: add_base_imm(g, S_V, 4096)
    g('v_mov_b32 v4, 0')
    g('v_mov_b32 v5, 1')
    g(f's_mov_b64 {pr(S_SV)}, exec')
    g('s_mov_b64 exec, 1')
    g(f'ds_add_u32 v4, v5 offset:{C_VISS}')
    g(f's_mov_b64 exec, {pr(S_SV)}')

def emit_attn(g):
    pol = g.pol
    K0, V0 = 16, 80
    QF = 144
    g('s_waitcnt lgkmcnt(0)')
    g(f's_lshl_b32 s{S_T0}, s{S_BB}, 4')
    g(f's_add_u32 s{S_T0}, s{S_T0}, s{S_HKV}')
    g(f's_lshl_b32 s{S_T0}, s{S_T0}, 20')
    il = g.o.get('kvil', True)
    g(f's_lshl_b32 s{S_T1}, s{S_SP}, {14 if il else 17}')
    g(f's_add_u32 s{S_T0}, s{S_T0}, s{S_T1}')
    g(f's_sub_u32 s{S_T1}, s{S_WAVE}, 4')
    g(f's_lshl_b32 s{S_T1}, s{S_T1}, {17 if il else 14}')
    g(f's_add_u32 s{S_T0}, s{S_T0}, s{S_T1}')
    add_base(g, S_K, S_T0)
    add_base(g, S_V, S_T0)
    g('v_lshlrev_b32 v4, 8, v1')
    g('v_lshl_add_u32 v4, v2, 4, v4')
    g('v_lshlrev_b32 v3, 10, v2')
    g('v_lshl_add_u32 v3, v1, 4, v3')
    if g.o.get('tlb'):
        g('v_mov_b32 v6, 0')
        g(f'global_load_dword v16, v6, {pr(S_K)} nt')
        g(f'global_load_dword v80, v6, {pr(S_V)} nt')
    g('s_barrier')
    g.stamp(1)
    g('s_setprio 2')
    for T in range(4):
        for s in range(4):
            g(f'global_load_dwordx4 {vr(K0+16*T+4*s)}, v4, {pr(S_K)} offset:{64*s} {pol}')
        if T < 3: add_base_imm(g, S_K, 4096)
    g('s_setprio 1')
    g(f's_cmp_ge_u32 s{S_WAVE}, 8')
    g('s_cbranch_scc1 L_grp2')
    issue_v(g, V0)
    g.stamp(2)
    lds_wait_ge(g, 'qf', C_QF, 1, 4, sleep=4)
    g.stamp(3)
    emit_qk_softmax(g, 16)
    g('s_branch L_pv')
    g.label('L_grp2')
    g.stamp(2)
    lds_wait_ge(g, 'qf', C_QF, 1, 4, sleep=4)
    g.stamp(3)
    emit_qk_softmax(g, 0)
    issue_v(g, V0)
    g.label('L_pv')
    M = 152; LS = 154; AC = 144
    for T in range(4):
        g(f's_waitcnt vmcnt({12 - 4*T})')
        for i in range(4):
            a = AC + 4*(i & 1)
            g(f'v_mfma_f32_16x16x32_bf16 {vr(a)}, {vr(V0+16*T+4*i)}, {vr(K0+16*T+4*i)}, {vr(a)}')
    g.stamp(6)
    g(f's_sub_u32 s{S_T2}, s{S_WAVE}, 4')
    g(f's_lshl_b32 s{S_T0}, s{S_T2}, 10')
    g('v_lshlrev_b32 v4, 4, v0')
    g(f'v_add_u32 v4, s{S_T0}, v4')
    g('v_lshrrev_b32 v5, 3, v1')
    g('v_lshlrev_b32 v5, 3, v5')
    g(f's_lshl_b32 s{S_T0}, s{S_T2}, 4')
    g(f'v_add_u32 v5, s{S_T0}, v5')
    g(f'v_mov_b32 v6, v{M}')
    g(f'v_mov_b32 v7, v{LS}')
    g(f'ds_write_b64 v5, v[6:7] offset:{L_AS}')
    g.nop(2)
    for r in range(4): g(f'v_add_f32 v{AC+r}, v{AC+r}, v{AC+4+r}')
    g(f'ds_write_b128 v4, {vr(AC)} offset:{L_AO}')
    arrive_last(g, C_ACNT, 7, 'L_end_stamp')
    g(f'ds_read_b32 v14, v12 offset:{C_TAG}')
    g('v_lshlrev_b32 v4, 4, v0')
    g('v_lshrrev_b32 v5, 3, v1')
    g('v_lshlrev_b32 v5, 3, v5')
    ST = 16; OV = 32
    for w in range(8):
        g(f'ds_read_b64 v[{ST+2*w}:{ST+2*w+1}], v5 offset:{L_AS + 16*w}')
    for w in range(8):
        g(f'ds_read_b128 {vr(OV+4*w)}, v4 offset:{L_AO + 1024*w}')
    g(f's_lshl_b32 s{S_T0}, s{S_HKV}, 1')
    g(f's_add_u32 s{S_T0}, s{S_T0}, s{S_BB}')
    g(f's_lshl_b32 s{S_T0}, s{S_T0}, 3')
    g(f's_add_u32 s{S_T0}, s{S_T0}, s{S_SP}')
    g(f's_lshl_b32 s{S_T1}, s{S_T0}, 10')
    set_ws_base(g, S_B, S_T1, WS_A)
    g(f's_lshl_b32 s{S_T1}, s{S_T0}, 7')
    set_ws_base(g, S_B2, S_T1, WS_S)
    g('s_waitcnt lgkmcnt(8)')
    g(f'v_max3_f32 v8, v{ST}, v{ST+2}, v{ST+4}')
    g(f'v_max3_f32 v8, v8, v{ST+6}, v{ST+8}')
    g(f'v_max3_f32 v8, v8, v{ST+10}, v{ST+12}')
    g(f'v_max_f32 v8, v8, v{ST+14}')
    g('v_and_b32 v8, 0xffffff00, v8')
    for w in range(8): g(f'v_sub_f32 v{ST+2*w}, v{ST+2*w}, v8')
    for w in range(8): g(f'v_exp_f32 v{ST+2*w}, v{ST+2*w}')
    g.nop(1)
    g(f'v_mul_f32 v9, v{ST}, v{ST+1}')
    for w in range(1, 8): g(f'v_fmac_f32 v9, v{ST+2*w}, v{ST+2*w+1}')
    g('v_mov_b32 v10, 0'); g('v_mov_b32 v11, 0')
    tag_insert(g, 72, 8, 14)
    g('s_waitcnt lgkmcnt(0)')
    for r in range(4):
        g(f'v_mul_f32 v{64+r}, v{ST}, v{OV+r}')
    for w in range(1, 8):
        for r in range(4):
            g(f'v_fmac_f32 v{64+r}, v{ST+2*w}, v{OV+4*w+r}')
    tag_insert(g, 68, 64, 14)
    if g.o.get('fastA'):
        g(f'v_add_u32 v6, {WS_ALT}, v4')
        g(f'global_store_dwordx4 v6, {vr(68)}, {pr(S_B)}')
    g(f'global_store_dwordx4 v4, {vr(68)}, {pr(S_B)} sc1')
    g('v_lshlrev_b32 v5, 1, v5')
    g('v_and_b32 v6, 0x37, v0')
    g('v_cmp_eq_u32_e32 vcc, 0, v6')
    g(f's_and_saveexec_b64 {pr(S_SV)}, vcc')
    if g.o.get('fastA'):
        g(f'v_add_u32 v6, {WS_ALT}, v5')
        g(f'global_store_dwordx4 v6, {vr(72)}, {pr(S_B2)}')
    g(f'global_store_dwordx4 v5, {vr(72)}, {pr(S_B2)} sc1')
    g(f's_mov_b64 exec, {pr(S_SV)}')

def generate(stamps=False, pol='nt', opts=None):
    g = G(stamps, pol, opts)
    g('s_cmp_ge_u32 s2, 256')
    g('s_cbranch_scc1 L_end')
    g.stamp(0)
    g('s_load_dwordx16 s[4:19], s[0:1], 0')
    g('s_load_dwordx8 s[20:27], s[0:1], 64')
    g('v_lshrrev_b32 v3, 6, v0')
    g('v_and_b32 v0, 63, v0')
    g(f'v_readfirstlane_b32 s{S_WAVE}, v3')
    g(f'v_and_b32 v{V_N}, 15, v0')
    g(f'v_lshrrev_b32 v{V_G}, 4, v0')
    g(f's_and_b32 s{S_XCD}, s2, 7')
    g(f's_lshr_b32 s{S_SLOT}, s2, 3')
    g(f's_lshr_b32 s{S_HKV}, s{S_SLOT}, 4')
    g(f's_lshl_b32 s{S_T0}, s{S_XCD}, 1')
    g(f's_add_u32 s{S_HKV}, s{S_HKV}, s{S_T0}')
    g(f's_bfe_u32 s{S_BB}, s{S_SLOT}, 0x10003')
    g(f's_and_b32 s{S_SP}, s{S_SLOT}, 7')
    g(f's_mov_b32 s{S_L2E}, 0x{LOG2E:08x}')
    if g.o.get('skew'):
        g(f's_mul_i32 s91, s{S_XCD}, 13')
        g(f's_mov_b32 s92, s91')
        g(f's_mov_b32 s90, 13')
        g(f's_sub_u32 s{S_T0}, s{S_XCD}, 4')
        g(f's_mul_i32 s{S_T1}, s{S_T0}, 23')
        g(f's_add_u32 s{S_T1}, s{S_T1}, 52')
        g(f's_mul_i32 s{S_T2}, s{S_T0}, 3')
        g(f's_add_u32 s{S_T2}, s{S_T2}, 52')
        g(f's_cmp_ge_u32 s{S_XCD}, 4')
        g(f's_cselect_b32 s90, 23, s90')
        g(f's_cselect_b32 s91, s{S_T1}, s91')
        g(f's_cselect_b32 s92, s{S_T2}, s92')
    else:
        g(f's_mov_b32 s90, 18')
        g(f's_mul_i32 s91, s{S_XCD}, 18')
    tag_consts(g)
    g(f's_cmp_ge_u32 s{S_WAVE}, 4')
    g('s_cbranch_scc1 L_attn')
    g('s_setprio 3')
    g(f's_cmp_lg_u32 s{S_WAVE}, 0')
    g('s_cbranch_scc1 L_noinit')
    g('v_lshlrev_b32 v3, 4, v0')
    for r in range(4, 8): g(f'v_mov_b32 v{r}, 0')
    g('ds_write_b128 v3, v[4:7]')
    g.label('L_noinit')
    g('s_waitcnt lgkmcnt(0)')
    g.stamp(1)
    g(f's_cmp_lg_u32 s{S_WAVE}, 1')
    g('s_cbranch_scc1 L_nogen')
    g(f's_load_dword s{S_TAG}, {pr(S_WS)}, {WS_GEN}')
    g.label('L_nogen')
    g(f's_cmp_ge_u32 s{S_SLOT}, 26')
    g('s_cbranch_scc1 L_roleO')
    XR = 124; XF = 136
    g('v_lshrrev_b32 v3, 5, v0')
    g('v_and_b32 v4, 31, v0')
    g('v_mul_u32_u24 v3, 1152, v3')
    g('v_mad_u32_u24 v3, v4, 36, v3')
    xp = g.o.get('xpol', '')
    g('v_mov_b32 v15, v3')
    def xloads():
        g(f'global_load_dwordx4 {vr(XR)}, v15, {pr(S_X)} {xp}')
        g(f'global_load_dwordx4 {vr(XR+4)}, v15, {pr(S_X)} offset:16 {xp}')
        g(f'global_load_dword v{XR+8}, v15, {pr(S_X)} offset:32 {xp}')
    XPOS = g.o.get('xpos', 0)
    if XPOS == 0: xloads()
    S_HALF = S_RS
    S_A, S_R = S_T2, S_T3
    if g.o.get('remap', True):
        g(f's_cmp_ge_u32 s{S_SLOT}, s90')
        g('s_cbranch_scc1 L_tileLight')
        g(f's_add_u32 s{S_ID}, s91, s{S_SLOT}')
        g(f's_and_b32 s{S_HALF}, s{S_ID}, 1')
        g(f's_lshr_b32 s{S_A}, s{S_ID}, 2')
        g(f's_and_b32 s{S_R}, s{S_ID}, 2')
        g(f's_sub_u32 s{S_T0}, s{S_ID}, 104')
        g(f's_lshr_b32 s{S_T0}, s{S_T0}, 1')
        g(f's_add_u32 s{S_T0}, s{S_T0}, 6')
        g(f's_cmp_ge_u32 s{S_ID}, 104')
        g(f's_cselect_b32 s{S_A}, s{S_T0}, s{S_A}')
        g(f's_cselect_b32 s{S_R}, 3, s{S_R}')
        g('s_branch L_tileCT')
        g.label('L_tileLight')
        if g.o.get('skew'):
            g(f's_sub_u32 s{S_T0}, s{S_SLOT}, s90')
            g(f's_add_u32 s{S_T0}, s{S_T0}, s92')
        else:
            g(f's_sub_u32 s{S_T0}, s{S_SLOT}, 18')
            g(f's_lshl_b32 s{S_T0}, s{S_T0}, 3')
            g(f's_add_u32 s{S_T0}, s{S_T0}, s{S_XCD}')
        g(f's_mov_b32 s{S_F}, s{S_T0}')
        g(f's_and_b32 s{S_HALF}, s{S_T0}, 1')
        g(f's_lshr_b32 s{S_A}, s{S_T0}, 1')
        g(f's_sub_u32 s{S_T1}, s{S_A}, 26')
        g(f's_cmp_ge_u32 s{S_T0}, 52')
        g(f's_cselect_b32 s{S_A}, s{S_T1}, s{S_A}')
        g(f's_cselect_b32 s{S_R}, 3, 1')
        g.label('L_tileCT')
        g(f's_lshl_b32 s{S_T0}, s{S_A}, 2')
        g(f's_add_u32 s{S_T0}, s{S_T0}, s{S_R}')
    else:
        g(f's_cmp_ge_u32 s{S_SLOT}, 18')
        g('s_cbranch_scc1 L_tileLight')
        g(f's_mul_i32 s{S_ID}, s{S_XCD}, 18')
        g(f's_add_u32 s{S_ID}, s{S_ID}, s{S_SLOT}')
        g(f's_and_b32 s{S_HALF}, s{S_ID}, 1')
        g(f's_lshr_b32 s{S_T0}, s{S_ID}, 1')
        g('s_branch L_tileCT')
        g.label('L_tileLight')
        g(f's_sub_u32 s{S_T1}, s{S_SLOT}, 18')
        g(f's_and_b32 s{S_HALF}, s{S_T1}, 1')
        g(f's_lshl_b32 s{S_T0}, s{S_XCD}, 3')
        g(f's_add_u32 s{S_T0}, s{S_T0}, s{S_T1}')
        g(f's_lshr_b32 s{S_T0}, s{S_T0}, 1')
        g(f's_add_u32 s{S_T0}, s{S_T0}, 72')
        g.label('L_tileCT')
    g(f's_lshl_b32 s{S_TILE}, s{S_T0}, 1')
    g(f's_add_u32 s{S_TILE}, s{S_TILE}, s{S_HALF}')
    g(f's_mov_b64 {pr(S_B)}, {pr(S_GATE)}')
    g(f's_mov_b32 s{S_STR}, 9216')
    g(f's_mov_b32 s{S_T1}, 0')
    g(f's_cmp_ge_u32 s{S_T0}, 36')
    g(f's_cselect_b64 {pr(S_B)}, {pr(S_UP)}, {pr(S_B)}')
    g(f's_cselect_b32 s{S_T1}, 36, s{S_T1}')
    g(f's_cmp_ge_u32 s{S_T0}, 72')
    g(f's_cselect_b64 {pr(S_B)}, {pr(S_WQ)}, {pr(S_B)}')
    g(f's_cselect_b32 s{S_T1}, 72, s{S_T1}')
    g(f's_cselect_b32 s{S_STR}, 8192, s{S_STR}')
    g(f's_sub_u32 s{S_T0}, s{S_T0}, s{S_T1}')
    g(f's_mul_i32 s{S_T1}, s{S_HALF}, 288')
    g(f's_mul_i32 s{S_T2}, s{S_WAVE}, 72')
    g(f's_add_u32 s{S_RS}, s{S_T1}, s{S_T2}')
    g(f's_mul_i32 s{S_T1}, s{S_RS}, s{S_STR}')
    g(f's_lshl_b32 s{S_T0}, s{S_T0}, 8')
    g(f's_add_u32 s{S_T1}, s{S_T1}, s{S_T0}')
    add_base(g, S_B, S_T1)
    g(f'v_mul_lo_u32 v3, v{V_G}, s{S_STR}')
    g(f'v_lshl_add_u32 v3, v{V_N}, 4, v3')
    g(f's_lshl_b32 s{S_STR}, s{S_STR}, 2')
    W0 = 16
    for i in range(18):
        g(f'global_load_dwordx4 {vr(W0+4*i)}, v3, {pr(S_B)} {pol}')
        if i < 17: add_base(g, S_B, S_STR)
        if XPOS == i + 1: xloads()
    g('s_barrier')
    g.stamp(2)
    g(f's_cmp_lg_u32 s{S_WAVE}, 1')
    g('s_cbranch_scc1 L_notag1')
    emit_tag_publish(g)
    g.label('L_notag1')
    g(f's_waitcnt vmcnt({18 - XPOS})')
    emit_layernorm(g, XR, XF)
    make_masks(g, MK, V_N, 12)
    g(f'v_lshrrev_b32 v3, 3, v{V_N}')
    g('v_mul_u32_u24 v3, 576, v3')
    g(f'v_add_u32 v3, v3, v{V_G}')
    g(f'v_add_u32 v3, s{S_RS}, v3')
    g('v_lshlrev_b32 v3, 2, v3')
    XV = 136
    for i in range(18):
        g(f'ds_read_b32 v{XV+i}, v3 offset:{L_XD + 16*i}')
    ACC = 156; BT = 160
    for r in range(4): g(f'v_mov_b32 v{ACC+r}, 0')
    g('s_waitcnt lgkmcnt(0)')
    for i in range(18):
        b = BT + 4*(i & 1)
        for r in range(4):
            g(f'v_and_b32 v{b+r}, v{XV+i}, v{MK+r}')
        g(f's_waitcnt vmcnt({17 - i})')
        g.nop(1)
        g(f'v_mfma_f32_16x16x32_bf16 {vr(ACC)}, {vr(W0+4*i)}, {vr(b)}, {vr(ACC)}')
    g.stamp(3)
    get_tag_from_lds(g, 12, VTAG)
    g(f's_lshl_b32 s{S_T0}, s{S_WAVE}, 10')
    g('v_lshlrev_b32 v3, 4, v0')
    g(f'v_add_u32 v4, s{S_T0}, v3')
    g(f'ds_write_b128 v4, {vr(ACC)} offset:{L_Y1}')
    arrive_last(g, C_L1CNT, 3, 'L_l1pubdone')
    g('v_lshlrev_b32 v3, 4, v0')
    for w in range(4):
        g(f'ds_read_b128 {vr(124+4*w)}, v3 offset:{L_Y1 + 1024*w}')
    g(f's_lshl_b32 s{S_T0}, s{S_TILE}, 10')
    set_ws_base(g, S_B, S_T0, WS_L1)
    g('s_waitcnt lgkmcnt(0)')
    for j in range(1, 4):
        for r in range(4): g(f'v_add_f32 v{124+r}, v{124+r}, v{124+4*j+r}')
    tag_insert(g, 160, 124, VTAG)
    pub_store(g, 'v3', vr(160), pr(S_B), True)
    g.label('L_l1pubdone')
    g.stamp(4)
    g(f's_cmp_lg_u32 s{S_WAVE}, 1')
    g('s_cbranch_scc1 L_noq1')
    emit_qpoll(g, g.o.get('qdelay', 0))
    g.label('L_noq1')
    g(f's_cmp_ge_u32 s{S_SLOT}, s90')
    g('s_cbranch_scc1 L_roleQtail')
    S_RB = S_TILE
    g(f's_add_u32 s{S_T2}, s91, s{S_SLOT}')
    g(f's_mul_i32 s{S_RB}, s{S_T2}, 171')
    g(f's_lshr_b32 s{S_RB}, s{S_RB}, 9')
    g(f's_mul_i32 s{S_T1}, s{S_RB}, 3')
    g(f's_sub_u32 s{S_CB}, s{S_T2}, s{S_T1}')
    g(f's_cmp_lg_u32 s{S_WAVE}, 0')
    g('s_cbranch_scc1 L_noh')
    emit_hpoll(g, S_RB)
    g.label('L_noh')
    g(f's_mul_i32 s{S_T0}, s{S_RB}, 96')
    g(f's_mul_i32 s{S_T1}, s{S_WAVE}, 24')
    g(f's_add_u32 s{S_T0}, s{S_T0}, s{S_T1}')
    g(f's_mul_i32 s{S_T0}, s{S_T0}, 1152')
    g(f's_mul_i32 s{S_T1}, s{S_CB}, 384')
    g(f's_add_u32 s{S_T0}, s{S_T0}, s{S_T1}')
    g(f's_mov_b64 {pr(S_B)}, {pr(S_DOWN)}')
    add_base(g, S_B, S_T0)
    l2_lane_offsets(g)
    WD = 88
    if not g.o.get('early'):
        if g.o.get('fgateA'):
            lds_wait_ge(g, 'facnt', C_ACNT, g.o.get('fgateA'), 12, sleep=2)
        else:
            lds_wait_ge(g, 'viss', C_VISS, g.o.get('fgate', 8), 12, sleep=4)
    if g.o.get('nolate'):
        g('s_branch L_end_stamp')
    if g.o.get('ggate'):
        count_in(g)
        global_gate(g, g.o.get('ggate'))
    if g.o.get('gg2'):
        count_in(g)
        go_wait(g)
    l2_issue(g, WD, 3)
    l2_prep(g, 48, S_RB, WS_F, 60, 62)
    lds_wait_ge(g, 'hf', C_HF, 1, 12)
    g(f'v_lshrrev_b32 v3, 3, v{V_N}')
    g('v_mul_u32_u24 v3, 96, v3')
    g(f'v_lshl_add_u32 v3, v{V_G}, 1, v3')
    g(f's_mul_i32 s{S_T0}, s{S_WAVE}, 24')
    g(f'v_add_u32 v3, s{S_T0}, v3')
    g('v_lshlrev_b32 v3, 2, v3')
    P = 16
    for i in range(3):
        g(f'ds_read_b64 v[{P+2*i}:{P+2*i+1}], v3 offset:{L_HD + 32*i}')
    l2_compute(g, WD, 3, P, 24, 40, waitvm=lambda i: 6 - 3*i)
    l2_finish(g, 24, 60, 62, 64)
    g('s_branch L_end_stamp')
    g.label('L_roleQtail')
    if g.o.get('ggate') or g.o.get('gg2'): count_in(g)
    if g.o.get('gg2'):
        sk = g.u('nodet')
        g(f's_cmp_lg_u32 s{S_WAVE}, 1')
        g(f's_cbranch_scc1 {sk}')
        g(f's_cmp_lg_u32 s{S_F}, 51')
        g(f's_cbranch_scc1 {sk}')
        detector(g, g.o.get('gg2'))
        g.label(sk)
    g(f's_and_b32 s{S_T0}, s{S_WAVE}, 1')
    if g.o.get('fin2'):
        g(f's_cmp_lg_u32 s{S_T0}, 0')
    else:
        g(f's_cmp_lg_u32 s{S_WAVE}, 0')
    g('s_cbranch_scc1 L_end_stamp')
    if not g.o.get('remap', True):
        g(f's_sub_u32 s{S_F}, s{S_SLOT}, 18')
        g(f's_lshl_b32 s{S_F}, s{S_F}, 3')
        g(f's_add_u32 s{S_F}, s{S_F}, s{S_XCD}')
    g(f's_cmp_ge_u32 s{S_F}, 36')
    g('s_cbranch_scc1 L_end_stamp')
    if g.o.get('fin2'):
        g(f's_cmp_eq_u32 s{S_WAVE}, 2')
        g('s_cbranch_scc1 L_ffg')
        emit_final(g)
        g('s_branch L_end_stamp')
        g.label('L_ffg')
        emit_ffgather(g)
    else:
        emit_final_old(g)
    g('s_branch L_end_stamp')
    g.label('L_roleO')
    emit_roleO(g)
    g('s_branch L_end_stamp')
    g.label('L_attn')
    emit_attn(g)
    g.label('L_end_stamp')
    if stamps:
        g.stamp(7)
        g('s_waitcnt lgkmcnt(0) vmcnt(0)')
        g('s_mov_b64 exec, -1')
        g('v_cmp_eq_u32_e32 vcc, 0, v0')
        g(f's_and_saveexec_b64 {pr(S_SV)}, vcc')
        g('s_cbranch_execz L_end')
        g(f's_mul_i32 s{S_T0}, s2, 12')
        g(f's_add_u32 s{S_T0}, s{S_T0}, s{S_WAVE}')
        g(f's_lshl_b32 s{S_T0}, s{S_T0}, 6')
        g(f's_add_u32 s{S_T0}, s{S_T0}, 0x{WS_STAMP:x}')
        add_base(g, S_WS, S_T0)
        g('v_mov_b32 v1, 0')
        for j in range(8):
            g(f'v_mov_b32 v2, s{64+2*j}'); g(f'v_mov_b32 v3, s{65+2*j}')
            g(f'global_store_dwordx2 v1, v[2:3], {pr(S_WS)} offset:{8*j}')
            g.nop(2)
    g.label('L_end')
    g('s_endpgm')
    return g

if __name__ == '__main__':
    ap = argparse.ArgumentParser()
    ap.add_argument('-o', default='k.s')
    ap.add_argument('--stamps', action='store_true')
    ap.add_argument('--pol', default='nt')
    ap.add_argument('--nopoll', default='')
    ap.add_argument('--nopub', action='store_true')
    ap.add_argument('--early', action='store_true')
    ap.add_argument('--dbl', action='store_true')
    ap.add_argument('--noremap', action='store_true')
    ap.add_argument('--fastA', action='store_true')
    ap.add_argument('--xpos', type=int, default=0)
    ap.add_argument('--xpol', default='')
    ap.add_argument('--tlb', action='store_true')
    ap.add_argument('--gg2', type=int, default=0)
    ap.add_argument('--ogg2', action='store_true')
    ap.add_argument('--nolate', type=int, default=0)
    ap.add_argument('--fin2', action='store_true')
    ap.add_argument('--osplit', type=int, default=0)
    ap.add_argument('--skew', action='store_true')
    ap.add_argument('--qprobe', type=int, default=0)
    ap.add_argument('--fgateA', type=int, default=0)
    ap.add_argument('--ggate', type=int, default=0)
    ap.add_argument('--ogg', type=int, default=0)
    ap.add_argument('--warm', action='store_true')
    ap.add_argument('--ownwait', type=int, default=8)
    ap.add_argument('--ogate', type=int, default=8)
    ap.add_argument('--fgate', type=int, default=8)
    ap.add_argument('--oearly', type=int, default=0)
    ap.add_argument('--stO', action='store_true')
    ap.add_argument('--finpipe', type=int, default=0)
    ap.add_argument('--nokvil', action='store_true')
    ap.add_argument('--qdelay', type=int, default=0)
    ap.add_argument('--qdelayO', type=int, default=0)
    a = ap.parse_args()
    opts = {}
    if a.nopoll: opts['nopoll'] = a.nopoll.split(',')
    if a.early: opts['early'] = True
    opts['remap'] = not a.noremap; opts['fastA'] = a.fastA; opts['xpos'] = a.xpos; opts['xpol'] = a.xpol; opts['tlb'] = a.tlb; opts['gg2'] = a.gg2; opts['ogg2'] = a.ogg2; opts['nolate'] = a.nolate; opts['fin2'] = a.fin2; opts['osplit'] = a.osplit; opts['skew'] = a.skew; opts['qprobe'] = a.qprobe; opts['fgateA'] = a.fgateA; opts['ggate'] = a.ggate; opts['ogg'] = a.ogg; opts['warm'] = a.warm; opts['ownwait'] = a.ownwait; opts['ogate'] = a.ogate; opts['fgate'] = a.fgate; opts['oearly'] = a.oearly; opts['stO'] = a.stO; opts['finpipe'] = a.finpipe; opts['kvil'] = not a.nokvil
    opts['dbl'] = a.dbl; opts['qdelay'] = a.qdelay; opts['qdelayO'] = a.qdelayO
    pol = a.pol
    g = generate(a.stamps, a.pol, opts)
    if a.nopub:
        g.L = [l for l in g.L if not ('global_store_dwordx4' in l and 'sc1' in l)]
    open(a.o, 'w').write(header(256, 768, LDS_SIZE) + '\n'.join(g.L) + '\n' + footer(168))
    print(a.o, len(g.L), 'lines')
```

```python
import sys, argparse
from genlib import *

V_LANE, V_N, V_G = 0, 1, 2
WS_ALT = 0x300000 - WS_A
MK = 8
VTAG = 14

def arrive_last(g, cnt_off, last_val, skip_label):
    g('s_waitcnt lgkmcnt(0)')
    g('v_mov_b32 v12, 0')
    g('v_mov_b32 v13, 1')
    g(f's_mov_b64 {pr(S_SV)}, exec')
    g('s_mov_b64 exec, 1')
    g(f'ds_add_rtn_u32 v13, v12, v13 offset:{cnt_off}')
    g('s_waitcnt lgkmcnt(0)')
    g(f'v_readfirstlane_b32 s{S_T0}, v13')
    g(f's_mov_b64 exec, {pr(S_SV)}')
    g(f's_cmp_lg_u32 s{S_T0}, {last_val}')
    g(f's_cbranch_scc1 {skip_label}')

def set_ws_base(g, dst, off_sreg, const):
    g(f's_add_u32 s{off_sreg}, s{off_sreg}, {const}')
    g(f's_mov_b64 {pr(dst)}, {pr(S_WS)}')
    add_base(g, dst, off_sreg)

def pub_store(g, addr, data, base, local):
    if local and g.o.get('dbl'):
        g(f'global_store_dwordx4 {addr}, {data}, {base}')
    g(f'global_store_dwordx4 {addr}, {data}, {base} sc1')

def count_in(g):
    sk = g.u('ci')
    g(f's_cmp_lg_u32 s{S_WAVE}, 3')
    g(f's_cbranch_scc1 {sk}')
    lds_wait_ge(g, 'vi8', C_VISS, 8, 12, sleep=4)
    g('v_mov_b32 v12, 0')
    g('v_mov_b32 v13, 1')
    g(f's_mov_b64 {pr(S_SV)}, exec')
    g('s_mov_b64 exec, 1')
    g(f'global_atomic_add v12, v13, {pr(S_DBG)} sc1')
    g(f's_mov_b64 exec, {pr(S_SV)}')
    g.label(sk)

WS_QALT = 0x3A0000 - WS_L1
WS_G = 0x380000
C_GO = 44
def detector(g, thr):
    lp = g.u('dt_lp'); ok = g.u('dt_ok')
    g(f's_mov_b32 s{S_CNT}, {SPIN_LIMIT}')
    g.label(lp)
    g(f's_load_dword s{S_T0}, {pr(S_DBG)}, 0 glc')
    g('s_waitcnt lgkmcnt(0)')
    g(f's_cmp_ge_u32 s{S_T0}, {thr}')
    g(f's_cbranch_scc1 {ok}')
    g(f's_sub_u32 s{S_CNT}, s{S_CNT}, 1')
    g(f's_cbranch_scc1 {ok}')
    g('s_sleep 2')
    g(f's_branch {lp}')
    g.label(ok)
    g('v_lshlrev_b32 v4, 7, v0')
    g(f'v_mov_b32 v5, s{S_TAG}')
    g(f's_mov_b64 {pr(S_B2)}, {pr(S_WS)}')
    add_base_imm(g, S_B2, WS_G)
    g(f's_mov_b64 {pr(S_SV)}, exec')
    g('s_mov_b64 exec, 0xff')
    g(f'global_store_dword v4, v5, {pr(S_B2)} sc1')
    g(f's_mov_b64 exec, {pr(S_SV)}')

def go_wait(g):
    sk = g.u('gw_sk'); lp = g.u('gw_lp'); ok = g.u('gw_ok')
    g(f's_cmp_lg_u32 s{S_WAVE}, 2')
    g(f's_cbranch_scc1 {sk}')
    g(f's_lshl_b32 s{S_T0}, s{S_XCD}, 7')
    set_ws_base(g, S_B2, S_T0, WS_G)
    g(f's_mov_b32 s{S_CNT}, {SPIN_LIMIT}')
    g.label(lp)
    g(f's_load_dword s{S_T0}, {pr(S_B2)}, 0 glc')
    g('s_waitcnt lgkmcnt(0)')
    g(f's_cmp_eq_u32 s{S_T0}, s{S_TAG}')
    g(f's_cbranch_scc1 {ok}')
    g(f's_sub_u32 s{S_CNT}, s{S_CNT}, 1')
    g(f's_cbranch_scc1 {ok}')
    g('s_sleep 6')
    g(f's_branch {lp}')
    g.label(ok)
    g('v_mov_b32 v12, 0'); g('v_mov_b32 v13, 1')
    g(f'ds_write_b32 v12, v13 offset:{C_GO}')
    g.label(sk)
    lds_wait_ge(g, 'go', C_GO, 1, 12, sleep=2)

def global_gate(g, thr):
    lp = g.u('gg_lp'); ok = g.u('gg_ok')
    g(f's_mov_b32 s{S_CNT}, {SPIN_LIMIT}')
    g.label(lp)
    g(f's_load_dword s{S_T0}, {pr(S_DBG)}, 0 glc')
    g('s_waitcnt lgkmcnt(0)')
    g(f's_cmp_ge_u32 s{S_T0}, {thr}')
    g(f's_cbranch_scc1 {ok}')
    g(f's_sub_u32 s{S_CNT}, s{S_CNT}, 1')
    g(f's_cbranch_scc1 {ok}')
    g('s_sleep 2')
    g(f's_branch {lp}')
    g.label(ok)

def emit_tag_publish(g):
    g('s_waitcnt lgkmcnt(0)')
    g(f's_add_u32 s{S_TAG}, s{S_TAG}, 1')
    g(f's_and_b32 s{S_T0}, s{S_TAG}, 0xff')
    g(f's_mul_i32 s{S_T0}, s{S_T0}, 0x01010100')
    g(f's_mov_b32 s{S_T1}, s{S_TAG}')
    g(f's_xor_b32 s{S_TAG}, s{S_TAG}, s{S_T0}')
    g('v_mov_b32 v4, 0')
    g(f'v_mov_b32 v5, s{S_TAG}')
    g(f'v_mov_b32 v6, s{S_T1}')
    g(f'ds_write_b32 v4, v5 offset:{C_TAG}')
    g(f'ds_write_b32 v4, v6 offset:{C_RAWG}')
    g('s_waitcnt lgkmcnt(0)')
    g('v_mov_b32 v5, 1')
    g(f'ds_write_b32 v4, v5 offset:{C_TAGF}')

def emit_layernorm(g, XR, XF):
    for k in range(9):
        g(f'v_lshlrev_b32 v{XF+2*k}, 16, v{XR+k}')
        g(f'v_and_b32 v{XF+2*k+1}, 0xffff0000, v{XR+k}')
    S, T = 154, 155
    g(f'v_add_f32 v{S}, v{XF}, v{XF+1}')
    for k in range(2, 18): g(f'v_add_f32 v{S}, v{S}, v{XF+k}')
    row_reduce(g, 'v_add_f32', S)
    xor16_op(g, 'v_add_f32', S, T)
    g(f'v_mul_f32 v{S}, 0x{INV576:08x}, v{S}')
    Q, D = 156, 157
    g(f'v_sub_f32 v{D}, v{XF}, v{S}')
    g(f'v_mul_f32 v{Q}, v{D}, v{D}')
    for k in range(1, 18):
        g(f'v_sub_f32 v{D}, v{XF+k}, v{S}')
        g(f'v_fmac_f32 v{Q}, v{D}, v{D}')
    row_reduce(g, 'v_add_f32', Q)
    xor16_op(g, 'v_add_f32', Q, T)
    g(f'v_mul_f32 v{Q}, 0x{INV576:08x}, v{Q}')
    bf16_round(g, Q, Q)
    g(f'v_add_f32 v{Q}, 0x{EPS:08x}, v{Q}')
    bf16_round(g, Q, Q)
    g(f'v_sqrt_f32 v{Q}, v{Q}')
    g.nop(1)
    bf16_round(g, Q, Q)
    g(f'v_rcp_f32 v{Q}, v{Q}')
    bf16_round(g, S, S)
    for k in range(18):
        g(f'v_sub_f32 v{XF+k}, v{XF+k}, v{S}')
    for k in range(0, 18, 2):
        g(f'v_cvt_pk_bf16_f32 v{XR+k//2}, v{XF+k}, v{XF+k+1}')
    for k in range(9):
        g(f'v_lshlrev_b32 v{XF+2*k}, 16, v{XR+k}')
        g(f'v_and_b32 v{XF+2*k+1}, 0xffff0000, v{XR+k}')
    for k in range(18):
        g(f'v_mul_f32 v{XF+k}, v{XF+k}, v{Q}')
    for k in range(18):
        g(f'v_cvt_pk_bf16_f32 v{XF+k}, v{XF+k}, v{XF+k}')
    g('v_lshrrev_b32 v3, 5, v0')
    g('v_and_b32 v4, 31, v0')
    g('v_mul_u32_u24 v3, 576, v3')
    g('v_mad_u32_u24 v3, v4, 18, v3')
    g('v_lshlrev_b32 v3, 2, v3')
    for k in range(0, 18, 2):
        g(f'ds_write_b64 v3, v[{XF+k}:{XF+k+1}] offset:{L_XD + 4*k}')
    g('s_waitcnt lgkmcnt(0)')

def emit_qpoll(g, presleep=0):
    g(f's_lshl_b32 s{S_T0}, s{S_HKV}, 12')
    g(f's_lshl_b32 s{S_T1}, s{S_BB}, 7')
    g(f's_add_u32 s{S_T0}, s{S_T0}, s{S_T1}')
    set_ws_base(g, S_B2, S_T0, WS_L1 + 144*1024)
    g('v_lshrrev_b32 v3, 5, v0')
    g('v_lshlrev_b32 v3, 11, v3')
    g('v_bfe_u32 v4, v0, 3, 2')
    g('v_lshl_add_u32 v3, v4, 8, v3')
    g('v_and_b32 v4, 7, v0')
    g('v_lshl_add_u32 v3, v4, 4, v3')
    D = 124
    if g.o.get('qprobe'):
        lp = g.u('qp_lp'); ok = g.u('qp_ok')
        g(f's_and_b32 s{S_T4}, s{S_TAG}, 0xff')
        g(f's_mov_b32 s{S_CNT}, {SPIN_LIMIT}')
        g.label(lp)
        for k in range(4):
            g(f's_load_dword s{84+k}, {pr(S_B2)}, {1024*k} glc')
        g('s_waitcnt lgkmcnt(0)')
        for k in range(4):
            g(f's_and_b32 s{84+k}, s{84+k}, 0xff')
            g(f's_xor_b32 s{84+k}, s{84+k}, s{S_T4}')
        g('s_or_b32 s84, s84, s85')
        g('s_or_b32 s86, s86, s87')
        g('s_or_b32 s84, s84, s86')
        g('s_cmp_eq_u32 s84, 0')
        g(f's_cbranch_scc1 {ok}')
        g(f's_sub_u32 s{S_CNT}, s{S_CNT}, 1')
        g(f's_cbranch_scc1 {ok}')
        g(f's_sleep {g.o.get("qprobe")}')
        g(f's_branch {lp}')
        g.label(ok)
        presleep = 0
    if presleep:
        n = presleep
        while n > 0:
            g(f's_sleep {min(n,127)}'); n -= 127
    pre = None
    if g.o.get('qfast'):
        g(f'v_add_u32 v156, {WS_QALT}, v3')
        g('v_mov_b32 v157, v3')
        def pre():
            g(f's_and_b32 s{S_T0}, s{S_CNT}, 1')
            g(f's_cmp_eq_u32 s{S_T0}, 1')
            g(f's_cselect_b64 vcc, -1, 0')
            g('v_cndmask_b32_e32 v3, v156, v157, vcc')
    loads = [f'global_load_dwordx4 {vr(D+4*h)}, v3, {pr(S_B2)} offset:{1024*h} sc1' for h in range(2)]
    poll_retry(g, 'q', loads, D, 5, 6, sleep=g.o.get('qsleep', 4), st_first=5, st_cnt=1, pre_iter=pre)
    g.stamp(6)
    for r in range(4):
        g(f'v_add_f32 v{D+r}, v{D+r}, v{D+4+r}')
    g(f'v_cvt_pk_bf16_f32 v{D}, v{D}, v{D+1}')
    g(f'v_cvt_pk_bf16_f32 v{D+2}, v{D+2}, v{D+3}')
    g('v_lshrrev_b32 v3, 5, v0')
    g('v_lshlrev_b32 v3, 8, v3')
    g('v_bfe_u32 v4, v0, 3, 2')
    g('v_lshl_add_u32 v3, v4, 6, v3')
    g('v_and_b32 v4, 7, v0')
    g('v_lshl_add_u32 v3, v4, 1, v3')
    g(f'ds_write_b16 v3, v{D} offset:{L_QL}')
    g(f'ds_write_b16_d16_hi v3, v{D} offset:{L_QL+16}')
    g(f'ds_write_b16 v3, v{D+2} offset:{L_QL+32}')
    g(f'ds_write_b16_d16_hi v3, v{D+2} offset:{L_QL+48}')
    g('s_waitcnt lgkmcnt(0)')
    g('v_mov_b32 v4, 0')
    g('v_mov_b32 v5, 1')
    g(f'ds_write_b32 v4, v5 offset:{C_QF}')

def emit_hpoll(g, S_RB):
    set_off = []
    g(f's_mul_i32 s{S_T2}, s{S_RB}, 3')
    g('v_lshrrev_b32 v3, 5, v0')
    g(f'v_mul_u32_u24 v3, {72*1024}, v3')
    g('v_bfe_u32 v4, v0, 4, 1')
    g('v_lshl_add_u32 v3, v4, 10, v3')
    g('v_lshl_add_u32 v3, v1, 4, v3')
    for k in range(3):
        g(f's_add_u32 s{S_T0}, s{S_T2}, {k}')
        g(f's_lshr_b32 s{S_T1}, s{S_T0}, 2')
        g(f's_lshl_b32 s{S_T1}, s{S_T1}, 11')
        g(f's_and_b32 s{S_T0}, s{S_T0}, 3')
        g(f's_lshl_b32 s{S_T0}, s{S_T0}, 8')
        g(f's_add_u32 s{S_T0}, s{S_T0}, s{S_T1}')
        g(f'v_add_u32 v{156+k}, s{S_T0}, v3')
    g(f's_mov_b64 {pr(S_B2)}, {pr(S_WS)}')
    add_base_imm(g, S_B2, WS_L1)
    D = 124
    loads = [f'global_load_dwordx4 {vr(D+4*k)}, v{156+k}, {pr(S_B2)} sc1' for k in range(3)]
    poll_retry(g, 'h', loads, D, 5, 6, sleep=g.o.get('hsleep', 8), st_first=5, st_cnt=1)
    g.stamp(6)
    N = 12
    T = D + 12
    U = D + 24
    for j in range(N): g(f'v_mov_b32 v{T+j}, v{D+j}')
    g.nop(2)
    for j in range(N): g(f'v_permlane16_swap_b32 v{D+j}, v{T+j}')
    g.nop(1)
    for j in range(N): g(f'v_add_f32 v{D+j}, v{D+j}, v{T+j}')
    for j in range(N): bf16_round(g, D+j, D+j)
    for j in range(N): g(f'v_mov_b32 v{U+j}, v{D+j}')
    g.nop(2)
    for j in range(N): g(f'v_permlane32_swap_b32 v{D+j}, v{U+j}')
    g.nop(1)
    for j in range(N): g(f'v_mul_f32 v{T+j}, s{S_L2E}, v{D+j}')
    for j in range(N): g(f'v_exp_f32 v{T+j}, -v{T+j}')
    g.nop(1)
    for j in range(N): g(f'v_add_f32 v{T+j}, 1.0, v{T+j}')
    for j in range(N): g(f'v_rcp_f32 v{T+j}, v{T+j}')
    g.nop(1)
    for j in range(N): g(f'v_mul_f32 v{T+j}, v{D+j}, v{T+j}')
    for j in range(N): bf16_round(g, T+j, T+j)
    for j in range(N): g(f'v_mul_f32 v{T+j}, v{T+j}, v{U+j}')
    for j in range(N): g(f'v_cvt_pk_bf16_f32 v{T+j}, v{T+j}, v{T+j}')
    g('v_lshrrev_b32 v3, 3, v1')
    g('v_mul_u32_u24 v3, 96, v3')
    g('v_and_b32 v4, 7, v1')
    g('v_add_u32 v3, v3, v4')
    g('v_lshlrev_b32 v3, 2, v3')
    for k in range(3):
        for r in range(4):
            g(f'ds_write_b32 v3, v{T+4*k+r} offset:{L_HD + 128*k + 32*r}')
    g('s_waitcnt lgkmcnt(0)')
    g('v_mov_b32 v4, 0')
    g('v_mov_b32 v5, 1')
    g(f'ds_write_b32 v4, v5 offset:{C_HF}')

def l2_lane_offsets(g):
    g('v_mul_u32_u24 v5, 2304, v2')
    g('v_lshl_add_u32 v5, v1, 4, v5')
    g('v_add_u32 v6, 256, v5')
    g('v_add_u32 v7, 1024, v5')
    g('v_cmp_gt_u32_e32 vcc, 8, v1')
    g.nop(2)
    g('v_cndmask_b32_e32 v6, v7, v6, vcc')

def l2_issue(g, W0, ng, base=None, a0=5, a1=6, last_adv=False):
    pol = g.pol
    base = S_B if base is None else base
    for i in range(ng):
        g(f'global_load_dwordx4 {vr(W0+12*i)}, v{a0}, {pr(base)} {pol}')
        g(f'global_load_dwordx4 {vr(W0+12*i+4)}, v{a1}, {pr(base)} {pol}')
        g(f'global_load_dwordx4 {vr(W0+12*i+8)}, v{a0}, {pr(base)} offset:1280 {pol}')
        if i < ng-1 or last_adv: add_base_imm(g, base, 9216)

def l2_compute(g, W0, ng, P, AC, BE0, waitvm=None):
    for i in range(ng):
        g(f's_waitcnt lgkmcnt({ng-1-i})')
        be = BE0 + 8*(i & 1); bo = be + 4
        for r in range(4): g(f'v_and_b32 v{be+r}, v{P+2*i}, v{MK+r}')
        for r in range(4): g(f'v_and_b32 v{bo+r}, v{P+2*i+1}, v{MK+r}')
        if waitvm is not None:
            g(f's_waitcnt vmcnt({waitvm(i)})')
        c = (lambda k: '0') if i == 0 else (lambda k: vr(AC+k))
        if waitvm is None: g.nop(1) if False else None
        g(f'v_mfma_f32_16x16x32_bf16 {vr(AC)}, {vr(W0+12*i)}, {vr(be)}, {c(0)}')
        g(f'v_mfma_f32_16x16x32_bf16 {vr(AC+4)}, {vr(W0+12*i+4)}, {vr(be)}, {c(4)}')
        g(f'v_mfma_f32_16x16x32_bf16 {vr(AC+8)}, {vr(W0+12*i+4)}, {vr(bo)}, {c(8)}')
        g(f'v_mfma_f32_16x16x32_bf16 {vr(AC+12)}, {vr(W0+12*i+8)}, {vr(bo)}, {c(12)}')

S_PB = 80
def l2_prep(g, nprod, prod_sreg, ws_const, VI, VP):
    fs = nprod*128
    g(f's_mul_i32 s{S_T0}, s{S_WAVE}, 3072')
    g(f'v_lshlrev_b32 v{VI}, 4, v0')
    g(f'v_add_u32 v{VI}, s{S_T0}, v{VI}')
    g(f's_mul_i32 s{S_T0}, s{S_WAVE}, 24')
    g(f'v_add_u32 v{VP}, s{S_T0}, v0')
    g(f'v_lshlrev_b32 v{VI+1}, 4, v{VP}')
    g(f'v_lshrrev_b32 v6, 4, v{VP}')
    g(f'v_bfe_u32 v7, v{VP}, 3, 1')
    g('v_mad_u32_u24 v6, v7, 18, v6')
    g(f'v_mul_u32_u24 v6, {fs}, v6')
    g(f'v_and_b32 v7, 7, v{VP}')
    g(f'v_lshl_add_u32 v{VP}, v7, 4, v6')
    g(f's_mul_i32 s{S_T0}, s{S_CB}, {6*fs}')
    g(f's_lshl_b32 s{S_T1}, s{prod_sreg}, 7')
    g(f's_add_u32 s{S_T0}, s{S_T0}, s{S_T1}')
    set_ws_base(g, S_PB, S_T0, ws_const)

def l2_finish(g, AC, VI, VP, R0, st_a=None, st_b=None):
    g('v_cmp_gt_u32_e32 vcc, 2, v2')
    g('v_mov_b32 v12, 0')
    g('v_mov_b32 v13, 1')
    g.nop(5)
    g(f'ds_write_b128 v{VI}, {vr(AC)} offset:{L_Y}')
    for r in range(4):
        g(f'v_cndmask_b32_e32 v{AC+4+r}, v{AC+8+r}, v{AC+4+r}, vcc')
    g(f'ds_write_b128 v{VI}, {vr(AC+12)} offset:{L_Y + 2048}')
    g(f'ds_write_b128 v{VI}, {vr(AC+4)} offset:{L_Y + 1024}')
    if st_a is not None: g.stamp(st_a)
    g(f's_mov_b64 {pr(S_SV)}, exec')
    g('s_waitcnt lgkmcnt(0)')
    g('s_mov_b64 exec, 1')
    g(f'ds_add_u32 v12, v13 offset:{C_YCNT}')
    g(f's_mov_b64 exec, 0xffffff')
    lp = g.u('ys'); ok = g.u('yok')
    g(f's_mov_b32 s{S_CNT}, {SPIN_LIMIT*8}')
    g.label(lp)
    g(f'ds_read_b32 v13, v12 offset:{C_YCNT}')
    g('s_waitcnt lgkmcnt(0)')
    g(f'v_readfirstlane_b32 s{S_T0}, v13')
    g(f's_cmp_ge_u32 s{S_T0}, 4')
    g(f's_cbranch_scc1 {ok}')
    g(f's_sub_u32 s{S_CNT}, s{S_CNT}, 1')
    g(f's_cbranch_scc0 {lp}')
    g.label(ok)
    for w in range(4):
        g(f'ds_read_b128 {vr(R0+8*w)}, v{VI+1} offset:{L_Y + 3072*w}')
        g(f'ds_read_b128 {vr(R0+4+8*w)}, v{VI+1} offset:{L_Y + 3072*w + 6*256}')
    for stage in range(4):
        g(f's_waitcnt lgkmcnt({6-2*stage})')
        for r in range(4):
            if stage == 0:
                g(f'v_add_f32 v{R0+r}, v{R0+r}, v{R0+4+r}')
            else:
                g(f'v_add_f32 v{R0+8*stage+r}, v{R0+8*stage+r}, v{R0+8*stage+4+r}')
                g(f'v_add_f32 v{R0+r}, v{R0+r}, v{R0+8*stage+r}')
    tag_insert(g, R0+4, R0, VTAG)
    g(f'global_store_dwordx4 v{VP}, {vr(R0+4)}, {pr(S_PB)} sc1')
    g(f's_mov_b64 exec, {pr(S_SV)}')
    if st_b is not None: g.stamp(st_b)

def reduce_hh(g, d, t):
    g.nop(2)
    for r in range(4):
        g(f'v_add_f32_dpp v{d+r}, v{d+r}, v{d+r} row_ror:8 row_mask:0xf bank_mask:0xf')
    for r in range(4): g(f'v_mov_b32 v{t+r}, v{d+r}')
    g.nop(2)
    for r in range(4): g(f'v_permlane16_swap_b32 v{d+r}, v{t+r}')
    g.nop(1)
    for r in range(4): g(f'v_add_f32 v{d+r}, v{d+r}, v{t+r}')
    for r in range(4): g(f'v_mov_b32 v{t+r}, v{d+r}')
    g.nop(2)
    for r in range(4): g(f'v_permlane32_swap_b32 v{d+r}, v{t+r}')
    g.nop(1)
    for r in range(4): g(f'v_add_f32 v{d+r}, v{d+r}, v{t+r}')

def emit_final_old(g):
    g('v_and_b32 v3, 7, v0')
    g('v_lshlrev_b32 v3, 1, v3')
    g(f's_lshl_b32 s{S_T0}, s{S_F}, 6')
    g(f'v_add_u32 v3, s{S_T0}, v3')
    for r in range(4):
        g(f'global_load_ushort v{124+r}, v3, {pr(S_X)} offset:{16*r}')
    g('v_lshlrev_b32 v4, 4, v0')
    g('v_add_u32 v5, 4096, v4')
    g(f's_mul_i32 s{S_T0}, s{S_F}, 6144')
    set_ws_base(g, S_B, S_T0, WS_F)
    g(f's_lshl_b32 s{S_T0}, s{S_F}, 11')
    set_ws_base(g, S_B2, S_T0, WS_B)
    lds_wait_ge(g, 'own', C_ACNT, 8, 12, sleep=8)
    g.stamp(5)
    D = 16
    loads = [f'global_load_dwordx4 {vr(D+4*k)}, v{4 if k < 4 else 5}, {pr(S_B)} offset:{1024*(k%4)} sc1' for k in range(6)]
    if 'fin' in g.o.get('nopoll', ()): g.o['finpipe'] = 0
    if not g.o.get('finpipe'):
        loads += [f'global_load_dwordx4 {vr(D+24+4*k)}, v4, {pr(S_B2)} offset:{1024*k} sc1' for k in range(2)]
        poll_retry(g, 'fin', loads, D, 13, 15, sleep=0, st_cnt=1)
    else:
        poll_retry(g, 'fin', loads, D, 13, 15, sleep=2)
        g.stamp(4)
        for k in range(1, 6):
            for r in range(4): g(f'v_add_f32 v{D+r}, v{D+r}, v{D+4*k+r}')
        reduce_hh(g, D, 96)
        for r in range(4): bf16_round(g, D+r, D+r)
        for r in range(4): g(f'v_lshlrev_b32 v{124+r}, 16, v{124+r}')
        NS = g.o.get('finpipe')
        SETS = [64 + 8*j for j in range(NS)]
        def iss(j):
            for k in range(2):
                g(f'global_load_dwordx4 {vr(SETS[j]+4*k)}, v4, {pr(S_B2)} offset:{1024*k} sc1')
        lp = g.u('fp_lp'); done = g.u('fp_done')
        oks = [g.u('fp_ok') for _ in range(NS)]
        g(f's_mov_b32 s{S_CNT}, {SPIN_LIMIT}')
        for j in range(NS-1): iss(j)
        g.label(lp)
        for j in range(NS):
            iss((j + NS - 1) % NS)
            g(f's_waitcnt vmcnt({2*(NS-1)})')
            tag_check(g, SETS[j], 13, 15, True)
            tag_check(g, SETS[j]+4, 13, 15, False)
            g(f's_cmp_eq_u64 {pr(S_OK)}, -1')
            g(f's_cbranch_scc1 {oks[j]}')
        g(f's_sub_u32 s{S_CNT}, s{S_CNT}, 1')
        g(f's_cbranch_scc0 {lp}')
        for j in range(NS):
            g.label(oks[j])
            for r in range(4): g(f'v_add_f32 v{D+24+r}, v{SETS[j]+r}, v{SETS[j]+4+r}')
            if j < NS-1: g(f's_branch {done}')
        g.label(done)
    g.stamp(6)
    FF = D; AT = D + 24
    if not g.o.get('finpipe'):
        for k in range(1, 6):
            for r in range(4): g(f'v_add_f32 v{FF+r}, v{FF+r}, v{FF+4*k+r}')
        for r in range(4): g(f'v_add_f32 v{AT+r}, v{AT+r}, v{AT+4+r}')
    if g.o.get('finpipe'):
        reduce_hh(g, AT, 96)
        for r in range(4): bf16_round(g, AT+r, AT+r)
    else:
        vals = [FF+r for r in range(4)] + [AT+r for r in range(4)]
        T = 96
        g.nop(2)
        for v in vals: g(f'v_add_f32_dpp v{v}, v{v}, v{v} row_ror:8 row_mask:0xf bank_mask:0xf')
        for j, v in enumerate(vals): g(f'v_mov_b32 v{T+j}, v{v}')
        g.nop(2)
        for j, v in enumerate(vals): g(f'v_permlane16_swap_b32 v{v}, v{T+j}')
        g.nop(1)
        for j, v in enumerate(vals): g(f'v_add_f32 v{v}, v{v}, v{T+j}')
        for j, v in enumerate(vals): g(f'v_mov_b32 v{T+j}, v{v}')
        g.nop(2)
        for j, v in enumerate(vals): g(f'v_permlane32_swap_b32 v{v}, v{T+j}')
        g.nop(1)
        for j, v in enumerate(vals): g(f'v_add_f32 v{v}, v{v}, v{T+j}')
        for v in vals: bf16_round(g, v, v)
        for r in range(4): g(f'v_lshlrev_b32 v{124+r}, 16, v{124+r}')
    for r in range(4): g(f'v_add_f32 v{AT+r}, v{124+r}, v{AT+r}')
    for r in range(4): bf16_round(g, AT+r, AT+r)
    for r in range(4): g(f'v_add_f32 v{AT+r}, v{AT+r}, v{FF+r}')
    g(f'v_cvt_pk_bf16_f32 v28, v{AT}, v{AT+1}')
    g(f'v_cvt_pk_bf16_f32 v29, v{AT+2}, v{AT+3}')
    g('v_cmp_gt_u32_e32 vcc, 8, v0')
    g(f's_and_saveexec_b64 {pr(S_SV)}, vcc')
    g(f'global_store_short v3, v28, {pr(S_OUT)}')
    g(f'global_store_short_d16_hi v3, v28, {pr(S_OUT)} offset:16')
    g(f'global_store_short v3, v29, {pr(S_OUT)} offset:32')
    g(f'global_store_short_d16_hi v3, v29, {pr(S_OUT)} offset:48')
    g(f's_cmp_lg_u32 s{S_F}, 0')
    g('s_cbranch_scc1 L_nobump')
    g('s_mov_b64 exec, 1')
    g('v_mov_b32 v4, 0')
    g(f'ds_read_b32 v5, v4 offset:{C_RAWG}')
    g('s_waitcnt lgkmcnt(0)')
    g(f'global_store_dword v4, v5, {pr(S_WS)} sc1')
    g.label('L_nobump')
    g(f's_mov_b64 exec, {pr(S_SV)}')

C_FFF = 40
L_FF = L_QL + 0
def emit_ffgather(g):
    g('v_lshlrev_b32 v4, 4, v0')
    g('v_add_u32 v5, 4096, v4')
    g(f's_mul_i32 s{S_T0}, s{S_F}, 6144')
    set_ws_base(g, S_B, S_T0, WS_F)
    lds_wait_ge(g, 'own', C_ACNT, g.o.get('ffown', 4), 12, sleep=8)
    g.stamp(5)
    D = 16
    loads = [f'global_load_dwordx4 {vr(D+4*k)}, v{4 if k < 4 else 5}, {pr(S_B)} offset:{1024*(k%4)} sc1' for k in range(6)]
    poll_retry(g, 'fin', loads, D, 13, 15, sleep=g.o.get('ffsleep', 1), st_cnt=1)
    g.stamp(4)
    for k in range(1, 6):
        for r in range(4): g(f'v_add_f32 v{D+r}, v{D+r}, v{D+4*k+r}')
    reduce_hh(g, D, 96)
    for r in range(4): bf16_round(g, D+r, D+r)
    g('v_lshlrev_b32 v4, 4, v0')
    g('v_cmp_gt_u32_e32 vcc, 8, v0')
    g(f's_and_saveexec_b64 {pr(S_SV)}, vcc')
    g(f'ds_write_b128 v4, {vr(D)} offset:{L_Y}')
    g('s_waitcnt lgkmcnt(0)')
    g('v_mov_b32 v12, 0'); g('v_mov_b32 v13, 1')
    g(f'ds_write_b32 v12, v13 offset:{C_FFF}')
    g(f's_mov_b64 exec, {pr(S_SV)}')
    g.stamp(6)

def emit_final(g):
    g('v_and_b32 v3, 7, v0')
    g('v_lshlrev_b32 v3, 1, v3')
    g(f's_lshl_b32 s{S_T0}, s{S_F}, 6')
    g(f'v_add_u32 v3, s{S_T0}, v3')
    for r in range(4):
        g(f'global_load_ushort v{124+r}, v3, {pr(S_X)} offset:{16*r}')
    g('v_lshlrev_b32 v4, 4, v0')
    g(f's_lshl_b32 s{S_T0}, s{S_F}, 11')
    set_ws_base(g, S_B2, S_T0, WS_B)
    g('v_mov_b32 v12, 0')
    g(f'ds_read_b32 v30, v12 offset:{C_RAWG}')
    lds_wait_ge(g, 'own', C_ACNT, 8, 12, sleep=8)
    g.stamp(5)
    g('s_waitcnt vmcnt(0)')
    for r in range(4): g(f'v_lshlrev_b32 v{124+r}, 16, v{124+r}')
    AT = 40
    NS = g.o.get('finpipe') or 3
    SETS = [64 + 8*j for j in range(NS)]
    def iss(j):
        for k in range(2):
            g(f'global_load_dwordx4 {vr(SETS[j]+4*k)}, v4, {pr(S_B2)} offset:{1024*k} sc1')
    if 'fin' not in g.o.get('nopoll', ()):
        lp = g.u('fp_lp'); done = g.u('fp_done')
        oks = [g.u('fp_ok') for _ in range(NS)]
        g(f's_mov_b32 s{S_CNT}, {SPIN_LIMIT}')
        for j in range(NS-1): iss(j)
        g.label(lp)
        for j in range(NS):
            iss((j + NS - 1) % NS)
            g(f's_waitcnt vmcnt({2*(NS-1)})')
            tag_check(g, SETS[j], 13, 15, True)
            tag_check(g, SETS[j]+4, 13, 15, False)
            g(f's_cmp_eq_u64 {pr(S_OK)}, -1')
            g(f's_cbranch_scc1 {oks[j]}')
        g(f's_sub_u32 s{S_CNT}, s{S_CNT}, 1')
        g(f's_cbranch_scc0 {lp}')
        for j in range(NS):
            g.label(oks[j])
            for r in range(4): g(f'v_add_f32 v{AT+r}, v{SETS[j]+r}, v{SETS[j]+4+r}')
            if j < NS-1: g(f's_branch {done}')
        g.label(done)
    g.stamp(6)
    reduce_hh(g, AT, 48)
    for r in range(4): bf16_round(g, AT+r, AT+r)
    for r in range(4): g(f'v_add_f32 v{AT+r}, v{124+r}, v{AT+r}')
    for r in range(4): bf16_round(g, AT+r, AT+r)
    if 'fin' not in g.o.get('nopoll', ()):
        lds_wait_ge(g, 'fff', C_FFF, 1, 12, sleep=0)
    g('v_lshlrev_b32 v4, 4, v0')
    g(f'ds_read_b128 {vr(52)}, v4 offset:{L_Y}')
    g('v_cmp_gt_u32_e32 vcc, 8, v0')
    g('s_waitcnt lgkmcnt(0)')
    for r in range(4): g(f'v_add_f32 v{AT+r}, v{AT+r}, v{52+r}')
    g(f'v_cvt_pk_bf16_f32 v28, v{AT}, v{AT+1}')
    g(f'v_cvt_pk_bf16_f32 v29, v{AT+2}, v{AT+3}')
    g(f's_and_saveexec_b64 {pr(S_SV)}, vcc')
    g(f'global_store_short v3, v28, {pr(S_OUT)}')
    g(f'global_store_short_d16_hi v3, v28, {pr(S_OUT)} offset:16')
    g(f'global_store_short v3, v29, {pr(S_OUT)} offset:32')
    g(f'global_store_short_d16_hi v3, v29, {pr(S_OUT)} offset:48')
    g(f's_cmp_lg_u32 s{S_F}, 0')
    g('s_cbranch_scc1 L_nobump')
    g('s_mov_b64 exec, 1')
    g('v_mov_b32 v4, 0')
    g(f'global_store_dword v4, v30, {pr(S_WS)} sc1')
    g.label('L_nobump')
    g(f's_mov_b64 exec, {pr(S_SV)}')

def emit_roleO(g):
    S_HO = S_ID
    g(f's_sub_u32 s{S_CB}, s{S_SLOT}, 26')
    g(f's_cmp_ge_u32 s{S_CB}, 3')
    g(f's_cselect_b32 s{S_T0}, 1, 0')
    g(f's_mul_i32 s{S_T1}, s{S_T0}, 3')
    g(f's_sub_u32 s{S_CB}, s{S_CB}, s{S_T1}')
    g(f's_lshl_b32 s{S_HO}, s{S_XCD}, 1')
    g(f's_add_u32 s{S_HO}, s{S_HO}, s{S_T0}')
    NE = g.o.get('oearly', 0)
    W0 = 16
    g(f's_mul_i32 s{S_T0}, s{S_HO}, {256*1152}')
    g(f's_mul_i32 s{S_T1}, s{S_CB}, 384')
    g(f's_add_u32 s{S_T0}, s{S_T0}, s{S_T1}')
    g(f's_mul_i32 s{S_T1}, s{S_WAVE}, {64*1152}')
    g(f's_add_u32 s{S_T0}, s{S_T0}, s{S_T1}')
    g(f's_mov_b64 s[82:83], {pr(S_WO)}')
    add_base(g, 82, S_T0)
    l2_lane_offsets(g)
    g('v_mov_b32 v165, v5'); g('v_mov_b32 v166, v6')
    l2_issue(g, W0, NE, base=82, a0=165, a1=166, last_adv=True)
    g('s_barrier')
    g.stamp(2)
    g(f's_cmp_lg_u32 s{S_WAVE}, 1')
    g('s_cbranch_scc1 L_Onoq')
    emit_tag_publish(g)
    emit_qpoll(g, g.o.get('qdelayO', 0))
    g.label('L_Onoq')
    get_tag_from_lds(g, 12, VTAG)
    make_masks(g, MK, 1, 112)
    if g.o.get('nolate', 0) > 1:
        g('s_branch L_end_stamp')
    if NE < 8:
        if not g.o.get('early'):
            lds_wait_ge(g, 'viss', C_VISS, g.o.get('ogate', 8), 12, sleep=4)
        if g.o.get('ogg'):
            global_gate(g, g.o.get('ogg'))
        osp = g.o.get('osplit', 0)
        if g.o.get('gg2') and g.o.get('ogg2'):
            if osp: l2_issue(g, W0 + 12*NE, osp - NE, base=82, a0=165, a1=166, last_adv=True)
            lds_wait_ge(g, 'viss8', C_VISS, 8, 12, sleep=4)
            count_in(g)
            go_wait(g)
            l2_issue(g, W0 + 12*max(osp,NE), 8 - max(osp,NE), base=82, a0=165, a1=166)
        elif osp:
            l2_issue(g, W0 + 12*NE, osp - NE, base=82, a0=165, a1=166, last_adv=True)
            lds_wait_ge(g, 'viss8', C_VISS, 8, 12, sleep=4)
            l2_issue(g, W0 + 12*osp, 8 - osp, base=82, a0=165, a1=166)
            if g.o.get('gg2'): count_in(g)
        else:
            l2_issue(g, W0 + 12*NE, 8 - NE, base=82, a0=165, a1=166)
        if g.o.get('ggate'): count_in(g)
    else:
        lds_wait_ge(g, 'own', C_ACNT, 8, 12, sleep=4)
    if not g.o.get('stO'): g.stamp(3)
    g(f's_lshl_b32 s{S_T0}, s{S_HO}, 14')
    g(f's_and_b32 s{S_T1}, s{S_WAVE}, 1')
    g(f's_lshl_b32 s{S_T1}, s{S_T1}, 9')
    g(f's_add_u32 s{S_T0}, s{S_T0}, s{S_T1}')
    g(f's_lshr_b32 s{S_T1}, s{S_WAVE}, 1')
    g(f's_lshl_b32 s{S_T1}, s{S_T1}, 7')
    g(f's_add_u32 s{S_T0}, s{S_T0}, s{S_T1}')
    set_ws_base(g, S_B, S_T0, WS_A)
    g(f's_lshl_b32 s{S_T0}, s{S_HO}, 11')
    g(f's_lshr_b32 s{S_T1}, s{S_WAVE}, 1')
    g(f's_lshl_b32 s{S_T1}, s{S_T1}, 4')
    g(f's_add_u32 s{S_T0}, s{S_T0}, s{S_T1}')
    set_ws_base(g, S_B2, S_T0, WS_S)
    g('v_lshrrev_b32 v3, 5, v0')
    g('v_bfe_u32 v5, v0, 3, 1')
    g('v_lshl_add_u32 v4, v3, 1, v5')
    g('v_lshlrev_b32 v3, 12, v4')
    g('v_lshlrev_b32 v4, 9, v4')
    g('v_bfe_u32 v5, v0, 4, 1')
    g('v_lshl_add_u32 v3, v5, 8, v3')
    g('v_and_b32 v5, 7, v0')
    g('v_lshl_add_u32 v3, v5, 4, v3')
    g('v_lshrrev_b32 v160, 5, v0')
    g('v_lshlrev_b32 v160, 6, v160')
    g('v_bfe_u32 v5, v0, 4, 1')
    g('v_lshl_add_u32 v160, v5, 5, v160')
    g('v_and_b32 v5, 7, v0')
    g('v_add_u32 v160, v160, v5')
    g(f's_lshl_b32 s{S_T0}, s{S_WAVE}, 7')
    g(f'v_add_u32 v160, s{S_T0}, v160')
    g('v_lshlrev_b32 v160, 2, v160')
    g('v_lshrrev_b32 v161, 3, v1')
    g('v_lshlrev_b32 v161, 6, v161')
    g('v_lshl_add_u32 v161, v2, 1, v161')
    g(f'v_add_u32 v161, s{S_T0}, v161')
    g('v_lshlrev_b32 v161, 2, v161')
    l2_prep(g, 16, S_HO, WS_B, 162, 164)
    D = 112
    if g.o.get('fastA'):
        g(f'v_add_u32 v156, {WS_ALT}, v3')
        g(f'v_add_u32 v157, {WS_ALT}, v4')
        g('v_mov_b32 v158, v3'); g('v_mov_b32 v159, v4')
        def pre():
            g(f's_and_b32 s{S_T0}, s{S_CNT}, 3')
            g(f's_cmp_eq_u32 s{S_T0}, 1')
            g(f's_cselect_b64 vcc, -1, 0')
            g('v_cndmask_b32_e32 v3, v156, v158, vcc')
            g('v_cndmask_b32_e32 v4, v157, v159, vcc')
    else:
        pre = None
    if g.stamps and g.o.get('stO'):
        pre0 = pre
        def pre():
            g('s_waitcnt lgkmcnt(0)')
            g('s_mov_b64 s[68:69], s[70:71]')
            g('s_mov_b64 s[70:71], s[74:75]')
            g('s_memrealtime s[74:75]')
            if pre0: pre0()
    loads = [f'global_load_dwordx4 {vr(D+4*i)}, v3, {pr(S_B)} offset:{1024*i} sc1' for i in range(4)]
    loads += [f'global_load_dwordx4 {vr(D+16+4*i)}, v4, {pr(S_B2)} offset:{128*i} sc1' for i in range(4)]
    if g.o.get('warm') and g.o.get('fastA'):
        for i in range(4): g(f'global_load_dwordx4 {vr(D+4*i)}, v156, {pr(S_B)} offset:{1024*i} sc1')
        for i in range(4): g(f'global_load_dwordx4 {vr(D+16+4*i)}, v157, {pr(S_B2)} offset:{128*i} sc1')
    if NE < 8 and g.o.get('ogate', 8) < 8 and g.o.get('ownwait', 8):
        lds_wait_ge(g, 'own', C_ACNT, g.o.get('ownwait', 8), 12, sleep=4)
    poll_retry(g, 'ha', loads, D, 5, 6, sleep=0, st_cnt=1, pre_iter=pre)
    g.stamp(4)
    ST = D + 16
    M = 144; LL = 145; O = 148
    for i in range(4):
        g(f'v_and_b32 v{ST+4*i}, 0xffffff00, v{ST+4*i}')
    g(f'v_max_f32 v{M}, v{ST}, v{ST+4}')
    g(f'v_max3_f32 v{M}, v{M}, v{ST+8}, v{ST+12}')
    g.nop(2)
    g(f'v_max_f32_dpp v{M}, v{M}, v{M} row_ror:8 row_mask:0xf bank_mask:0xf')
    for i in range(4): g(f'v_sub_f32 v{ST+4*i}, v{ST+4*i}, v{M}')
    for i in range(4): g(f'v_exp_f32 v{ST+4*i}, v{ST+4*i}')
    g.nop(1)
    g(f'v_mul_f32 v{LL}, v{ST}, v{ST+1}')
    for r in range(4): g(f'v_mul_f32 v{O+r}, v{ST}, v{D+r}')
    for i in range(1, 4):
        g(f'v_fmac_f32 v{LL}, v{ST+4*i}, v{ST+4*i+1}')
        for r in range(4): g(f'v_fmac_f32 v{O+r}, v{ST+4*i}, v{D+4*i+r}')
    g.nop(1)
    g(f'v_add_f32_dpp v{LL}, v{LL}, v{LL} row_ror:8 row_mask:0xf bank_mask:0xf')
    for r in range(4):
        g(f'v_add_f32_dpp v{O+r}, v{O+r}, v{O+r} row_ror:8 row_mask:0xf bank_mask:0xf')
    g(f'v_rcp_f32 v{LL}, v{LL}')
    g.nop(1)
    for r in range(4): g(f'v_mul_f32 v{O+r}, v{O+r}, v{LL}')
    for r in range(4): g(f'v_cvt_pk_bf16_f32 v{O+r}, v{O+r}, v{O+r}')
    for r in range(4): g(f'ds_write_b32 v160, v{O+r} offset:{L_OD + 32*r}')
    g('s_waitcnt lgkmcnt(0)')
    P = 112
    for i in range(8):
        g(f'ds_read_b64 v[{P+2*i}:{P+2*i+1}], v161 offset:{L_OD + 32*i}')
    l2_compute(g, W0, 8, P, 128, 144)
    l2_finish(g, 128, 162, 164, 16, st_a=None if g.o.get('stO') else 5, st_b=6)

def emit_qk_softmax(g, extra):
    K0, V0 = 16, 80
    QF = 144
    g('v_lshrrev_b32 v4, 3, v1')
    g('v_lshlrev_b32 v4, 8, v4')
    g('v_lshl_add_u32 v4, v2, 4, v4')
    for s in range(4):
        g(f'ds_read_b128 {vr(QF+4*s)}, v4 offset:{L_QL + 64*s}')
    SCR = [8, 12, 160, 164]
    for T in range(4):
        for r in range(4): g(f'v_mov_b32 v{SCR[T]+r}, 0')
    g('s_waitcnt lgkmcnt(0)')
    for T in range(4):
        g(f's_waitcnt vmcnt({12 - 4*T + extra})')
        for s in range(4):
            g(f'v_mfma_f32_16x16x32_bf16 {vr(SCR[T])}, {vr(K0+16*T+4*s)}, {vr(QF+4*s)}, {vr(SCR[T])}')
    g.nop(8)
    g.stamp(4)
    sc = [SCR[T]+r for T in range(4) for r in range(4)]
    TP = 144
    for k in range(0, 16, 2):
        g(f'v_cvt_pk_bf16_f32 v{TP+k//2}, v{sc[k]}, v{sc[k+1]}')
    for k in range(0, 16, 2):
        g(f'v_lshlrev_b32 v{sc[k]}, 16, v{TP+k//2}')
        g(f'v_and_b32 v{sc[k+1]}, 0xffff0000, v{TP+k//2}')
    for k in range(16):
        g(f'v_mul_f32 v{sc[k]}, 0x{SCALE:08x}, v{sc[k]}')
    for k in range(0, 16, 2):
        g(f'v_cvt_pk_bf16_f32 v{TP+k//2}, v{sc[k]}, v{sc[k+1]}')
    for k in range(0, 16, 2):
        g(f'v_lshlrev_b32 v{sc[k]}, 16, v{TP+k//2}')
        g(f'v_and_b32 v{sc[k+1]}, 0xffff0000, v{TP+k//2}')
    M = 152; T1 = 153; LS = 154
    g(f'v_max3_f32 v{M}, v{sc[0]}, v{sc[1]}, v{sc[2]}')
    for k in range(3, 15, 2):
        g(f'v_max3_f32 v{M}, v{M}, v{sc[k]}, v{sc[k+1]}')
    g(f'v_max_f32 v{M}, v{M}, v{sc[15]}')
    xor16_op(g, 'v_max_f32', M, T1)
    xor32_op(g, 'v_max_f32', M, T1)
    g(f'v_mul_f32 v{M}, s{S_L2E}, v{M}')
    for k in range(16):
        g(f'v_fma_f32 v{sc[k]}, v{sc[k]}, s{S_L2E}, -v{M}')
    for k in range(16):
        g(f'v_exp_f32 v{sc[k]}, v{sc[k]}')
    g.nop(1)
    g(f'v_add_f32 v{LS}, v{sc[0]}, v{sc[1]}')
    for k in range(2, 16):
        g(f'v_add_f32 v{LS}, v{LS}, v{sc[k]}')
    for k in range(16):
        g(f'v_cvt_pk_bf16_f32 v{sc[k]}, v{sc[k]}, v{sc[k]}')
    xor16_op(g, 'v_add_f32', LS, T1)
    xor32_op(g, 'v_add_f32', LS, T1)
    AMK = 156
    make_masks(g, AMK, 1, 4)
    for T in range(4):
        for i in range(4):
            for r in range(4):
                g(f'v_and_b32 v{K0+16*T+4*i+r}, v{sc[4*T+i]}, v{AMK+r}')
    AC = 144
    for r in range(8): g(f'v_mov_b32 v{AC+r}, 0')
    g.stamp(5)

def issue_v(g, V0):
    pol = g.pol
    for T in range(4):
        for i in range(4):
            g(f'global_load_dwordx4 {vr(V0+16*T+4*i)}, v3, {pr(S_V)} offset:{256*i} {pol}')
        if T < 3: add_base_imm(g, S_V, 4096)
    g('v_mov_b32 v4, 0')
    g('v_mov_b32 v5, 1')
    g(f's_mov_b64 {pr(S_SV)}, exec')
    g('s_mov_b64 exec, 1')
    g(f'ds_add_u32 v4, v5 offset:{C_VISS}')
    g(f's_mov_b64 exec, {pr(S_SV)}')

def emit_attn(g):
    pol = g.pol
    K0, V0 = 16, 80
    QF = 144
    g('s_waitcnt lgkmcnt(0)')
    g(f's_lshl_b32 s{S_T0}, s{S_BB}, 4')
    g(f's_add_u32 s{S_T0}, s{S_T0}, s{S_HKV}')
    g(f's_lshl_b32 s{S_T0}, s{S_T0}, 20')
    il = g.o.get('kvil', True)
    g(f's_lshl_b32 s{S_T1}, s{S_SP}, {14 if il else 17}')
    g(f's_add_u32 s{S_T0}, s{S_T0}, s{S_T1}')
    g(f's_sub_u32 s{S_T1}, s{S_WAVE}, 4')
    g(f's_lshl_b32 s{S_T1}, s{S_T1}, {17 if il else 14}')
    g(f's_add_u32 s{S_T0}, s{S_T0}, s{S_T1}')
    add_base(g, S_K, S_T0)
    add_base(g, S_V, S_T0)
    g('v_lshlrev_b32 v4, 8, v1')
    g('v_lshl_add_u32 v4, v2, 4, v4')
    g('v_lshlrev_b32 v3, 10, v2')
    g('v_lshl_add_u32 v3, v1, 4, v3')
    if g.o.get('tlb'):
        g('v_mov_b32 v6, 0')
        g(f'global_load_dword v16, v6, {pr(S_K)} nt')
        g(f'global_load_dword v80, v6, {pr(S_V)} nt')
    g('s_barrier')
    g.stamp(1)
    g('s_setprio 2')
    for T in range(4):
        for s in range(4):
            g(f'global_load_dwordx4 {vr(K0+16*T+4*s)}, v4, {pr(S_K)} offset:{64*s} {pol}')
        if T < 3: add_base_imm(g, S_K, 4096)
    g('s_setprio 1')
    g(f's_cmp_ge_u32 s{S_WAVE}, 8')
    g('s_cbranch_scc1 L_grp2')
    issue_v(g, V0)
    g.stamp(2)
    lds_wait_ge(g, 'qf', C_QF, 1, 4, sleep=4)
    g.stamp(3)
    emit_qk_softmax(g, 16)
    g('s_branch L_pv')
    g.label('L_grp2')
    g.stamp(2)
    lds_wait_ge(g, 'qf', C_QF, 1, 4, sleep=4)
    g.stamp(3)
    emit_qk_softmax(g, 0)
    issue_v(g, V0)
    g.label('L_pv')
    M = 152; LS = 154; AC = 144
    for T in range(4):
        g(f's_waitcnt vmcnt({12 - 4*T})')
        for i in range(4):
            a = AC + 4*(i & 1)
            g(f'v_mfma_f32_16x16x32_bf16 {vr(a)}, {vr(V0+16*T+4*i)}, {vr(K0+16*T+4*i)}, {vr(a)}')
    g.stamp(6)
    g(f's_sub_u32 s{S_T2}, s{S_WAVE}, 4')
    g(f's_lshl_b32 s{S_T0}, s{S_T2}, 10')
    g('v_lshlrev_b32 v4, 4, v0')
    g(f'v_add_u32 v4, s{S_T0}, v4')
    g('v_lshrrev_b32 v5, 3, v1')
    g('v_lshlrev_b32 v5, 3, v5')
    g(f's_lshl_b32 s{S_T0}, s{S_T2}, 4')
    g(f'v_add_u32 v5, s{S_T0}, v5')
    g(f'v_mov_b32 v6, v{M}')
    g(f'v_mov_b32 v7, v{LS}')
    g(f'ds_write_b64 v5, v[6:7] offset:{L_AS}')
    g.nop(2)
    for r in range(4): g(f'v_add_f32 v{AC+r}, v{AC+r}, v{AC+4+r}')
    g(f'ds_write_b128 v4, {vr(AC)} offset:{L_AO}')
    arrive_last(g, C_ACNT, 7, 'L_end_stamp')
    g(f'ds_read_b32 v14, v12 offset:{C_TAG}')
    g('v_lshlrev_b32 v4, 4, v0')
    g('v_lshrrev_b32 v5, 3, v1')
    g('v_lshlrev_b32 v5, 3, v5')
    ST = 16; OV = 32
    for w in range(8):
        g(f'ds_read_b64 v[{ST+2*w}:{ST+2*w+1}], v5 offset:{L_AS + 16*w}')
    for w in range(8):
        g(f'ds_read_b128 {vr(OV+4*w)}, v4 offset:{L_AO + 1024*w}')
    g(f's_lshl_b32 s{S_T0}, s{S_HKV}, 1')
    g(f's_add_u32 s{S_T0}, s{S_T0}, s{S_BB}')
    g(f's_lshl_b32 s{S_T0}, s{S_T0}, 3')
    g(f's_add_u32 s{S_T0}, s{S_T0}, s{S_SP}')
    g(f's_lshl_b32 s{S_T1}, s{S_T0}, 10')
    set_ws_base(g, S_B, S_T1, WS_A)
    g(f's_lshl_b32 s{S_T1}, s{S_T0}, 7')
    set_ws_base(g, S_B2, S_T1, WS_S)
    g('s_waitcnt lgkmcnt(8)')
    g(f'v_max3_f32 v8, v{ST}, v{ST+2}, v{ST+4}')
    g(f'v_max3_f32 v8, v8, v{ST+6}, v{ST+8}')
    g(f'v_max3_f32 v8, v8, v{ST+10}, v{ST+12}')
    g(f'v_max_f32 v8, v8, v{ST+14}')
    g('v_and_b32 v8, 0xffffff00, v8')
    for w in range(8): g(f'v_sub_f32 v{ST+2*w}, v{ST+2*w}, v8')
    for w in range(8): g(f'v_exp_f32 v{ST+2*w}, v{ST+2*w}')
    g.nop(1)
    g(f'v_mul_f32 v9, v{ST}, v{ST+1}')
    for w in range(1, 8): g(f'v_fmac_f32 v9, v{ST+2*w}, v{ST+2*w+1}')
    g('v_mov_b32 v10, 0'); g('v_mov_b32 v11, 0')
    tag_insert(g, 72, 8, 14)
    g('s_waitcnt lgkmcnt(0)')
    for r in range(4):
        g(f'v_mul_f32 v{64+r}, v{ST}, v{OV+r}')
    for w in range(1, 8):
        for r in range(4):
            g(f'v_fmac_f32 v{64+r}, v{ST+2*w}, v{OV+4*w+r}')
    tag_insert(g, 68, 64, 14)
    if g.o.get('fastA'):
        g(f'v_add_u32 v6, {WS_ALT}, v4')
        g(f'global_store_dwordx4 v6, {vr(68)}, {pr(S_B)}')
    g(f'global_store_dwordx4 v4, {vr(68)}, {pr(S_B)} sc1')
    g('v_lshlrev_b32 v5, 1, v5')
    g('v_and_b32 v6, 0x37, v0')
    g('v_cmp_eq_u32_e32 vcc, 0, v6')
    g(f's_and_saveexec_b64 {pr(S_SV)}, vcc')
    if g.o.get('fastA'):
        g(f'v_add_u32 v6, {WS_ALT}, v5')
        g(f'global_store_dwordx4 v6, {vr(72)}, {pr(S_B2)}')
    g(f'global_store_dwordx4 v5, {vr(72)}, {pr(S_B2)} sc1')
    g(f's_mov_b64 exec, {pr(S_SV)}')

def generate(stamps=False, pol='nt', opts=None):
    g = G(stamps, pol, opts)
    g('s_cmp_ge_u32 s2, 256')
    g('s_cbranch_scc1 L_end')
    g.stamp(0)
    g('s_load_dwordx16 s[4:19], s[0:1], 0')
    g('s_load_dwordx8 s[20:27], s[0:1], 64')
    g('v_lshrrev_b32 v3, 6, v0')
    g('v_and_b32 v0, 63, v0')
    g(f'v_readfirstlane_b32 s{S_WAVE}, v3')
    g(f'v_and_b32 v{V_N}, 15, v0')
    g(f'v_lshrrev_b32 v{V_G}, 4, v0')
    g(f's_and_b32 s{S_XCD}, s2, 7')
    g(f's_lshr_b32 s{S_SLOT}, s2, 3')
    g(f's_lshr_b32 s{S_HKV}, s{S_SLOT}, 4')
    g(f's_lshl_b32 s{S_T0}, s{S_XCD}, 1')
    g(f's_add_u32 s{S_HKV}, s{S_HKV}, s{S_T0}')
    g(f's_bfe_u32 s{S_BB}, s{S_SLOT}, 0x10003')
    g(f's_and_b32 s{S_SP}, s{S_SLOT}, 7')
    g(f's_mov_b32 s{S_L2E}, 0x{LOG2E:08x}')
    if g.o.get('skew'):
        g(f's_mul_i32 s91, s{S_XCD}, 13')
        g(f's_mov_b32 s92, s91')
        g(f's_mov_b32 s90, 13')
        g(f's_sub_u32 s{S_T0}, s{S_XCD}, 4')
        g(f's_mul_i32 s{S_T1}, s{S_T0}, 23')
        g(f's_add_u32 s{S_T1}, s{S_T1}, 52')
        g(f's_mul_i32 s{S_T2}, s{S_T0}, 3')
        g(f's_add_u32 s{S_T2}, s{S_T2}, 52')
        g(f's_cmp_ge_u32 s{S_XCD}, 4')
        g(f's_cselect_b32 s90, 23, s90')
        g(f's_cselect_b32 s91, s{S_T1}, s91')
        g(f's_cselect_b32 s92, s{S_T2}, s92')
    else:
        g(f's_mov_b32 s90, 18')
        g(f's_mul_i32 s91, s{S_XCD}, 18')
    tag_consts(g)
    g(f's_cmp_ge_u32 s{S_WAVE}, 4')
    g('s_cbranch_scc1 L_attn')
    g('s_setprio 3')
    g(f's_cmp_lg_u32 s{S_WAVE}, 0')
    g('s_cbranch_scc1 L_noinit')
    g('v_lshlrev_b32 v3, 4, v0')
    for r in range(4, 8): g(f'v_mov_b32 v{r}, 0')
    g('ds_write_b128 v3, v[4:7]')
    g.label('L_noinit')
    g('s_waitcnt lgkmcnt(0)')
    g.stamp(1)
    g(f's_cmp_lg_u32 s{S_WAVE}, 1')
    g('s_cbranch_scc1 L_nogen')
    g(f's_load_dword s{S_TAG}, {pr(S_WS)}, {WS_GEN}')
    g.label('L_nogen')
    g(f's_cmp_ge_u32 s{S_SLOT}, 26')
    g('s_cbranch_scc1 L_roleO')
    XR = 124; XF = 136
    g('v_lshrrev_b32 v3, 5, v0')
    g('v_and_b32 v4, 31, v0')
    g('v_mul_u32_u24 v3, 1152, v3')
    g('v_mad_u32_u24 v3, v4, 36, v3')
    xp = g.o.get('xpol', '')
    g('v_mov_b32 v15, v3')
    def xloads():
        g(f'global_load_dwordx4 {vr(XR)}, v15, {pr(S_X)} {xp}')
        g(f'global_load_dwordx4 {vr(XR+4)}, v15, {pr(S_X)} offset:16 {xp}')
        g(f'global_load_dword v{XR+8}, v15, {pr(S_X)} offset:32 {xp}')
    XPOS = g.o.get('xpos', 0)
    if XPOS == 0: xloads()
    S_HALF = S_RS
    S_A, S_R = S_T2, S_T3
    if g.o.get('remap', True):
        g(f's_cmp_ge_u32 s{S_SLOT}, s90')
        g('s_cbranch_scc1 L_tileLight')
        g(f's_add_u32 s{S_ID}, s91, s{S_SLOT}')
        g(f's_and_b32 s{S_HALF}, s{S_ID}, 1')
        g(f's_lshr_b32 s{S_A}, s{S_ID}, 2')
        g(f's_and_b32 s{S_R}, s{S_ID}, 2')
        g(f's_sub_u32 s{S_T0}, s{S_ID}, 104')
        g(f's_lshr_b32 s{S_T0}, s{S_T0}, 1')
        g(f's_add_u32 s{S_T0}, s{S_T0}, 6')
        g(f's_cmp_ge_u32 s{S_ID}, 104')
        g(f's_cselect_b32 s{S_A}, s{S_T0}, s{S_A}')
        g(f's_cselect_b32 s{S_R}, 3, s{S_R}')
        g('s_branch L_tileCT')
        g.label('L_tileLight')
        if g.o.get('skew'):
            g(f's_sub_u32 s{S_T0}, s{S_SLOT}, s90')
            g(f's_add_u32 s{S_T0}, s{S_T0}, s92')
        else:
            g(f's_sub_u32 s{S_T0}, s{S_SLOT}, 18')
            g(f's_lshl_b32 s{S_T0}, s{S_T0}, 3')
            g(f's_add_u32 s{S_T0}, s{S_T0}, s{S_XCD}')
        g(f's_mov_b32 s{S_F}, s{S_T0}')
        g(f's_and_b32 s{S_HALF}, s{S_T0}, 1')
        g(f's_lshr_b32 s{S_A}, s{S_T0}, 1')
        g(f's_sub_u32 s{S_T1}, s{S_A}, 26')
        g(f's_cmp_ge_u32 s{S_T0}, 52')
        g(f's_cselect_b32 s{S_A}, s{S_T1}, s{S_A}')
        g(f's_cselect_b32 s{S_R}, 3, 1')
        g.label('L_tileCT')
        g(f's_lshl_b32 s{S_T0}, s{S_A}, 2')
        g(f's_add_u32 s{S_T0}, s{S_T0}, s{S_R}')
    else:
        g(f's_cmp_ge_u32 s{S_SLOT}, 18')
        g('s_cbranch_scc1 L_tileLight')
        g(f's_mul_i32 s{S_ID}, s{S_XCD}, 18')
        g(f's_add_u32 s{S_ID}, s{S_ID}, s{S_SLOT}')
        g(f's_and_b32 s{S_HALF}, s{S_ID}, 1')
        g(f's_lshr_b32 s{S_T0}, s{S_ID}, 1')
        g('s_branch L_tileCT')
        g.label('L_tileLight')
        g(f's_sub_u32 s{S_T1}, s{S_SLOT}, 18')
        g(f's_and_b32 s{S_HALF}, s{S_T1}, 1')
        g(f's_lshl_b32 s{S_T0}, s{S_XCD}, 3')
        g(f's_add_u32 s{S_T0}, s{S_T0}, s{S_T1}')
        g(f's_lshr_b32 s{S_T0}, s{S_T0}, 1')
        g(f's_add_u32 s{S_T0}, s{S_T0}, 72')
        g.label('L_tileCT')
    g(f's_lshl_b32 s{S_TILE}, s{S_T0}, 1')
    g(f's_add_u32 s{S_TILE}, s{S_TILE}, s{S_HALF}')
    g(f's_mov_b64 {pr(S_B)}, {pr(S_GATE)}')
    g(f's_mov_b32 s{S_STR}, 9216')
    g(f's_mov_b32 s{S_T1}, 0')
    g(f's_cmp_ge_u32 s{S_T0}, 36')
    g(f's_cselect_b64 {pr(S_B)}, {pr(S_UP)}, {pr(S_B)}')
    g(f's_cselect_b32 s{S_T1}, 36, s{S_T1}')
    g(f's_cmp_ge_u32 s{S_T0}, 72')
    g(f's_cselect_b64 {pr(S_B)}, {pr(S_WQ)}, {pr(S_B)}')
    g(f's_cselect_b32 s{S_T1}, 72, s{S_T1}')
    g(f's_cselect_b32 s{S_STR}, 8192, s{S_STR}')
    g(f's_sub_u32 s{S_T0}, s{S_T0}, s{S_T1}')
    g(f's_mul_i32 s{S_T1}, s{S_HALF}, 288')
    g(f's_mul_i32 s{S_T2}, s{S_WAVE}, 72')
    g(f's_add_u32 s{S_RS}, s{S_T1}, s{S_T2}')
    g(f's_mul_i32 s{S_T1}, s{S_RS}, s{S_STR}')
    g(f's_lshl_b32 s{S_T0}, s{S_T0}, 8')
    g(f's_add_u32 s{S_T1}, s{S_T1}, s{S_T0}')
    add_base(g, S_B, S_T1)
    g(f'v_mul_lo_u32 v3, v{V_G}, s{S_STR}')
    g(f'v_lshl_add_u32 v3, v{V_N}, 4, v3')
    g(f's_lshl_b32 s{S_STR}, s{S_STR}, 2')
    W0 = 16
    for i in range(18):
        g(f'global_load_dwordx4 {vr(W0+4*i)}, v3, {pr(S_B)} {pol}')
        if i < 17: add_base(g, S_B, S_STR)
        if XPOS == i + 1: xloads()
    g('s_barrier')
    g.stamp(2)
    g(f's_cmp_lg_u32 s{S_WAVE}, 1')
    g('s_cbranch_scc1 L_notag1')
    emit_tag_publish(g)
    g.label('L_notag1')
    g(f's_waitcnt vmcnt({18 - XPOS})')
    emit_layernorm(g, XR, XF)
    make_masks(g, MK, V_N, 12)
    g(f'v_lshrrev_b32 v3, 3, v{V_N}')
    g('v_mul_u32_u24 v3, 576, v3')
    g(f'v_add_u32 v3, v3, v{V_G}')
    g(f'v_add_u32 v3, s{S_RS}, v3')
    g('v_lshlrev_b32 v3, 2, v3')
    XV = 136
    for i in range(18):
        g(f'ds_read_b32 v{XV+i}, v3 offset:{L_XD + 16*i}')
    ACC = 156; BT = 160
    for r in range(4): g(f'v_mov_b32 v{ACC+r}, 0')
    g('s_waitcnt lgkmcnt(0)')
    for i in range(18):
        b = BT + 4*(i & 1)
        for r in range(4):
            g(f'v_and_b32 v{b+r}, v{XV+i}, v{MK+r}')
        g(f's_waitcnt vmcnt({17 - i})')
        g.nop(1)
        g(f'v_mfma_f32_16x16x32_bf16 {vr(ACC)}, {vr(W0+4*i)}, {vr(b)}, {vr(ACC)}')
    g.stamp(3)
    get_tag_from_lds(g, 12, VTAG)
    g(f's_lshl_b32 s{S_T0}, s{S_WAVE}, 10')
    g('v_lshlrev_b32 v3, 4, v0')
    g(f'v_add_u32 v4, s{S_T0}, v3')
    g(f'ds_write_b128 v4, {vr(ACC)} offset:{L_Y1}')
    arrive_last(g, C_L1CNT, 3, 'L_l1pubdone')
    g('v_lshlrev_b32 v3, 4, v0')
    for w in range(4):
        g(f'ds_read_b128 {vr(124+4*w)}, v3 offset:{L_Y1 + 1024*w}')
    g(f's_lshl_b32 s{S_T0}, s{S_TILE}, 10')
    set_ws_base(g, S_B, S_T0, WS_L1)
    g('s_waitcnt lgkmcnt(0)')
    for j in range(1, 4):
        for r in range(4): g(f'v_add_f32 v{124+r}, v{124+r}, v{124+4*j+r}')
    tag_insert(g, 160, 124, VTAG)
    if g.o.get('qfast'):
        g(f'v_add_u32 v4, {WS_QALT}, v3')
        g(f's_cmp_lt_u32 s{S_TILE}, 144')
        g('s_cbranch_scc1 L_noqalt')
        g(f'global_store_dwordx4 v4, {vr(160)}, {pr(S_B)}')
        g.label('L_noqalt')
    pub_store(g, 'v3', vr(160), pr(S_B), True)
    g.label('L_l1pubdone')
    g.stamp(4)
    g(f's_cmp_lg_u32 s{S_WAVE}, 1')
    g('s_cbranch_scc1 L_noq1')
    emit_qpoll(g, g.o.get('qdelay', 0))
    g.label('L_noq1')
    g(f's_cmp_ge_u32 s{S_SLOT}, s90')
    g('s_cbranch_scc1 L_roleQtail')
    S_RB = S_TILE
    g(f's_add_u32 s{S_T2}, s91, s{S_SLOT}')
    g(f's_mul_i32 s{S_RB}, s{S_T2}, 171')
    g(f's_lshr_b32 s{S_RB}, s{S_RB}, 9')
    g(f's_mul_i32 s{S_T1}, s{S_RB}, 3')
    g(f's_sub_u32 s{S_CB}, s{S_T2}, s{S_T1}')
    g(f's_cmp_lg_u32 s{S_WAVE}, 0')
    g('s_cbranch_scc1 L_noh')
    emit_hpoll(g, S_RB)
    g.label('L_noh')
    g(f's_mul_i32 s{S_T0}, s{S_RB}, 96')
    g(f's_mul_i32 s{S_T1}, s{S_WAVE}, 24')
    g(f's_add_u32 s{S_T0}, s{S_T0}, s{S_T1}')
    g(f's_mul_i32 s{S_T0}, s{S_T0}, 1152')
    g(f's_mul_i32 s{S_T1}, s{S_CB}, 384')
    g(f's_add_u32 s{S_T0}, s{S_T0}, s{S_T1}')
    g(f's_mov_b64 {pr(S_B)}, {pr(S_DOWN)}')
    add_base(g, S_B, S_T0)
    l2_lane_offsets(g)
    WD = 88
    if not g.o.get('early'):
        if g.o.get('fgateA'):
            lds_wait_ge(g, 'facnt', C_ACNT, g.o.get('fgateA'), 12, sleep=2)
        else:
            lds_wait_ge(g, 'viss', C_VISS, g.o.get('fgate', 8), 12, sleep=4)
    if g.o.get('nolate'):
        g('s_branch L_end_stamp')
    if g.o.get('ggate'):
        count_in(g)
        global_gate(g, g.o.get('ggate'))
    if g.o.get('gg2'):
        count_in(g)
        go_wait(g)
    l2_issue(g, WD, 3)
    l2_prep(g, 48, S_RB, WS_F, 60, 62)
    lds_wait_ge(g, 'hf', C_HF, 1, 12)
    g(f'v_lshrrev_b32 v3, 3, v{V_N}')
    g('v_mul_u32_u24 v3, 96, v3')
    g(f'v_lshl_add_u32 v3, v{V_G}, 1, v3')
    g(f's_mul_i32 s{S_T0}, s{S_WAVE}, 24')
    g(f'v_add_u32 v3, s{S_T0}, v3')
    g('v_lshlrev_b32 v3, 2, v3')
    P = 16
    for i in range(3):
        g(f'ds_read_b64 v[{P+2*i}:{P+2*i+1}], v3 offset:{L_HD + 32*i}')
    l2_compute(g, WD, 3, P, 24, 40, waitvm=lambda i: 6 - 3*i)
    l2_finish(g, 24, 60, 62, 64)
    g('s_branch L_end_stamp')
    g.label('L_roleQtail')
    if g.o.get('ggate') or g.o.get('gg2'): count_in(g)
    if g.o.get('gg2'):
        sk = g.u('nodet')
        g(f's_cmp_lg_u32 s{S_WAVE}, 1')
        g(f's_cbranch_scc1 {sk}')
        g(f's_cmp_lg_u32 s{S_F}, 51')
        g(f's_cbranch_scc1 {sk}')
        detector(g, g.o.get('gg2'))
        g.label(sk)
    g(f's_and_b32 s{S_T0}, s{S_WAVE}, 1')
    if g.o.get('fin2'):
        g(f's_cmp_lg_u32 s{S_T0}, 0')
    else:
        g(f's_cmp_lg_u32 s{S_WAVE}, 0')
    g('s_cbranch_scc1 L_end_stamp')
    if not g.o.get('remap', True):
        g(f's_sub_u32 s{S_F}, s{S_SLOT}, 18')
        g(f's_lshl_b32 s{S_F}, s{S_F}, 3')
        g(f's_add_u32 s{S_F}, s{S_F}, s{S_XCD}')
    g(f's_cmp_ge_u32 s{S_F}, 36')
    g('s_cbranch_scc1 L_end_stamp')
    if g.o.get('fin2'):
        g(f's_cmp_eq_u32 s{S_WAVE}, 2')
        g('s_cbranch_scc1 L_ffg')
        emit_final(g)
        g('s_branch L_end_stamp')
        g.label('L_ffg')
        emit_ffgather(g)
    else:
        emit_final_old(g)
    g('s_branch L_end_stamp')
    g.label('L_roleO')
    emit_roleO(g)
    g('s_branch L_end_stamp')
    g.label('L_attn')
    emit_attn(g)
    g.label('L_end_stamp')
    if stamps:
        g.stamp(7)
        g('s_waitcnt lgkmcnt(0) vmcnt(0)')
        g('s_mov_b64 exec, -1')
        g('v_cmp_eq_u32_e32 vcc, 0, v0')
        g(f's_and_saveexec_b64 {pr(S_SV)}, vcc')
        g('s_cbranch_execz L_end')
        g(f's_mul_i32 s{S_T0}, s2, 12')
        g(f's_add_u32 s{S_T0}, s{S_T0}, s{S_WAVE}')
        g(f's_lshl_b32 s{S_T0}, s{S_T0}, 6')
        g(f's_add_u32 s{S_T0}, s{S_T0}, 0x{WS_STAMP:x}')
        add_base(g, S_WS, S_T0)
        g('v_mov_b32 v1, 0')
        for j in range(8):
            g(f'v_mov_b32 v2, s{64+2*j}'); g(f'v_mov_b32 v3, s{65+2*j}')
            g(f'global_store_dwordx2 v1, v[2:3], {pr(S_WS)} offset:{8*j}')
            g.nop(2)
    g.label('L_end')
    g('s_endpgm')
    return g

if __name__ == '__main__':
    ap = argparse.ArgumentParser()
    ap.add_argument('-o', default='k.s')
    ap.add_argument('--stamps', action='store_true')
    ap.add_argument('--pol', default='nt')
    ap.add_argument('--nopoll', default='')
    ap.add_argument('--nopub', action='store_true')
    ap.add_argument('--early', action='store_true')
    ap.add_argument('--dbl', action='store_true')
    ap.add_argument('--noremap', action='store_true')
    ap.add_argument('--fastA', action='store_true')
    ap.add_argument('--qfast', action='store_true')
    ap.add_argument('--xpos', type=int, default=0)
    ap.add_argument('--xpol', default='')
    ap.add_argument('--tlb', action='store_true')
    ap.add_argument('--gg2', type=int, default=0)
    ap.add_argument('--ogg2', action='store_true')
    ap.add_argument('--nolate', type=int, default=0)
    ap.add_argument('--fin2', action='store_true')
    ap.add_argument('--osplit', type=int, default=0)
    ap.add_argument('--skew', action='store_true')
    ap.add_argument('--qprobe', type=int, default=0)
    ap.add_argument('--fgateA', type=int, default=0)
    ap.add_argument('--ggate', type=int, default=0)
    ap.add_argument('--ogg', type=int, default=0)
    ap.add_argument('--warm', action='store_true')
    ap.add_argument('--ownwait', type=int, default=8)
    ap.add_argument('--ogate', type=int, default=8)
    ap.add_argument('--fgate', type=int, default=8)
    ap.add_argument('--oearly', type=int, default=0)
    ap.add_argument('--stO', action='store_true')
    ap.add_argument('--finpipe', type=int, default=0)
    ap.add_argument('--nokvil', action='store_true')
    ap.add_argument('--qdelay', type=int, default=0)
    ap.add_argument('--qdelayO', type=int, default=0)
    a = ap.parse_args()
    opts = {}
    if a.nopoll: opts['nopoll'] = a.nopoll.split(',')
    if a.early: opts['early'] = True
    opts['remap'] = not a.noremap; opts['fastA'] = a.fastA; opts['qfast'] = a.qfast; opts['xpos'] = a.xpos; opts['xpol'] = a.xpol; opts['tlb'] = a.tlb; opts['gg2'] = a.gg2; opts['ogg2'] = a.ogg2; opts['nolate'] = a.nolate; opts['fin2'] = a.fin2; opts['osplit'] = a.osplit; opts['skew'] = a.skew; opts['qprobe'] = a.qprobe; opts['fgateA'] = a.fgateA; opts['ggate'] = a.ggate; opts['ogg'] = a.ogg; opts['warm'] = a.warm; opts['ownwait'] = a.ownwait; opts['ogate'] = a.ogate; opts['fgate'] = a.fgate; opts['oearly'] = a.oearly; opts['stO'] = a.stO; opts['finpipe'] = a.finpipe; opts['kvil'] = not a.nokvil
    opts['dbl'] = a.dbl; opts['qdelay'] = a.qdelay; opts['qdelayO'] = a.qdelayO
    pol = a.pol
    g = generate(a.stamps, a.pol, opts)
    if a.nopub:
        g.L = [l for l in g.L if not ('global_store_dwordx4' in l and 'sc1' in l)]
    open(a.o, 'w').write(header(256, 768, LDS_SIZE) + '\n'.join(g.L) + '\n' + footer(168))
    print(a.o, len(g.L), 'lines')
```

```python
import sys, argparse
from genlib import *

V_LANE, V_N, V_G = 0, 1, 2
WS_ALT = 0x300000 - WS_A
MK = 8
VTAG = 14

def arrive_last(g, cnt_off, last_val, skip_label):
    g('s_waitcnt lgkmcnt(0)')
    g('v_mov_b32 v12, 0')
    g('v_mov_b32 v13, 1')
    g(f's_mov_b64 {pr(S_SV)}, exec')
    g('s_mov_b64 exec, 1')
    g(f'ds_add_rtn_u32 v13, v12, v13 offset:{cnt_off}')
    g('s_waitcnt lgkmcnt(0)')
    g(f'v_readfirstlane_b32 s{S_T0}, v13')
    g(f's_mov_b64 exec, {pr(S_SV)}')
    g(f's_cmp_lg_u32 s{S_T0}, {last_val}')
    g(f's_cbranch_scc1 {skip_label}')

def set_ws_base(g, dst, off_sreg, const):
    g(f's_add_u32 s{off_sreg}, s{off_sreg}, {const}')
    g(f's_mov_b64 {pr(dst)}, {pr(S_WS)}')
    add_base(g, dst, off_sreg)

def pub_store(g, addr, data, base, local):
    if local and g.o.get('dbl'):
        g(f'global_store_dwordx4 {addr}, {data}, {base}')
    g(f'global_store_dwordx4 {addr}, {data}, {base} sc1')

def count_in(g):
    sk = g.u('ci')
    g(f's_cmp_lg_u32 s{S_WAVE}, 3')
    g(f's_cbranch_scc1 {sk}')
    lds_wait_ge(g, 'vi8', C_VISS, 8, 12, sleep=4)
    g('v_mov_b32 v12, 0')
    g('v_mov_b32 v13, 1')
    g(f's_mov_b64 {pr(S_SV)}, exec')
    g('s_mov_b64 exec, 1')
    g(f'global_atomic_add v12, v13, {pr(S_DBG)} sc1')
    g(f's_mov_b64 exec, {pr(S_SV)}')
    g.label(sk)

WS_QALT = 0x3A0000 - WS_L1
WS_G = 0x380000
C_GO = 44
def detector(g, thr):
    lp = g.u('dt_lp'); ok = g.u('dt_ok')
    g(f's_mov_b32 s{S_CNT}, {SPIN_LIMIT}')
    g.label(lp)
    g(f's_load_dword s{S_T0}, {pr(S_DBG)}, 0 glc')
    g('s_waitcnt lgkmcnt(0)')
    g(f's_cmp_ge_u32 s{S_T0}, {thr}')
    g(f's_cbranch_scc1 {ok}')
    g(f's_sub_u32 s{S_CNT}, s{S_CNT}, 1')
    g(f's_cbranch_scc1 {ok}')
    g('s_sleep 2')
    g(f's_branch {lp}')
    g.label(ok)
    g('v_lshlrev_b32 v4, 7, v0')
    g(f'v_mov_b32 v5, s{S_TAG}')
    g(f's_mov_b64 {pr(S_B2)}, {pr(S_WS)}')
    add_base_imm(g, S_B2, WS_G)
    g(f's_mov_b64 {pr(S_SV)}, exec')
    g('s_mov_b64 exec, 0xff')
    g(f'global_store_dword v4, v5, {pr(S_B2)} sc1')
    g(f's_mov_b64 exec, {pr(S_SV)}')

def go_wait(g):
    sk = g.u('gw_sk'); lp = g.u('gw_lp'); ok = g.u('gw_ok')
    g(f's_cmp_lg_u32 s{S_WAVE}, 2')
    g(f's_cbranch_scc1 {sk}')
    g(f's_lshl_b32 s{S_T0}, s{S_XCD}, 7')
    set_ws_base(g, S_B2, S_T0, WS_G)
    g(f's_mov_b32 s{S_CNT}, {SPIN_LIMIT}')
    g.label(lp)
    g(f's_load_dword s{S_T0}, {pr(S_B2)}, 0 glc')
    g('s_waitcnt lgkmcnt(0)')
    g(f's_cmp_eq_u32 s{S_T0}, s{S_TAG}')
    g(f's_cbranch_scc1 {ok}')
    g(f's_sub_u32 s{S_CNT}, s{S_CNT}, 1')
    g(f's_cbranch_scc1 {ok}')
    g('s_sleep 6')
    g(f's_branch {lp}')
    g.label(ok)
    g('v_mov_b32 v12, 0'); g('v_mov_b32 v13, 1')
    g(f'ds_write_b32 v12, v13 offset:{C_GO}')
    g.label(sk)
    lds_wait_ge(g, 'go', C_GO, 1, 12, sleep=2)

def global_gate(g, thr):
    lp = g.u('gg_lp'); ok = g.u('gg_ok')
    g(f's_mov_b32 s{S_CNT}, {SPIN_LIMIT}')
    g.label(lp)
    g(f's_load_dword s{S_T0}, {pr(S_DBG)}, 0 glc')
    g('s_waitcnt lgkmcnt(0)')
    g(f's_cmp_ge_u32 s{S_T0}, {thr}')
    g(f's_cbranch_scc1 {ok}')
    g(f's_sub_u32 s{S_CNT}, s{S_CNT}, 1')
    g(f's_cbranch_scc1 {ok}')
    g('s_sleep 2')
    g(f's_branch {lp}')
    g.label(ok)

def emit_tag_publish(g):
    g('s_waitcnt lgkmcnt(0)')
    g(f's_add_u32 s{S_TAG}, s{S_TAG}, 1')
    g(f's_and_b32 s{S_T0}, s{S_TAG}, 0xff')
    g(f's_mul_i32 s{S_T0}, s{S_T0}, 0x01010100')
    g(f's_mov_b32 s{S_T1}, s{S_TAG}')
    g(f's_xor_b32 s{S_TAG}, s{S_TAG}, s{S_T0}')
    g('v_mov_b32 v4, 0')
    g(f'v_mov_b32 v5, s{S_TAG}')
    g(f'v_mov_b32 v6, s{S_T1}')
    g(f'ds_write_b32 v4, v5 offset:{C_TAG}')
    g(f'ds_write_b32 v4, v6 offset:{C_RAWG}')
    g('s_waitcnt lgkmcnt(0)')
    g('v_mov_b32 v5, 1')
    g(f'ds_write_b32 v4, v5 offset:{C_TAGF}')

def emit_layernorm(g, XR, XF):
    for k in range(9):
        g(f'v_lshlrev_b32 v{XF+2*k}, 16, v{XR+k}')
        g(f'v_and_b32 v{XF+2*k+1}, 0xffff0000, v{XR+k}')
    S, T = 154, 155
    g(f'v_add_f32 v{S}, v{XF}, v{XF+1}')
    for k in range(2, 18): g(f'v_add_f32 v{S}, v{S}, v{XF+k}')
    row_reduce(g, 'v_add_f32', S)
    xor16_op(g, 'v_add_f32', S, T)
    g(f'v_mul_f32 v{S}, 0x{INV576:08x}, v{S}')
    Q, D = 156, 157
    g(f'v_sub_f32 v{D}, v{XF}, v{S}')
    g(f'v_mul_f32 v{Q}, v{D}, v{D}')
    for k in range(1, 18):
        g(f'v_sub_f32 v{D}, v{XF+k}, v{S}')
        g(f'v_fmac_f32 v{Q}, v{D}, v{D}')
    row_reduce(g, 'v_add_f32', Q)
    xor16_op(g, 'v_add_f32', Q, T)
    g(f'v_mul_f32 v{Q}, 0x{INV576:08x}, v{Q}')
    bf16_round(g, Q, Q)
    g(f'v_add_f32 v{Q}, 0x{EPS:08x}, v{Q}')
    bf16_round(g, Q, Q)
    g(f'v_sqrt_f32 v{Q}, v{Q}')
    g.nop(1)
    bf16_round(g, Q, Q)
    g(f'v_rcp_f32 v{Q}, v{Q}')
    bf16_round(g, S, S)
    for k in range(18):
        g(f'v_sub_f32 v{XF+k}, v{XF+k}, v{S}')
    for k in range(0, 18, 2):
        g(f'v_cvt_pk_bf16_f32 v{XR+k//2}, v{XF+k}, v{XF+k+1}')
    for k in range(9):
        g(f'v_lshlrev_b32 v{XF+2*k}, 16, v{XR+k}')
        g(f'v_and_b32 v{XF+2*k+1}, 0xffff0000, v{XR+k}')
    for k in range(18):
        g(f'v_mul_f32 v{XF+k}, v{XF+k}, v{Q}')
    for k in range(18):
        g(f'v_cvt_pk_bf16_f32 v{XF+k}, v{XF+k}, v{XF+k}')
    g('v_lshrrev_b32 v3, 5, v0')
    g('v_and_b32 v4, 31, v0')
    g('v_mul_u32_u24 v3, 576, v3')
    g('v_mad_u32_u24 v3, v4, 18, v3')
    g('v_lshlrev_b32 v3, 2, v3')
    for k in range(0, 18, 2):
        g(f'ds_write_b64 v3, v[{XF+k}:{XF+k+1}] offset:{L_XD + 4*k}')
    g('s_waitcnt lgkmcnt(0)')

def emit_qpoll(g, presleep=0):
    g(f's_lshl_b32 s{S_T0}, s{S_HKV}, 12')
    g(f's_lshl_b32 s{S_T1}, s{S_BB}, 7')
    g(f's_add_u32 s{S_T0}, s{S_T0}, s{S_T1}')
    set_ws_base(g, S_B2, S_T0, WS_L1 + 144*1024)
    g('v_lshrrev_b32 v3, 5, v0')
    g('v_lshlrev_b32 v3, 11, v3')
    g('v_bfe_u32 v4, v0, 3, 2')
    g('v_lshl_add_u32 v3, v4, 8, v3')
    g('v_and_b32 v4, 7, v0')
    g('v_lshl_add_u32 v3, v4, 4, v3')
    D = 124
    if g.o.get('qprobe'):
        lp = g.u('qp_lp'); ok = g.u('qp_ok')
        g(f's_and_b32 s{S_T4}, s{S_TAG}, 0xff')
        g(f's_mov_b32 s{S_CNT}, {SPIN_LIMIT}')
        g.label(lp)
        for k in range(4):
            g(f's_load_dword s{84+k}, {pr(S_B2)}, {1024*k} glc')
        g('s_waitcnt lgkmcnt(0)')
        for k in range(4):
            g(f's_and_b32 s{84+k}, s{84+k}, 0xff')
            g(f's_xor_b32 s{84+k}, s{84+k}, s{S_T4}')
        g('s_or_b32 s84, s84, s85')
        g('s_or_b32 s86, s86, s87')
        g('s_or_b32 s84, s84, s86')
        g('s_cmp_eq_u32 s84, 0')
        g(f's_cbranch_scc1 {ok}')
        g(f's_sub_u32 s{S_CNT}, s{S_CNT}, 1')
        g(f's_cbranch_scc1 {ok}')
        g(f's_sleep {g.o.get("qprobe")}')
        g(f's_branch {lp}')
        g.label(ok)
        presleep = 0
    if presleep:
        n = presleep
        while n > 0:
            g(f's_sleep {min(n,127)}'); n -= 127
    pre = None
    if g.o.get('qfast'):
        g(f'v_add_u32 v156, {WS_QALT}, v3')
        g('v_mov_b32 v157, v3')
        def pre():
            g(f's_and_b32 s{S_T0}, s{S_CNT}, 1')
            g(f's_cmp_eq_u32 s{S_T0}, 1')
            g(f's_cselect_b64 vcc, -1, 0')
            g('v_cndmask_b32_e32 v3, v156, v157, vcc')
    loads = [f'global_load_dwordx4 {vr(D+4*h)}, v3, {pr(S_B2)} offset:{1024*h} sc1' for h in range(2)]
    poll_retry(g, 'q', loads, D, 5, 6, sleep=g.o.get('qsleep', 4), st_first=5, st_cnt=1, pre_iter=pre)
    g.stamp(6)
    for r in range(4):
        g(f'v_add_f32 v{D+r}, v{D+r}, v{D+4+r}')
    g(f'v_cvt_pk_bf16_f32 v{D}, v{D}, v{D+1}')
    g(f'v_cvt_pk_bf16_f32 v{D+2}, v{D+2}, v{D+3}')
    g('v_lshrrev_b32 v3, 5, v0')
    g('v_lshlrev_b32 v3, 8, v3')
    g('v_bfe_u32 v4, v0, 3, 2')
    g('v_lshl_add_u32 v3, v4, 6, v3')
    g('v_and_b32 v4, 7, v0')
    g('v_lshl_add_u32 v3, v4, 1, v3')
    g(f'ds_write_b16 v3, v{D} offset:{L_QL}')
    g(f'ds_write_b16_d16_hi v3, v{D} offset:{L_QL+16}')
    g(f'ds_write_b16 v3, v{D+2} offset:{L_QL+32}')
    g(f'ds_write_b16_d16_hi v3, v{D+2} offset:{L_QL+48}')
    g('s_waitcnt lgkmcnt(0)')
    g('v_mov_b32 v4, 0')
    g('v_mov_b32 v5, 1')
    g(f'ds_write_b32 v4, v5 offset:{C_QF}')

def emit_hpoll(g, S_RB):
    set_off = []
    g(f's_mul_i32 s{S_T2}, s{S_RB}, 3')
    g('v_lshrrev_b32 v3, 5, v0')
    g(f'v_mul_u32_u24 v3, {72*1024}, v3')
    g('v_bfe_u32 v4, v0, 4, 1')
    g('v_lshl_add_u32 v3, v4, 10, v3')
    g('v_lshl_add_u32 v3, v1, 4, v3')
    for k in range(3):
        g(f's_add_u32 s{S_T0}, s{S_T2}, {k}')
        g(f's_lshr_b32 s{S_T1}, s{S_T0}, 2')
        g(f's_lshl_b32 s{S_T1}, s{S_T1}, 11')
        g(f's_and_b32 s{S_T0}, s{S_T0}, 3')
        g(f's_lshl_b32 s{S_T0}, s{S_T0}, 8')
        g(f's_add_u32 s{S_T0}, s{S_T0}, s{S_T1}')
        g(f'v_add_u32 v{156+k}, s{S_T0}, v3')
    g(f's_mov_b64 {pr(S_B2)}, {pr(S_WS)}')
    add_base_imm(g, S_B2, WS_L1)
    D = 124
    loads = [f'global_load_dwordx4 {vr(D+4*k)}, v{156+k}, {pr(S_B2)} sc1' for k in range(3)]
    poll_retry(g, 'h', loads, D, 5, 6, sleep=g.o.get('hsleep', 8), st_first=5, st_cnt=1)
    g.stamp(6)
    N = 12
    T = D + 12
    U = D + 24
    for j in range(N): g(f'v_mov_b32 v{T+j}, v{D+j}')
    g.nop(2)
    for j in range(N): g(f'v_permlane16_swap_b32 v{D+j}, v{T+j}')
    g.nop(1)
    for j in range(N): g(f'v_add_f32 v{D+j}, v{D+j}, v{T+j}')
    for j in range(N): bf16_round(g, D+j, D+j)
    for j in range(N): g(f'v_mov_b32 v{U+j}, v{D+j}')
    g.nop(2)
    for j in range(N): g(f'v_permlane32_swap_b32 v{D+j}, v{U+j}')
    g.nop(1)
    for j in range(N): g(f'v_mul_f32 v{T+j}, s{S_L2E}, v{D+j}')
    for j in range(N): g(f'v_exp_f32 v{T+j}, -v{T+j}')
    g.nop(1)
    for j in range(N): g(f'v_add_f32 v{T+j}, 1.0, v{T+j}')
    for j in range(N): g(f'v_rcp_f32 v{T+j}, v{T+j}')
    g.nop(1)
    for j in range(N): g(f'v_mul_f32 v{T+j}, v{D+j}, v{T+j}')
    for j in range(N): bf16_round(g, T+j, T+j)
    for j in range(N): g(f'v_mul_f32 v{T+j}, v{T+j}, v{U+j}')
    for j in range(N): g(f'v_cvt_pk_bf16_f32 v{T+j}, v{T+j}, v{T+j}')
    g('v_lshrrev_b32 v3, 3, v1')
    g('v_mul_u32_u24 v3, 96, v3')
    g('v_and_b32 v4, 7, v1')
    g('v_add_u32 v3, v3, v4')
    g('v_lshlrev_b32 v3, 2, v3')
    for k in range(3):
        for r in range(4):
            g(f'ds_write_b32 v3, v{T+4*k+r} offset:{L_HD + 128*k + 32*r}')
    g('s_waitcnt lgkmcnt(0)')
    g('v_mov_b32 v4, 0')
    g('v_mov_b32 v5, 1')
    g(f'ds_write_b32 v4, v5 offset:{C_HF}')

def l2_lane_offsets(g):
    g('v_mul_u32_u24 v5, 2304, v2')
    g('v_lshl_add_u32 v5, v1, 4, v5')
    g('v_add_u32 v6, 256, v5')
    g('v_add_u32 v7, 1024, v5')
    g('v_cmp_gt_u32_e32 vcc, 8, v1')
    g.nop(2)
    g('v_cndmask_b32_e32 v6, v7, v6, vcc')

def l2_issue(g, W0, ng, base=None, a0=5, a1=6, last_adv=False):
    pol = g.pol
    base = S_B if base is None else base
    for i in range(ng):
        g(f'global_load_dwordx4 {vr(W0+12*i)}, v{a0}, {pr(base)} {pol}')
        g(f'global_load_dwordx4 {vr(W0+12*i+4)}, v{a1}, {pr(base)} {pol}')
        g(f'global_load_dwordx4 {vr(W0+12*i+8)}, v{a0}, {pr(base)} offset:1280 {pol}')
        if i < ng-1 or last_adv: add_base_imm(g, base, 9216)

def l2_compute(g, W0, ng, P, AC, BE0, waitvm=None):
    for i in range(ng):
        g(f's_waitcnt lgkmcnt({ng-1-i})')
        be = BE0 + 8*(i & 1); bo = be + 4
        for r in range(4): g(f'v_and_b32 v{be+r}, v{P+2*i}, v{MK+r}')
        for r in range(4): g(f'v_and_b32 v{bo+r}, v{P+2*i+1}, v{MK+r}')
        if waitvm is not None:
            g(f's_waitcnt vmcnt({waitvm(i)})')
        c = (lambda k: '0') if i == 0 else (lambda k: vr(AC+k))
        if waitvm is None: g.nop(1) if False else None
        g(f'v_mfma_f32_16x16x32_bf16 {vr(AC)}, {vr(W0+12*i)}, {vr(be)}, {c(0)}')
        g(f'v_mfma_f32_16x16x32_bf16 {vr(AC+4)}, {vr(W0+12*i+4)}, {vr(be)}, {c(4)}')
        g(f'v_mfma_f32_16x16x32_bf16 {vr(AC+8)}, {vr(W0+12*i+4)}, {vr(bo)}, {c(8)}')
        g(f'v_mfma_f32_16x16x32_bf16 {vr(AC+12)}, {vr(W0+12*i+8)}, {vr(bo)}, {c(12)}')

S_PB = 80
def l2_prep(g, nprod, prod_sreg, ws_const, VI, VP):
    fs = nprod*128
    g(f's_mul_i32 s{S_T0}, s{S_WAVE}, 3072')
    g(f'v_lshlrev_b32 v{VI}, 4, v0')
    g(f'v_add_u32 v{VI}, s{S_T0}, v{VI}')
    g(f's_mul_i32 s{S_T0}, s{S_WAVE}, 24')
    g(f'v_add_u32 v{VP}, s{S_T0}, v0')
    g(f'v_lshlrev_b32 v{VI+1}, 4, v{VP}')
    g(f'v_lshrrev_b32 v6, 4, v{VP}')
    g(f'v_bfe_u32 v7, v{VP}, 3, 1')
    g('v_mad_u32_u24 v6, v7, 18, v6')
    g(f'v_mul_u32_u24 v6, {fs}, v6')
    g(f'v_and_b32 v7, 7, v{VP}')
    g(f'v_lshl_add_u32 v{VP}, v7, 4, v6')
    g(f's_mul_i32 s{S_T0}, s{S_CB}, {6*fs}')
    g(f's_lshl_b32 s{S_T1}, s{prod_sreg}, 7')
    g(f's_add_u32 s{S_T0}, s{S_T0}, s{S_T1}')
    set_ws_base(g, S_PB, S_T0, ws_const)

def l2_finish(g, AC, VI, VP, R0, st_a=None, st_b=None):
    g('v_cmp_gt_u32_e32 vcc, 2, v2')
    g('v_mov_b32 v12, 0')
    g('v_mov_b32 v13, 1')
    g.nop(5)
    g(f'ds_write_b128 v{VI}, {vr(AC)} offset:{L_Y}')
    for r in range(4):
        g(f'v_cndmask_b32_e32 v{AC+4+r}, v{AC+8+r}, v{AC+4+r}, vcc')
    g(f'ds_write_b128 v{VI}, {vr(AC+12)} offset:{L_Y + 2048}')
    g(f'ds_write_b128 v{VI}, {vr(AC+4)} offset:{L_Y + 1024}')
    if st_a is not None: g.stamp(st_a)
    g(f's_mov_b64 {pr(S_SV)}, exec')
    g('s_waitcnt lgkmcnt(0)')
    g('s_mov_b64 exec, 1')
    g(f'ds_add_u32 v12, v13 offset:{C_YCNT}')
    g(f's_mov_b64 exec, 0xffffff')
    lp = g.u('ys'); ok = g.u('yok')
    g(f's_mov_b32 s{S_CNT}, {SPIN_LIMIT*8}')
    g.label(lp)
    g(f'ds_read_b32 v13, v12 offset:{C_YCNT}')
    g('s_waitcnt lgkmcnt(0)')
    g(f'v_readfirstlane_b32 s{S_T0}, v13')
    g(f's_cmp_ge_u32 s{S_T0}, 4')
    g(f's_cbranch_scc1 {ok}')
    g(f's_sub_u32 s{S_CNT}, s{S_CNT}, 1')
    g(f's_cbranch_scc0 {lp}')
    g.label(ok)
    for w in range(4):
        g(f'ds_read_b128 {vr(R0+8*w)}, v{VI+1} offset:{L_Y + 3072*w}')
        g(f'ds_read_b128 {vr(R0+4+8*w)}, v{VI+1} offset:{L_Y + 3072*w + 6*256}')
    for stage in range(4):
        g(f's_waitcnt lgkmcnt({6-2*stage})')
        for r in range(4):
            if stage == 0:
                g(f'v_add_f32 v{R0+r}, v{R0+r}, v{R0+4+r}')
            else:
                g(f'v_add_f32 v{R0+8*stage+r}, v{R0+8*stage+r}, v{R0+8*stage+4+r}')
                g(f'v_add_f32 v{R0+r}, v{R0+r}, v{R0+8*stage+r}')
    tag_insert(g, R0+4, R0, VTAG)
    g(f'global_store_dwordx4 v{VP}, {vr(R0+4)}, {pr(S_PB)} sc1')
    g(f's_mov_b64 exec, {pr(S_SV)}')
    if st_b is not None: g.stamp(st_b)

def reduce_hh(g, d, t):
    g.nop(2)
    for r in range(4):
        g(f'v_add_f32_dpp v{d+r}, v{d+r}, v{d+r} row_ror:8 row_mask:0xf bank_mask:0xf')
    for r in range(4): g(f'v_mov_b32 v{t+r}, v{d+r}')
    g.nop(2)
    for r in range(4): g(f'v_permlane16_swap_b32 v{d+r}, v{t+r}')
    g.nop(1)
    for r in range(4): g(f'v_add_f32 v{d+r}, v{d+r}, v{t+r}')
    for r in range(4): g(f'v_mov_b32 v{t+r}, v{d+r}')
    g.nop(2)
    for r in range(4): g(f'v_permlane32_swap_b32 v{d+r}, v{t+r}')
    g.nop(1)
    for r in range(4): g(f'v_add_f32 v{d+r}, v{d+r}, v{t+r}')

def emit_final_old(g):
    g('v_and_b32 v3, 7, v0')
    g('v_lshlrev_b32 v3, 1, v3')
    g(f's_lshl_b32 s{S_T0}, s{S_F}, 6')
    g(f'v_add_u32 v3, s{S_T0}, v3')
    for r in range(4):
        g(f'global_load_ushort v{124+r}, v3, {pr(S_X)} offset:{16*r}')
    g('v_lshlrev_b32 v4, 4, v0')
    g('v_add_u32 v5, 4096, v4')
    g(f's_mul_i32 s{S_T0}, s{S_F}, 6144')
    set_ws_base(g, S_B, S_T0, WS_F)
    g(f's_lshl_b32 s{S_T0}, s{S_F}, 11')
    set_ws_base(g, S_B2, S_T0, WS_B)
    lds_wait_ge(g, 'own', C_ACNT, 8, 12, sleep=8)
    g.stamp(5)
    D = 16
    loads = [f'global_load_dwordx4 {vr(D+4*k)}, v{4 if k < 4 else 5}, {pr(S_B)} offset:{1024*(k%4)} sc1' for k in range(6)]
    if 'fin' in g.o.get('nopoll', ()): g.o['finpipe'] = 0
    if not g.o.get('finpipe'):
        loads += [f'global_load_dwordx4 {vr(D+24+4*k)}, v4, {pr(S_B2)} offset:{1024*k} sc1' for k in range(2)]
        poll_retry(g, 'fin', loads, D, 13, 15, sleep=0, st_cnt=1)
    else:
        poll_retry(g, 'fin', loads, D, 13, 15, sleep=2)
        g.stamp(4)
        for k in range(1, 6):
            for r in range(4): g(f'v_add_f32 v{D+r}, v{D+r}, v{D+4*k+r}')
        reduce_hh(g, D, 96)
        for r in range(4): bf16_round(g, D+r, D+r)
        for r in range(4): g(f'v_lshlrev_b32 v{124+r}, 16, v{124+r}')
        NS = g.o.get('finpipe')
        SETS = [64 + 8*j for j in range(NS)]
        def iss(j):
            for k in range(2):
                g(f'global_load_dwordx4 {vr(SETS[j]+4*k)}, v4, {pr(S_B2)} offset:{1024*k} sc1')
        lp = g.u('fp_lp'); done = g.u('fp_done')
        oks = [g.u('fp_ok') for _ in range(NS)]
        g(f's_mov_b32 s{S_CNT}, {SPIN_LIMIT}')
        for j in range(NS-1): iss(j)
        g.label(lp)
        for j in range(NS):
            iss((j + NS - 1) % NS)
            g(f's_waitcnt vmcnt({2*(NS-1)})')
            tag_check(g, SETS[j], 13, 15, True)
            tag_check(g, SETS[j]+4, 13, 15, False)
            g(f's_cmp_eq_u64 {pr(S_OK)}, -1')
            g(f's_cbranch_scc1 {oks[j]}')
        g(f's_sub_u32 s{S_CNT}, s{S_CNT}, 1')
        g(f's_cbranch_scc0 {lp}')
        for j in range(NS):
            g.label(oks[j])
            for r in range(4): g(f'v_add_f32 v{D+24+r}, v{SETS[j]+r}, v{SETS[j]+4+r}')
            if j < NS-1: g(f's_branch {done}')
        g.label(done)
    g.stamp(6)
    FF = D; AT = D + 24
    if not g.o.get('finpipe'):
        for k in range(1, 6):
            for r in range(4): g(f'v_add_f32 v{FF+r}, v{FF+r}, v{FF+4*k+r}')
        for r in range(4): g(f'v_add_f32 v{AT+r}, v{AT+r}, v{AT+4+r}')
    if g.o.get('finpipe'):
        reduce_hh(g, AT, 96)
        for r in range(4): bf16_round(g, AT+r, AT+r)
    else:
        vals = [FF+r for r in range(4)] + [AT+r for r in range(4)]
        T = 96
        g.nop(2)
        for v in vals: g(f'v_add_f32_dpp v{v}, v{v}, v{v} row_ror:8 row_mask:0xf bank_mask:0xf')
        for j, v in enumerate(vals): g(f'v_mov_b32 v{T+j}, v{v}')
        g.nop(2)
        for j, v in enumerate(vals): g(f'v_permlane16_swap_b32 v{v}, v{T+j}')
        g.nop(1)
        for j, v in enumerate(vals): g(f'v_add_f32 v{v}, v{v}, v{T+j}')
        for j, v in enumerate(vals): g(f'v_mov_b32 v{T+j}, v{v}')
        g.nop(2)
        for j, v in enumerate(vals): g(f'v_permlane32_swap_b32 v{v}, v{T+j}')
        g.nop(1)
        for j, v in enumerate(vals): g(f'v_add_f32 v{v}, v{v}, v{T+j}')
        for v in vals: bf16_round(g, v, v)
        for r in range(4): g(f'v_lshlrev_b32 v{124+r}, 16, v{124+r}')
    for r in range(4): g(f'v_add_f32 v{AT+r}, v{124+r}, v{AT+r}')
    for r in range(4): bf16_round(g, AT+r, AT+r)
    for r in range(4): g(f'v_add_f32 v{AT+r}, v{AT+r}, v{FF+r}')
    g(f'v_cvt_pk_bf16_f32 v28, v{AT}, v{AT+1}')
    g(f'v_cvt_pk_bf16_f32 v29, v{AT+2}, v{AT+3}')
    g('v_cmp_gt_u32_e32 vcc, 8, v0')
    g(f's_and_saveexec_b64 {pr(S_SV)}, vcc')
    g(f'global_store_short v3, v28, {pr(S_OUT)}')
    g(f'global_store_short_d16_hi v3, v28, {pr(S_OUT)} offset:16')
    g(f'global_store_short v3, v29, {pr(S_OUT)} offset:32')
    g(f'global_store_short_d16_hi v3, v29, {pr(S_OUT)} offset:48')
    g(f's_cmp_lg_u32 s{S_F}, 0')
    g('s_cbranch_scc1 L_nobump')
    g('s_mov_b64 exec, 1')
    g('v_mov_b32 v4, 0')
    g(f'ds_read_b32 v5, v4 offset:{C_RAWG}')
    g('s_waitcnt lgkmcnt(0)')
    g(f'global_store_dword v4, v5, {pr(S_WS)} sc1')
    g.label('L_nobump')
    g(f's_mov_b64 exec, {pr(S_SV)}')

C_FFF = 40
L_FF = L_QL + 0
def emit_ffgather(g):
    g('v_lshlrev_b32 v4, 4, v0')
    g('v_add_u32 v5, 4096, v4')
    g(f's_mul_i32 s{S_T0}, s{S_F}, 6144')
    set_ws_base(g, S_B, S_T0, WS_F)
    lds_wait_ge(g, 'own', C_ACNT, g.o.get('ffown', 4), 12, sleep=8)
    g.stamp(5)
    D = 16
    loads = [f'global_load_dwordx4 {vr(D+4*k)}, v{4 if k < 4 else 5}, {pr(S_B)} offset:{1024*(k%4)} sc1' for k in range(6)]
    poll_retry(g, 'fin', loads, D, 13, 15, sleep=g.o.get('ffsleep', 1), st_cnt=1)
    g.stamp(4)
    for k in range(1, 6):
        for r in range(4): g(f'v_add_f32 v{D+r}, v{D+r}, v{D+4*k+r}')
    reduce_hh(g, D, 96)
    for r in range(4): bf16_round(g, D+r, D+r)
    g('v_lshlrev_b32 v4, 4, v0')
    g('v_cmp_gt_u32_e32 vcc, 8, v0')
    g(f's_and_saveexec_b64 {pr(S_SV)}, vcc')
    g(f'ds_write_b128 v4, {vr(D)} offset:{L_Y}')
    g('s_waitcnt lgkmcnt(0)')
    g('v_mov_b32 v12, 0'); g('v_mov_b32 v13, 1')
    g(f'ds_write_b32 v12, v13 offset:{C_FFF}')
    g(f's_mov_b64 exec, {pr(S_SV)}')
    g.stamp(6)

def emit_final(g):
    g('v_and_b32 v3, 7, v0')
    g('v_lshlrev_b32 v3, 1, v3')
    g(f's_lshl_b32 s{S_T0}, s{S_F}, 6')
    g(f'v_add_u32 v3, s{S_T0}, v3')
    for r in range(4):
        g(f'global_load_ushort v{124+r}, v3, {pr(S_X)} offset:{16*r}')
    g('v_lshlrev_b32 v4, 4, v0')
    g(f's_lshl_b32 s{S_T0}, s{S_F}, 11')
    set_ws_base(g, S_B2, S_T0, WS_B)
    g('v_mov_b32 v12, 0')
    g(f'ds_read_b32 v30, v12 offset:{C_RAWG}')
    lds_wait_ge(g, 'own', C_ACNT, 8, 12, sleep=8)
    g.stamp(5)
    g('s_waitcnt vmcnt(0)')
    for r in range(4): g(f'v_lshlrev_b32 v{124+r}, 16, v{124+r}')
    AT = 40
    NS = g.o.get('finpipe') or 3
    SETS = [64 + 8*j for j in range(NS)]
    def iss(j):
        for k in range(2):
            g(f'global_load_dwordx4 {vr(SETS[j]+4*k)}, v4, {pr(S_B2)} offset:{1024*k} sc1')
    if 'fin' not in g.o.get('nopoll', ()):
        lp = g.u('fp_lp'); done = g.u('fp_done')
        oks = [g.u('fp_ok') for _ in range(NS)]
        g(f's_mov_b32 s{S_CNT}, {SPIN_LIMIT}')
        for j in range(NS-1): iss(j)
        g.label(lp)
        for j in range(NS):
            iss((j + NS - 1) % NS)
            g(f's_waitcnt vmcnt({2*(NS-1)})')
            tag_check(g, SETS[j], 13, 15, True)
            tag_check(g, SETS[j]+4, 13, 15, False)
            g(f's_cmp_eq_u64 {pr(S_OK)}, -1')
            g(f's_cbranch_scc1 {oks[j]}')
        g(f's_sub_u32 s{S_CNT}, s{S_CNT}, 1')
        g(f's_cbranch_scc0 {lp}')
        for j in range(NS):
            g.label(oks[j])
            for r in range(4): g(f'v_add_f32 v{AT+r}, v{SETS[j]+r}, v{SETS[j]+4+r}')
            if j < NS-1: g(f's_branch {done}')
        g.label(done)
    g.stamp(6)
    reduce_hh(g, AT, 48)
    for r in range(4): bf16_round(g, AT+r, AT+r)
    for r in range(4): g(f'v_add_f32 v{AT+r}, v{124+r}, v{AT+r}')
    for r in range(4): bf16_round(g, AT+r, AT+r)
    if 'fin' not in g.o.get('nopoll', ()):
        lds_wait_ge(g, 'fff', C_FFF, 1, 12, sleep=0)
    g('v_lshlrev_b32 v4, 4, v0')
    g(f'ds_read_b128 {vr(52)}, v4 offset:{L_Y}')
    g('v_cmp_gt_u32_e32 vcc, 8, v0')
    g('s_waitcnt lgkmcnt(0)')
    for r in range(4): g(f'v_add_f32 v{AT+r}, v{AT+r}, v{52+r}')
    g(f'v_cvt_pk_bf16_f32 v28, v{AT}, v{AT+1}')
    g(f'v_cvt_pk_bf16_f32 v29, v{AT+2}, v{AT+3}')
    g(f's_and_saveexec_b64 {pr(S_SV)}, vcc')
    g(f'global_store_short v3, v28, {pr(S_OUT)}')
    g(f'global_store_short_d16_hi v3, v28, {pr(S_OUT)} offset:16')
    g(f'global_store_short v3, v29, {pr(S_OUT)} offset:32')
    g(f'global_store_short_d16_hi v3, v29, {pr(S_OUT)} offset:48')
    g(f's_cmp_lg_u32 s{S_F}, 0')
    g('s_cbranch_scc1 L_nobump')
    g('s_mov_b64 exec, 1')
    g('v_mov_b32 v4, 0')
    g(f'global_store_dword v4, v30, {pr(S_WS)} sc1')
    g.label('L_nobump')
    g(f's_mov_b64 exec, {pr(S_SV)}')

def emit_roleO(g):
    S_HO = S_ID
    g(f's_sub_u32 s{S_CB}, s{S_SLOT}, 26')
    g(f's_cmp_ge_u32 s{S_CB}, 3')
    g(f's_cselect_b32 s{S_T0}, 1, 0')
    g(f's_mul_i32 s{S_T1}, s{S_T0}, 3')
    g(f's_sub_u32 s{S_CB}, s{S_CB}, s{S_T1}')
    g(f's_lshl_b32 s{S_HO}, s{S_XCD}, 1')
    g(f's_add_u32 s{S_HO}, s{S_HO}, s{S_T0}')
    NE = g.o.get('oearly', 0)
    W0 = 16
    g(f's_mul_i32 s{S_T0}, s{S_HO}, {256*1152}')
    g(f's_mul_i32 s{S_T1}, s{S_CB}, 384')
    g(f's_add_u32 s{S_T0}, s{S_T0}, s{S_T1}')
    g(f's_mul_i32 s{S_T1}, s{S_WAVE}, {64*1152}')
    g(f's_add_u32 s{S_T0}, s{S_T0}, s{S_T1}')
    g(f's_mov_b64 s[82:83], {pr(S_WO)}')
    add_base(g, 82, S_T0)
    l2_lane_offsets(g)
    g('v_mov_b32 v165, v5'); g('v_mov_b32 v166, v6')
    l2_issue(g, W0, NE, base=82, a0=165, a1=166, last_adv=True)
    g('s_barrier')
    g.stamp(2)
    g(f's_cmp_lg_u32 s{S_WAVE}, 1')
    g('s_cbranch_scc1 L_Onoq')
    emit_tag_publish(g)
    emit_qpoll(g, g.o.get('qdelayO', 0))
    g.label('L_Onoq')
    get_tag_from_lds(g, 12, VTAG)
    if g.o.get('touchB'):
        l2_prep(g, 16, S_HO, WS_B, 162, 164)
        g(f'v_not_b32 v15, v{VTAG}')
        tag_insert(g, 112, 112, 15)
        g(f's_mov_b64 {pr(S_SV)}, exec')
        g('s_mov_b64 exec, 0xffffff')
        g(f'global_store_dwordx4 v164, {vr(112)}, {pr(S_PB)} sc1')
        g(f's_mov_b64 exec, {pr(S_SV)}')
        g.nop(2)
    make_masks(g, MK, 1, 112)
    if g.o.get('nolate', 0) > 1:
        g('s_branch L_end_stamp')
    if NE < 8:
        if not g.o.get('early'):
            lds_wait_ge(g, 'viss', C_VISS, g.o.get('ogate', 8), 12, sleep=4)
        if g.o.get('ogg'):
            global_gate(g, g.o.get('ogg'))
        osp = g.o.get('osplit', 0)
        if g.o.get('gg2') and g.o.get('ogg2'):
            if osp: l2_issue(g, W0 + 12*NE, osp - NE, base=82, a0=165, a1=166, last_adv=True)
            lds_wait_ge(g, 'viss8', C_VISS, 8, 12, sleep=4)
            count_in(g)
            go_wait(g)
            l2_issue(g, W0 + 12*max(osp,NE), 8 - max(osp,NE), base=82, a0=165, a1=166)
        elif osp:
            l2_issue(g, W0 + 12*NE, osp - NE, base=82, a0=165, a1=166, last_adv=True)
            lds_wait_ge(g, 'viss8', C_VISS, 8, 12, sleep=4)
            l2_issue(g, W0 + 12*osp, 8 - osp, base=82, a0=165, a1=166)
            if g.o.get('gg2'): count_in(g)
        else:
            l2_issue(g, W0 + 12*NE, 8 - NE, base=82, a0=165, a1=166)
        if g.o.get('ggate'): count_in(g)
    else:
        lds_wait_ge(g, 'own', C_ACNT, 8, 12, sleep=4)
    if not g.o.get('stO'): g.stamp(3)
    g(f's_lshl_b32 s{S_T0}, s{S_HO}, 14')
    g(f's_and_b32 s{S_T1}, s{S_WAVE}, 1')
    g(f's_lshl_b32 s{S_T1}, s{S_T1}, 9')
    g(f's_add_u32 s{S_T0}, s{S_T0}, s{S_T1}')
    g(f's_lshr_b32 s{S_T1}, s{S_WAVE}, 1')
    g(f's_lshl_b32 s{S_T1}, s{S_T1}, 7')
    g(f's_add_u32 s{S_T0}, s{S_T0}, s{S_T1}')
    set_ws_base(g, S_B, S_T0, WS_A)
    g(f's_lshl_b32 s{S_T0}, s{S_HO}, 11')
    g(f's_lshr_b32 s{S_T1}, s{S_WAVE}, 1')
    g(f's_lshl_b32 s{S_T1}, s{S_T1}, 4')
    g(f's_add_u32 s{S_T0}, s{S_T0}, s{S_T1}')
    set_ws_base(g, S_B2, S_T0, WS_S)
    g('v_lshrrev_b32 v3, 5, v0')
    g('v_bfe_u32 v5, v0, 3, 1')
    g('v_lshl_add_u32 v4, v3, 1, v5')
    g('v_lshlrev_b32 v3, 12, v4')
    g('v_lshlrev_b32 v4, 9, v4')
    g('v_bfe_u32 v5, v0, 4, 1')
    g('v_lshl_add_u32 v3, v5, 8, v3')
    g('v_and_b32 v5, 7, v0')
    g('v_lshl_add_u32 v3, v5, 4, v3')
    g('v_lshrrev_b32 v160, 5, v0')
    g('v_lshlrev_b32 v160, 6, v160')
    g('v_bfe_u32 v5, v0, 4, 1')
    g('v_lshl_add_u32 v160, v5, 5, v160')
    g('v_and_b32 v5, 7, v0')
    g('v_add_u32 v160, v160, v5')
    g(f's_lshl_b32 s{S_T0}, s{S_WAVE}, 7')
    g(f'v_add_u32 v160, s{S_T0}, v160')
    g('v_lshlrev_b32 v160, 2, v160')
    g('v_lshrrev_b32 v161, 3, v1')
    g('v_lshlrev_b32 v161, 6, v161')
    g('v_lshl_add_u32 v161, v2, 1, v161')
    g(f'v_add_u32 v161, s{S_T0}, v161')
    g('v_lshlrev_b32 v161, 2, v161')
    l2_prep(g, 16, S_HO, WS_B, 162, 164)
    D = 112
    if g.o.get('fastA'):
        g(f'v_add_u32 v156, {WS_ALT}, v3')
        g(f'v_add_u32 v157, {WS_ALT}, v4')
        g('v_mov_b32 v158, v3'); g('v_mov_b32 v159, v4')
        def pre():
            g(f's_and_b32 s{S_T0}, s{S_CNT}, 3')
            g(f's_cmp_eq_u32 s{S_T0}, 1')
            g(f's_cselect_b64 vcc, -1, 0')
            g('v_cndmask_b32_e32 v3, v156, v158, vcc')
            g('v_cndmask_b32_e32 v4, v157, v159, vcc')
    else:
        pre = None
    if g.stamps and g.o.get('stO'):
        pre0 = pre
        def pre():
            g('s_waitcnt lgkmcnt(0)')
            g('s_mov_b64 s[68:69], s[70:71]')
            g('s_mov_b64 s[70:71], s[74:75]')
            g('s_memrealtime s[74:75]')
            if pre0: pre0()
    loads = [f'global_load_dwordx4 {vr(D+4*i)}, v3, {pr(S_B)} offset:{1024*i} sc1' for i in range(4)]
    loads += [f'global_load_dwordx4 {vr(D+16+4*i)}, v4, {pr(S_B2)} offset:{128*i} sc1' for i in range(4)]
    if g.o.get('warm') and g.o.get('fastA'):
        for i in range(4): g(f'global_load_dwordx4 {vr(D+4*i)}, v156, {pr(S_B)} offset:{1024*i} sc1')
        for i in range(4): g(f'global_load_dwordx4 {vr(D+16+4*i)}, v157, {pr(S_B2)} offset:{128*i} sc1')
    if NE < 8 and g.o.get('ogate', 8) < 8 and g.o.get('ownwait', 8):
        lds_wait_ge(g, 'own', C_ACNT, g.o.get('ownwait', 8), 12, sleep=4)
    poll_retry(g, 'ha', loads, D, 5, 6, sleep=0, st_cnt=1, pre_iter=pre)
    g.stamp(4)
    ST = D + 16
    M = 144; LL = 145; O = 148
    for i in range(4):
        g(f'v_and_b32 v{ST+4*i}, 0xffffff00, v{ST+4*i}')
    g(f'v_max_f32 v{M}, v{ST}, v{ST+4}')
    g(f'v_max3_f32 v{M}, v{M}, v{ST+8}, v{ST+12}')
    g.nop(2)
    g(f'v_max_f32_dpp v{M}, v{M}, v{M} row_ror:8 row_mask:0xf bank_mask:0xf')
    for i in range(4): g(f'v_sub_f32 v{ST+4*i}, v{ST+4*i}, v{M}')
    for i in range(4): g(f'v_exp_f32 v{ST+4*i}, v{ST+4*i}')
    g.nop(1)
    g(f'v_mul_f32 v{LL}, v{ST}, v{ST+1}')
    for r in range(4): g(f'v_mul_f32 v{O+r}, v{ST}, v{D+r}')
    for i in range(1, 4):
        g(f'v_fmac_f32 v{LL}, v{ST+4*i}, v{ST+4*i+1}')
        for r in range(4): g(f'v_fmac_f32 v{O+r}, v{ST+4*i}, v{D+4*i+r}')
    g.nop(1)
    g(f'v_add_f32_dpp v{LL}, v{LL}, v{LL} row_ror:8 row_mask:0xf bank_mask:0xf')
    for r in range(4):
        g(f'v_add_f32_dpp v{O+r}, v{O+r}, v{O+r} row_ror:8 row_mask:0xf bank_mask:0xf')
    g(f'v_rcp_f32 v{LL}, v{LL}')
    g.nop(1)
    for r in range(4): g(f'v_mul_f32 v{O+r}, v{O+r}, v{LL}')
    for r in range(4): g(f'v_cvt_pk_bf16_f32 v{O+r}, v{O+r}, v{O+r}')
    for r in range(4): g(f'ds_write_b32 v160, v{O+r} offset:{L_OD + 32*r}')
    g('s_waitcnt lgkmcnt(0)')
    P = 112
    for i in range(8):
        g(f'ds_read_b64 v[{P+2*i}:{P+2*i+1}], v161 offset:{L_OD + 32*i}')
    l2_compute(g, W0, 8, P, 128, 144)
    l2_finish(g, 128, 162, 164, 16, st_a=None if g.o.get('stO') else 5, st_b=6)

def emit_qk_softmax(g, extra):
    K0, V0 = 16, 80
    QF = 144
    g('v_lshrrev_b32 v4, 3, v1')
    g('v_lshlrev_b32 v4, 8, v4')
    g('v_lshl_add_u32 v4, v2, 4, v4')
    for s in range(4):
        g(f'ds_read_b128 {vr(QF+4*s)}, v4 offset:{L_QL + 64*s}')
    SCR = [8, 12, 160, 164]
    for T in range(4):
        for r in range(4): g(f'v_mov_b32 v{SCR[T]+r}, 0')
    g('s_waitcnt lgkmcnt(0)')
    for T in range(4):
        g(f's_waitcnt vmcnt({12 - 4*T + extra})')
        for s in range(4):
            g(f'v_mfma_f32_16x16x32_bf16 {vr(SCR[T])}, {vr(K0+16*T+4*s)}, {vr(QF+4*s)}, {vr(SCR[T])}')
    g.nop(8)
    g.stamp(4)
    sc = [SCR[T]+r for T in range(4) for r in range(4)]
    TP = 144
    for k in range(0, 16, 2):
        g(f'v_cvt_pk_bf16_f32 v{TP+k//2}, v{sc[k]}, v{sc[k+1]}')
    for k in range(0, 16, 2):
        g(f'v_lshlrev_b32 v{sc[k]}, 16, v{TP+k//2}')
        g(f'v_and_b32 v{sc[k+1]}, 0xffff0000, v{TP+k//2}')
    for k in range(16):
        g(f'v_mul_f32 v{sc[k]}, 0x{SCALE:08x}, v{sc[k]}')
    for k in range(0, 16, 2):
        g(f'v_cvt_pk_bf16_f32 v{TP+k//2}, v{sc[k]}, v{sc[k+1]}')
    for k in range(0, 16, 2):
        g(f'v_lshlrev_b32 v{sc[k]}, 16, v{TP+k//2}')
        g(f'v_and_b32 v{sc[k+1]}, 0xffff0000, v{TP+k//2}')
    M = 152; T1 = 153; LS = 154
    g(f'v_max3_f32 v{M}, v{sc[0]}, v{sc[1]}, v{sc[2]}')
    for k in range(3, 15, 2):
        g(f'v_max3_f32 v{M}, v{M}, v{sc[k]}, v{sc[k+1]}')
    g(f'v_max_f32 v{M}, v{M}, v{sc[15]}')
    xor16_op(g, 'v_max_f32', M, T1)
    xor32_op(g, 'v_max_f32', M, T1)
    g(f'v_mul_f32 v{M}, s{S_L2E}, v{M}')
    for k in range(16):
        g(f'v_fma_f32 v{sc[k]}, v{sc[k]}, s{S_L2E}, -v{M}')
    for k in range(16):
        g(f'v_exp_f32 v{sc[k]}, v{sc[k]}')
    g.nop(1)
    g(f'v_add_f32 v{LS}, v{sc[0]}, v{sc[1]}')
    for k in range(2, 16):
        g(f'v_add_f32 v{LS}, v{LS}, v{sc[k]}')
    for k in range(16):
        g(f'v_cvt_pk_bf16_f32 v{sc[k]}, v{sc[k]}, v{sc[k]}')
    xor16_op(g, 'v_add_f32', LS, T1)
    xor32_op(g, 'v_add_f32', LS, T1)
    AMK = 156
    make_masks(g, AMK, 1, 4)
    for T in range(4):
        for i in range(4):
            for r in range(4):
                g(f'v_and_b32 v{K0+16*T+4*i+r}, v{sc[4*T+i]}, v{AMK+r}')
    AC = 144
    for r in range(8): g(f'v_mov_b32 v{AC+r}, 0')
    g.stamp(5)

def issue_v(g, V0):
    pol = g.pol
    for T in range(4):
        for i in range(4):
            g(f'global_load_dwordx4 {vr(V0+16*T+4*i)}, v3, {pr(S_V)} offset:{256*i} {pol}')
        if T < 3: add_base_imm(g, S_V, 4096)
    g('v_mov_b32 v4, 0')
    g('v_mov_b32 v5, 1')
    g(f's_mov_b64 {pr(S_SV)}, exec')
    g('s_mov_b64 exec, 1')
    g(f'ds_add_u32 v4, v5 offset:{C_VISS}')
    g(f's_mov_b64 exec, {pr(S_SV)}')

def emit_attn(g):
    pol = g.pol
    K0, V0 = 16, 80
    QF = 144
    g('s_waitcnt lgkmcnt(0)')
    g(f's_lshl_b32 s{S_T0}, s{S_BB}, 4')
    g(f's_add_u32 s{S_T0}, s{S_T0}, s{S_HKV}')
    g(f's_lshl_b32 s{S_T0}, s{S_T0}, 20')
    il = g.o.get('kvil', True)
    g(f's_lshl_b32 s{S_T1}, s{S_SP}, {14 if il else 17}')
    g(f's_add_u32 s{S_T0}, s{S_T0}, s{S_T1}')
    g(f's_sub_u32 s{S_T1}, s{S_WAVE}, 4')
    g(f's_lshl_b32 s{S_T1}, s{S_T1}, {17 if il else 14}')
    g(f's_add_u32 s{S_T0}, s{S_T0}, s{S_T1}')
    add_base(g, S_K, S_T0)
    add_base(g, S_V, S_T0)
    g('v_lshlrev_b32 v4, 8, v1')
    g('v_lshl_add_u32 v4, v2, 4, v4')
    g('v_lshlrev_b32 v3, 10, v2')
    g('v_lshl_add_u32 v3, v1, 4, v3')
    if g.o.get('tlb'):
        g('v_mov_b32 v6, 0')
        g(f'global_load_dword v16, v6, {pr(S_K)} nt')
        g(f'global_load_dword v80, v6, {pr(S_V)} nt')
    g('s_barrier')
    g.stamp(1)
    g('s_setprio 2')
    for T in range(4):
        for s in range(4):
            g(f'global_load_dwordx4 {vr(K0+16*T+4*s)}, v4, {pr(S_K)} offset:{64*s} {pol}')
        if T < 3: add_base_imm(g, S_K, 4096)
    g('s_setprio 1')
    g(f's_cmp_ge_u32 s{S_WAVE}, 8')
    g('s_cbranch_scc1 L_grp2')
    issue_v(g, V0)
    g.stamp(2)
    lds_wait_ge(g, 'qf', C_QF, 1, 4, sleep=4)
    g.stamp(3)
    emit_qk_softmax(g, 16)
    g('s_branch L_pv')
    g.label('L_grp2')
    g.stamp(2)
    lds_wait_ge(g, 'qf', C_QF, 1, 4, sleep=4)
    g.stamp(3)
    emit_qk_softmax(g, 0)
    issue_v(g, V0)
    g.label('L_pv')
    M = 152; LS = 154; AC = 144
    for T in range(4):
        g(f's_waitcnt vmcnt({12 - 4*T})')
        for i in range(4):
            a = AC + 4*(i & 1)
            g(f'v_mfma_f32_16x16x32_bf16 {vr(a)}, {vr(V0+16*T+4*i)}, {vr(K0+16*T+4*i)}, {vr(a)}')
    g.stamp(6)
    g(f's_sub_u32 s{S_T2}, s{S_WAVE}, 4')
    g(f's_lshl_b32 s{S_T0}, s{S_T2}, 10')
    g('v_lshlrev_b32 v4, 4, v0')
    g(f'v_add_u32 v4, s{S_T0}, v4')
    g('v_lshrrev_b32 v5, 3, v1')
    g('v_lshlrev_b32 v5, 3, v5')
    g(f's_lshl_b32 s{S_T0}, s{S_T2}, 4')
    g(f'v_add_u32 v5, s{S_T0}, v5')
    g(f'v_mov_b32 v6, v{M}')
    g(f'v_mov_b32 v7, v{LS}')
    g(f'ds_write_b64 v5, v[6:7] offset:{L_AS}')
    g.nop(2)
    for r in range(4): g(f'v_add_f32 v{AC+r}, v{AC+r}, v{AC+4+r}')
    g(f'ds_write_b128 v4, {vr(AC)} offset:{L_AO}')
    arrive_last(g, C_ACNT, 7, 'L_end_stamp')
    g(f'ds_read_b32 v14, v12 offset:{C_TAG}')
    g('v_lshlrev_b32 v4, 4, v0')
    g('v_lshrrev_b32 v5, 3, v1')
    g('v_lshlrev_b32 v5, 3, v5')
    ST = 16; OV = 32
    for w in range(8):
        g(f'ds_read_b64 v[{ST+2*w}:{ST+2*w+1}], v5 offset:{L_AS + 16*w}')
    for w in range(8):
        g(f'ds_read_b128 {vr(OV+4*w)}, v4 offset:{L_AO + 1024*w}')
    g(f's_lshl_b32 s{S_T0}, s{S_HKV}, 1')
    g(f's_add_u32 s{S_T0}, s{S_T0}, s{S_BB}')
    g(f's_lshl_b32 s{S_T0}, s{S_T0}, 3')
    g(f's_add_u32 s{S_T0}, s{S_T0}, s{S_SP}')
    g(f's_lshl_b32 s{S_T1}, s{S_T0}, 10')
    set_ws_base(g, S_B, S_T1, WS_A)
    g(f's_lshl_b32 s{S_T1}, s{S_T0}, 7')
    set_ws_base(g, S_B2, S_T1, WS_S)
    g('s_waitcnt lgkmcnt(8)')
    g(f'v_max3_f32 v8, v{ST}, v{ST+2}, v{ST+4}')
    g(f'v_max3_f32 v8, v8, v{ST+6}, v{ST+8}')
    g(f'v_max3_f32 v8, v8, v{ST+10}, v{ST+12}')
    g(f'v_max_f32 v8, v8, v{ST+14}')
    g('v_and_b32 v8, 0xffffff00, v8')
    for w in range(8): g(f'v_sub_f32 v{ST+2*w}, v{ST+2*w}, v8')
    for w in range(8): g(f'v_exp_f32 v{ST+2*w}, v{ST+2*w}')
    g.nop(1)
    g(f'v_mul_f32 v9, v{ST}, v{ST+1}')
    for w in range(1, 8): g(f'v_fmac_f32 v9, v{ST+2*w}, v{ST+2*w+1}')
    g('v_mov_b32 v10, 0'); g('v_mov_b32 v11, 0')
    tag_insert(g, 72, 8, 14)
    g('s_waitcnt lgkmcnt(0)')
    for r in range(4):
        g(f'v_mul_f32 v{64+r}, v{ST}, v{OV+r}')
    for w in range(1, 8):
        for r in range(4):
            g(f'v_fmac_f32 v{64+r}, v{ST+2*w}, v{OV+4*w+r}')
    tag_insert(g, 68, 64, 14)
    if g.o.get('fastA'):
        g(f'v_add_u32 v6, {WS_ALT}, v4')
        g(f'global_store_dwordx4 v6, {vr(68)}, {pr(S_B)}')
    g(f'global_store_dwordx4 v4, {vr(68)}, {pr(S_B)} sc1')
    g('v_lshlrev_b32 v5, 1, v5')
    g('v_and_b32 v6, 0x37, v0')
    g('v_cmp_eq_u32_e32 vcc, 0, v6')
    g(f's_and_saveexec_b64 {pr(S_SV)}, vcc')
    if g.o.get('fastA'):
        g(f'v_add_u32 v6, {WS_ALT}, v5')
        g(f'global_store_dwordx4 v6, {vr(72)}, {pr(S_B2)}')
    g(f'global_store_dwordx4 v5, {vr(72)}, {pr(S_B2)} sc1')
    g(f's_mov_b64 exec, {pr(S_SV)}')

def generate(stamps=False, pol='nt', opts=None):
    g = G(stamps, pol, opts)
    g('s_cmp_ge_u32 s2, 256')
    g('s_cbranch_scc1 L_end')
    g.stamp(0)
    g('s_load_dwordx16 s[4:19], s[0:1], 0')
    g('s_load_dwordx8 s[20:27], s[0:1], 64')
    g('v_lshrrev_b32 v3, 6, v0')
    g('v_and_b32 v0, 63, v0')
    g(f'v_readfirstlane_b32 s{S_WAVE}, v3')
    g(f'v_and_b32 v{V_N}, 15, v0')
    g(f'v_lshrrev_b32 v{V_G}, 4, v0')
    g(f's_and_b32 s{S_XCD}, s2, 7')
    g(f's_lshr_b32 s{S_SLOT}, s2, 3')
    g(f's_lshr_b32 s{S_HKV}, s{S_SLOT}, 4')
    g(f's_lshl_b32 s{S_T0}, s{S_XCD}, 1')
    g(f's_add_u32 s{S_HKV}, s{S_HKV}, s{S_T0}')
    g(f's_bfe_u32 s{S_BB}, s{S_SLOT}, 0x10003')
    g(f's_and_b32 s{S_SP}, s{S_SLOT}, 7')
    g(f's_mov_b32 s{S_L2E}, 0x{LOG2E:08x}')
    if g.o.get('skew'):
        g(f's_mul_i32 s91, s{S_XCD}, 13')
        g(f's_mov_b32 s92, s91')
        g(f's_mov_b32 s90, 13')
        g(f's_sub_u32 s{S_T0}, s{S_XCD}, 4')
        g(f's_mul_i32 s{S_T1}, s{S_T0}, 23')
        g(f's_add_u32 s{S_T1}, s{S_T1}, 52')
        g(f's_mul_i32 s{S_T2}, s{S_T0}, 3')
        g(f's_add_u32 s{S_T2}, s{S_T2}, 52')
        g(f's_cmp_ge_u32 s{S_XCD}, 4')
        g(f's_cselect_b32 s90, 23, s90')
        g(f's_cselect_b32 s91, s{S_T1}, s91')
        g(f's_cselect_b32 s92, s{S_T2}, s92')
    else:
        g(f's_mov_b32 s90, 18')
        g(f's_mul_i32 s91, s{S_XCD}, 18')
    tag_consts(g)
    g(f's_cmp_ge_u32 s{S_WAVE}, 4')
    g('s_cbranch_scc1 L_attn')
    g('s_setprio 3')
    g(f's_cmp_lg_u32 s{S_WAVE}, 0')
    g('s_cbranch_scc1 L_noinit')
    g('v_lshlrev_b32 v3, 4, v0')
    for r in range(4, 8): g(f'v_mov_b32 v{r}, 0')
    g('ds_write_b128 v3, v[4:7]')
    g.label('L_noinit')
    g('s_waitcnt lgkmcnt(0)')
    g.stamp(1)
    g(f's_cmp_lg_u32 s{S_WAVE}, 1')
    g('s_cbranch_scc1 L_nogen')
    g(f's_load_dword s{S_TAG}, {pr(S_WS)}, {WS_GEN}')
    g.label('L_nogen')
    g(f's_cmp_ge_u32 s{S_SLOT}, 26')
    g('s_cbranch_scc1 L_roleO')
    XR = 124; XF = 136
    g('v_lshrrev_b32 v3, 5, v0')
    g('v_and_b32 v4, 31, v0')
    g('v_mul_u32_u24 v3, 1152, v3')
    g('v_mad_u32_u24 v3, v4, 36, v3')
    xp = g.o.get('xpol', '')
    g('v_mov_b32 v15, v3')
    def xloads():
        g(f'global_load_dwordx4 {vr(XR)}, v15, {pr(S_X)} {xp}')
        g(f'global_load_dwordx4 {vr(XR+4)}, v15, {pr(S_X)} offset:16 {xp}')
        g(f'global_load_dword v{XR+8}, v15, {pr(S_X)} offset:32 {xp}')
    XPOS = g.o.get('xpos', 0)
    if XPOS == 0: xloads()
    S_HALF = S_RS
    S_A, S_R = S_T2, S_T3
    if g.o.get('remap', True):
        g(f's_cmp_ge_u32 s{S_SLOT}, s90')
        g('s_cbranch_scc1 L_tileLight')
        g(f's_add_u32 s{S_ID}, s91, s{S_SLOT}')
        g(f's_and_b32 s{S_HALF}, s{S_ID}, 1')
        g(f's_lshr_b32 s{S_A}, s{S_ID}, 2')
        g(f's_and_b32 s{S_R}, s{S_ID}, 2')
        g(f's_sub_u32 s{S_T0}, s{S_ID}, 104')
        g(f's_lshr_b32 s{S_T0}, s{S_T0}, 1')
        g(f's_add_u32 s{S_T0}, s{S_T0}, 6')
        g(f's_cmp_ge_u32 s{S_ID}, 104')
        g(f's_cselect_b32 s{S_A}, s{S_T0}, s{S_A}')
        g(f's_cselect_b32 s{S_R}, 3, s{S_R}')
        g('s_branch L_tileCT')
        g.label('L_tileLight')
        if g.o.get('skew'):
            g(f's_sub_u32 s{S_T0}, s{S_SLOT}, s90')
            g(f's_add_u32 s{S_T0}, s{S_T0}, s92')
        else:
            g(f's_sub_u32 s{S_T0}, s{S_SLOT}, 18')
            g(f's_lshl_b32 s{S_T0}, s{S_T0}, 3')
            g(f's_add_u32 s{S_T0}, s{S_T0}, s{S_XCD}')
        g(f's_mov_b32 s{S_F}, s{S_T0}')
        g(f's_and_b32 s{S_HALF}, s{S_T0}, 1')
        g(f's_lshr_b32 s{S_A}, s{S_T0}, 1')
        g(f's_sub_u32 s{S_T1}, s{S_A}, 26')
        g(f's_cmp_ge_u32 s{S_T0}, 52')
        g(f's_cselect_b32 s{S_A}, s{S_T1}, s{S_A}')
        g(f's_cselect_b32 s{S_R}, 3, 1')
        g.label('L_tileCT')
        g(f's_lshl_b32 s{S_T0}, s{S_A}, 2')
        g(f's_add_u32 s{S_T0}, s{S_T0}, s{S_R}')
    else:
        g(f's_cmp_ge_u32 s{S_SLOT}, 18')
        g('s_cbranch_scc1 L_tileLight')
        g(f's_mul_i32 s{S_ID}, s{S_XCD}, 18')
        g(f's_add_u32 s{S_ID}, s{S_ID}, s{S_SLOT}')
        g(f's_and_b32 s{S_HALF}, s{S_ID}, 1')
        g(f's_lshr_b32 s{S_T0}, s{S_ID}, 1')
        g('s_branch L_tileCT')
        g.label('L_tileLight')
        g(f's_sub_u32 s{S_T1}, s{S_SLOT}, 18')
        g(f's_and_b32 s{S_HALF}, s{S_T1}, 1')
        g(f's_lshl_b32 s{S_T0}, s{S_XCD}, 3')
        g(f's_add_u32 s{S_T0}, s{S_T0}, s{S_T1}')
        g(f's_lshr_b32 s{S_T0}, s{S_T0}, 1')
        g(f's_add_u32 s{S_T0}, s{S_T0}, 72')
        g.label('L_tileCT')
    g(f's_lshl_b32 s{S_TILE}, s{S_T0}, 1')
    g(f's_add_u32 s{S_TILE}, s{S_TILE}, s{S_HALF}')
    g(f's_mov_b64 {pr(S_B)}, {pr(S_GATE)}')
    g(f's_mov_b32 s{S_STR}, 9216')
    g(f's_mov_b32 s{S_T1}, 0')
    g(f's_cmp_ge_u32 s{S_T0}, 36')
    g(f's_cselect_b64 {pr(S_B)}, {pr(S_UP)}, {pr(S_B)}')
    g(f's_cselect_b32 s{S_T1}, 36, s{S_T1}')
    g(f's_cmp_ge_u32 s{S_T0}, 72')
    g(f's_cselect_b64 {pr(S_B)}, {pr(S_WQ)}, {pr(S_B)}')
    g(f's_cselect_b32 s{S_T1}, 72, s{S_T1}')
    g(f's_cselect_b32 s{S_STR}, 8192, s{S_STR}')
    g(f's_sub_u32 s{S_T0}, s{S_T0}, s{S_T1}')
    g(f's_mul_i32 s{S_T1}, s{S_HALF}, 288')
    g(f's_mul_i32 s{S_T2}, s{S_WAVE}, 72')
    g(f's_add_u32 s{S_RS}, s{S_T1}, s{S_T2}')
    g(f's_mul_i32 s{S_T1}, s{S_RS}, s{S_STR}')
    g(f's_lshl_b32 s{S_T0}, s{S_T0}, 8')
    g(f's_add_u32 s{S_T1}, s{S_T1}, s{S_T0}')
    add_base(g, S_B, S_T1)
    g(f'v_mul_lo_u32 v3, v{V_G}, s{S_STR}')
    g(f'v_lshl_add_u32 v3, v{V_N}, 4, v3')
    g(f's_lshl_b32 s{S_STR}, s{S_STR}, 2')
    W0 = 16
    for i in range(18):
        g(f'global_load_dwordx4 {vr(W0+4*i)}, v3, {pr(S_B)} {pol}')
        if i < 17: add_base(g, S_B, S_STR)
        if XPOS == i + 1: xloads()
    g('s_barrier')
    g.stamp(2)
    g(f's_cmp_lg_u32 s{S_WAVE}, 1')
    g('s_cbranch_scc1 L_notag1')
    emit_tag_publish(g)
    g.label('L_notag1')
    g(f's_waitcnt vmcnt({18 - XPOS})')
    emit_layernorm(g, XR, XF)
    make_masks(g, MK, V_N, 12)
    g(f'v_lshrrev_b32 v3, 3, v{V_N}')
    g('v_mul_u32_u24 v3, 576, v3')
    g(f'v_add_u32 v3, v3, v{V_G}')
    g(f'v_add_u32 v3, s{S_RS}, v3')
    g('v_lshlrev_b32 v3, 2, v3')
    XV = 136
    for i in range(18):
        g(f'ds_read_b32 v{XV+i}, v3 offset:{L_XD + 16*i}')
    ACC = 156; BT = 160
    for r in range(4): g(f'v_mov_b32 v{ACC+r}, 0')
    g('s_waitcnt lgkmcnt(0)')
    for i in range(18):
        b = BT + 4*(i & 1)
        for r in range(4):
            g(f'v_and_b32 v{b+r}, v{XV+i}, v{MK+r}')
        g(f's_waitcnt vmcnt({17 - i})')
        g.nop(1)
        g(f'v_mfma_f32_16x16x32_bf16 {vr(ACC)}, {vr(W0+4*i)}, {vr(b)}, {vr(ACC)}')
    g.stamp(3)
    get_tag_from_lds(g, 12, VTAG)
    g(f's_lshl_b32 s{S_T0}, s{S_WAVE}, 10')
    g('v_lshlrev_b32 v3, 4, v0')
    g(f'v_add_u32 v4, s{S_T0}, v3')
    g(f'ds_write_b128 v4, {vr(ACC)} offset:{L_Y1}')
    arrive_last(g, C_L1CNT, 3, 'L_l1pubdone')
    g('v_lshlrev_b32 v3, 4, v0')
    for w in range(4):
        g(f'ds_read_b128 {vr(124+4*w)}, v3 offset:{L_Y1 + 1024*w}')
    g(f's_lshl_b32 s{S_T0}, s{S_TILE}, 10')
    set_ws_base(g, S_B, S_T0, WS_L1)
    g('s_waitcnt lgkmcnt(0)')
    for j in range(1, 4):
        for r in range(4): g(f'v_add_f32 v{124+r}, v{124+r}, v{124+4*j+r}')
    tag_insert(g, 160, 124, VTAG)
    if g.o.get('qfast'):
        g(f'v_add_u32 v4, {WS_QALT}, v3')
        g(f's_cmp_lt_u32 s{S_TILE}, 144')
        g('s_cbranch_scc1 L_noqalt')
        g(f'global_store_dwordx4 v4, {vr(160)}, {pr(S_B)}')
        g.label('L_noqalt')
    pub_store(g, 'v3', vr(160), pr(S_B), True)
    g.label('L_l1pubdone')
    g.stamp(4)
    g(f's_cmp_lg_u32 s{S_WAVE}, 1')
    g('s_cbranch_scc1 L_noq1')
    emit_qpoll(g, g.o.get('qdelay', 0))
    g.label('L_noq1')
    g(f's_cmp_ge_u32 s{S_SLOT}, s90')
    g('s_cbranch_scc1 L_roleQtail')
    S_RB = S_TILE
    g(f's_add_u32 s{S_T2}, s91, s{S_SLOT}')
    g(f's_mul_i32 s{S_RB}, s{S_T2}, 171')
    g(f's_lshr_b32 s{S_RB}, s{S_RB}, 9')
    g(f's_mul_i32 s{S_T1}, s{S_RB}, 3')
    g(f's_sub_u32 s{S_CB}, s{S_T2}, s{S_T1}')
    g(f's_cmp_lg_u32 s{S_WAVE}, 0')
    g('s_cbranch_scc1 L_noh')
    emit_hpoll(g, S_RB)
    g.label('L_noh')
    g(f's_mul_i32 s{S_T0}, s{S_RB}, 96')
    g(f's_mul_i32 s{S_T1}, s{S_WAVE}, 24')
    g(f's_add_u32 s{S_T0}, s{S_T0}, s{S_T1}')
    g(f's_mul_i32 s{S_T0}, s{S_T0}, 1152')
    g(f's_mul_i32 s{S_T1}, s{S_CB}, 384')
    g(f's_add_u32 s{S_T0}, s{S_T0}, s{S_T1}')
    g(f's_mov_b64 {pr(S_B)}, {pr(S_DOWN)}')
    add_base(g, S_B, S_T0)
    l2_lane_offsets(g)
    WD = 88
    if not g.o.get('early'):
        if g.o.get('fgateA'):
            lds_wait_ge(g, 'facnt', C_ACNT, g.o.get('fgateA'), 12, sleep=2)
        else:
            lds_wait_ge(g, 'viss', C_VISS, g.o.get('fgate', 8), 12, sleep=4)
    if g.o.get('nolate'):
        g('s_branch L_end_stamp')
    if g.o.get('ggate'):
        count_in(g)
        global_gate(g, g.o.get('ggate'))
    if g.o.get('gg2'):
        count_in(g)
        go_wait(g)
    l2_issue(g, WD, 3)
    l2_prep(g, 48, S_RB, WS_F, 60, 62)
    lds_wait_ge(g, 'hf', C_HF, 1, 12)
    g(f'v_lshrrev_b32 v3, 3, v{V_N}')
    g('v_mul_u32_u24 v3, 96, v3')
    g(f'v_lshl_add_u32 v3, v{V_G}, 1, v3')
    g(f's_mul_i32 s{S_T0}, s{S_WAVE}, 24')
    g(f'v_add_u32 v3, s{S_T0}, v3')
    g('v_lshlrev_b32 v3, 2, v3')
    P = 16
    for i in range(3):
        g(f'ds_read_b64 v[{P+2*i}:{P+2*i+1}], v3 offset:{L_HD + 32*i}')
    l2_compute(g, WD, 3, P, 24, 40, waitvm=lambda i: 6 - 3*i)
    l2_finish(g, 24, 60, 62, 64)
    g('s_branch L_end_stamp')
    g.label('L_roleQtail')
    if g.o.get('ggate') or g.o.get('gg2'): count_in(g)
    if g.o.get('gg2'):
        sk = g.u('nodet')
        g(f's_cmp_lg_u32 s{S_WAVE}, 1')
        g(f's_cbranch_scc1 {sk}')
        g(f's_cmp_lg_u32 s{S_F}, 51')
        g(f's_cbranch_scc1 {sk}')
        detector(g, g.o.get('gg2'))
        g.label(sk)
    g(f's_and_b32 s{S_T0}, s{S_WAVE}, 1')
    if g.o.get('fin2'):
        g(f's_cmp_lg_u32 s{S_T0}, 0')
    else:
        g(f's_cmp_lg_u32 s{S_WAVE}, 0')
    g('s_cbranch_scc1 L_end_stamp')
    if not g.o.get('remap', True):
        g(f's_sub_u32 s{S_F}, s{S_SLOT}, 18')
        g(f's_lshl_b32 s{S_F}, s{S_F}, 3')
        g(f's_add_u32 s{S_F}, s{S_F}, s{S_XCD}')
    g(f's_cmp_ge_u32 s{S_F}, 36')
    g('s_cbranch_scc1 L_end_stamp')
    if g.o.get('fin2'):
        g(f's_cmp_eq_u32 s{S_WAVE}, 2')
        g('s_cbranch_scc1 L_ffg')
        emit_final(g)
        g('s_branch L_end_stamp')
        g.label('L_ffg')
        emit_ffgather(g)
    else:
        emit_final_old(g)
    g('s_branch L_end_stamp')
    g.label('L_roleO')
    emit_roleO(g)
    g('s_branch L_end_stamp')
    g.label('L_attn')
    emit_attn(g)
    g.label('L_end_stamp')
    if stamps:
        g.stamp(7)
        g('s_waitcnt lgkmcnt(0) vmcnt(0)')
        g('s_mov_b64 exec, -1')
        g('v_cmp_eq_u32_e32 vcc, 0, v0')
        g(f's_and_saveexec_b64 {pr(S_SV)}, vcc')
        g('s_cbranch_execz L_end')
        g(f's_mul_i32 s{S_T0}, s2, 12')
        g(f's_add_u32 s{S_T0}, s{S_T0}, s{S_WAVE}')
        g(f's_lshl_b32 s{S_T0}, s{S_T0}, 6')
        g(f's_add_u32 s{S_T0}, s{S_T0}, 0x{WS_STAMP:x}')
        add_base(g, S_WS, S_T0)
        g('v_mov_b32 v1, 0')
        for j in range(8):
            g(f'v_mov_b32 v2, s{64+2*j}'); g(f'v_mov_b32 v3, s{65+2*j}')
            g(f'global_store_dwordx2 v1, v[2:3], {pr(S_WS)} offset:{8*j}')
            g.nop(2)
    g.label('L_end')
    g('s_endpgm')
    return g

if __name__ == '__main__':
    ap = argparse.ArgumentParser()
    ap.add_argument('-o', default='k.s')
    ap.add_argument('--stamps', action='store_true')
    ap.add_argument('--pol', default='nt')
    ap.add_argument('--nopoll', default='')
    ap.add_argument('--nopub', action='store_true')
    ap.add_argument('--early', action='store_true')
    ap.add_argument('--dbl', action='store_true')
    ap.add_argument('--noremap', action='store_true')
    ap.add_argument('--fastA', action='store_true')
    ap.add_argument('--touchB', action='store_true')
    ap.add_argument('--qfast', action='store_true')
    ap.add_argument('--xpos', type=int, default=0)
    ap.add_argument('--xpol', default='')
    ap.add_argument('--tlb', action='store_true')
    ap.add_argument('--gg2', type=int, default=0)
    ap.add_argument('--ogg2', action='store_true')
    ap.add_argument('--nolate', type=int, default=0)
    ap.add_argument('--fin2', action='store_true')
    ap.add_argument('--osplit', type=int, default=0)
    ap.add_argument('--skew', action='store_true')
    ap.add_argument('--qprobe', type=int, default=0)
    ap.add_argument('--fgateA', type=int, default=0)
    ap.add_argument('--ggate', type=int, default=0)
    ap.add_argument('--ogg', type=int, default=0)
    ap.add_argument('--warm', action='store_true')
    ap.add_argument('--ownwait', type=int, default=8)
    ap.add_argument('--ogate', type=int, default=8)
    ap.add_argument('--fgate', type=int, default=8)
    ap.add_argument('--oearly', type=int, default=0)
    ap.add_argument('--stO', action='store_true')
    ap.add_argument('--finpipe', type=int, default=0)
    ap.add_argument('--nokvil', action='store_true')
    ap.add_argument('--qdelay', type=int, default=0)
    ap.add_argument('--qdelayO', type=int, default=0)
    a = ap.parse_args()
    opts = {}
    if a.nopoll: opts['nopoll'] = a.nopoll.split(',')
    if a.early: opts['early'] = True
    opts['remap'] = not a.noremap; opts['fastA'] = a.fastA; opts['touchB'] = a.touchB; opts['qfast'] = a.qfast; opts['xpos'] = a.xpos; opts['xpol'] = a.xpol; opts['tlb'] = a.tlb; opts['gg2'] = a.gg2; opts['ogg2'] = a.ogg2; opts['nolate'] = a.nolate; opts['fin2'] = a.fin2; opts['osplit'] = a.osplit; opts['skew'] = a.skew; opts['qprobe'] = a.qprobe; opts['fgateA'] = a.fgateA; opts['ggate'] = a.ggate; opts['ogg'] = a.ogg; opts['warm'] = a.warm; opts['ownwait'] = a.ownwait; opts['ogate'] = a.ogate; opts['fgate'] = a.fgate; opts['oearly'] = a.oearly; opts['stO'] = a.stO; opts['finpipe'] = a.finpipe; opts['kvil'] = not a.nokvil
    opts['dbl'] = a.dbl; opts['qdelay'] = a.qdelay; opts['qdelayO'] = a.qdelayO
    pol = a.pol
    g = generate(a.stamps, a.pol, opts)
    if a.nopub:
        g.L = [l for l in g.L if not ('global_store_dwordx4' in l and 'sc1' in l)]
    open(a.o, 'w').write(header(256, 768, LDS_SIZE) + '\n'.join(g.L) + '\n' + footer(168))
    print(a.o, len(g.L), 'lines')
```

```python
import sys, argparse
from genlib import *

V_LANE, V_N, V_G = 0, 1, 2
WS_ALT = 0x300000 - WS_A
MK = 8
VTAG = 14

def arrive_last(g, cnt_off, last_val, skip_label):
    g('s_waitcnt lgkmcnt(0)')
    g('v_mov_b32 v12, 0')
    g('v_mov_b32 v13, 1')
    g(f's_mov_b64 {pr(S_SV)}, exec')
    g('s_mov_b64 exec, 1')
    g(f'ds_add_rtn_u32 v13, v12, v13 offset:{cnt_off}')
    g('s_waitcnt lgkmcnt(0)')
    g(f'v_readfirstlane_b32 s{S_T0}, v13')
    g(f's_mov_b64 exec, {pr(S_SV)}')
    g(f's_cmp_lg_u32 s{S_T0}, {last_val}')
    g(f's_cbranch_scc1 {skip_label}')

def set_ws_base(g, dst, off_sreg, const):
    g(f's_add_u32 s{off_sreg}, s{off_sreg}, {const}')
    g(f's_mov_b64 {pr(dst)}, {pr(S_WS)}')
    add_base(g, dst, off_sreg)

def strip(g, regs):
    for r in regs: g(f'v_and_b32 v{r}, 0xffffff00, v{r}')

def pub_store(g, addr, data, base, local):
    if local and g.o.get('dbl'):
        g(f'global_store_dwordx4 {addr}, {data}, {base}')
    g(f'global_store_dwordx4 {addr}, {data}, {base} sc1')

def count_in(g):
    sk = g.u('ci')
    g(f's_cmp_lg_u32 s{S_WAVE}, 3')
    g(f's_cbranch_scc1 {sk}')
    lds_wait_ge(g, 'vi8', C_VISS, 8, 12, sleep=4)
    g('v_mov_b32 v12, 0')
    g('v_mov_b32 v13, 1')
    g(f's_mov_b64 {pr(S_SV)}, exec')
    g('s_mov_b64 exec, 1')
    g(f'global_atomic_add v12, v13, {pr(S_DBG)} sc1')
    g(f's_mov_b64 exec, {pr(S_SV)}')
    g.label(sk)

WS_QALT = 0x3A0000 - WS_L1
WS_G = 0x380000
C_GO = 44
def detector(g, thr):
    lp = g.u('dt_lp'); ok = g.u('dt_ok')
    g(f's_mov_b32 s{S_CNT}, {SPIN_LIMIT}')
    g.label(lp)
    g(f's_load_dword s{S_T0}, {pr(S_DBG)}, 0 glc')
    g('s_waitcnt lgkmcnt(0)')
    g(f's_cmp_ge_u32 s{S_T0}, {thr}')
    g(f's_cbranch_scc1 {ok}')
    g(f's_sub_u32 s{S_CNT}, s{S_CNT}, 1')
    g(f's_cbranch_scc1 {ok}')
    g('s_sleep 2')
    g(f's_branch {lp}')
    g.label(ok)
    g('v_lshlrev_b32 v4, 7, v0')
    g(f'v_mov_b32 v5, s{S_TAG}')
    g(f's_mov_b64 {pr(S_B2)}, {pr(S_WS)}')
    add_base_imm(g, S_B2, WS_G)
    g(f's_mov_b64 {pr(S_SV)}, exec')
    g('s_mov_b64 exec, 0xff')
    g(f'global_store_dword v4, v5, {pr(S_B2)} sc1')
    g(f's_mov_b64 exec, {pr(S_SV)}')

def go_wait(g):
    sk = g.u('gw_sk'); lp = g.u('gw_lp'); ok = g.u('gw_ok')
    g(f's_cmp_lg_u32 s{S_WAVE}, 2')
    g(f's_cbranch_scc1 {sk}')
    g(f's_lshl_b32 s{S_T0}, s{S_XCD}, 7')
    set_ws_base(g, S_B2, S_T0, WS_G)
    g(f's_mov_b32 s{S_CNT}, {SPIN_LIMIT}')
    g.label(lp)
    g(f's_load_dword s{S_T0}, {pr(S_B2)}, 0 glc')
    g('s_waitcnt lgkmcnt(0)')
    g(f's_cmp_eq_u32 s{S_T0}, s{S_TAG}')
    g(f's_cbranch_scc1 {ok}')
    g(f's_sub_u32 s{S_CNT}, s{S_CNT}, 1')
    g(f's_cbranch_scc1 {ok}')
    g('s_sleep 6')
    g(f's_branch {lp}')
    g.label(ok)
    g('v_mov_b32 v12, 0'); g('v_mov_b32 v13, 1')
    g(f'ds_write_b32 v12, v13 offset:{C_GO}')
    g.label(sk)
    lds_wait_ge(g, 'go', C_GO, 1, 12, sleep=2)

def global_gate(g, thr):
    lp = g.u('gg_lp'); ok = g.u('gg_ok')
    g(f's_mov_b32 s{S_CNT}, {SPIN_LIMIT}')
    g.label(lp)
    g(f's_load_dword s{S_T0}, {pr(S_DBG)}, 0 glc')
    g('s_waitcnt lgkmcnt(0)')
    g(f's_cmp_ge_u32 s{S_T0}, {thr}')
    g(f's_cbranch_scc1 {ok}')
    g(f's_sub_u32 s{S_CNT}, s{S_CNT}, 1')
    g(f's_cbranch_scc1 {ok}')
    g('s_sleep 2')
    g(f's_branch {lp}')
    g.label(ok)

def emit_tag_publish(g):
    g('s_waitcnt lgkmcnt(0)')
    g(f's_add_u32 s{S_TAG}, s{S_TAG}, 1')
    g(f's_and_b32 s{S_T0}, s{S_TAG}, 0xff')
    g(f's_mul_i32 s{S_T0}, s{S_T0}, 0x01010100')
    g(f's_mov_b32 s{S_T1}, s{S_TAG}')
    g(f's_xor_b32 s{S_TAG}, s{S_TAG}, s{S_T0}')
    g('v_mov_b32 v4, 0')
    g(f'v_mov_b32 v5, s{S_TAG}')
    g(f'v_mov_b32 v6, s{S_T1}')
    g(f'ds_write_b32 v4, v5 offset:{C_TAG}')
    g(f'ds_write_b32 v4, v6 offset:{C_RAWG}')
    g('s_waitcnt lgkmcnt(0)')
    g('v_mov_b32 v5, 1')
    g(f'ds_write_b32 v4, v5 offset:{C_TAGF}')

def emit_layernorm(g, XR, XF):
    for k in range(9):
        g(f'v_lshlrev_b32 v{XF+2*k}, 16, v{XR+k}')
        g(f'v_and_b32 v{XF+2*k+1}, 0xffff0000, v{XR+k}')
    S, T = 154, 155
    g(f'v_add_f32 v{S}, v{XF}, v{XF+1}')
    for k in range(2, 18): g(f'v_add_f32 v{S}, v{S}, v{XF+k}')
    row_reduce(g, 'v_add_f32', S)
    xor16_op(g, 'v_add_f32', S, T)
    g(f'v_mul_f32 v{S}, 0x{INV576:08x}, v{S}')
    Q, D = 156, 157
    g(f'v_sub_f32 v{D}, v{XF}, v{S}')
    g(f'v_mul_f32 v{Q}, v{D}, v{D}')
    for k in range(1, 18):
        g(f'v_sub_f32 v{D}, v{XF+k}, v{S}')
        g(f'v_fmac_f32 v{Q}, v{D}, v{D}')
    row_reduce(g, 'v_add_f32', Q)
    xor16_op(g, 'v_add_f32', Q, T)
    g(f'v_mul_f32 v{Q}, 0x{INV576:08x}, v{Q}')
    bf16_round(g, Q, Q)
    g(f'v_add_f32 v{Q}, 0x{EPS:08x}, v{Q}')
    bf16_round(g, Q, Q)
    g(f'v_sqrt_f32 v{Q}, v{Q}')
    g.nop(1)
    bf16_round(g, Q, Q)
    g(f'v_rcp_f32 v{Q}, v{Q}')
    bf16_round(g, S, S)
    for k in range(18):
        g(f'v_sub_f32 v{XF+k}, v{XF+k}, v{S}')
    for k in range(0, 18, 2):
        g(f'v_cvt_pk_bf16_f32 v{XR+k//2}, v{XF+k}, v{XF+k+1}')
    for k in range(9):
        g(f'v_lshlrev_b32 v{XF+2*k}, 16, v{XR+k}')
        g(f'v_and_b32 v{XF+2*k+1}, 0xffff0000, v{XR+k}')
    for k in range(18):
        g(f'v_mul_f32 v{XF+k}, v{XF+k}, v{Q}')
    for k in range(18):
        g(f'v_cvt_pk_bf16_f32 v{XF+k}, v{XF+k}, v{XF+k}')
    g('v_lshrrev_b32 v3, 5, v0')
    g('v_and_b32 v4, 31, v0')
    g('v_mul_u32_u24 v3, 576, v3')
    g('v_mad_u32_u24 v3, v4, 18, v3')
    g('v_lshlrev_b32 v3, 2, v3')
    for k in range(0, 18, 2):
        g(f'ds_write_b64 v3, v[{XF+k}:{XF+k+1}] offset:{L_XD + 4*k}')
    g('s_waitcnt lgkmcnt(0)')

def emit_qpoll(g, presleep=0):
    g(f's_lshl_b32 s{S_T0}, s{S_HKV}, 12')
    g(f's_lshl_b32 s{S_T1}, s{S_BB}, 7')
    g(f's_add_u32 s{S_T0}, s{S_T0}, s{S_T1}')
    set_ws_base(g, S_B2, S_T0, WS_L1 + 144*1024)
    g('v_lshrrev_b32 v3, 5, v0')
    g('v_lshlrev_b32 v3, 11, v3')
    g('v_bfe_u32 v4, v0, 3, 2')
    g('v_lshl_add_u32 v3, v4, 8, v3')
    g('v_and_b32 v4, 7, v0')
    g('v_lshl_add_u32 v3, v4, 4, v3')
    D = 124
    if g.o.get('qprobe'):
        lp = g.u('qp_lp'); ok = g.u('qp_ok')
        g(f's_and_b32 s{S_T4}, s{S_TAG}, 0xff')
        g(f's_mov_b32 s{S_CNT}, {SPIN_LIMIT}')
        g.label(lp)
        for k in range(4):
            g(f's_load_dword s{84+k}, {pr(S_B2)}, {1024*k} glc')
        g('s_waitcnt lgkmcnt(0)')
        for k in range(4):
            g(f's_and_b32 s{84+k}, s{84+k}, 0xff')
            g(f's_xor_b32 s{84+k}, s{84+k}, s{S_T4}')
        g('s_or_b32 s84, s84, s85')
        g('s_or_b32 s86, s86, s87')
        g('s_or_b32 s84, s84, s86')
        g('s_cmp_eq_u32 s84, 0')
        g(f's_cbranch_scc1 {ok}')
        g(f's_sub_u32 s{S_CNT}, s{S_CNT}, 1')
        g(f's_cbranch_scc1 {ok}')
        g(f's_sleep {g.o.get("qprobe")}')
        g(f's_branch {lp}')
        g.label(ok)
        presleep = 0
    if presleep:
        n = presleep
        while n > 0:
            g(f's_sleep {min(n,127)}'); n -= 127
    pre = None
    if g.o.get('qfast'):
        g(f'v_add_u32 v156, {WS_QALT}, v3')
        g('v_mov_b32 v157, v3')
        def pre():
            g(f's_and_b32 s{S_T0}, s{S_CNT}, 1')
            g(f's_cmp_eq_u32 s{S_T0}, 1')
            g(f's_cselect_b64 vcc, -1, 0')
            g('v_cndmask_b32_e32 v3, v156, v157, vcc')
    loads = [f'global_load_dwordx4 {vr(D+4*h)}, v3, {pr(S_B2)} offset:{1024*h} sc1' for h in range(2)]
    poll_retry(g, 'q', loads, D, 5, 6, sleep=g.o.get('qsleep', 4), st_first=5, st_cnt=1, pre_iter=pre)
    g.stamp(6)
    strip(g, range(D, D+8))
    for r in range(4):
        g(f'v_add_f32 v{D+r}, v{D+r}, v{D+4+r}')
    g(f'v_cvt_pk_bf16_f32 v{D}, v{D}, v{D+1}')
    g(f'v_cvt_pk_bf16_f32 v{D+2}, v{D+2}, v{D+3}')
    g('v_lshrrev_b32 v3, 5, v0')
    g('v_lshlrev_b32 v3, 8, v3')
    g('v_bfe_u32 v4, v0, 3, 2')
    g('v_lshl_add_u32 v3, v4, 6, v3')
    g('v_and_b32 v4, 7, v0')
    g('v_lshl_add_u32 v3, v4, 1, v3')
    g(f'ds_write_b16 v3, v{D} offset:{L_QL}')
    g(f'ds_write_b16_d16_hi v3, v{D} offset:{L_QL+16}')
    g(f'ds_write_b16 v3, v{D+2} offset:{L_QL+32}')
    g(f'ds_write_b16_d16_hi v3, v{D+2} offset:{L_QL+48}')
    g('s_waitcnt lgkmcnt(0)')
    g('v_mov_b32 v4, 0')
    g('v_mov_b32 v5, 1')
    g(f'ds_write_b32 v4, v5 offset:{C_QF}')

def emit_hpoll(g, S_RB):
    set_off = []
    g(f's_mul_i32 s{S_T2}, s{S_RB}, 3')
    g('v_lshrrev_b32 v3, 5, v0')
    g(f'v_mul_u32_u24 v3, {72*1024}, v3')
    g('v_bfe_u32 v4, v0, 4, 1')
    g('v_lshl_add_u32 v3, v4, 10, v3')
    g('v_lshl_add_u32 v3, v1, 4, v3')
    for k in range(3):
        g(f's_add_u32 s{S_T0}, s{S_T2}, {k}')
        g(f's_lshr_b32 s{S_T1}, s{S_T0}, 2')
        g(f's_lshl_b32 s{S_T1}, s{S_T1}, 11')
        g(f's_and_b32 s{S_T0}, s{S_T0}, 3')
        g(f's_lshl_b32 s{S_T0}, s{S_T0}, 8')
        g(f's_add_u32 s{S_T0}, s{S_T0}, s{S_T1}')
        g(f'v_add_u32 v{156+k}, s{S_T0}, v3')
    g(f's_mov_b64 {pr(S_B2)}, {pr(S_WS)}')
    add_base_imm(g, S_B2, WS_L1)
    D = 124
    loads = [f'global_load_dwordx4 {vr(D+4*k)}, v{156+k}, {pr(S_B2)} sc1' for k in range(3)]
    poll_retry(g, 'h', loads, D, 5, 6, sleep=g.o.get('hsleep', 8), st_first=5, st_cnt=1)
    g.stamp(6)
    N = 12
    strip(g, range(D, D+12))
    T = D + 12
    U = D + 24
    for j in range(N): g(f'v_mov_b32 v{T+j}, v{D+j}')
    g.nop(2)
    for j in range(N): g(f'v_permlane16_swap_b32 v{D+j}, v{T+j}')
    g.nop(1)
    for j in range(N): g(f'v_add_f32 v{D+j}, v{D+j}, v{T+j}')
    for j in range(N): bf16_round(g, D+j, D+j)
    for j in range(N): g(f'v_mov_b32 v{U+j}, v{D+j}')
    g.nop(2)
    for j in range(N): g(f'v_permlane32_swap_b32 v{D+j}, v{U+j}')
    g.nop(1)
    for j in range(N): g(f'v_mul_f32 v{T+j}, s{S_L2E}, v{D+j}')
    for j in range(N): g(f'v_exp_f32 v{T+j}, -v{T+j}')
    g.nop(1)
    for j in range(N): g(f'v_add_f32 v{T+j}, 1.0, v{T+j}')
    for j in range(N): g(f'v_rcp_f32 v{T+j}, v{T+j}')
    g.nop(1)
    for j in range(N): g(f'v_mul_f32 v{T+j}, v{D+j}, v{T+j}')
    for j in range(N): bf16_round(g, T+j, T+j)
    for j in range(N): g(f'v_mul_f32 v{T+j}, v{T+j}, v{U+j}')
    for j in range(N): g(f'v_cvt_pk_bf16_f32 v{T+j}, v{T+j}, v{T+j}')
    g('v_lshrrev_b32 v3, 3, v1')
    g('v_mul_u32_u24 v3, 96, v3')
    g('v_and_b32 v4, 7, v1')
    g('v_add_u32 v3, v3, v4')
    g('v_lshlrev_b32 v3, 2, v3')
    for k in range(3):
        for r in range(4):
            g(f'ds_write_b32 v3, v{T+4*k+r} offset:{L_HD + 128*k + 32*r}')
    g('s_waitcnt lgkmcnt(0)')
    g('v_mov_b32 v4, 0')
    g('v_mov_b32 v5, 1')
    g(f'ds_write_b32 v4, v5 offset:{C_HF}')

def l2_lane_offsets(g):
    g('v_mul_u32_u24 v5, 2304, v2')
    g('v_lshl_add_u32 v5, v1, 4, v5')
    g('v_add_u32 v6, 256, v5')
    g('v_add_u32 v7, 1024, v5')
    g('v_cmp_gt_u32_e32 vcc, 8, v1')
    g.nop(2)
    g('v_cndmask_b32_e32 v6, v7, v6, vcc')

def l2_issue(g, W0, ng, base=None, a0=5, a1=6, last_adv=False):
    pol = g.pol
    base = S_B if base is None else base
    for i in range(ng):
        g(f'global_load_dwordx4 {vr(W0+12*i)}, v{a0}, {pr(base)} {pol}')
        g(f'global_load_dwordx4 {vr(W0+12*i+4)}, v{a1}, {pr(base)} {pol}')
        g(f'global_load_dwordx4 {vr(W0+12*i+8)}, v{a0}, {pr(base)} offset:1280 {pol}')
        if i < ng-1 or last_adv: add_base_imm(g, base, 9216)

def l2_compute(g, W0, ng, P, AC, BE0, waitvm=None):
    for i in range(ng):
        g(f's_waitcnt lgkmcnt({ng-1-i})')
        be = BE0 + 8*(i & 1); bo = be + 4
        for r in range(4): g(f'v_and_b32 v{be+r}, v{P+2*i}, v{MK+r}')
        for r in range(4): g(f'v_and_b32 v{bo+r}, v{P+2*i+1}, v{MK+r}')
        if waitvm is not None:
            g(f's_waitcnt vmcnt({waitvm(i)})')
        c = (lambda k: '0') if i == 0 else (lambda k: vr(AC+k))
        if waitvm is None: g.nop(1) if False else None
        g(f'v_mfma_f32_16x16x32_bf16 {vr(AC)}, {vr(W0+12*i)}, {vr(be)}, {c(0)}')
        g(f'v_mfma_f32_16x16x32_bf16 {vr(AC+4)}, {vr(W0+12*i+4)}, {vr(be)}, {c(4)}')
        g(f'v_mfma_f32_16x16x32_bf16 {vr(AC+8)}, {vr(W0+12*i+4)}, {vr(bo)}, {c(8)}')
        g(f'v_mfma_f32_16x16x32_bf16 {vr(AC+12)}, {vr(W0+12*i+8)}, {vr(bo)}, {c(12)}')

S_PB = 80
def l2_prep(g, nprod, prod_sreg, ws_const, VI, VP):
    fs = nprod*128
    g(f's_mul_i32 s{S_T0}, s{S_WAVE}, 3072')
    g(f'v_lshlrev_b32 v{VI}, 4, v0')
    g(f'v_add_u32 v{VI}, s{S_T0}, v{VI}')
    g(f's_mul_i32 s{S_T0}, s{S_WAVE}, 24')
    g(f'v_add_u32 v{VP}, s{S_T0}, v0')
    g(f'v_lshlrev_b32 v{VI+1}, 4, v{VP}')
    g(f'v_lshrrev_b32 v6, 4, v{VP}')
    g(f'v_bfe_u32 v7, v{VP}, 3, 1')
    g('v_mad_u32_u24 v6, v7, 18, v6')
    g(f'v_mul_u32_u24 v6, {fs}, v6')
    g(f'v_and_b32 v7, 7, v{VP}')
    g(f'v_lshl_add_u32 v{VP}, v7, 4, v6')
    g(f's_mul_i32 s{S_T0}, s{S_CB}, {6*fs}')
    g(f's_lshl_b32 s{S_T1}, s{prod_sreg}, 7')
    g(f's_add_u32 s{S_T0}, s{S_T0}, s{S_T1}')
    set_ws_base(g, S_PB, S_T0, ws_const)

def l2_finish(g, AC, VI, VP, R0, st_a=None, st_b=None):
    g('v_cmp_gt_u32_e32 vcc, 2, v2')
    g('v_mov_b32 v12, 0')
    g('v_mov_b32 v13, 1')
    g.nop(5)
    g(f'ds_write_b128 v{VI}, {vr(AC)} offset:{L_Y}')
    for r in range(4):
        g(f'v_cndmask_b32_e32 v{AC+4+r}, v{AC+8+r}, v{AC+4+r}, vcc')
    g(f'ds_write_b128 v{VI}, {vr(AC+12)} offset:{L_Y + 2048}')
    g(f'ds_write_b128 v{VI}, {vr(AC+4)} offset:{L_Y + 1024}')
    if st_a is not None: g.stamp(st_a)
    g(f's_mov_b64 {pr(S_SV)}, exec')
    g('s_waitcnt lgkmcnt(0)')
    g('s_mov_b64 exec, 1')
    g(f'ds_add_u32 v12, v13 offset:{C_YCNT}')
    g(f's_mov_b64 exec, 0xffffff')
    lp = g.u('ys'); ok = g.u('yok')
    g(f's_mov_b32 s{S_CNT}, {SPIN_LIMIT*8}')
    g.label(lp)
    g(f'ds_read_b32 v13, v12 offset:{C_YCNT}')
    g('s_waitcnt lgkmcnt(0)')
    g(f'v_readfirstlane_b32 s{S_T0}, v13')
    g(f's_cmp_ge_u32 s{S_T0}, 4')
    g(f's_cbranch_scc1 {ok}')
    g(f's_sub_u32 s{S_CNT}, s{S_CNT}, 1')
    g(f's_cbranch_scc0 {lp}')
    g.label(ok)
    for w in range(4):
        g(f'ds_read_b128 {vr(R0+8*w)}, v{VI+1} offset:{L_Y + 3072*w}')
        g(f'ds_read_b128 {vr(R0+4+8*w)}, v{VI+1} offset:{L_Y + 3072*w + 6*256}')
    for stage in range(4):
        g(f's_waitcnt lgkmcnt({6-2*stage})')
        for r in range(4):
            if stage == 0:
                g(f'v_add_f32 v{R0+r}, v{R0+r}, v{R0+4+r}')
            else:
                g(f'v_add_f32 v{R0+8*stage+r}, v{R0+8*stage+r}, v{R0+8*stage+4+r}')
                g(f'v_add_f32 v{R0+r}, v{R0+r}, v{R0+8*stage+r}')
    tag_insert(g, R0+4, R0, VTAG)
    g(f'global_store_dwordx4 v{VP}, {vr(R0+4)}, {pr(S_PB)} sc1')
    g(f's_mov_b64 exec, {pr(S_SV)}')
    if st_b is not None: g.stamp(st_b)

def reduce_hh(g, d, t):
    g.nop(2)
    for r in range(4):
        g(f'v_add_f32_dpp v{d+r}, v{d+r}, v{d+r} row_ror:8 row_mask:0xf bank_mask:0xf')
    for r in range(4): g(f'v_mov_b32 v{t+r}, v{d+r}')
    g.nop(2)
    for r in range(4): g(f'v_permlane16_swap_b32 v{d+r}, v{t+r}')
    g.nop(1)
    for r in range(4): g(f'v_add_f32 v{d+r}, v{d+r}, v{t+r}')
    for r in range(4): g(f'v_mov_b32 v{t+r}, v{d+r}')
    g.nop(2)
    for r in range(4): g(f'v_permlane32_swap_b32 v{d+r}, v{t+r}')
    g.nop(1)
    for r in range(4): g(f'v_add_f32 v{d+r}, v{d+r}, v{t+r}')

def emit_final_old(g):
    g('v_and_b32 v3, 7, v0')
    g('v_lshlrev_b32 v3, 1, v3')
    g(f's_lshl_b32 s{S_T0}, s{S_F}, 6')
    g(f'v_add_u32 v3, s{S_T0}, v3')
    for r in range(4):
        g(f'global_load_ushort v{124+r}, v3, {pr(S_X)} offset:{16*r}')
    g('v_lshlrev_b32 v4, 4, v0')
    g('v_add_u32 v5, 4096, v4')
    g(f's_mul_i32 s{S_T0}, s{S_F}, 6144')
    set_ws_base(g, S_B, S_T0, WS_F)
    g(f's_lshl_b32 s{S_T0}, s{S_F}, 11')
    set_ws_base(g, S_B2, S_T0, WS_B)
    lds_wait_ge(g, 'own', C_ACNT, 8, 12, sleep=8)
    g.stamp(5)
    D = 16
    loads = [f'global_load_dwordx4 {vr(D+4*k)}, v{4 if k < 4 else 5}, {pr(S_B)} offset:{1024*(k%4)} sc1' for k in range(6)]
    if 'fin' in g.o.get('nopoll', ()): g.o['finpipe'] = 0
    if not g.o.get('finpipe'):
        loads += [f'global_load_dwordx4 {vr(D+24+4*k)}, v4, {pr(S_B2)} offset:{1024*k} sc1' for k in range(2)]
        poll_retry(g, 'fin', loads, D, 13, 15, sleep=0, st_cnt=1)
    else:
        poll_retry(g, 'fin', loads, D, 13, 15, sleep=2)
        g.stamp(4)
        strip(g, range(D, D+24))
        for k in range(1, 6):
            for r in range(4): g(f'v_add_f32 v{D+r}, v{D+r}, v{D+4*k+r}')
        reduce_hh(g, D, 96)
        for r in range(4): bf16_round(g, D+r, D+r)
        for r in range(4): g(f'v_lshlrev_b32 v{124+r}, 16, v{124+r}')
        NS = g.o.get('finpipe')
        SETS = [64 + 8*j for j in range(NS)]
        def iss(j):
            for k in range(2):
                g(f'global_load_dwordx4 {vr(SETS[j]+4*k)}, v4, {pr(S_B2)} offset:{1024*k} sc1')
        lp = g.u('fp_lp'); done = g.u('fp_done')
        oks = [g.u('fp_ok') for _ in range(NS)]
        g(f's_mov_b32 s{S_CNT}, {SPIN_LIMIT}')
        for j in range(NS-1): iss(j)
        g.label(lp)
        for j in range(NS):
            iss((j + NS - 1) % NS)
            g(f's_waitcnt vmcnt({2*(NS-1)})')
            tag_check(g, SETS[j], 13, 15, True)
            tag_check(g, SETS[j]+4, 13, 15, False)
            g(f's_cmp_eq_u64 {pr(S_OK)}, -1')
            g(f's_cbranch_scc1 {oks[j]}')
        g(f's_sub_u32 s{S_CNT}, s{S_CNT}, 1')
        g(f's_cbranch_scc0 {lp}')
        for j in range(NS):
            g.label(oks[j])
            strip(g, range(SETS[j], SETS[j]+8))
            for r in range(4): g(f'v_add_f32 v{D+24+r}, v{SETS[j]+r}, v{SETS[j]+4+r}')
            if j < NS-1: g(f's_branch {done}')
        g.label(done)
    g.stamp(6)
    FF = D; AT = D + 24
    if not g.o.get('finpipe'):
        for k in range(1, 6):
            for r in range(4): g(f'v_add_f32 v{FF+r}, v{FF+r}, v{FF+4*k+r}')
        for r in range(4): g(f'v_add_f32 v{AT+r}, v{AT+r}, v{AT+4+r}')
    if g.o.get('finpipe'):
        reduce_hh(g, AT, 96)
        for r in range(4): bf16_round(g, AT+r, AT+r)
    else:
        vals = [FF+r for r in range(4)] + [AT+r for r in range(4)]
        T = 96
        g.nop(2)
        for v in vals: g(f'v_add_f32_dpp v{v}, v{v}, v{v} row_ror:8 row_mask:0xf bank_mask:0xf')
        for j, v in enumerate(vals): g(f'v_mov_b32 v{T+j}, v{v}')
        g.nop(2)
        for j, v in enumerate(vals): g(f'v_permlane16_swap_b32 v{v}, v{T+j}')
        g.nop(1)
        for j, v in enumerate(vals): g(f'v_add_f32 v{v}, v{v}, v{T+j}')
        for j, v in enumerate(vals): g(f'v_mov_b32 v{T+j}, v{v}')
        g.nop(2)
        for j, v in enumerate(vals): g(f'v_permlane32_swap_b32 v{v}, v{T+j}')
        g.nop(1)
        for j, v in enumerate(vals): g(f'v_add_f32 v{v}, v{v}, v{T+j}')
        for v in vals: bf16_round(g, v, v)
        for r in range(4): g(f'v_lshlrev_b32 v{124+r}, 16, v{124+r}')
    for r in range(4): g(f'v_add_f32 v{AT+r}, v{124+r}, v{AT+r}')
    for r in range(4): bf16_round(g, AT+r, AT+r)
    for r in range(4): g(f'v_add_f32 v{AT+r}, v{AT+r}, v{FF+r}')
    g(f'v_cvt_pk_bf16_f32 v28, v{AT}, v{AT+1}')
    g(f'v_cvt_pk_bf16_f32 v29, v{AT+2}, v{AT+3}')
    g('v_cmp_gt_u32_e32 vcc, 8, v0')
    g(f's_and_saveexec_b64 {pr(S_SV)}, vcc')
    g(f'global_store_short v3, v28, {pr(S_OUT)}')
    g(f'global_store_short_d16_hi v3, v28, {pr(S_OUT)} offset:16')
    g(f'global_store_short v3, v29, {pr(S_OUT)} offset:32')
    g(f'global_store_short_d16_hi v3, v29, {pr(S_OUT)} offset:48')
    g(f's_cmp_lg_u32 s{S_F}, 0')
    g('s_cbranch_scc1 L_nobump')
    g('s_mov_b64 exec, 1')
    g('v_mov_b32 v4, 0')
    g(f'ds_read_b32 v5, v4 offset:{C_RAWG}')
    g('s_waitcnt lgkmcnt(0)')
    g(f'global_store_dword v4, v5, {pr(S_WS)} sc1')
    g.label('L_nobump')
    g(f's_mov_b64 exec, {pr(S_SV)}')

C_FFF = 40
L_FF = L_QL + 0
def emit_ffgather(g):
    g('v_lshlrev_b32 v4, 4, v0')
    g('v_add_u32 v5, 4096, v4')
    g(f's_mul_i32 s{S_T0}, s{S_F}, 6144')
    set_ws_base(g, S_B, S_T0, WS_F)
    lds_wait_ge(g, 'own', C_ACNT, g.o.get('ffown', 4), 12, sleep=8)
    g.stamp(5)
    D = 16
    loads = [f'global_load_dwordx4 {vr(D+4*k)}, v{4 if k < 4 else 5}, {pr(S_B)} offset:{1024*(k%4)} sc1' for k in range(6)]
    poll_retry(g, 'fin', loads, D, 13, 15, sleep=g.o.get('ffsleep', 1), st_cnt=1)
    g.stamp(4)
    for k in range(1, 6):
        for r in range(4): g(f'v_add_f32 v{D+r}, v{D+r}, v{D+4*k+r}')
    reduce_hh(g, D, 96)
    for r in range(4): bf16_round(g, D+r, D+r)
    g('v_lshlrev_b32 v4, 4, v0')
    g('v_cmp_gt_u32_e32 vcc, 8, v0')
    g(f's_and_saveexec_b64 {pr(S_SV)}, vcc')
    g(f'ds_write_b128 v4, {vr(D)} offset:{L_Y}')
    g('s_waitcnt lgkmcnt(0)')
    g('v_mov_b32 v12, 0'); g('v_mov_b32 v13, 1')
    g(f'ds_write_b32 v12, v13 offset:{C_FFF}')
    g(f's_mov_b64 exec, {pr(S_SV)}')
    g.stamp(6)

def emit_final(g):
    g('v_and_b32 v3, 7, v0')
    g('v_lshlrev_b32 v3, 1, v3')
    g(f's_lshl_b32 s{S_T0}, s{S_F}, 6')
    g(f'v_add_u32 v3, s{S_T0}, v3')
    for r in range(4):
        g(f'global_load_ushort v{124+r}, v3, {pr(S_X)} offset:{16*r}')
    g('v_lshlrev_b32 v4, 4, v0')
    g(f's_lshl_b32 s{S_T0}, s{S_F}, 11')
    set_ws_base(g, S_B2, S_T0, WS_B)
    g('v_mov_b32 v12, 0')
    g(f'ds_read_b32 v30, v12 offset:{C_RAWG}')
    lds_wait_ge(g, 'own', C_ACNT, 8, 12, sleep=8)
    g.stamp(5)
    g('s_waitcnt vmcnt(0)')
    for r in range(4): g(f'v_lshlrev_b32 v{124+r}, 16, v{124+r}')
    AT = 40
    NS = g.o.get('finpipe') or 3
    SETS = [64 + 8*j for j in range(NS)]
    def iss(j):
        for k in range(2):
            g(f'global_load_dwordx4 {vr(SETS[j]+4*k)}, v4, {pr(S_B2)} offset:{1024*k} sc1')
    if 'fin' not in g.o.get('nopoll', ()):
        lp = g.u('fp_lp'); done = g.u('fp_done')
        oks = [g.u('fp_ok') for _ in range(NS)]
        g(f's_mov_b32 s{S_CNT}, {SPIN_LIMIT}')
        for j in range(NS-1): iss(j)
        g.label(lp)
        for j in range(NS):
            iss((j + NS - 1) % NS)
            g(f's_waitcnt vmcnt({2*(NS-1)})')
            tag_check(g, SETS[j], 13, 15, True)
            tag_check(g, SETS[j]+4, 13, 15, False)
            g(f's_cmp_eq_u64 {pr(S_OK)}, -1')
            g(f's_cbranch_scc1 {oks[j]}')
        g(f's_sub_u32 s{S_CNT}, s{S_CNT}, 1')
        g(f's_cbranch_scc0 {lp}')
        for j in range(NS):
            g.label(oks[j])
            for r in range(4): g(f'v_add_f32 v{AT+r}, v{SETS[j]+r}, v{SETS[j]+4+r}')
            if j < NS-1: g(f's_branch {done}')
        g.label(done)
    g.stamp(6)
    reduce_hh(g, AT, 48)
    for r in range(4): bf16_round(g, AT+r, AT+r)
    for r in range(4): g(f'v_add_f32 v{AT+r}, v{124+r}, v{AT+r}')
    for r in range(4): bf16_round(g, AT+r, AT+r)
    if 'fin' not in g.o.get('nopoll', ()):
        lds_wait_ge(g, 'fff', C_FFF, 1, 12, sleep=0)
    g('v_lshlrev_b32 v4, 4, v0')
    g(f'ds_read_b128 {vr(52)}, v4 offset:{L_Y}')
    g('v_cmp_gt_u32_e32 vcc, 8, v0')
    g('s_waitcnt lgkmcnt(0)')
    for r in range(4): g(f'v_add_f32 v{AT+r}, v{AT+r}, v{52+r}')
    g(f'v_cvt_pk_bf16_f32 v28, v{AT}, v{AT+1}')
    g(f'v_cvt_pk_bf16_f32 v29, v{AT+2}, v{AT+3}')
    g(f's_and_saveexec_b64 {pr(S_SV)}, vcc')
    g(f'global_store_short v3, v28, {pr(S_OUT)}')
    g(f'global_store_short_d16_hi v3, v28, {pr(S_OUT)} offset:16')
    g(f'global_store_short v3, v29, {pr(S_OUT)} offset:32')
    g(f'global_store_short_d16_hi v3, v29, {pr(S_OUT)} offset:48')
    g(f's_cmp_lg_u32 s{S_F}, 0')
    g('s_cbranch_scc1 L_nobump')
    g('s_mov_b64 exec, 1')
    g('v_mov_b32 v4, 0')
    g(f'global_store_dword v4, v30, {pr(S_WS)} sc1')
    g.label('L_nobump')
    g(f's_mov_b64 exec, {pr(S_SV)}')

def emit_roleO(g):
    S_HO = S_ID
    g(f's_sub_u32 s{S_CB}, s{S_SLOT}, 26')
    g(f's_cmp_ge_u32 s{S_CB}, 3')
    g(f's_cselect_b32 s{S_T0}, 1, 0')
    g(f's_mul_i32 s{S_T1}, s{S_T0}, 3')
    g(f's_sub_u32 s{S_CB}, s{S_CB}, s{S_T1}')
    g(f's_lshl_b32 s{S_HO}, s{S_XCD}, 1')
    g(f's_add_u32 s{S_HO}, s{S_HO}, s{S_T0}')
    NE = g.o.get('oearly', 0)
    W0 = 16
    g(f's_mul_i32 s{S_T0}, s{S_HO}, {256*1152}')
    g(f's_mul_i32 s{S_T1}, s{S_CB}, 384')
    g(f's_add_u32 s{S_T0}, s{S_T0}, s{S_T1}')
    g(f's_mul_i32 s{S_T1}, s{S_WAVE}, {64*1152}')
    g(f's_add_u32 s{S_T0}, s{S_T0}, s{S_T1}')
    g(f's_mov_b64 s[82:83], {pr(S_WO)}')
    add_base(g, 82, S_T0)
    l2_lane_offsets(g)
    g('v_mov_b32 v165, v5'); g('v_mov_b32 v166, v6')
    l2_issue(g, W0, NE, base=82, a0=165, a1=166, last_adv=True)
    g('s_barrier')
    g.stamp(2)
    g(f's_cmp_lg_u32 s{S_WAVE}, 1')
    g('s_cbranch_scc1 L_Onoq')
    emit_tag_publish(g)
    emit_qpoll(g, g.o.get('qdelayO', 0))
    g.label('L_Onoq')
    get_tag_from_lds(g, 12, VTAG)
    if g.o.get('touchB'):
        l2_prep(g, 16, S_HO, WS_B, 162, 164)
        g(f'v_not_b32 v15, v{VTAG}')
        tag_insert(g, 112, 112, 15)
        g(f's_mov_b64 {pr(S_SV)}, exec')
        g('s_mov_b64 exec, 0xffffff')
        g(f'global_store_dwordx4 v164, {vr(112)}, {pr(S_PB)} sc1')
        g(f's_mov_b64 exec, {pr(S_SV)}')
        g.nop(2)
    make_masks(g, MK, 1, 112)
    if g.o.get('nolate', 0) > 1:
        g('s_branch L_end_stamp')
    if NE < 8:
        if not g.o.get('early'):
            lds_wait_ge(g, 'viss', C_VISS, g.o.get('ogate', 8), 12, sleep=4)
        if g.o.get('ogg'):
            global_gate(g, g.o.get('ogg'))
        osp = g.o.get('osplit', 0)
        if g.o.get('gg2') and g.o.get('ogg2'):
            if osp: l2_issue(g, W0 + 12*NE, osp - NE, base=82, a0=165, a1=166, last_adv=True)
            lds_wait_ge(g, 'viss8', C_VISS, 8, 12, sleep=4)
            count_in(g)
            go_wait(g)
            l2_issue(g, W0 + 12*max(osp,NE), 8 - max(osp,NE), base=82, a0=165, a1=166)
        elif osp:
            l2_issue(g, W0 + 12*NE, osp - NE, base=82, a0=165, a1=166, last_adv=True)
            lds_wait_ge(g, 'viss8', C_VISS, 8, 12, sleep=4)
            l2_issue(g, W0 + 12*osp, 8 - osp, base=82, a0=165, a1=166)
            if g.o.get('gg2'): count_in(g)
        else:
            l2_issue(g, W0 + 12*NE, 8 - NE, base=82, a0=165, a1=166)
        if g.o.get('ggate'): count_in(g)
    else:
        lds_wait_ge(g, 'own', C_ACNT, 8, 12, sleep=4)
    if not g.o.get('stO'): g.stamp(3)
    g(f's_lshl_b32 s{S_T0}, s{S_HO}, 14')
    g(f's_and_b32 s{S_T1}, s{S_WAVE}, 1')
    g(f's_lshl_b32 s{S_T1}, s{S_T1}, 9')
    g(f's_add_u32 s{S_T0}, s{S_T0}, s{S_T1}')
    g(f's_lshr_b32 s{S_T1}, s{S_WAVE}, 1')
    g(f's_lshl_b32 s{S_T1}, s{S_T1}, 7')
    g(f's_add_u32 s{S_T0}, s{S_T0}, s{S_T1}')
    set_ws_base(g, S_B, S_T0, WS_A)
    g(f's_lshl_b32 s{S_T0}, s{S_HO}, 11')
    g(f's_lshr_b32 s{S_T1}, s{S_WAVE}, 1')
    g(f's_lshl_b32 s{S_T1}, s{S_T1}, 4')
    g(f's_add_u32 s{S_T0}, s{S_T0}, s{S_T1}')
    set_ws_base(g, S_B2, S_T0, WS_S)
    g('v_lshrrev_b32 v3, 5, v0')
    g('v_bfe_u32 v5, v0, 3, 1')
    g('v_lshl_add_u32 v4, v3, 1, v5')
    g('v_lshlrev_b32 v3, 12, v4')
    g('v_lshlrev_b32 v4, 9, v4')
    g('v_bfe_u32 v5, v0, 4, 1')
    g('v_lshl_add_u32 v3, v5, 8, v3')
    g('v_and_b32 v5, 7, v0')
    g('v_lshl_add_u32 v3, v5, 4, v3')
    g('v_lshrrev_b32 v160, 5, v0')
    g('v_lshlrev_b32 v160, 6, v160')
    g('v_bfe_u32 v5, v0, 4, 1')
    g('v_lshl_add_u32 v160, v5, 5, v160')
    g('v_and_b32 v5, 7, v0')
    g('v_add_u32 v160, v160, v5')
    g(f's_lshl_b32 s{S_T0}, s{S_WAVE}, 7')
    g(f'v_add_u32 v160, s{S_T0}, v160')
    g('v_lshlrev_b32 v160, 2, v160')
    g('v_lshrrev_b32 v161, 3, v1')
    g('v_lshlrev_b32 v161, 6, v161')
    g('v_lshl_add_u32 v161, v2, 1, v161')
    g(f'v_add_u32 v161, s{S_T0}, v161')
    g('v_lshlrev_b32 v161, 2, v161')
    l2_prep(g, 16, S_HO, WS_B, 162, 164)
    D = 112
    if g.o.get('fastA'):
        g(f'v_add_u32 v156, {WS_ALT}, v3')
        g(f'v_add_u32 v157, {WS_ALT}, v4')
        g('v_mov_b32 v158, v3'); g('v_mov_b32 v159, v4')
        def pre():
            g(f's_and_b32 s{S_T0}, s{S_CNT}, 3')
            g(f's_cmp_eq_u32 s{S_T0}, 1')
            g(f's_cselect_b64 vcc, -1, 0')
            g('v_cndmask_b32_e32 v3, v156, v158, vcc')
            g('v_cndmask_b32_e32 v4, v157, v159, vcc')
    else:
        pre = None
    if g.stamps and g.o.get('stO'):
        pre0 = pre
        def pre():
            g('s_waitcnt lgkmcnt(0)')
            g('s_mov_b64 s[68:69], s[70:71]')
            g('s_mov_b64 s[70:71], s[74:75]')
            g('s_memrealtime s[74:75]')
            if pre0: pre0()
    loads = [f'global_load_dwordx4 {vr(D+4*i)}, v3, {pr(S_B)} offset:{1024*i} sc1' for i in range(4)]
    loads += [f'global_load_dwordx4 {vr(D+16+4*i)}, v4, {pr(S_B2)} offset:{128*i} sc1' for i in range(4)]
    if g.o.get('warm') and g.o.get('fastA'):
        for i in range(4): g(f'global_load_dwordx4 {vr(D+4*i)}, v156, {pr(S_B)} offset:{1024*i} sc1')
        for i in range(4): g(f'global_load_dwordx4 {vr(D+16+4*i)}, v157, {pr(S_B2)} offset:{128*i} sc1')
    if NE < 8 and g.o.get('ogate', 8) < 8 and g.o.get('ownwait', 8):
        lds_wait_ge(g, 'own', C_ACNT, g.o.get('ownwait', 8), 12, sleep=4)
    poll_retry(g, 'ha', loads, D, 5, 6, sleep=0, st_cnt=1, pre_iter=pre)
    g.stamp(4)
    ST = D + 16
    M = 144; LL = 145; O = 148
    for i in range(4):
        g(f'v_and_b32 v{ST+4*i}, 0xffffff00, v{ST+4*i}')
    g(f'v_max_f32 v{M}, v{ST}, v{ST+4}')
    g(f'v_max3_f32 v{M}, v{M}, v{ST+8}, v{ST+12}')
    strip(g, [ST+4*i+1 for i in range(4)])
    g(f'v_max_f32_dpp v{M}, v{M}, v{M} row_ror:8 row_mask:0xf bank_mask:0xf')
    strip(g, range(D, D+8))
    for i in range(4): g(f'v_sub_f32 v{ST+4*i}, v{ST+4*i}, v{M}')
    for i in range(4): g(f'v_exp_f32 v{ST+4*i}, v{ST+4*i}')
    strip(g, range(D+8, D+16))
    g(f'v_mul_f32 v{LL}, v{ST}, v{ST+1}')
    for r in range(4): g(f'v_mul_f32 v{O+r}, v{ST}, v{D+r}')
    for i in range(1, 4):
        g(f'v_fmac_f32 v{LL}, v{ST+4*i}, v{ST+4*i+1}')
        for r in range(4): g(f'v_fmac_f32 v{O+r}, v{ST+4*i}, v{D+4*i+r}')
    g.nop(1)
    g(f'v_add_f32_dpp v{LL}, v{LL}, v{LL} row_ror:8 row_mask:0xf bank_mask:0xf')
    for r in range(4):
        g(f'v_add_f32_dpp v{O+r}, v{O+r}, v{O+r} row_ror:8 row_mask:0xf bank_mask:0xf')
    g(f'v_rcp_f32 v{LL}, v{LL}')
    g.nop(1)
    for r in range(4): g(f'v_mul_f32 v{O+r}, v{O+r}, v{LL}')
    for r in range(4): g(f'v_cvt_pk_bf16_f32 v{O+r}, v{O+r}, v{O+r}')
    for r in range(4): g(f'ds_write_b32 v160, v{O+r} offset:{L_OD + 32*r}')
    g('s_waitcnt lgkmcnt(0)')
    P = 112
    for i in range(8):
        g(f'ds_read_b64 v[{P+2*i}:{P+2*i+1}], v161 offset:{L_OD + 32*i}')
    l2_compute(g, W0, 8, P, 128, 144)
    l2_finish(g, 128, 162, 164, 16, st_a=None if g.o.get('stO') else 5, st_b=6)

def emit_qk_softmax(g, extra):
    K0, V0 = 16, 80
    QF = 144
    g('v_lshrrev_b32 v4, 3, v1')
    g('v_lshlrev_b32 v4, 8, v4')
    g('v_lshl_add_u32 v4, v2, 4, v4')
    for s in range(4):
        g(f'ds_read_b128 {vr(QF+4*s)}, v4 offset:{L_QL + 64*s}')
    SCR = [8, 12, 160, 164]
    for T in range(4):
        for r in range(4): g(f'v_mov_b32 v{SCR[T]+r}, 0')
    g('s_waitcnt lgkmcnt(0)')
    for T in range(4):
        g(f's_waitcnt vmcnt({12 - 4*T + extra})')
        for s in range(4):
            g(f'v_mfma_f32_16x16x32_bf16 {vr(SCR[T])}, {vr(K0+16*T+4*s)}, {vr(QF+4*s)}, {vr(SCR[T])}')
    g.nop(8)
    g.stamp(4)
    sc = [SCR[T]+r for T in range(4) for r in range(4)]
    TP = 144
    for k in range(0, 16, 2):
        g(f'v_cvt_pk_bf16_f32 v{TP+k//2}, v{sc[k]}, v{sc[k+1]}')
    for k in range(0, 16, 2):
        g(f'v_lshlrev_b32 v{sc[k]}, 16, v{TP+k//2}')
        g(f'v_and_b32 v{sc[k+1]}, 0xffff0000, v{TP+k//2}')
    for k in range(16):
        g(f'v_mul_f32 v{sc[k]}, 0x{SCALE:08x}, v{sc[k]}')
    for k in range(0, 16, 2):
        g(f'v_cvt_pk_bf16_f32 v{TP+k//2}, v{sc[k]}, v{sc[k+1]}')
    for k in range(0, 16, 2):
        g(f'v_lshlrev_b32 v{sc[k]}, 16, v{TP+k//2}')
        g(f'v_and_b32 v{sc[k+1]}, 0xffff0000, v{TP+k//2}')
    M = 152; T1 = 153; LS = 154
    g(f'v_max3_f32 v{M}, v{sc[0]}, v{sc[1]}, v{sc[2]}')
    for k in range(3, 15, 2):
        g(f'v_max3_f32 v{M}, v{M}, v{sc[k]}, v{sc[k+1]}')
    g(f'v_max_f32 v{M}, v{M}, v{sc[15]}')
    xor16_op(g, 'v_max_f32', M, T1)
    xor32_op(g, 'v_max_f32', M, T1)
    g(f'v_mul_f32 v{M}, s{S_L2E}, v{M}')
    for k in range(16):
        g(f'v_fma_f32 v{sc[k]}, v{sc[k]}, s{S_L2E}, -v{M}')
    for k in range(16):
        g(f'v_exp_f32 v{sc[k]}, v{sc[k]}')
    g.nop(1)
    g(f'v_add_f32 v{LS}, v{sc[0]}, v{sc[1]}')
    for k in range(2, 16):
        g(f'v_add_f32 v{LS}, v{LS}, v{sc[k]}')
    for k in range(16):
        g(f'v_cvt_pk_bf16_f32 v{sc[k]}, v{sc[k]}, v{sc[k]}')
    xor16_op(g, 'v_add_f32', LS, T1)
    xor32_op(g, 'v_add_f32', LS, T1)
    AMK = 156
    make_masks(g, AMK, 1, 4)
    for T in range(4):
        for i in range(4):
            for r in range(4):
                g(f'v_and_b32 v{K0+16*T+4*i+r}, v{sc[4*T+i]}, v{AMK+r}')
    AC = 144
    for r in range(8): g(f'v_mov_b32 v{AC+r}, 0')
    g.stamp(5)

def issue_v(g, V0):
    pol = g.pol
    for T in range(4):
        for i in range(4):
            g(f'global_load_dwordx4 {vr(V0+16*T+4*i)}, v3, {pr(S_V)} offset:{256*i} {pol}')
        if T < 3: add_base_imm(g, S_V, 4096)
    g('v_mov_b32 v4, 0')
    g('v_mov_b32 v5, 1')
    g(f's_mov_b64 {pr(S_SV)}, exec')
    g('s_mov_b64 exec, 1')
    g(f'ds_add_u32 v4, v5 offset:{C_VISS}')
    g(f's_mov_b64 exec, {pr(S_SV)}')

def emit_attn(g):
    pol = g.pol
    K0, V0 = 16, 80
    QF = 144
    g('s_waitcnt lgkmcnt(0)')
    g(f's_lshl_b32 s{S_T0}, s{S_BB}, 4')
    g(f's_add_u32 s{S_T0}, s{S_T0}, s{S_HKV}')
    g(f's_lshl_b32 s{S_T0}, s{S_T0}, 20')
    il = g.o.get('kvil', True)
    g(f's_lshl_b32 s{S_T1}, s{S_SP}, {14 if il else 17}')
    g(f's_add_u32 s{S_T0}, s{S_T0}, s{S_T1}')
    g(f's_sub_u32 s{S_T1}, s{S_WAVE}, 4')
    g(f's_lshl_b32 s{S_T1}, s{S_T1}, {17 if il else 14}')
    g(f's_add_u32 s{S_T0}, s{S_T0}, s{S_T1}')
    add_base(g, S_K, S_T0)
    add_base(g, S_V, S_T0)
    g('v_lshlrev_b32 v4, 8, v1')
    g('v_lshl_add_u32 v4, v2, 4, v4')
    g('v_lshlrev_b32 v3, 10, v2')
    g('v_lshl_add_u32 v3, v1, 4, v3')
    if g.o.get('tlb'):
        g('v_mov_b32 v6, 0')
        g(f'global_load_dword v16, v6, {pr(S_K)} nt')
        g(f'global_load_dword v80, v6, {pr(S_V)} nt')
    g('s_barrier')
    g.stamp(1)
    g('s_setprio 2')
    for T in range(4):
        for s in range(4):
            g(f'global_load_dwordx4 {vr(K0+16*T+4*s)}, v4, {pr(S_K)} offset:{64*s} {pol}')
        if T < 3: add_base_imm(g, S_K, 4096)
    g('s_setprio 1')
    g(f's_cmp_ge_u32 s{S_WAVE}, 8')
    g('s_cbranch_scc1 L_grp2')
    issue_v(g, V0)
    g.stamp(2)
    lds_wait_ge(g, 'qf', C_QF, 1, 4, sleep=4)
    g.stamp(3)
    emit_qk_softmax(g, 16)
    g('s_branch L_pv')
    g.label('L_grp2')
    g.stamp(2)
    lds_wait_ge(g, 'qf', C_QF, 1, 4, sleep=4)
    g.stamp(3)
    emit_qk_softmax(g, 0)
    issue_v(g, V0)
    g.label('L_pv')
    M = 152; LS = 154; AC = 144
    for T in range(4):
        g(f's_waitcnt vmcnt({12 - 4*T})')
        for i in range(4):
            a = AC + 4*(i & 1)
            g(f'v_mfma_f32_16x16x32_bf16 {vr(a)}, {vr(V0+16*T+4*i)}, {vr(K0+16*T+4*i)}, {vr(a)}')
    g.stamp(6)
    g(f's_sub_u32 s{S_T2}, s{S_WAVE}, 4')
    g(f's_lshl_b32 s{S_T0}, s{S_T2}, 10')
    g('v_lshlrev_b32 v4, 4, v0')
    g(f'v_add_u32 v4, s{S_T0}, v4')
    g('v_lshrrev_b32 v5, 3, v1')
    g('v_lshlrev_b32 v5, 3, v5')
    g(f's_lshl_b32 s{S_T0}, s{S_T2}, 4')
    g(f'v_add_u32 v5, s{S_T0}, v5')
    g(f'v_mov_b32 v6, v{M}')
    g(f'v_mov_b32 v7, v{LS}')
    g(f'ds_write_b64 v5, v[6:7] offset:{L_AS}')
    g.nop(2)
    for r in range(4): g(f'v_add_f32 v{AC+r}, v{AC+r}, v{AC+4+r}')
    g(f'ds_write_b128 v4, {vr(AC)} offset:{L_AO}')
    arrive_last(g, C_ACNT, 7, 'L_end_stamp')
    g(f'ds_read_b32 v14, v12 offset:{C_TAG}')
    g('v_lshlrev_b32 v4, 4, v0')
    g('v_lshrrev_b32 v5, 3, v1')
    g('v_lshlrev_b32 v5, 3, v5')
    ST = 16; OV = 32
    for w in range(8):
        g(f'ds_read_b64 v[{ST+2*w}:{ST+2*w+1}], v5 offset:{L_AS + 16*w}')
    for w in range(8):
        g(f'ds_read_b128 {vr(OV+4*w)}, v4 offset:{L_AO + 1024*w}')
    g(f's_lshl_b32 s{S_T0}, s{S_HKV}, 1')
    g(f's_add_u32 s{S_T0}, s{S_T0}, s{S_BB}')
    g(f's_lshl_b32 s{S_T0}, s{S_T0}, 3')
    g(f's_add_u32 s{S_T0}, s{S_T0}, s{S_SP}')
    g(f's_lshl_b32 s{S_T1}, s{S_T0}, 10')
    set_ws_base(g, S_B, S_T1, WS_A)
    g(f's_lshl_b32 s{S_T1}, s{S_T0}, 7')
    set_ws_base(g, S_B2, S_T1, WS_S)
    g('s_waitcnt lgkmcnt(8)')
    g(f'v_max3_f32 v8, v{ST}, v{ST+2}, v{ST+4}')
    g(f'v_max3_f32 v8, v8, v{ST+6}, v{ST+8}')
    g(f'v_max3_f32 v8, v8, v{ST+10}, v{ST+12}')
    g(f'v_max_f32 v8, v8, v{ST+14}')
    g('v_and_b32 v8, 0xffffff00, v8')
    for w in range(8): g(f'v_sub_f32 v{ST+2*w}, v{ST+2*w}, v8')
    for w in range(8): g(f'v_exp_f32 v{ST+2*w}, v{ST+2*w}')
    g.nop(1)
    g(f'v_mul_f32 v9, v{ST}, v{ST+1}')
    for w in range(1, 8): g(f'v_fmac_f32 v9, v{ST+2*w}, v{ST+2*w+1}')
    g('v_mov_b32 v10, 0'); g('v_mov_b32 v11, 0')
    tag_insert(g, 72, 8, 14)
    g('s_waitcnt lgkmcnt(0)')
    for r in range(4):
        g(f'v_mul_f32 v{64+r}, v{ST}, v{OV+r}')
    for w in range(1, 8):
        for r in range(4):
            g(f'v_fmac_f32 v{64+r}, v{ST+2*w}, v{OV+4*w+r}')
    tag_insert(g, 68, 64, 14)
    if g.o.get('fastA'):
        g(f'v_add_u32 v6, {WS_ALT}, v4')
        g(f'global_store_dwordx4 v6, {vr(68)}, {pr(S_B)}')
    g(f'global_store_dwordx4 v4, {vr(68)}, {pr(S_B)} sc1')
    g('v_lshlrev_b32 v5, 1, v5')
    g('v_and_b32 v6, 0x37, v0')
    g('v_cmp_eq_u32_e32 vcc, 0, v6')
    g(f's_and_saveexec_b64 {pr(S_SV)}, vcc')
    if g.o.get('fastA'):
        g(f'v_add_u32 v6, {WS_ALT}, v5')
        g(f'global_store_dwordx4 v6, {vr(72)}, {pr(S_B2)}')
    g(f'global_store_dwordx4 v5, {vr(72)}, {pr(S_B2)} sc1')
    g(f's_mov_b64 exec, {pr(S_SV)}')

def generate(stamps=False, pol='nt', opts=None):
    g = G(stamps, pol, opts)
    g('s_cmp_ge_u32 s2, 256')
    g('s_cbranch_scc1 L_end')
    g.stamp(0)
    g('s_load_dwordx16 s[4:19], s[0:1], 0')
    g('s_load_dwordx8 s[20:27], s[0:1], 64')
    g('v_lshrrev_b32 v3, 6, v0')
    g('v_and_b32 v0, 63, v0')
    g(f'v_readfirstlane_b32 s{S_WAVE}, v3')
    g(f'v_and_b32 v{V_N}, 15, v0')
    g(f'v_lshrrev_b32 v{V_G}, 4, v0')
    g(f's_and_b32 s{S_XCD}, s2, 7')
    g(f's_lshr_b32 s{S_SLOT}, s2, 3')
    g(f's_lshr_b32 s{S_HKV}, s{S_SLOT}, 4')
    g(f's_lshl_b32 s{S_T0}, s{S_XCD}, 1')
    g(f's_add_u32 s{S_HKV}, s{S_HKV}, s{S_T0}')
    g(f's_bfe_u32 s{S_BB}, s{S_SLOT}, 0x10003')
    g(f's_and_b32 s{S_SP}, s{S_SLOT}, 7')
    g(f's_mov_b32 s{S_L2E}, 0x{LOG2E:08x}')
    if g.o.get('skew'):
        g(f's_mul_i32 s91, s{S_XCD}, 13')
        g(f's_mov_b32 s92, s91')
        g(f's_mov_b32 s90, 13')
        g(f's_sub_u32 s{S_T0}, s{S_XCD}, 4')
        g(f's_mul_i32 s{S_T1}, s{S_T0}, 23')
        g(f's_add_u32 s{S_T1}, s{S_T1}, 52')
        g(f's_mul_i32 s{S_T2}, s{S_T0}, 3')
        g(f's_add_u32 s{S_T2}, s{S_T2}, 52')
        g(f's_cmp_ge_u32 s{S_XCD}, 4')
        g(f's_cselect_b32 s90, 23, s90')
        g(f's_cselect_b32 s91, s{S_T1}, s91')
        g(f's_cselect_b32 s92, s{S_T2}, s92')
    else:
        g(f's_mov_b32 s90, 18')
        g(f's_mul_i32 s91, s{S_XCD}, 18')
    tag_consts(g)
    g(f's_cmp_ge_u32 s{S_WAVE}, 4')
    g('s_cbranch_scc1 L_attn')
    g('s_setprio 3')
    g(f's_cmp_lg_u32 s{S_WAVE}, 0')
    g('s_cbranch_scc1 L_noinit')
    g('v_lshlrev_b32 v3, 4, v0')
    for r in range(4, 8): g(f'v_mov_b32 v{r}, 0')
    g('ds_write_b128 v3, v[4:7]')
    g.label('L_noinit')
    g('s_waitcnt lgkmcnt(0)')
    g.stamp(1)
    g(f's_cmp_lg_u32 s{S_WAVE}, 1')
    g('s_cbranch_scc1 L_nogen')
    g(f's_load_dword s{S_TAG}, {pr(S_WS)}, {WS_GEN}')
    g.label('L_nogen')
    g(f's_cmp_ge_u32 s{S_SLOT}, 26')
    g('s_cbranch_scc1 L_roleO')
    XR = 124; XF = 136
    g('v_lshrrev_b32 v3, 5, v0')
    g('v_and_b32 v4, 31, v0')
    g('v_mul_u32_u24 v3, 1152, v3')
    g('v_mad_u32_u24 v3, v4, 36, v3')
    xp = g.o.get('xpol', '')
    g('v_mov_b32 v15, v3')
    def xloads():
        g(f'global_load_dwordx4 {vr(XR)}, v15, {pr(S_X)} {xp}')
        g(f'global_load_dwordx4 {vr(XR+4)}, v15, {pr(S_X)} offset:16 {xp}')
        g(f'global_load_dword v{XR+8}, v15, {pr(S_X)} offset:32 {xp}')
    XPOS = g.o.get('xpos', 0)
    if XPOS == 0: xloads()
    S_HALF = S_RS
    S_A, S_R = S_T2, S_T3
    if g.o.get('remap', True):
        g(f's_cmp_ge_u32 s{S_SLOT}, s90')
        g('s_cbranch_scc1 L_tileLight')
        g(f's_add_u32 s{S_ID}, s91, s{S_SLOT}')
        g(f's_and_b32 s{S_HALF}, s{S_ID}, 1')
        g(f's_lshr_b32 s{S_A}, s{S_ID}, 2')
        g(f's_and_b32 s{S_R}, s{S_ID}, 2')
        g(f's_sub_u32 s{S_T0}, s{S_ID}, 104')
        g(f's_lshr_b32 s{S_T0}, s{S_T0}, 1')
        g(f's_add_u32 s{S_T0}, s{S_T0}, 6')
        g(f's_cmp_ge_u32 s{S_ID}, 104')
        g(f's_cselect_b32 s{S_A}, s{S_T0}, s{S_A}')
        g(f's_cselect_b32 s{S_R}, 3, s{S_R}')
        g('s_branch L_tileCT')
        g.label('L_tileLight')
        if g.o.get('skew'):
            g(f's_sub_u32 s{S_T0}, s{S_SLOT}, s90')
            g(f's_add_u32 s{S_T0}, s{S_T0}, s92')
        else:
            g(f's_sub_u32 s{S_T0}, s{S_SLOT}, 18')
            g(f's_lshl_b32 s{S_T0}, s{S_T0}, 3')
            g(f's_add_u32 s{S_T0}, s{S_T0}, s{S_XCD}')
        g(f's_mov_b32 s{S_F}, s{S_T0}')
        g(f's_and_b32 s{S_HALF}, s{S_T0}, 1')
        g(f's_lshr_b32 s{S_A}, s{S_T0}, 1')
        g(f's_sub_u32 s{S_T1}, s{S_A}, 26')
        g(f's_cmp_ge_u32 s{S_T0}, 52')
        g(f's_cselect_b32 s{S_A}, s{S_T1}, s{S_A}')
        g(f's_cselect_b32 s{S_R}, 3, 1')
        g.label('L_tileCT')
        g(f's_lshl_b32 s{S_T0}, s{S_A}, 2')
        g(f's_add_u32 s{S_T0}, s{S_T0}, s{S_R}')
    else:
        g(f's_cmp_ge_u32 s{S_SLOT}, 18')
        g('s_cbranch_scc1 L_tileLight')
        g(f's_mul_i32 s{S_ID}, s{S_XCD}, 18')
        g(f's_add_u32 s{S_ID}, s{S_ID}, s{S_SLOT}')
        g(f's_and_b32 s{S_HALF}, s{S_ID}, 1')
        g(f's_lshr_b32 s{S_T0}, s{S_ID}, 1')
        g('s_branch L_tileCT')
        g.label('L_tileLight')
        g(f's_sub_u32 s{S_T1}, s{S_SLOT}, 18')
        g(f's_and_b32 s{S_HALF}, s{S_T1}, 1')
        g(f's_lshl_b32 s{S_T0}, s{S_XCD}, 3')
        g(f's_add_u32 s{S_T0}, s{S_T0}, s{S_T1}')
        g(f's_lshr_b32 s{S_T0}, s{S_T0}, 1')
        g(f's_add_u32 s{S_T0}, s{S_T0}, 72')
        g.label('L_tileCT')
    g(f's_lshl_b32 s{S_TILE}, s{S_T0}, 1')
    g(f's_add_u32 s{S_TILE}, s{S_TILE}, s{S_HALF}')
    g(f's_mov_b64 {pr(S_B)}, {pr(S_GATE)}')
    g(f's_mov_b32 s{S_STR}, 9216')
    g(f's_mov_b32 s{S_T1}, 0')
    g(f's_cmp_ge_u32 s{S_T0}, 36')
    g(f's_cselect_b64 {pr(S_B)}, {pr(S_UP)}, {pr(S_B)}')
    g(f's_cselect_b32 s{S_T1}, 36, s{S_T1}')
    g(f's_cmp_ge_u32 s{S_T0}, 72')
    g(f's_cselect_b64 {pr(S_B)}, {pr(S_WQ)}, {pr(S_B)}')
    g(f's_cselect_b32 s{S_T1}, 72, s{S_T1}')
    g(f's_cselect_b32 s{S_STR}, 8192, s{S_STR}')
    g(f's_sub_u32 s{S_T0}, s{S_T0}, s{S_T1}')
    g(f's_mul_i32 s{S_T1}, s{S_HALF}, 288')
    g(f's_mul_i32 s{S_T2}, s{S_WAVE}, 72')
    g(f's_add_u32 s{S_RS}, s{S_T1}, s{S_T2}')
    g(f's_mul_i32 s{S_T1}, s{S_RS}, s{S_STR}')
    g(f's_lshl_b32 s{S_T0}, s{S_T0}, 8')
    g(f's_add_u32 s{S_T1}, s{S_T1}, s{S_T0}')
    add_base(g, S_B, S_T1)
    g(f'v_mul_lo_u32 v3, v{V_G}, s{S_STR}')
    g(f'v_lshl_add_u32 v3, v{V_N}, 4, v3')
    g(f's_lshl_b32 s{S_STR}, s{S_STR}, 2')
    W0 = 16
    for i in range(18):
        g(f'global_load_dwordx4 {vr(W0+4*i)}, v3, {pr(S_B)} {pol}')
        if i < 17: add_base(g, S_B, S_STR)
        if XPOS == i + 1: xloads()
    g('s_barrier')
    g.stamp(2)
    g(f's_cmp_lg_u32 s{S_WAVE}, 1')
    g('s_cbranch_scc1 L_notag1')
    emit_tag_publish(g)
    g.label('L_notag1')
    g(f's_waitcnt vmcnt({18 - XPOS})')
    emit_layernorm(g, XR, XF)
    make_masks(g, MK, V_N, 12)
    g(f'v_lshrrev_b32 v3, 3, v{V_N}')
    g('v_mul_u32_u24 v3, 576, v3')
    g(f'v_add_u32 v3, v3, v{V_G}')
    g(f'v_add_u32 v3, s{S_RS}, v3')
    g('v_lshlrev_b32 v3, 2, v3')
    XV = 136
    for i in range(18):
        g(f'ds_read_b32 v{XV+i}, v3 offset:{L_XD + 16*i}')
    ACC = 156; BT = 160
    for r in range(4): g(f'v_mov_b32 v{ACC+r}, 0')
    g('s_waitcnt lgkmcnt(0)')
    for i in range(18):
        b = BT + 4*(i & 1)
        for r in range(4):
            g(f'v_and_b32 v{b+r}, v{XV+i}, v{MK+r}')
        g(f's_waitcnt vmcnt({17 - i})')
        g.nop(1)
        g(f'v_mfma_f32_16x16x32_bf16 {vr(ACC)}, {vr(W0+4*i)}, {vr(b)}, {vr(ACC)}')
    g.stamp(3)
    get_tag_from_lds(g, 12, VTAG)
    g(f's_lshl_b32 s{S_T0}, s{S_WAVE}, 10')
    g('v_lshlrev_b32 v3, 4, v0')
    g(f'v_add_u32 v4, s{S_T0}, v3')
    g(f'ds_write_b128 v4, {vr(ACC)} offset:{L_Y1}')
    arrive_last(g, C_L1CNT, 3, 'L_l1pubdone')
    g('v_lshlrev_b32 v3, 4, v0')
    for w in range(4):
        g(f'ds_read_b128 {vr(124+4*w)}, v3 offset:{L_Y1 + 1024*w}')
    g(f's_lshl_b32 s{S_T0}, s{S_TILE}, 10')
    set_ws_base(g, S_B, S_T0, WS_L1)
    g('s_waitcnt lgkmcnt(0)')
    for j in range(1, 4):
        for r in range(4): g(f'v_add_f32 v{124+r}, v{124+r}, v{124+4*j+r}')
    tag_insert(g, 160, 124, VTAG)
    if g.o.get('qfast'):
        g(f'v_add_u32 v4, {WS_QALT}, v3')
        g(f's_cmp_lt_u32 s{S_TILE}, 144')
        g('s_cbranch_scc1 L_noqalt')
        g(f'global_store_dwordx4 v4, {vr(160)}, {pr(S_B)}')
        g.label('L_noqalt')
    pub_store(g, 'v3', vr(160), pr(S_B), True)
    g.label('L_l1pubdone')
    g.stamp(4)
    g(f's_cmp_lg_u32 s{S_WAVE}, 1')
    g('s_cbranch_scc1 L_noq1')
    emit_qpoll(g, g.o.get('qdelay', 0))
    g.label('L_noq1')
    g(f's_cmp_ge_u32 s{S_SLOT}, s90')
    g('s_cbranch_scc1 L_roleQtail')
    S_RB = S_TILE
    g(f's_add_u32 s{S_T2}, s91, s{S_SLOT}')
    g(f's_mul_i32 s{S_RB}, s{S_T2}, 171')
    g(f's_lshr_b32 s{S_RB}, s{S_RB}, 9')
    g(f's_mul_i32 s{S_T1}, s{S_RB}, 3')
    g(f's_sub_u32 s{S_CB}, s{S_T2}, s{S_T1}')
    g(f's_cmp_lg_u32 s{S_WAVE}, 0')
    g('s_cbranch_scc1 L_noh')
    emit_hpoll(g, S_RB)
    g.label('L_noh')
    g(f's_mul_i32 s{S_T0}, s{S_RB}, 96')
    g(f's_mul_i32 s{S_T1}, s{S_WAVE}, 24')
    g(f's_add_u32 s{S_T0}, s{S_T0}, s{S_T1}')
    g(f's_mul_i32 s{S_T0}, s{S_T0}, 1152')
    g(f's_mul_i32 s{S_T1}, s{S_CB}, 384')
    g(f's_add_u32 s{S_T0}, s{S_T0}, s{S_T1}')
    g(f's_mov_b64 {pr(S_B)}, {pr(S_DOWN)}')
    add_base(g, S_B, S_T0)
    l2_lane_offsets(g)
    WD = 88
    if not g.o.get('early'):
        if g.o.get('fgateA'):
            lds_wait_ge(g, 'facnt', C_ACNT, g.o.get('fgateA'), 12, sleep=2)
        else:
            lds_wait_ge(g, 'viss', C_VISS, g.o.get('fgate', 8), 12, sleep=4)
    if g.o.get('nolate'):
        g('s_branch L_end_stamp')
    if g.o.get('ggate'):
        count_in(g)
        global_gate(g, g.o.get('ggate'))
    if g.o.get('gg2'):
        count_in(g)
        go_wait(g)
    l2_issue(g, WD, 3)
    l2_prep(g, 48, S_RB, WS_F, 60, 62)
    lds_wait_ge(g, 'hf', C_HF, 1, 12)
    g(f'v_lshrrev_b32 v3, 3, v{V_N}')
    g('v_mul_u32_u24 v3, 96, v3')
    g(f'v_lshl_add_u32 v3, v{V_G}, 1, v3')
    g(f's_mul_i32 s{S_T0}, s{S_WAVE}, 24')
    g(f'v_add_u32 v3, s{S_T0}, v3')
    g('v_lshlrev_b32 v3, 2, v3')
    P = 16
    for i in range(3):
        g(f'ds_read_b64 v[{P+2*i}:{P+2*i+1}], v3 offset:{L_HD + 32*i}')
    l2_compute(g, WD, 3, P, 24, 40, waitvm=lambda i: 6 - 3*i)
    l2_finish(g, 24, 60, 62, 64)
    g('s_branch L_end_stamp')
    g.label('L_roleQtail')
    if g.o.get('ggate') or g.o.get('gg2'): count_in(g)
    if g.o.get('gg2'):
        sk = g.u('nodet')
        g(f's_cmp_lg_u32 s{S_WAVE}, 1')
        g(f's_cbranch_scc1 {sk}')
        g(f's_cmp_lg_u32 s{S_F}, 51')
        g(f's_cbranch_scc1 {sk}')
        detector(g, g.o.get('gg2'))
        g.label(sk)
    g(f's_and_b32 s{S_T0}, s{S_WAVE}, 1')
    if g.o.get('fin2'):
        g(f's_cmp_lg_u32 s{S_T0}, 0')
    else:
        g(f's_cmp_lg_u32 s{S_WAVE}, 0')
    g('s_cbranch_scc1 L_end_stamp')
    if not g.o.get('remap', True):
        g(f's_sub_u32 s{S_F}, s{S_SLOT}, 18')
        g(f's_lshl_b32 s{S_F}, s{S_F}, 3')
        g(f's_add_u32 s{S_F}, s{S_F}, s{S_XCD}')
    g(f's_cmp_ge_u32 s{S_F}, 36')
    g('s_cbranch_scc1 L_end_stamp')
    if g.o.get('fin2'):
        g(f's_cmp_eq_u32 s{S_WAVE}, 2')
        g('s_cbranch_scc1 L_ffg')
        emit_final(g)
        g('s_branch L_end_stamp')
        g.label('L_ffg')
        emit_ffgather(g)
    else:
        emit_final_old(g)
    g('s_branch L_end_stamp')
    g.label('L_roleO')
    emit_roleO(g)
    g('s_branch L_end_stamp')
    g.label('L_attn')
    emit_attn(g)
    g.label('L_end_stamp')
    if stamps:
        g.stamp(7)
        g('s_waitcnt lgkmcnt(0) vmcnt(0)')
        g('s_mov_b64 exec, -1')
        g('v_cmp_eq_u32_e32 vcc, 0, v0')
        g(f's_and_saveexec_b64 {pr(S_SV)}, vcc')
        g('s_cbranch_execz L_end')
        g(f's_mul_i32 s{S_T0}, s2, 12')
        g(f's_add_u32 s{S_T0}, s{S_T0}, s{S_WAVE}')
        g(f's_lshl_b32 s{S_T0}, s{S_T0}, 6')
        g(f's_add_u32 s{S_T0}, s{S_T0}, 0x{WS_STAMP:x}')
        add_base(g, S_WS, S_T0)
        g('v_mov_b32 v1, 0')
        for j in range(8):
            g(f'v_mov_b32 v2, s{64+2*j}'); g(f'v_mov_b32 v3, s{65+2*j}')
            g(f'global_store_dwordx2 v1, v[2:3], {pr(S_WS)} offset:{8*j}')
            g.nop(2)
    g.label('L_end')
    g('s_endpgm')
    return g

if __name__ == '__main__':
    ap = argparse.ArgumentParser()
    ap.add_argument('-o', default='k.s')
    ap.add_argument('--stamps', action='store_true')
    ap.add_argument('--pol', default='nt')
    ap.add_argument('--nopoll', default='')
    ap.add_argument('--nopub', action='store_true')
    ap.add_argument('--early', action='store_true')
    ap.add_argument('--dbl', action='store_true')
    ap.add_argument('--noremap', action='store_true')
    ap.add_argument('--fastA', action='store_true')
    ap.add_argument('--touchB', action='store_true')
    ap.add_argument('--qfast', action='store_true')
    ap.add_argument('--xpos', type=int, default=0)
    ap.add_argument('--xpol', default='')
    ap.add_argument('--tlb', action='store_true')
    ap.add_argument('--gg2', type=int, default=0)
    ap.add_argument('--ogg2', action='store_true')
    ap.add_argument('--nolate', type=int, default=0)
    ap.add_argument('--fin2', action='store_true')
    ap.add_argument('--osplit', type=int, default=0)
    ap.add_argument('--skew', action='store_true')
    ap.add_argument('--qprobe', type=int, default=0)
    ap.add_argument('--fgateA', type=int, default=0)
    ap.add_argument('--ggate', type=int, default=0)
    ap.add_argument('--ogg', type=int, default=0)
    ap.add_argument('--warm', action='store_true')
    ap.add_argument('--ownwait', type=int, default=8)
    ap.add_argument('--ogate', type=int, default=8)
    ap.add_argument('--fgate', type=int, default=8)
    ap.add_argument('--oearly', type=int, default=0)
    ap.add_argument('--stO', action='store_true')
    ap.add_argument('--finpipe', type=int, default=0)
    ap.add_argument('--nokvil', action='store_true')
    ap.add_argument('--qdelay', type=int, default=0)
    ap.add_argument('--qdelayO', type=int, default=0)
    a = ap.parse_args()
    opts = {}
    if a.nopoll: opts['nopoll'] = a.nopoll.split(',')
    if a.early: opts['early'] = True
    opts['remap'] = not a.noremap; opts['fastA'] = a.fastA; opts['touchB'] = a.touchB; opts['qfast'] = a.qfast; opts['xpos'] = a.xpos; opts['xpol'] = a.xpol; opts['tlb'] = a.tlb; opts['gg2'] = a.gg2; opts['ogg2'] = a.ogg2; opts['nolate'] = a.nolate; opts['fin2'] = a.fin2; opts['osplit'] = a.osplit; opts['skew'] = a.skew; opts['qprobe'] = a.qprobe; opts['fgateA'] = a.fgateA; opts['ggate'] = a.ggate; opts['ogg'] = a.ogg; opts['warm'] = a.warm; opts['ownwait'] = a.ownwait; opts['ogate'] = a.ogate; opts['fgate'] = a.fgate; opts['oearly'] = a.oearly; opts['stO'] = a.stO; opts['finpipe'] = a.finpipe; opts['kvil'] = not a.nokvil
    opts['dbl'] = a.dbl; opts['qdelay'] = a.qdelay; opts['qdelayO'] = a.qdelayO
    pol = a.pol
    g = generate(a.stamps, a.pol, opts)
    if a.nopub:
        g.L = [l for l in g.L if not ('global_store_dwordx4' in l and 'sc1' in l)]
    open(a.o, 'w').write(header(256, 768, LDS_SIZE) + '\n'.join(g.L) + '\n' + footer(168))
    print(a.o, len(g.L), 'lines')
```

```python
import sys, argparse
from common import *

WS_GEN = 0
WS_L1  = 0x1000
WS_A   = 0x100000
WS_S   = 0x140000
WS_F   = 0x180000
WS_B   = 0x240000
WS_STAMP = 0x8000000

L_CTRL = 0
C_TAGF, C_TAG, C_QF, C_HF, C_ACNT, C_YCNT, C_RAWG, C_L1CNT, C_VISS = 0, 4, 8, 12, 16, 20, 28, 32, 36
L_Y    = 21504
L_XD   = 5120
L_QL   = 9728
L_AS   = 10496
L_AO   = 10752
L_OD   = 18944
L_HD   = L_OD
L_Y1 = L_Y + 12288
LDS_SIZE = L_Y1 + 4096

LOG2E = 0x3fb8aa3b
SCALE = 0x3db504f3
INV576 = 0x3ae38e39
EPS = 0x3727c5ac
SPIN_LIMIT = 0x20000

class G:
    def __init__(self, stamps=False, pol='nt', opts=None):
        self.o = opts or {}
        self.L = []
        self.stamps = stamps
        self.pol = pol
        self.nst = 0
        self.uid = 0
    def __call__(self, s):
        for line in s.split('\n'):
            line = line.strip()
            if line: self.L.append('  ' + line)
    def label(self, l): self.L.append(l + ':')
    def c(self, s): self.L.append('  ; ' + s)
    def u(self, p):
        self.uid += 1
        return f'L_{p}_{self.uid}'
    def nop(self, n):
        while n > 0:
            k = min(n, 16)
            self(f's_nop {k-1}')
            n -= k
    def stamp(self, i):
        if self.stamps:
            self(f's_memrealtime s[{64+2*i}:{65+2*i}]')

S_X, S_K, S_V, S_WQ, S_WO, S_GATE, S_UP = 4, 6, 8, 10, 12, 16, 18
S_DOWN, S_OUT, S_DBG, S_WS = 20, 22, 24, 26
S_WAVE, S_XCD, S_SLOT = 28, 29, 30
S_T0, S_T1, S_T2, S_T3 = 31, 32, 33, 34
S_B = 36
S_B2 = 38
S_TAG = 40
S_SEL0 = 41
S_SELA, S_SELB = 45, 46
S_ID = 47
S_RS = 48
S_CNT = 49
S_OK = 50
S_SV = 52
S_STR = 54
S_TILE = 55
S_HKV = 56
S_BB = 57
S_SP = 58
S_CB = 59
S_F = 60
S_L2E = 61
S_T4, S_PEND = 62, 63

def pr(r): return f's[{r}:{r+1}]'
def vr(r, n=4): return f'v[{r}:{r+n-1}]'

def add_base(g, r, val_sreg):
    g(f's_add_u32 s{r}, s{r}, s{val_sreg}')
    g(f's_addc_u32 s{r+1}, s{r+1}, 0')
def add_base_imm(g, r, imm):
    g(f's_add_u32 s{r}, s{r}, {imm}')
    g(f's_addc_u32 s{r+1}, s{r+1}, 0')

def tag_consts(g):
    for r in range(4):
        g(f's_mov_b32 s{S_SEL0+r}, 0x{0x07060500 | r:08x}')
    g(f's_mov_b32 s{S_SELA}, 0x0c0c0400')
    g(f's_mov_b32 s{S_SELB}, 0x04000c0c')

def tag_insert(g, dst, src, vtag):
    for r in range(4):
        g(f'v_perm_b32 v{dst+r}, v{src+r}, v{vtag}, s{S_SEL0+r}')

def tag_check(g, d, t0, t1, first):
    g(f'v_perm_b32 v{t0}, v{d+1}, v{d}, s{S_SELA}')
    g(f'v_perm_b32 v{t1}, v{d+3}, v{d+2}, s{S_SELB}')
    g(f'v_or_b32 v{t0}, v{t0}, v{t1}')
    if first:
        g(f'v_cmp_eq_u32_e64 {pr(S_OK)}, s{S_TAG}, v{t0}')
    else:
        g(f'v_cmp_eq_u32_e32 vcc, s{S_TAG}, v{t0}')
        g(f's_and_b64 {pr(S_OK)}, {pr(S_OK)}, vcc')

def poll_loop(g, name, issue, ngran, dreg, t0, t1, sleep=4, errcode=1, st_first=None, st_cnt=None):
    if name in g.o.get('nopoll', ()):
        return
    lp = g.u(name + '_lp'); ok = g.u(name + '_ok')
    g(f's_mov_b32 s{S_CNT}, {SPIN_LIMIT}')
    g.label(lp)
    issue()
    for i in range(ngran):
        g(f's_waitcnt vmcnt({ngran-1-i})')
        tag_check(g, dreg + 4*i, t0, t1, i == 0)
    if g.stamps and st_first is not None:
        sk = g.u('sk')
        g(f's_cmp_lg_u32 s{S_CNT}, {SPIN_LIMIT}')
        g(f's_cbranch_scc1 {sk}')
        g.stamp(st_first)
        g.label(sk)
    g(f's_cmp_eq_u64 {pr(S_OK)}, -1')
    g(f's_cbranch_scc1 {ok}')
    g(f's_sub_u32 s{S_CNT}, s{S_CNT}, 1')
    g(f's_cbranch_scc1 {ok}')
    g(f's_sleep {sleep}')
    g(f's_branch {lp}')
    g.label(ok)
    if g.stamps and st_cnt is not None:
        g('s_waitcnt lgkmcnt(0)')
        g(f's_sub_u32 s{64+2*st_cnt}, {SPIN_LIMIT}, s{S_CNT}')
        g(f's_mov_b32 s{65+2*st_cnt}, 0x7fffffff')

def poll_retry(g, name, loads, dreg, t0, t1, sleep=1, st_first=None, st_cnt=None, pre_iter=None, backoff=None):
    if name in g.o.get('nopoll', ()):
        return
    n = len(loads)
    lp = g.u(name + '_lp'); ok = g.u(name + '_ok')
    g(f's_mov_b32 s{S_CNT}, {SPIN_LIMIT}')
    g(f's_mov_b32 s{S_PEND}, {(1 << n) - 1}')
    g.label(lp)
    if pre_iter: pre_iter()
    for k in range(n):
        sk = g.u('sk')
        g(f's_bitcmp1_b32 s{S_PEND}, {k}')
        g(f's_cbranch_scc0 {sk}')
        g(loads[k])
        g.label(sk)
    g('s_waitcnt vmcnt(0)')
    for k in range(n):
        sk = g.u('sk')
        g(f's_bitcmp1_b32 s{S_PEND}, {k}')
        g(f's_cbranch_scc0 {sk}')
        tag_check(g, dreg + 4*k, t0, t1, True)
        g(f's_cmp_eq_u64 {pr(S_OK)}, -1')
        g(f's_cbranch_scc0 {sk}')
        g(f's_bitset0_b32 s{S_PEND}, {k}')
        g.label(sk)
    if g.stamps and st_first is not None:
        sk = g.u('sk')
        g(f's_cmp_lg_u32 s{S_CNT}, {SPIN_LIMIT}')
        g(f's_cbranch_scc1 {sk}')
        g.stamp(st_first)
        g.label(sk)
    g(f's_cmp_eq_u32 s{S_PEND}, 0')
    g(f's_cbranch_scc1 {ok}')
    g(f's_sub_u32 s{S_CNT}, s{S_CNT}, 1')
    g(f's_cbranch_scc1 {ok}')
    if backoff:
        thr, sl = backoff
        g(f's_bcnt1_i32_b32 s{S_T0}, s{S_PEND}')
        g(f's_cmp_lt_u32 s{S_T0}, {thr}')
        g(f's_cbranch_scc1 {lp}')
        g(f's_sleep {sl}')
    if sleep: g(f's_sleep {sleep}')
    g(f's_branch {lp}')
    g.label(ok)
    if g.stamps and st_cnt is not None:
        g('s_waitcnt lgkmcnt(0)')
        g(f's_sub_u32 s{64+2*st_cnt}, {SPIN_LIMIT}, s{S_CNT}')
        g(f's_mov_b32 s{65+2*st_cnt}, 0x7fffffff')

def lds_wait_ge(g, name, off, val, vt, sleep=2):
    lp = g.u(name + '_lp'); ok = g.u(name + '_ok')
    g(f's_mov_b32 s{S_CNT}, {SPIN_LIMIT*8}')
    g(f'v_mov_b32 v{vt}, 0')
    g.label(lp)
    g(f'ds_read_b32 v{vt+1}, v{vt} offset:{off}')
    g('s_waitcnt lgkmcnt(0)')
    g(f'v_readfirstlane_b32 s{S_T0}, v{vt+1}')
    g(f's_cmp_ge_u32 s{S_T0}, {val}')
    g(f's_cbranch_scc1 {ok}')
    g(f's_sub_u32 s{S_CNT}, s{S_CNT}, 1')
    g(f's_cbranch_scc1 {ok}')
    g(f's_sleep {sleep}')
    g(f's_branch {lp}')
    g.label(ok)

def get_tag_from_lds(g, vt, vtag):
    lds_wait_ge(g, 'tag', C_TAGF, 1, vt)
    g(f'ds_read_b32 v{vtag}, v{vt} offset:{C_TAG}')
    g('s_waitcnt lgkmcnt(0)')
    g(f'v_readfirstlane_b32 s{S_TAG}, v{vtag}')

def bf16_round(g, dst, src, tmp=None):
    g(f'v_cvt_pk_bf16_f32 v{dst}, v{src}, v{src}')
    g(f'v_and_b32 v{dst}, 0xffff0000, v{dst}')

def make_masks(g, m, vn, t):
    g(f'v_and_b32 v{t}, 7, v{vn}')
    g(f'v_and_b32 v{t+1}, 1, v{t}')
    g(f'v_lshrrev_b32 v{t}, 1, v{t}')
    g(f'v_mov_b32 v{t+2}, 0xffff')
    g(f'v_lshlrev_b32 v{t+1}, 4, v{t+1}')
    g(f'v_lshlrev_b32 v{t+1}, v{t+1}, v{t+2}')
    for r in range(4):
        g(f'v_cmp_eq_u32_e32 vcc, {r}, v{t}')
        g.nop(2)
        g(f'v_cndmask_b32_e32 v{m+r}, 0, v{t+1}, vcc')

def xor16_op(g, op, a, t):
    g(f'v_mov_b32 v{t}, v{a}')
    g.nop(2)
    g(f'v_permlane16_swap_b32 v{a}, v{t}')
    g.nop(1)
    g(f'{op} v{a}, v{a}, v{t}')
def xor32_op(g, op, a, t):
    g(f'v_mov_b32 v{t}, v{a}')
    g.nop(2)
    g(f'v_permlane32_swap_b32 v{a}, v{t}')
    g.nop(1)
    g(f'{op} v{a}, v{a}, v{t}')
def row_reduce(g, op, a):
    for s in (8, 4, 2, 1):
        g.nop(2)
        g(f'{op}_dpp v{a}, v{a}, v{a} row_ror:{s} row_mask:0xf bank_mask:0xf')

def build():
    pass
```

```python
import sys, argparse
from genlib import *

V_LANE, V_N, V_G = 0, 1, 2
WS_ALT = 0x300000 - WS_A
MK = 8
VTAG = 14

def arrive_last(g, cnt_off, last_val, skip_label):
    g('s_waitcnt lgkmcnt(0)')
    g('v_mov_b32 v12, 0')
    g('v_mov_b32 v13, 1')
    g(f's_mov_b64 {pr(S_SV)}, exec')
    g('s_mov_b64 exec, 1')
    g(f'ds_add_rtn_u32 v13, v12, v13 offset:{cnt_off}')
    g('s_waitcnt lgkmcnt(0)')
    g(f'v_readfirstlane_b32 s{S_T0}, v13')
    g(f's_mov_b64 exec, {pr(S_SV)}')
    g(f's_cmp_lg_u32 s{S_T0}, {last_val}')
    g(f's_cbranch_scc1 {skip_label}')

def set_ws_base(g, dst, off_sreg, const):
    g(f's_add_u32 s{off_sreg}, s{off_sreg}, {const}')
    g(f's_mov_b64 {pr(dst)}, {pr(S_WS)}')
    add_base(g, dst, off_sreg)

def strip(g, regs):
    for r in regs: g(f'v_and_b32 v{r}, 0xffffff00, v{r}')

def pub_store(g, addr, data, base, local):
    if local and g.o.get('dbl'):
        g(f'global_store_dwordx4 {addr}, {data}, {base}')
    g(f'global_store_dwordx4 {addr}, {data}, {base} sc1')

def count_in(g):
    sk = g.u('ci')
    g(f's_cmp_lg_u32 s{S_WAVE}, 3')
    g(f's_cbranch_scc1 {sk}')
    lds_wait_ge(g, 'vi8', C_VISS, 8, 12, sleep=4)
    g('v_mov_b32 v12, 0')
    g('v_mov_b32 v13, 1')
    g(f's_mov_b64 {pr(S_SV)}, exec')
    g('s_mov_b64 exec, 1')
    g(f'global_atomic_add v12, v13, {pr(S_DBG)} sc1')
    g(f's_mov_b64 exec, {pr(S_SV)}')
    g.label(sk)

WS_QALT = 0x3A0000 - WS_L1
WS_G = 0x380000
C_GO = 44
def detector(g, thr):
    lp = g.u('dt_lp'); ok = g.u('dt_ok')
    g(f's_mov_b32 s{S_CNT}, {SPIN_LIMIT}')
    g.label(lp)
    g(f's_load_dword s{S_T0}, {pr(S_DBG)}, 0 glc')
    g('s_waitcnt lgkmcnt(0)')
    g(f's_cmp_ge_u32 s{S_T0}, {thr}')
    g(f's_cbranch_scc1 {ok}')
    g(f's_sub_u32 s{S_CNT}, s{S_CNT}, 1')
    g(f's_cbranch_scc1 {ok}')
    g('s_sleep 2')
    g(f's_branch {lp}')
    g.label(ok)
    g('v_lshlrev_b32 v4, 7, v0')
    g(f'v_mov_b32 v5, s{S_TAG}')
    g(f's_mov_b64 {pr(S_B2)}, {pr(S_WS)}')
    add_base_imm(g, S_B2, WS_G)
    g(f's_mov_b64 {pr(S_SV)}, exec')
    g('s_mov_b64 exec, 0xff')
    g(f'global_store_dword v4, v5, {pr(S_B2)} sc1')
    g(f's_mov_b64 exec, {pr(S_SV)}')

def go_wait(g):
    sk = g.u('gw_sk'); lp = g.u('gw_lp'); ok = g.u('gw_ok')
    g(f's_cmp_lg_u32 s{S_WAVE}, 2')
    g(f's_cbranch_scc1 {sk}')
    g(f's_lshl_b32 s{S_T0}, s{S_XCD}, 7')
    set_ws_base(g, S_B2, S_T0, WS_G)
    g(f's_mov_b32 s{S_CNT}, {SPIN_LIMIT}')
    g.label(lp)
    g(f's_load_dword s{S_T0}, {pr(S_B2)}, 0 glc')
    g('s_waitcnt lgkmcnt(0)')
    g(f's_cmp_eq_u32 s{S_T0}, s{S_TAG}')
    g(f's_cbranch_scc1 {ok}')
    g(f's_sub_u32 s{S_CNT}, s{S_CNT}, 1')
    g(f's_cbranch_scc1 {ok}')
    g('s_sleep 6')
    g(f's_branch {lp}')
    g.label(ok)
    g('v_mov_b32 v12, 0'); g('v_mov_b32 v13, 1')
    g(f'ds_write_b32 v12, v13 offset:{C_GO}')
    g.label(sk)
    lds_wait_ge(g, 'go', C_GO, 1, 12, sleep=2)

def global_gate(g, thr):
    lp = g.u('gg_lp'); ok = g.u('gg_ok')
    g(f's_mov_b32 s{S_CNT}, {SPIN_LIMIT}')
    g.label(lp)
    g(f's_load_dword s{S_T0}, {pr(S_DBG)}, 0 glc')
    g('s_waitcnt lgkmcnt(0)')
    g(f's_cmp_ge_u32 s{S_T0}, {thr}')
    g(f's_cbranch_scc1 {ok}')
    g(f's_sub_u32 s{S_CNT}, s{S_CNT}, 1')
    g(f's_cbranch_scc1 {ok}')
    g('s_sleep 2')
    g(f's_branch {lp}')
    g.label(ok)

def kernarg_ready(g, lab):
    g('s_waitcnt lgkmcnt(0)')
    g.stamp(1)
    g(f's_cmp_lg_u32 s{S_WAVE}, 1')
    g(f's_cbranch_scc1 {lab}')
    g(f's_load_dword s{S_TAG}, {pr(S_WS)}, {WS_GEN}')
    g.label(lab)

def emit_tag_publish(g):
    g('s_waitcnt lgkmcnt(0)')
    g(f's_add_u32 s{S_TAG}, s{S_TAG}, 1')
    g(f's_and_b32 s{S_T0}, s{S_TAG}, 0xff')
    g(f's_mul_i32 s{S_T0}, s{S_T0}, 0x01010100')
    g(f's_mov_b32 s{S_T1}, s{S_TAG}')
    g(f's_xor_b32 s{S_TAG}, s{S_TAG}, s{S_T0}')
    g('v_mov_b32 v4, 0')
    g(f'v_mov_b32 v5, s{S_TAG}')
    g(f'v_mov_b32 v6, s{S_T1}')
    g(f'ds_write_b32 v4, v5 offset:{C_TAG}')
    g(f'ds_write_b32 v4, v6 offset:{C_RAWG}')
    g('s_waitcnt lgkmcnt(0)')
    g('v_mov_b32 v5, 1')
    g(f'ds_write_b32 v4, v5 offset:{C_TAGF}')

def emit_layernorm(g, XR, XF):
    for k in range(9):
        g(f'v_lshlrev_b32 v{XF+2*k}, 16, v{XR+k}')
        g(f'v_and_b32 v{XF+2*k+1}, 0xffff0000, v{XR+k}')
    S, T = 154, 155
    g(f'v_add_f32 v{S}, v{XF}, v{XF+1}')
    for k in range(2, 18): g(f'v_add_f32 v{S}, v{S}, v{XF+k}')
    row_reduce(g, 'v_add_f32', S)
    xor16_op(g, 'v_add_f32', S, T)
    g(f'v_mul_f32 v{S}, 0x{INV576:08x}, v{S}')
    Q, D = 156, 157
    g(f'v_sub_f32 v{D}, v{XF}, v{S}')
    g(f'v_mul_f32 v{Q}, v{D}, v{D}')
    for k in range(1, 18):
        g(f'v_sub_f32 v{D}, v{XF+k}, v{S}')
        g(f'v_fmac_f32 v{Q}, v{D}, v{D}')
    row_reduce(g, 'v_add_f32', Q)
    xor16_op(g, 'v_add_f32', Q, T)
    g(f'v_mul_f32 v{Q}, 0x{INV576:08x}, v{Q}')
    bf16_round(g, Q, Q)
    g(f'v_add_f32 v{Q}, 0x{EPS:08x}, v{Q}')
    bf16_round(g, Q, Q)
    g(f'v_sqrt_f32 v{Q}, v{Q}')
    g.nop(1)
    bf16_round(g, Q, Q)
    g(f'v_rcp_f32 v{Q}, v{Q}')
    bf16_round(g, S, S)
    for k in range(18):
        g(f'v_sub_f32 v{XF+k}, v{XF+k}, v{S}')
    for k in range(0, 18, 2):
        g(f'v_cvt_pk_bf16_f32 v{XR+k//2}, v{XF+k}, v{XF+k+1}')
    for k in range(9):
        g(f'v_lshlrev_b32 v{XF+2*k}, 16, v{XR+k}')
        g(f'v_and_b32 v{XF+2*k+1}, 0xffff0000, v{XR+k}')
    for k in range(18):
        g(f'v_mul_f32 v{XF+k}, v{XF+k}, v{Q}')
    for k in range(18):
        g(f'v_cvt_pk_bf16_f32 v{XF+k}, v{XF+k}, v{XF+k}')
    g('v_lshrrev_b32 v3, 5, v0')
    g('v_and_b32 v4, 31, v0')
    g('v_mul_u32_u24 v3, 576, v3')
    g('v_mad_u32_u24 v3, v4, 18, v3')
    g('v_lshlrev_b32 v3, 2, v3')
    for k in range(0, 18, 2):
        g(f'ds_write_b64 v3, v[{XF+k}:{XF+k+1}] offset:{L_XD + 4*k}')
    g('s_waitcnt lgkmcnt(0)')

def emit_qpoll(g, presleep=0):
    g(f's_lshl_b32 s{S_T0}, s{S_HKV}, 12')
    g(f's_lshl_b32 s{S_T1}, s{S_BB}, 7')
    g(f's_add_u32 s{S_T0}, s{S_T0}, s{S_T1}')
    set_ws_base(g, S_B2, S_T0, WS_L1 + 144*1024)
    g('v_lshrrev_b32 v3, 5, v0')
    g('v_lshlrev_b32 v3, 11, v3')
    g('v_bfe_u32 v4, v0, 3, 2')
    g('v_lshl_add_u32 v3, v4, 8, v3')
    g('v_and_b32 v4, 7, v0')
    g('v_lshl_add_u32 v3, v4, 4, v3')
    D = 124
    if g.o.get('qprobe'):
        lp = g.u('qp_lp'); ok = g.u('qp_ok')
        g(f's_and_b32 s{S_T4}, s{S_TAG}, 0xff')
        g(f's_mov_b32 s{S_CNT}, {SPIN_LIMIT}')
        g.label(lp)
        for k in range(4):
            g(f's_load_dword s{84+k}, {pr(S_B2)}, {1024*k} glc')
        g('s_waitcnt lgkmcnt(0)')
        for k in range(4):
            g(f's_and_b32 s{84+k}, s{84+k}, 0xff')
            g(f's_xor_b32 s{84+k}, s{84+k}, s{S_T4}')
        g('s_or_b32 s84, s84, s85')
        g('s_or_b32 s86, s86, s87')
        g('s_or_b32 s84, s84, s86')
        g('s_cmp_eq_u32 s84, 0')
        g(f's_cbranch_scc1 {ok}')
        g(f's_sub_u32 s{S_CNT}, s{S_CNT}, 1')
        g(f's_cbranch_scc1 {ok}')
        g(f's_sleep {g.o.get("qprobe")}')
        g(f's_branch {lp}')
        g.label(ok)
        presleep = 0
    if presleep:
        n = presleep
        while n > 0:
            g(f's_sleep {min(n,127)}'); n -= 127
    pre = None
    if g.o.get('qfast'):
        g(f'v_add_u32 v156, {WS_QALT}, v3')
        g('v_mov_b32 v157, v3')
        def pre():
            g(f's_and_b32 s{S_T0}, s{S_CNT}, 1')
            g(f's_cmp_eq_u32 s{S_T0}, 1')
            g(f's_cselect_b64 vcc, -1, 0')
            g('v_cndmask_b32_e32 v3, v156, v157, vcc')
    loads = [f'global_load_dwordx4 {vr(D+4*h)}, v3, {pr(S_B2)} offset:{1024*h} sc1' for h in range(2)]
    poll_retry(g, 'q', loads, D, 5, 6, sleep=g.o.get('qsleep', 4), st_first=5, st_cnt=1, pre_iter=pre)
    g.stamp(6)
    strip(g, range(D, D+8))
    for r in range(4):
        g(f'v_add_f32 v{D+r}, v{D+r}, v{D+4+r}')
    g(f'v_cvt_pk_bf16_f32 v{D}, v{D}, v{D+1}')
    g(f'v_cvt_pk_bf16_f32 v{D+2}, v{D+2}, v{D+3}')
    g('v_lshrrev_b32 v3, 5, v0')
    g('v_lshlrev_b32 v3, 8, v3')
    g('v_bfe_u32 v4, v0, 3, 2')
    g('v_lshl_add_u32 v3, v4, 6, v3')
    g('v_and_b32 v4, 7, v0')
    g('v_lshl_add_u32 v3, v4, 1, v3')
    g(f'ds_write_b16 v3, v{D} offset:{L_QL}')
    g(f'ds_write_b16_d16_hi v3, v{D} offset:{L_QL+16}')
    g(f'ds_write_b16 v3, v{D+2} offset:{L_QL+32}')
    g(f'ds_write_b16_d16_hi v3, v{D+2} offset:{L_QL+48}')
    g('s_waitcnt lgkmcnt(0)')
    g('v_mov_b32 v4, 0')
    g('v_mov_b32 v5, 1')
    g(f'ds_write_b32 v4, v5 offset:{C_QF}')

def emit_hpoll(g, S_RB):
    set_off = []
    g(f's_mul_i32 s{S_T2}, s{S_RB}, 3')
    g('v_lshrrev_b32 v3, 5, v0')
    g(f'v_mul_u32_u24 v3, {72*1024}, v3')
    g('v_bfe_u32 v4, v0, 4, 1')
    g('v_lshl_add_u32 v3, v4, 10, v3')
    g('v_lshl_add_u32 v3, v1, 4, v3')
    for k in range(3):
        g(f's_add_u32 s{S_T0}, s{S_T2}, {k}')
        g(f's_lshr_b32 s{S_T1}, s{S_T0}, 2')
        g(f's_lshl_b32 s{S_T1}, s{S_T1}, 11')
        g(f's_and_b32 s{S_T0}, s{S_T0}, 3')
        g(f's_lshl_b32 s{S_T0}, s{S_T0}, 8')
        g(f's_add_u32 s{S_T0}, s{S_T0}, s{S_T1}')
        g(f'v_add_u32 v{156+k}, s{S_T0}, v3')
    g(f's_mov_b64 {pr(S_B2)}, {pr(S_WS)}')
    add_base_imm(g, S_B2, WS_L1)
    D = 124
    loads = [f'global_load_dwordx4 {vr(D+4*k)}, v{156+k}, {pr(S_B2)} sc1' for k in range(3)]
    poll_retry(g, 'h', loads, D, 5, 6, sleep=g.o.get('hsleep', 8), st_first=5, st_cnt=1)
    g.stamp(6)
    N = 12
    strip(g, range(D, D+12))
    T = D + 12
    U = D + 24
    for j in range(N): g(f'v_mov_b32 v{T+j}, v{D+j}')
    g.nop(2)
    for j in range(N): g(f'v_permlane16_swap_b32 v{D+j}, v{T+j}')
    g.nop(1)
    for j in range(N): g(f'v_add_f32 v{D+j}, v{D+j}, v{T+j}')
    for j in range(N): bf16_round(g, D+j, D+j)
    for j in range(N): g(f'v_mov_b32 v{U+j}, v{D+j}')
    g.nop(2)
    for j in range(N): g(f'v_permlane32_swap_b32 v{D+j}, v{U+j}')
    g.nop(1)
    for j in range(N): g(f'v_mul_f32 v{T+j}, s{S_L2E}, v{D+j}')
    for j in range(N): g(f'v_exp_f32 v{T+j}, -v{T+j}')
    g.nop(1)
    for j in range(N): g(f'v_add_f32 v{T+j}, 1.0, v{T+j}')
    for j in range(N): g(f'v_rcp_f32 v{T+j}, v{T+j}')
    g.nop(1)
    for j in range(N): g(f'v_mul_f32 v{T+j}, v{D+j}, v{T+j}')
    for j in range(N): bf16_round(g, T+j, T+j)
    for j in range(N): g(f'v_mul_f32 v{T+j}, v{T+j}, v{U+j}')
    for j in range(N): g(f'v_cvt_pk_bf16_f32 v{T+j}, v{T+j}, v{T+j}')
    g('v_lshrrev_b32 v3, 3, v1')
    g('v_mul_u32_u24 v3, 96, v3')
    g('v_and_b32 v4, 7, v1')
    g('v_add_u32 v3, v3, v4')
    g('v_lshlrev_b32 v3, 2, v3')
    for k in range(3):
        for r in range(4):
            g(f'ds_write_b32 v3, v{T+4*k+r} offset:{L_HD + 128*k + 32*r}')
    g('s_waitcnt lgkmcnt(0)')
    g('v_mov_b32 v4, 0')
    g('v_mov_b32 v5, 1')
    g(f'ds_write_b32 v4, v5 offset:{C_HF}')

def l2_lane_offsets(g):
    g('v_mul_u32_u24 v5, 2304, v2')
    g('v_lshl_add_u32 v5, v1, 4, v5')
    g('v_add_u32 v6, 256, v5')
    g('v_add_u32 v7, 1024, v5')
    g('v_cmp_gt_u32_e32 vcc, 8, v1')
    g.nop(2)
    g('v_cndmask_b32_e32 v6, v7, v6, vcc')

def l2_issue(g, W0, ng, base=None, a0=5, a1=6, last_adv=False):
    pol = g.pol
    base = S_B if base is None else base
    for i in range(ng):
        g(f'global_load_dwordx4 {vr(W0+12*i)}, v{a0}, {pr(base)} {pol}')
        g(f'global_load_dwordx4 {vr(W0+12*i+4)}, v{a1}, {pr(base)} {pol}')
        g(f'global_load_dwordx4 {vr(W0+12*i+8)}, v{a0}, {pr(base)} offset:1280 {pol}')
        if i < ng-1 or last_adv: add_base_imm(g, base, 9216)

def l2_compute(g, W0, ng, P, AC, BE0, waitvm=None):
    def band(i, k):
        be = BE0 + 8*(i & 1)
        src = P + 2*i + (k >> 1)
        for r in (2*(k & 1), 2*(k & 1) + 1):
            g(f'v_and_b32 v{be + 4*(k >> 1) + r}, v{src}, v{MK+r}')
    g(f's_waitcnt lgkmcnt({ng-1})')
    for k in range(4): band(0, k)
    for i in range(ng):
        be = BE0 + 8*(i & 1); bo = be + 4
        if i + 1 < ng: g(f's_waitcnt lgkmcnt({ng-2-i})')
        if waitvm is not None:
            g(f's_waitcnt vmcnt({waitvm(i)})')
        if i == 0 and waitvm is None and ng == 1: g.nop(2)
        c = (lambda k: '0') if i == 0 else (lambda k: vr(AC+k))
        ms = [f'v_mfma_f32_16x16x32_bf16 {vr(AC)}, {vr(W0+12*i)}, {vr(be)}, {c(0)}',
              f'v_mfma_f32_16x16x32_bf16 {vr(AC+4)}, {vr(W0+12*i+4)}, {vr(be)}, {c(4)}',
              f'v_mfma_f32_16x16x32_bf16 {vr(AC+8)}, {vr(W0+12*i+4)}, {vr(bo)}, {c(8)}',
              f'v_mfma_f32_16x16x32_bf16 {vr(AC+12)}, {vr(W0+12*i+8)}, {vr(bo)}, {c(12)}']
        if i == 0: g.nop(1)
        for k in range(4):
            g(ms[k])
            if i + 1 < ng: band(i + 1, k)

S_PB = 80
def l2_prep(g, nprod, prod_sreg, ws_const, VI, VP):
    fs = nprod*128
    g(f's_mul_i32 s{S_T0}, s{S_WAVE}, 3072')
    g(f'v_lshlrev_b32 v{VI}, 4, v0')
    g(f'v_add_u32 v{VI}, s{S_T0}, v{VI}')
    g(f's_mul_i32 s{S_T0}, s{S_WAVE}, 24')
    g(f'v_add_u32 v{VP}, s{S_T0}, v0')
    g(f'v_lshlrev_b32 v{VI+1}, 4, v{VP}')
    g(f'v_lshrrev_b32 v6, 4, v{VP}')
    g(f'v_bfe_u32 v7, v{VP}, 3, 1')
    g('v_mad_u32_u24 v6, v7, 18, v6')
    g(f'v_mul_u32_u24 v6, {fs}, v6')
    g(f'v_and_b32 v7, 7, v{VP}')
    g(f'v_lshl_add_u32 v{VP}, v7, 4, v6')
    g(f's_mul_i32 s{S_T0}, s{S_CB}, {6*fs}')
    g(f's_lshl_b32 s{S_T1}, s{prod_sreg}, 7')
    g(f's_add_u32 s{S_T0}, s{S_T0}, s{S_T1}')
    set_ws_base(g, S_PB, S_T0, ws_const)

def l2_finish(g, AC, VI, VP, R0, st_a=None, st_b=None):
    g('v_cmp_gt_u32_e32 vcc, 2, v2')
    g('v_mov_b32 v12, 0')
    g('v_mov_b32 v13, 1')
    g.nop(5)
    g(f'ds_write_b128 v{VI}, {vr(AC)} offset:{L_Y}')
    for r in range(4):
        g(f'v_cndmask_b32_e32 v{AC+4+r}, v{AC+8+r}, v{AC+4+r}, vcc')
    g(f'ds_write_b128 v{VI}, {vr(AC+12)} offset:{L_Y + 2048}')
    g(f'ds_write_b128 v{VI}, {vr(AC+4)} offset:{L_Y + 1024}')
    if st_a is not None: g.stamp(st_a)
    g(f's_mov_b64 {pr(S_SV)}, exec')
    if g.o.get('ybar'):
        g('s_waitcnt lgkmcnt(0)')
        g('s_barrier')
        g(f's_mov_b64 exec, 0xffffff')
    else:
        g('s_waitcnt lgkmcnt(0)')
        g('s_mov_b64 exec, 1')
        g(f'ds_add_u32 v12, v13 offset:{C_YCNT}')
        g(f's_mov_b64 exec, 0xffffff')
        lp = g.u('ys'); ok = g.u('yok')
        g(f's_mov_b32 s{S_CNT}, {SPIN_LIMIT*8}')
        g.label(lp)
        g(f'ds_read_b32 v13, v12 offset:{C_YCNT}')
        g('s_waitcnt lgkmcnt(0)')
        g(f'v_readfirstlane_b32 s{S_T0}, v13')
        g(f's_cmp_ge_u32 s{S_T0}, 4')
        g(f's_cbranch_scc1 {ok}')
        g(f's_sub_u32 s{S_CNT}, s{S_CNT}, 1')
        g(f's_cbranch_scc0 {lp}')
        g.label(ok)
    for w in range(4):
        g(f'ds_read_b128 {vr(R0+8*w)}, v{VI+1} offset:{L_Y + 3072*w}')
        g(f'ds_read_b128 {vr(R0+4+8*w)}, v{VI+1} offset:{L_Y + 3072*w + 6*256}')
    for stage in range(4):
        g(f's_waitcnt lgkmcnt({6-2*stage})')
        for r in range(4):
            if stage == 0:
                g(f'v_add_f32 v{R0+r}, v{R0+r}, v{R0+4+r}')
            else:
                g(f'v_add_f32 v{R0+8*stage+r}, v{R0+8*stage+r}, v{R0+8*stage+4+r}')
                g(f'v_add_f32 v{R0+r}, v{R0+r}, v{R0+8*stage+r}')
    tag_insert(g, R0+4, R0, VTAG)
    g(f'global_store_dwordx4 v{VP}, {vr(R0+4)}, {pr(S_PB)} sc1')
    g(f's_mov_b64 exec, {pr(S_SV)}')
    if st_b is not None: g.stamp(st_b)

def reduce_hh(g, d, t):
    g.nop(2)
    for r in range(4):
        g(f'v_add_f32_dpp v{d+r}, v{d+r}, v{d+r} row_ror:8 row_mask:0xf bank_mask:0xf')
    for r in range(4): g(f'v_mov_b32 v{t+r}, v{d+r}')
    g.nop(2)
    for r in range(4): g(f'v_permlane16_swap_b32 v{d+r}, v{t+r}')
    g.nop(1)
    for r in range(4): g(f'v_add_f32 v{d+r}, v{d+r}, v{t+r}')
    for r in range(4): g(f'v_mov_b32 v{t+r}, v{d+r}')
    g.nop(2)
    for r in range(4): g(f'v_permlane32_swap_b32 v{d+r}, v{t+r}')
    g.nop(1)
    for r in range(4): g(f'v_add_f32 v{d+r}, v{d+r}, v{t+r}')

def emit_final_old(g):
    g('v_and_b32 v3, 7, v0')
    g('v_lshlrev_b32 v3, 1, v3')
    g(f's_lshl_b32 s{S_T0}, s{S_F}, 6')
    g(f'v_add_u32 v3, s{S_T0}, v3')
    for r in range(4):
        g(f'global_load_ushort v{124+r}, v3, {pr(S_X)} offset:{16*r}')
    g('v_lshlrev_b32 v4, 4, v0')
    g('v_add_u32 v5, 4096, v4')
    g(f's_mul_i32 s{S_T0}, s{S_F}, 6144')
    set_ws_base(g, S_B, S_T0, WS_F)
    g(f's_lshl_b32 s{S_T0}, s{S_F}, 11')
    set_ws_base(g, S_B2, S_T0, WS_B)
    lds_wait_ge(g, 'own', C_ACNT, 8, 12, sleep=8)
    g.stamp(5)
    D = 16
    loads = [f'global_load_dwordx4 {vr(D+4*k)}, v{4 if k < 4 else 5}, {pr(S_B)} offset:{1024*(k%4)} sc1' for k in range(6)]
    if 'fin' in g.o.get('nopoll', ()): g.o['finpipe'] = 0
    if not g.o.get('finpipe'):
        loads += [f'global_load_dwordx4 {vr(D+24+4*k)}, v4, {pr(S_B2)} offset:{1024*k} sc1' for k in range(2)]
        poll_retry(g, 'fin', loads, D, 13, 15, sleep=0, st_cnt=1)
    else:
        poll_retry(g, 'fin', loads, D, 13, 15, sleep=2)
        g.stamp(4)
        strip(g, range(D, D+24))
        for k in range(1, 6):
            for r in range(4): g(f'v_add_f32 v{D+r}, v{D+r}, v{D+4*k+r}')
        reduce_hh(g, D, 96)
        for r in range(4): bf16_round(g, D+r, D+r)
        for r in range(4): g(f'v_lshlrev_b32 v{124+r}, 16, v{124+r}')
        NS = g.o.get('finpipe')
        SETS = [64 + 8*j for j in range(NS)]
        def iss(j):
            for k in range(2):
                g(f'global_load_dwordx4 {vr(SETS[j]+4*k)}, v4, {pr(S_B2)} offset:{1024*k} sc1')
        lp = g.u('fp_lp'); done = g.u('fp_done')
        oks = [g.u('fp_ok') for _ in range(NS)]
        g(f's_mov_b32 s{S_CNT}, {SPIN_LIMIT}')
        for j in range(NS-1): iss(j)
        g.label(lp)
        for j in range(NS):
            iss((j + NS - 1) % NS)
            g(f's_waitcnt vmcnt({2*(NS-1)})')
            tag_check(g, SETS[j], 13, 15, True)
            tag_check(g, SETS[j]+4, 13, 15, False)
            g(f's_cmp_eq_u64 {pr(S_OK)}, -1')
            g(f's_cbranch_scc1 {oks[j]}')
        g(f's_sub_u32 s{S_CNT}, s{S_CNT}, 1')
        g(f's_cbranch_scc0 {lp}')
        for j in range(NS):
            g.label(oks[j])
            strip(g, range(SETS[j], SETS[j]+8))
            for r in range(4): g(f'v_add_f32 v{D+24+r}, v{SETS[j]+r}, v{SETS[j]+4+r}')
            if j < NS-1: g(f's_branch {done}')
        g.label(done)
    g.stamp(6)
    FF = D; AT = D + 24
    if not g.o.get('finpipe'):
        for k in range(1, 6):
            for r in range(4): g(f'v_add_f32 v{FF+r}, v{FF+r}, v{FF+4*k+r}')
        for r in range(4): g(f'v_add_f32 v{AT+r}, v{AT+r}, v{AT+4+r}')
    if g.o.get('finpipe'):
        reduce_hh(g, AT, 96)
        for r in range(4): bf16_round(g, AT+r, AT+r)
    else:
        vals = [FF+r for r in range(4)] + [AT+r for r in range(4)]
        T = 96
        g.nop(2)
        for v in vals: g(f'v_add_f32_dpp v{v}, v{v}, v{v} row_ror:8 row_mask:0xf bank_mask:0xf')
        for j, v in enumerate(vals): g(f'v_mov_b32 v{T+j}, v{v}')
        g.nop(2)
        for j, v in enumerate(vals): g(f'v_permlane16_swap_b32 v{v}, v{T+j}')
        g.nop(1)
        for j, v in enumerate(vals): g(f'v_add_f32 v{v}, v{v}, v{T+j}')
        for j, v in enumerate(vals): g(f'v_mov_b32 v{T+j}, v{v}')
        g.nop(2)
        for j, v in enumerate(vals): g(f'v_permlane32_swap_b32 v{v}, v{T+j}')
        g.nop(1)
        for j, v in enumerate(vals): g(f'v_add_f32 v{v}, v{v}, v{T+j}')
        for v in vals: bf16_round(g, v, v)
        for r in range(4): g(f'v_lshlrev_b32 v{124+r}, 16, v{124+r}')
    for r in range(4): g(f'v_add_f32 v{AT+r}, v{124+r}, v{AT+r}')
    for r in range(4): bf16_round(g, AT+r, AT+r)
    for r in range(4): g(f'v_add_f32 v{AT+r}, v{AT+r}, v{FF+r}')
    g(f'v_cvt_pk_bf16_f32 v28, v{AT}, v{AT+1}')
    g(f'v_cvt_pk_bf16_f32 v29, v{AT+2}, v{AT+3}')
    g('v_cmp_gt_u32_e32 vcc, 8, v0')
    g(f's_and_saveexec_b64 {pr(S_SV)}, vcc')
    g(f'global_store_short v3, v28, {pr(S_OUT)}')
    g(f'global_store_short_d16_hi v3, v28, {pr(S_OUT)} offset:16')
    g(f'global_store_short v3, v29, {pr(S_OUT)} offset:32')
    g(f'global_store_short_d16_hi v3, v29, {pr(S_OUT)} offset:48')
    g(f's_cmp_lg_u32 s{S_F}, 0')
    g('s_cbranch_scc1 L_nobump')
    g('s_mov_b64 exec, 1')
    g('v_mov_b32 v4, 0')
    g(f'ds_read_b32 v5, v4 offset:{C_RAWG}')
    g('s_waitcnt lgkmcnt(0)')
    g(f'global_store_dword v4, v5, {pr(S_WS)} sc1')
    g.label('L_nobump')
    g(f's_mov_b64 exec, {pr(S_SV)}')

C_FFF = 40
L_FF = L_QL + 0
def emit_ffgather(g):
    g('v_lshlrev_b32 v4, 4, v0')
    g('v_add_u32 v5, 4096, v4')
    g(f's_mul_i32 s{S_T0}, s{S_F}, 6144')
    set_ws_base(g, S_B, S_T0, WS_F)
    lds_wait_ge(g, 'own', C_ACNT, g.o.get('ffown', 4), 12, sleep=8)
    g.stamp(5)
    D = 16
    loads = [f'global_load_dwordx4 {vr(D+4*k)}, v{4 if k < 4 else 5}, {pr(S_B)} offset:{1024*(k%4)} sc1' for k in range(6)]
    poll_retry(g, 'fin', loads, D, 13, 15, sleep=g.o.get('ffsleep', 1), st_cnt=1)
    g.stamp(4)
    for k in range(1, 6):
        for r in range(4): g(f'v_add_f32 v{D+r}, v{D+r}, v{D+4*k+r}')
    reduce_hh(g, D, 96)
    for r in range(4): bf16_round(g, D+r, D+r)
    g('v_lshlrev_b32 v4, 4, v0')
    g('v_cmp_gt_u32_e32 vcc, 8, v0')
    g(f's_and_saveexec_b64 {pr(S_SV)}, vcc')
    g(f'ds_write_b128 v4, {vr(D)} offset:{L_Y}')
    g('s_waitcnt lgkmcnt(0)')
    g('v_mov_b32 v12, 0'); g('v_mov_b32 v13, 1')
    g(f'ds_write_b32 v12, v13 offset:{C_FFF}')
    g(f's_mov_b64 exec, {pr(S_SV)}')
    g.stamp(6)

def emit_final(g):
    g('v_and_b32 v3, 7, v0')
    g('v_lshlrev_b32 v3, 1, v3')
    g(f's_lshl_b32 s{S_T0}, s{S_F}, 6')
    g(f'v_add_u32 v3, s{S_T0}, v3')
    for r in range(4):
        g(f'global_load_ushort v{124+r}, v3, {pr(S_X)} offset:{16*r}')
    g('v_lshlrev_b32 v4, 4, v0')
    g(f's_lshl_b32 s{S_T0}, s{S_F}, 11')
    set_ws_base(g, S_B2, S_T0, WS_B)
    g('v_mov_b32 v12, 0')
    g(f'ds_read_b32 v30, v12 offset:{C_RAWG}')
    lds_wait_ge(g, 'own', C_ACNT, 8, 12, sleep=8)
    g.stamp(5)
    g('s_waitcnt vmcnt(0)')
    for r in range(4): g(f'v_lshlrev_b32 v{124+r}, 16, v{124+r}')
    AT = 40
    NS = g.o.get('finpipe') or 3
    SETS = [64 + 8*j for j in range(NS)]
    def iss(j):
        for k in range(2):
            g(f'global_load_dwordx4 {vr(SETS[j]+4*k)}, v4, {pr(S_B2)} offset:{1024*k} sc1')
    if 'fin' not in g.o.get('nopoll', ()):
        lp = g.u('fp_lp'); done = g.u('fp_done')
        oks = [g.u('fp_ok') for _ in range(NS)]
        g(f's_mov_b32 s{S_CNT}, {SPIN_LIMIT}')
        for j in range(NS-1): iss(j)
        g.label(lp)
        for j in range(NS):
            iss((j + NS - 1) % NS)
            g(f's_waitcnt vmcnt({2*(NS-1)})')
            tag_check(g, SETS[j], 13, 15, True)
            tag_check(g, SETS[j]+4, 13, 15, False)
            g(f's_cmp_eq_u64 {pr(S_OK)}, -1')
            g(f's_cbranch_scc1 {oks[j]}')
        g(f's_sub_u32 s{S_CNT}, s{S_CNT}, 1')
        g(f's_cbranch_scc0 {lp}')
        for j in range(NS):
            g.label(oks[j])
            for r in range(4): g(f'v_add_f32 v{AT+r}, v{SETS[j]+r}, v{SETS[j]+4+r}')
            if j < NS-1: g(f's_branch {done}')
        g.label(done)
    g.stamp(6)
    reduce_hh(g, AT, 48)
    for r in range(4): bf16_round(g, AT+r, AT+r)
    for r in range(4): g(f'v_add_f32 v{AT+r}, v{124+r}, v{AT+r}')
    for r in range(4): bf16_round(g, AT+r, AT+r)
    if 'fin' not in g.o.get('nopoll', ()):
        lds_wait_ge(g, 'fff', C_FFF, 1, 12, sleep=0)
    g('v_lshlrev_b32 v4, 4, v0')
    g(f'ds_read_b128 {vr(52)}, v4 offset:{L_Y}')
    g('v_cmp_gt_u32_e32 vcc, 8, v0')
    g('s_waitcnt lgkmcnt(0)')
    for r in range(4): g(f'v_add_f32 v{AT+r}, v{AT+r}, v{52+r}')
    g(f'v_cvt_pk_bf16_f32 v28, v{AT}, v{AT+1}')
    g(f'v_cvt_pk_bf16_f32 v29, v{AT+2}, v{AT+3}')
    g(f's_and_saveexec_b64 {pr(S_SV)}, vcc')
    g(f'global_store_short v3, v28, {pr(S_OUT)}')
    g(f'global_store_short_d16_hi v3, v28, {pr(S_OUT)} offset:16')
    g(f'global_store_short v3, v29, {pr(S_OUT)} offset:32')
    g(f'global_store_short_d16_hi v3, v29, {pr(S_OUT)} offset:48')
    g(f's_cmp_lg_u32 s{S_F}, 0')
    g('s_cbranch_scc1 L_nobump')
    g('s_mov_b64 exec, 1')
    g('v_mov_b32 v4, 0')
    g(f'global_store_dword v4, v30, {pr(S_WS)} sc1')
    g.label('L_nobump')
    g(f's_mov_b64 exec, {pr(S_SV)}')

def emit_roleO(g):
    S_HO = S_ID
    g(f's_sub_u32 s{S_CB}, s{S_SLOT}, 26')
    g(f's_cmp_ge_u32 s{S_CB}, 3')
    g(f's_cselect_b32 s{S_T0}, 1, 0')
    g(f's_mul_i32 s{S_T1}, s{S_T0}, 3')
    g(f's_sub_u32 s{S_CB}, s{S_CB}, s{S_T1}')
    g(f's_lshl_b32 s{S_HO}, s{S_XCD}, 1')
    g(f's_add_u32 s{S_HO}, s{S_HO}, s{S_T0}')
    NE = g.o.get('oearly', 0)
    W0 = 16
    kernarg_ready(g, 'L_nogenO')
    g(f's_mul_i32 s{S_T0}, s{S_HO}, {256*1152}')
    g(f's_mul_i32 s{S_T1}, s{S_CB}, 384')
    g(f's_add_u32 s{S_T0}, s{S_T0}, s{S_T1}')
    g(f's_mul_i32 s{S_T1}, s{S_WAVE}, {64*1152}')
    g(f's_add_u32 s{S_T0}, s{S_T0}, s{S_T1}')
    g(f's_mov_b64 s[82:83], {pr(S_WO)}')
    add_base(g, 82, S_T0)
    l2_lane_offsets(g)
    g('v_mov_b32 v165, v5'); g('v_mov_b32 v166, v6')
    l2_issue(g, W0, NE, base=82, a0=165, a1=166, last_adv=True)
    g('s_barrier')
    g.stamp(2)
    g(f's_cmp_lg_u32 s{S_WAVE}, 1')
    g('s_cbranch_scc1 L_Onoq')
    emit_tag_publish(g)
    emit_qpoll(g, g.o.get('qdelayO', 0))
    g.label('L_Onoq')
    get_tag_from_lds(g, 12, VTAG)
    if g.o.get('touchB'):
        l2_prep(g, 16, S_HO, WS_B, 162, 164)
        g(f'v_not_b32 v15, v{VTAG}')
        tag_insert(g, 112, 112, 15)
        g(f's_mov_b64 {pr(S_SV)}, exec')
        g('s_mov_b64 exec, 0xffffff')
        g(f'global_store_dwordx4 v164, {vr(112)}, {pr(S_PB)} sc1')
        g(f's_mov_b64 exec, {pr(S_SV)}')
        g.nop(2)
    make_masks(g, MK, 1, 112)
    if g.o.get('nolate', 0) > 1:
        g('s_branch L_end_stamp')
    if NE < 8:
        if not g.o.get('early'):
            lds_wait_ge(g, 'viss', C_VISS, g.o.get('ogate', 8), 12, sleep=4)
        if g.o.get('ogg'):
            global_gate(g, g.o.get('ogg'))
        osp = g.o.get('osplit', 0)
        if g.o.get('gg2') and g.o.get('ogg2'):
            if osp: l2_issue(g, W0 + 12*NE, osp - NE, base=82, a0=165, a1=166, last_adv=True)
            lds_wait_ge(g, 'viss8', C_VISS, 8, 12, sleep=4)
            count_in(g)
            go_wait(g)
            l2_issue(g, W0 + 12*max(osp,NE), 8 - max(osp,NE), base=82, a0=165, a1=166)
        elif osp:
            l2_issue(g, W0 + 12*NE, osp - NE, base=82, a0=165, a1=166, last_adv=True)
            lds_wait_ge(g, 'viss8', C_VISS, 8, 12, sleep=4)
            l2_issue(g, W0 + 12*osp, 8 - osp, base=82, a0=165, a1=166)
            if g.o.get('gg2'): count_in(g)
        else:
            l2_issue(g, W0 + 12*NE, 8 - NE, base=82, a0=165, a1=166)
        if g.o.get('ggate'): count_in(g)
    else:
        lds_wait_ge(g, 'own', C_ACNT, 8, 12, sleep=4)
    if not g.o.get('stO'): g.stamp(3)
    g(f's_lshl_b32 s{S_T0}, s{S_HO}, 14')
    g(f's_and_b32 s{S_T1}, s{S_WAVE}, 1')
    g(f's_lshl_b32 s{S_T1}, s{S_T1}, 9')
    g(f's_add_u32 s{S_T0}, s{S_T0}, s{S_T1}')
    g(f's_lshr_b32 s{S_T1}, s{S_WAVE}, 1')
    g(f's_lshl_b32 s{S_T1}, s{S_T1}, 7')
    g(f's_add_u32 s{S_T0}, s{S_T0}, s{S_T1}')
    set_ws_base(g, S_B, S_T0, WS_A)
    g(f's_lshl_b32 s{S_T0}, s{S_HO}, 11')
    g(f's_lshr_b32 s{S_T1}, s{S_WAVE}, 1')
    g(f's_lshl_b32 s{S_T1}, s{S_T1}, 4')
    g(f's_add_u32 s{S_T0}, s{S_T0}, s{S_T1}')
    set_ws_base(g, S_B2, S_T0, WS_S)
    g('v_lshrrev_b32 v3, 5, v0')
    g('v_bfe_u32 v5, v0, 3, 1')
    g('v_lshl_add_u32 v4, v3, 1, v5')
    g('v_lshlrev_b32 v3, 12, v4')
    g('v_lshlrev_b32 v4, 9, v4')
    g('v_bfe_u32 v5, v0, 4, 1')
    g('v_lshl_add_u32 v3, v5, 8, v3')
    g('v_and_b32 v5, 7, v0')
    g('v_lshl_add_u32 v3, v5, 4, v3')
    g('v_lshrrev_b32 v160, 5, v0')
    g('v_lshlrev_b32 v160, 6, v160')
    g('v_bfe_u32 v5, v0, 4, 1')
    g('v_lshl_add_u32 v160, v5, 5, v160')
    g('v_and_b32 v5, 7, v0')
    g('v_add_u32 v160, v160, v5')
    g(f's_lshl_b32 s{S_T0}, s{S_WAVE}, 7')
    g(f'v_add_u32 v160, s{S_T0}, v160')
    g('v_lshlrev_b32 v160, 2, v160')
    g('v_lshrrev_b32 v161, 3, v1')
    g('v_lshlrev_b32 v161, 6, v161')
    g('v_lshl_add_u32 v161, v2, 1, v161')
    g(f'v_add_u32 v161, s{S_T0}, v161')
    g('v_lshlrev_b32 v161, 2, v161')
    l2_prep(g, 16, S_HO, WS_B, 162, 164)
    D = 112
    if g.o.get('fastA'):
        g(f'v_add_u32 v156, {WS_ALT}, v3')
        g(f'v_add_u32 v157, {WS_ALT}, v4')
        g('v_mov_b32 v158, v3'); g('v_mov_b32 v159, v4')
        def pre():
            g(f's_and_b32 s{S_T0}, s{S_CNT}, {g.o.get("abmask", 3)}')
            g(f's_cmp_eq_u32 s{S_T0}, 1')
            g(f's_cselect_b64 vcc, -1, 0')
            g('v_cndmask_b32_e32 v3, v156, v158, vcc')
            g('v_cndmask_b32_e32 v4, v157, v159, vcc')
    else:
        pre = None
    if g.stamps and g.o.get('stO'):
        pre0 = pre
        def pre():
            g('s_waitcnt lgkmcnt(0)')
            g('s_mov_b64 s[68:69], s[70:71]')
            g('s_mov_b64 s[70:71], s[74:75]')
            g('s_memrealtime s[74:75]')
            if pre0: pre0()
    loads = [f'global_load_dwordx4 {vr(D+4*i)}, v3, {pr(S_B)} offset:{1024*i} sc1' for i in range(4)]
    loads += [f'global_load_dwordx4 {vr(D+16+4*i)}, v4, {pr(S_B2)} offset:{128*i} sc1' for i in range(4)]
    if g.o.get('warm') and g.o.get('fastA'):
        for i in range(4): g(f'global_load_dwordx4 {vr(D+4*i)}, v156, {pr(S_B)} offset:{1024*i} sc1')
        for i in range(4): g(f'global_load_dwordx4 {vr(D+16+4*i)}, v157, {pr(S_B2)} offset:{128*i} sc1')
    if NE < 8 and g.o.get('ogate', 8) < 8 and g.o.get('ownwait', 8):
        lds_wait_ge(g, 'own', C_ACNT, g.o.get('ownwait', 8), 12, sleep=4)
    poll_retry(g, 'ha', loads, D, 5, 6, sleep=0, st_cnt=1, pre_iter=pre, backoff=g.o.get('habk'))
    g.stamp(4)
    ST = D + 16
    M = 144; LL = 145; O = 148
    for i in range(4):
        g(f'v_and_b32 v{ST+4*i}, 0xffffff00, v{ST+4*i}')
    g(f'v_max_f32 v{M}, v{ST}, v{ST+4}')
    g(f'v_max3_f32 v{M}, v{M}, v{ST+8}, v{ST+12}')
    strip(g, [ST+4*i+1 for i in range(4)])
    g(f'v_max_f32_dpp v{M}, v{M}, v{M} row_ror:8 row_mask:0xf bank_mask:0xf')
    strip(g, range(D, D+8))
    for i in range(4): g(f'v_sub_f32 v{ST+4*i}, v{ST+4*i}, v{M}')
    for i in range(4): g(f'v_exp_f32 v{ST+4*i}, v{ST+4*i}')
    strip(g, range(D+8, D+16))
    g(f'v_mul_f32 v{LL}, v{ST}, v{ST+1}')
    for r in range(4): g(f'v_mul_f32 v{O+r}, v{ST}, v{D+r}')
    for i in range(1, 4):
        g(f'v_fmac_f32 v{LL}, v{ST+4*i}, v{ST+4*i+1}')
        for r in range(4): g(f'v_fmac_f32 v{O+r}, v{ST+4*i}, v{D+4*i+r}')
    g.nop(1)
    g(f'v_add_f32_dpp v{LL}, v{LL}, v{LL} row_ror:8 row_mask:0xf bank_mask:0xf')
    for r in range(4):
        g(f'v_add_f32_dpp v{O+r}, v{O+r}, v{O+r} row_ror:8 row_mask:0xf bank_mask:0xf')
    g(f'v_rcp_f32 v{LL}, v{LL}')
    g.nop(1)
    for r in range(4): g(f'v_mul_f32 v{O+r}, v{O+r}, v{LL}')
    for r in range(4): g(f'v_cvt_pk_bf16_f32 v{O+r}, v{O+r}, v{O+r}')
    for r in range(4): g(f'ds_write_b32 v160, v{O+r} offset:{L_OD + 32*r}')
    g('s_waitcnt lgkmcnt(0)')
    P = 112
    for i in range(8):
        g(f'ds_read_b64 v[{P+2*i}:{P+2*i+1}], v161 offset:{L_OD + 32*i}')
    l2_compute(g, W0, 8, P, 128, 144)
    l2_finish(g, 128, 162, 164, 16, st_a=None if g.o.get('stO') else 5, st_b=6)

def emit_qk_softmax(g, extra):
    K0, V0 = 16, 80
    QF = 144
    g('v_lshrrev_b32 v4, 3, v1')
    g('v_lshlrev_b32 v4, 8, v4')
    g('v_lshl_add_u32 v4, v2, 4, v4')
    for s in range(4):
        g(f'ds_read_b128 {vr(QF+4*s)}, v4 offset:{L_QL + 64*s}')
    SCR = [8, 12, 160, 164]
    for T in range(4):
        for r in range(4): g(f'v_mov_b32 v{SCR[T]+r}, 0')
    g('s_waitcnt lgkmcnt(0)')
    for T in range(4):
        g(f's_waitcnt vmcnt({12 - 4*T + extra})')
        for s in range(4):
            g(f'v_mfma_f32_16x16x32_bf16 {vr(SCR[T])}, {vr(K0+16*T+4*s)}, {vr(QF+4*s)}, {vr(SCR[T])}')
    g.nop(8)
    g.stamp(4)
    sc = [SCR[T]+r for T in range(4) for r in range(4)]
    TP = 144
    for k in range(0, 16, 2):
        g(f'v_cvt_pk_bf16_f32 v{TP+k//2}, v{sc[k]}, v{sc[k+1]}')
    for k in range(0, 16, 2):
        g(f'v_lshlrev_b32 v{sc[k]}, 16, v{TP+k//2}')
        g(f'v_and_b32 v{sc[k+1]}, 0xffff0000, v{TP+k//2}')
    for k in range(16):
        g(f'v_mul_f32 v{sc[k]}, 0x{SCALE:08x}, v{sc[k]}')
    for k in range(0, 16, 2):
        g(f'v_cvt_pk_bf16_f32 v{TP+k//2}, v{sc[k]}, v{sc[k+1]}')
    for k in range(0, 16, 2):
        g(f'v_lshlrev_b32 v{sc[k]}, 16, v{TP+k//2}')
        g(f'v_and_b32 v{sc[k+1]}, 0xffff0000, v{TP+k//2}')
    M = 152; T1 = 153; LS = 154
    g(f'v_max3_f32 v{M}, v{sc[0]}, v{sc[1]}, v{sc[2]}')
    for k in range(3, 15, 2):
        g(f'v_max3_f32 v{M}, v{M}, v{sc[k]}, v{sc[k+1]}')
    g(f'v_max_f32 v{M}, v{M}, v{sc[15]}')
    xor16_op(g, 'v_max_f32', M, T1)
    xor32_op(g, 'v_max_f32', M, T1)
    g(f'v_mul_f32 v{M}, s{S_L2E}, v{M}')
    for k in range(16):
        g(f'v_fma_f32 v{sc[k]}, v{sc[k]}, s{S_L2E}, -v{M}')
    for k in range(16):
        g(f'v_exp_f32 v{sc[k]}, v{sc[k]}')
    g.nop(1)
    g(f'v_add_f32 v{LS}, v{sc[0]}, v{sc[1]}')
    for k in range(2, 16):
        g(f'v_add_f32 v{LS}, v{LS}, v{sc[k]}')
    for k in range(16):
        g(f'v_cvt_pk_bf16_f32 v{sc[k]}, v{sc[k]}, v{sc[k]}')
    xor16_op(g, 'v_add_f32', LS, T1)
    xor32_op(g, 'v_add_f32', LS, T1)
    AMK = 156
    make_masks(g, AMK, 1, 4)
    for T in range(4):
        for i in range(4):
            for r in range(4):
                g(f'v_and_b32 v{K0+16*T+4*i+r}, v{sc[4*T+i]}, v{AMK+r}')
    AC = 144
    for r in range(8): g(f'v_mov_b32 v{AC+r}, 0')
    g.stamp(5)

def issue_v(g, V0):
    pol = g.pol
    for T in range(4):
        for i in range(4):
            g(f'global_load_dwordx4 {vr(V0+16*T+4*i)}, v3, {pr(S_V)} offset:{256*i} {pol}')
        if T < 3: add_base_imm(g, S_V, 4096)
    g('v_mov_b32 v4, 0')
    g('v_mov_b32 v5, 1')
    g(f's_mov_b64 {pr(S_SV)}, exec')
    g('s_mov_b64 exec, 1')
    g(f'ds_add_u32 v4, v5 offset:{C_VISS}')
    g(f's_mov_b64 exec, {pr(S_SV)}')

def emit_attn(g):
    pol = g.pol
    K0, V0 = 16, 80
    QF = 144
    g('s_waitcnt lgkmcnt(0)')
    g(f's_lshl_b32 s{S_T0}, s{S_BB}, 4')
    g(f's_add_u32 s{S_T0}, s{S_T0}, s{S_HKV}')
    g(f's_lshl_b32 s{S_T0}, s{S_T0}, 20')
    il = g.o.get('kvil', True)
    g(f's_lshl_b32 s{S_T1}, s{S_SP}, {14 if il else 17}')
    g(f's_add_u32 s{S_T0}, s{S_T0}, s{S_T1}')
    g(f's_sub_u32 s{S_T1}, s{S_WAVE}, 4')
    g(f's_lshl_b32 s{S_T1}, s{S_T1}, {17 if il else 14}')
    g(f's_add_u32 s{S_T0}, s{S_T0}, s{S_T1}')
    add_base(g, S_K, S_T0)
    add_base(g, S_V, S_T0)
    g('v_lshlrev_b32 v4, 8, v1')
    g('v_lshl_add_u32 v4, v2, 4, v4')
    g('v_lshlrev_b32 v3, 10, v2')
    g('v_lshl_add_u32 v3, v1, 4, v3')
    if g.o.get('tlb'):
        g('v_mov_b32 v6, 0')
        g(f'global_load_dword v16, v6, {pr(S_K)} nt')
        g(f'global_load_dword v80, v6, {pr(S_V)} nt')
    g('s_barrier')
    g.stamp(1)
    g('s_setprio 2')
    for T in range(4):
        for s in range(4):
            g(f'global_load_dwordx4 {vr(K0+16*T+4*s)}, v4, {pr(S_K)} offset:{64*s} {pol}')
        if T < 3: add_base_imm(g, S_K, 4096)
    g('s_setprio 1')
    g(f's_cmp_ge_u32 s{S_WAVE}, 8')
    g('s_cbranch_scc1 L_grp2')
    issue_v(g, V0)
    g.stamp(2)
    lds_wait_ge(g, 'qf', C_QF, 1, 4, sleep=4)
    g.stamp(3)
    emit_qk_softmax(g, 16)
    g('s_branch L_pv')
    g.label('L_grp2')
    g.stamp(2)
    lds_wait_ge(g, 'qf', C_QF, 1, 4, sleep=4)
    g.stamp(3)
    emit_qk_softmax(g, 0)
    issue_v(g, V0)
    g.label('L_pv')
    M = 152; LS = 154; AC = 144
    g(f's_sub_u32 s{S_T2}, s{S_WAVE}, 4')
    g(f's_lshl_b32 s{S_T0}, s{S_T2}, 10')
    g('v_lshlrev_b32 v7, 4, v0')
    g(f'v_add_u32 v4, s{S_T0}, v7')
    g('v_lshrrev_b32 v6, 3, v1')
    g('v_lshlrev_b32 v6, 3, v6')
    g(f's_lshl_b32 s{S_T0}, s{S_T2}, 4')
    g(f'v_add_u32 v5, s{S_T0}, v6')
    g('v_mov_b32 v12, 0')
    g(f'ds_read_b32 v14, v12 offset:{C_TAG}')
    g(f'v_mov_b32 v10, v{M}')
    g(f'v_mov_b32 v11, v{LS}')
    g(f'ds_write_b64 v5, v[10:11] offset:{L_AS}')
    g(f's_lshl_b32 s{S_T0}, s{S_HKV}, 1')
    g(f's_add_u32 s{S_T0}, s{S_T0}, s{S_BB}')
    g(f's_lshl_b32 s{S_T0}, s{S_T0}, 3')
    g(f's_add_u32 s{S_T0}, s{S_T0}, s{S_SP}')
    g(f's_lshl_b32 s{S_T1}, s{S_T0}, 10')
    set_ws_base(g, S_B, S_T1, WS_A)
    g(f's_lshl_b32 s{S_T1}, s{S_T0}, 7')
    set_ws_base(g, S_B2, S_T1, WS_S)
    g('v_mov_b32 v13, 1')
    for T in range(4):
        g(f's_waitcnt vmcnt({12 - 4*T})')
        for i in range(4):
            a = AC + 4*(i & 1)
            g(f'v_mfma_f32_16x16x32_bf16 {vr(a)}, {vr(V0+16*T+4*i)}, {vr(K0+16*T+4*i)}, {vr(a)}')
    g.stamp(6)
    g.nop(8)
    for r in range(4): g(f'v_add_f32 v{AC+r}, v{AC+r}, v{AC+4+r}')
    g(f'ds_write_b128 v4, {vr(AC)} offset:{L_AO}')
    g(f's_mov_b64 {pr(S_SV)}, exec')
    g('s_waitcnt lgkmcnt(0)')
    g('s_mov_b64 exec, 1')
    g(f'ds_add_rtn_u32 v13, v12, v13 offset:{C_ACNT}')
    g('s_waitcnt lgkmcnt(0)')
    g(f'v_readfirstlane_b32 s{S_T0}, v13')
    g(f's_mov_b64 exec, {pr(S_SV)}')
    g(f's_cmp_lg_u32 s{S_T0}, 7')
    g('s_cbranch_scc1 L_end_stamp')
    ST = 16; OV = 32
    for w in range(8):
        g(f'ds_read_b64 v[{ST+2*w}:{ST+2*w+1}], v6 offset:{L_AS + 16*w}')
    for w in range(8):
        g(f'ds_read_b128 {vr(OV+4*w)}, v7 offset:{L_AO + 1024*w}')
    g('s_waitcnt lgkmcnt(8)')
    g(f'v_max3_f32 v8, v{ST}, v{ST+2}, v{ST+4}')
    g(f'v_max3_f32 v9, v{ST+6}, v{ST+8}, v{ST+10}')
    g(f'v_max3_f32 v8, v8, v{ST+12}, v{ST+14}')
    g(f'v_max_f32 v8, v8, v9')
    g('v_and_b32 v8, 0xffffff00, v8')
    for w in range(8): g(f'v_sub_f32 v{ST+2*w}, v{ST+2*w}, v8')
    for w in range(8): g(f'v_exp_f32 v{ST+2*w}, v{ST+2*w}')
    g('v_mov_b32 v10, 0')
    g('v_mov_b32 v11, 0')
    g(f'v_mul_f32 v9, v{ST}, v{ST+1}')
    for w in range(1, 8): g(f'v_fmac_f32 v9, v{ST+2*w}, v{ST+2*w+1}')
    g('s_waitcnt lgkmcnt(0)')
    for r in range(4):
        g(f'v_mul_f32 v{64+r}, v{ST}, v{OV+r}')
    for w in range(1, 8):
        for r in range(4):
            g(f'v_fmac_f32 v{64+r}, v{ST+2*w}, v{OV+4*w+r}')
    tag_insert(g, 68, 64, 14)
    tag_insert(g, 72, 8, 14)
    g('v_lshlrev_b32 v5, 1, v6')
    g('v_and_b32 v4, 0x37, v0')
    g('v_cmp_eq_u32_e32 vcc, 0, v4')
    if g.o.get('fastA'):
        g(f'v_add_u32 v13, {WS_ALT}, v7')
        g(f'v_add_u32 v12, {WS_ALT}, v5')
        g(f'global_store_dwordx4 v13, {vr(68)}, {pr(S_B)}')
        g(f's_and_saveexec_b64 {pr(S_SV)}, vcc')
        g(f'global_store_dwordx4 v12, {vr(72)}, {pr(S_B2)}')
        g(f'global_store_dwordx4 v5, {vr(72)}, {pr(S_B2)} sc1')
        g(f's_mov_b64 exec, {pr(S_SV)}')
        g(f'global_store_dwordx4 v7, {vr(68)}, {pr(S_B)} sc1')
    else:
        g(f'global_store_dwordx4 v7, {vr(68)}, {pr(S_B)} sc1')
        g(f's_and_saveexec_b64 {pr(S_SV)}, vcc')
        g(f'global_store_dwordx4 v5, {vr(72)}, {pr(S_B2)} sc1')
        g(f's_mov_b64 exec, {pr(S_SV)}')

def generate(stamps=False, pol='nt', opts=None):
    g = G(stamps, pol, opts)
    g('s_cmp_ge_u32 s2, 256')
    g('s_cbranch_scc1 L_end')
    g.stamp(0)
    g('s_load_dwordx16 s[4:19], s[0:1], 0')
    g('s_load_dwordx8 s[20:27], s[0:1], 64')
    g('v_lshrrev_b32 v3, 6, v0')
    g('v_and_b32 v0, 63, v0')
    g(f'v_readfirstlane_b32 s{S_WAVE}, v3')
    g(f'v_and_b32 v{V_N}, 15, v0')
    g(f'v_lshrrev_b32 v{V_G}, 4, v0')
    g(f's_and_b32 s{S_XCD}, s2, 7')
    g(f's_lshr_b32 s{S_SLOT}, s2, 3')
    g(f's_lshr_b32 s{S_HKV}, s{S_SLOT}, 4')
    g(f's_lshl_b32 s{S_T0}, s{S_XCD}, 1')
    g(f's_add_u32 s{S_HKV}, s{S_HKV}, s{S_T0}')
    g(f's_bfe_u32 s{S_BB}, s{S_SLOT}, 0x10003')
    g(f's_and_b32 s{S_SP}, s{S_SLOT}, 7')
    g(f's_mov_b32 s{S_L2E}, 0x{LOG2E:08x}')
    if g.o.get('skew'):
        g(f's_mul_i32 s91, s{S_XCD}, 13')
        g(f's_mov_b32 s92, s91')
        g(f's_mov_b32 s90, 13')
        g(f's_sub_u32 s{S_T0}, s{S_XCD}, 4')
        g(f's_mul_i32 s{S_T1}, s{S_T0}, 23')
        g(f's_add_u32 s{S_T1}, s{S_T1}, 52')
        g(f's_mul_i32 s{S_T2}, s{S_T0}, 3')
        g(f's_add_u32 s{S_T2}, s{S_T2}, 52')
        g(f's_cmp_ge_u32 s{S_XCD}, 4')
        g(f's_cselect_b32 s90, 23, s90')
        g(f's_cselect_b32 s91, s{S_T1}, s91')
        g(f's_cselect_b32 s92, s{S_T2}, s92')
    else:
        g(f's_mov_b32 s90, 18')
        g(f's_mul_i32 s91, s{S_XCD}, 18')
    tag_consts(g)
    g(f's_cmp_ge_u32 s{S_WAVE}, 4')
    g('s_cbranch_scc1 L_attn')
    g('s_setprio 3')
    g(f's_cmp_lg_u32 s{S_WAVE}, 0')
    g('s_cbranch_scc1 L_noinit')
    g('v_lshlrev_b32 v3, 4, v0')
    for r in range(4, 8): g(f'v_mov_b32 v{r}, 0')
    g('ds_write_b128 v3, v[4:7]')
    g.label('L_noinit')
    g(f's_cmp_ge_u32 s{S_SLOT}, 26')
    g('s_cbranch_scc1 L_roleO')
    XR = 124; XF = 136
    g('v_lshrrev_b32 v3, 5, v0')
    g('v_and_b32 v4, 31, v0')
    g('v_mul_u32_u24 v3, 1152, v3')
    g('v_mad_u32_u24 v3, v4, 36, v3')
    xp = g.o.get('xpol', '')
    g('v_mov_b32 v15, v3')
    def xloads():
        g(f'global_load_dwordx4 {vr(XR)}, v15, {pr(S_X)} {xp}')
        g(f'global_load_dwordx4 {vr(XR+4)}, v15, {pr(S_X)} offset:16 {xp}')
        g(f'global_load_dword v{XR+8}, v15, {pr(S_X)} offset:32 {xp}')
    XPOS = g.o.get('xpos', 0)
    S_HALF = S_RS
    S_A, S_R = S_T2, S_T3
    if g.o.get('remap', True):
        g(f's_cmp_ge_u32 s{S_SLOT}, s90')
        g('s_cbranch_scc1 L_tileLight')
        g(f's_add_u32 s{S_ID}, s91, s{S_SLOT}')
        g(f's_and_b32 s{S_HALF}, s{S_ID}, 1')
        g(f's_lshr_b32 s{S_A}, s{S_ID}, 2')
        g(f's_and_b32 s{S_R}, s{S_ID}, 2')
        g(f's_sub_u32 s{S_T0}, s{S_ID}, 104')
        g(f's_lshr_b32 s{S_T0}, s{S_T0}, 1')
        g(f's_add_u32 s{S_T0}, s{S_T0}, 6')
        g(f's_cmp_ge_u32 s{S_ID}, 104')
        g(f's_cselect_b32 s{S_A}, s{S_T0}, s{S_A}')
        g(f's_cselect_b32 s{S_R}, 3, s{S_R}')
        g('s_branch L_tileCT')
        g.label('L_tileLight')
        if g.o.get('skew'):
            g(f's_sub_u32 s{S_T0}, s{S_SLOT}, s90')
            g(f's_add_u32 s{S_T0}, s{S_T0}, s92')
        else:
            g(f's_sub_u32 s{S_T0}, s{S_SLOT}, 18')
            g(f's_lshl_b32 s{S_T0}, s{S_T0}, 3')
            g(f's_add_u32 s{S_T0}, s{S_T0}, s{S_XCD}')
        g(f's_mov_b32 s{S_F}, s{S_T0}')
        g(f's_and_b32 s{S_HALF}, s{S_T0}, 1')
        g(f's_lshr_b32 s{S_A}, s{S_T0}, 1')
        g(f's_sub_u32 s{S_T1}, s{S_A}, 26')
        g(f's_cmp_ge_u32 s{S_T0}, 52')
        g(f's_cselect_b32 s{S_A}, s{S_T1}, s{S_A}')
        g(f's_cselect_b32 s{S_R}, 3, 1')
        g.label('L_tileCT')
        g(f's_lshl_b32 s{S_T0}, s{S_A}, 2')
        g(f's_add_u32 s{S_T0}, s{S_T0}, s{S_R}')
    else:
        g(f's_cmp_ge_u32 s{S_SLOT}, 18')
        g('s_cbranch_scc1 L_tileLight')
        g(f's_mul_i32 s{S_ID}, s{S_XCD}, 18')
        g(f's_add_u32 s{S_ID}, s{S_ID}, s{S_SLOT}')
        g(f's_and_b32 s{S_HALF}, s{S_ID}, 1')
        g(f's_lshr_b32 s{S_T0}, s{S_ID}, 1')
        g('s_branch L_tileCT')
        g.label('L_tileLight')
        g(f's_sub_u32 s{S_T1}, s{S_SLOT}, 18')
        g(f's_and_b32 s{S_HALF}, s{S_T1}, 1')
        g(f's_lshl_b32 s{S_T0}, s{S_XCD}, 3')
        g(f's_add_u32 s{S_T0}, s{S_T0}, s{S_T1}')
        g(f's_lshr_b32 s{S_T0}, s{S_T0}, 1')
        g(f's_add_u32 s{S_T0}, s{S_T0}, 72')
        g.label('L_tileCT')
    g(f's_lshl_b32 s{S_TILE}, s{S_T0}, 1')
    g(f's_add_u32 s{S_TILE}, s{S_TILE}, s{S_HALF}')
    g(f's_mov_b32 s94, s{S_T0}')
    g(f's_mov_b32 s{S_STR}, 9216')
    g(f's_mov_b32 s{S_T1}, 0')
    g(f's_cmp_ge_u32 s{S_T0}, 36')
    g(f's_cselect_b32 s{S_T1}, 36, s{S_T1}')
    g(f's_cmp_ge_u32 s{S_T0}, 72')
    g(f's_cselect_b32 s{S_T1}, 72, s{S_T1}')
    g(f's_cselect_b32 s{S_STR}, 8192, s{S_STR}')
    g(f's_sub_u32 s{S_T0}, s{S_T0}, s{S_T1}')
    g(f's_mul_i32 s{S_T1}, s{S_HALF}, 288')
    g(f's_mul_i32 s{S_T2}, s{S_WAVE}, 72')
    g(f's_add_u32 s{S_RS}, s{S_T1}, s{S_T2}')
    g(f's_mul_i32 s{S_T1}, s{S_RS}, s{S_STR}')
    g(f's_lshl_b32 s{S_T0}, s{S_T0}, 8')
    g(f's_add_u32 s{S_T1}, s{S_T1}, s{S_T0}')
    g(f'v_mul_lo_u32 v3, v{V_G}, s{S_STR}')
    g(f'v_lshl_add_u32 v3, v{V_N}, 4, v3')
    g(f's_lshl_b32 s{S_STR}, s{S_STR}, 2')
    g(f's_mov_b32 s95, s{S_T1}')
    kernarg_ready(g, 'L_nogen')
    if XPOS == 0: xloads()
    g(f's_mov_b64 {pr(S_B)}, {pr(S_GATE)}')
    g('s_cmp_ge_u32 s94, 36')
    g(f's_cselect_b64 {pr(S_B)}, {pr(S_UP)}, {pr(S_B)}')
    g('s_cmp_ge_u32 s94, 72')
    g(f's_cselect_b64 {pr(S_B)}, {pr(S_WQ)}, {pr(S_B)}')
    add_base(g, S_B, 95)
    W0 = 16
    for i in range(18):
        g(f'global_load_dwordx4 {vr(W0+4*i)}, v3, {pr(S_B)} {pol}')
        if i < 17: add_base(g, S_B, S_STR)
        if XPOS == i + 1: xloads()
    g('s_barrier')
    g.stamp(2)
    g(f's_cmp_lg_u32 s{S_WAVE}, 1')
    g('s_cbranch_scc1 L_notag1')
    emit_tag_publish(g)
    g.label('L_notag1')
    g(f's_waitcnt vmcnt({18 - XPOS})')
    emit_layernorm(g, XR, XF)
    make_masks(g, MK, V_N, 12)
    g(f'v_lshrrev_b32 v3, 3, v{V_N}')
    g('v_mul_u32_u24 v3, 576, v3')
    g(f'v_add_u32 v3, v3, v{V_G}')
    g(f'v_add_u32 v3, s{S_RS}, v3')
    g('v_lshlrev_b32 v3, 2, v3')
    XV = 136
    for i in range(18):
        g(f'ds_read_b32 v{XV+i}, v3 offset:{L_XD + 16*i}')
    ACC = 156; BT = 160
    for r in range(4): g(f'v_mov_b32 v{ACC+r}, 0')
    g('s_waitcnt lgkmcnt(0)')
    for i in range(18):
        b = BT + 4*(i & 1)
        for r in range(4):
            g(f'v_and_b32 v{b+r}, v{XV+i}, v{MK+r}')
        g(f's_waitcnt vmcnt({17 - i})')
        g.nop(1)
        g(f'v_mfma_f32_16x16x32_bf16 {vr(ACC)}, {vr(W0+4*i)}, {vr(b)}, {vr(ACC)}')
    g.stamp(3)
    get_tag_from_lds(g, 12, VTAG)
    g(f's_lshl_b32 s{S_T0}, s{S_WAVE}, 10')
    g('v_lshlrev_b32 v3, 4, v0')
    g(f'v_add_u32 v4, s{S_T0}, v3')
    g(f'ds_write_b128 v4, {vr(ACC)} offset:{L_Y1}')
    arrive_last(g, C_L1CNT, 3, 'L_l1pubdone')
    g('v_lshlrev_b32 v3, 4, v0')
    for w in range(4):
        g(f'ds_read_b128 {vr(124+4*w)}, v3 offset:{L_Y1 + 1024*w}')
    g(f's_lshl_b32 s{S_T0}, s{S_TILE}, 10')
    set_ws_base(g, S_B, S_T0, WS_L1)
    g('s_waitcnt lgkmcnt(0)')
    for j in range(1, 4):
        for r in range(4): g(f'v_add_f32 v{124+r}, v{124+r}, v{124+4*j+r}')
    tag_insert(g, 160, 124, VTAG)
    if g.o.get('qfast'):
        g(f'v_add_u32 v4, {WS_QALT}, v3')
        g(f's_cmp_lt_u32 s{S_TILE}, 144')
        g('s_cbranch_scc1 L_noqalt')
        g(f'global_store_dwordx4 v4, {vr(160)}, {pr(S_B)}')
        g.label('L_noqalt')
    pub_store(g, 'v3', vr(160), pr(S_B), True)
    g.label('L_l1pubdone')
    g.stamp(4)
    g(f's_cmp_lg_u32 s{S_WAVE}, 1')
    g('s_cbranch_scc1 L_noq1')
    emit_qpoll(g, g.o.get('qdelay', 0))
    g.label('L_noq1')
    g(f's_cmp_ge_u32 s{S_SLOT}, s90')
    g('s_cbranch_scc1 L_roleQtail')
    S_RB = S_TILE
    g(f's_add_u32 s{S_T2}, s91, s{S_SLOT}')
    g(f's_mul_i32 s{S_RB}, s{S_T2}, 171')
    g(f's_lshr_b32 s{S_RB}, s{S_RB}, 9')
    g(f's_mul_i32 s{S_T1}, s{S_RB}, 3')
    g(f's_sub_u32 s{S_CB}, s{S_T2}, s{S_T1}')
    g(f's_cmp_lg_u32 s{S_WAVE}, 0')
    g('s_cbranch_scc1 L_noh')
    emit_hpoll(g, S_RB)
    g.label('L_noh')
    g(f's_mul_i32 s{S_T0}, s{S_RB}, 96')
    g(f's_mul_i32 s{S_T1}, s{S_WAVE}, 24')
    g(f's_add_u32 s{S_T0}, s{S_T0}, s{S_T1}')
    g(f's_mul_i32 s{S_T0}, s{S_T0}, 1152')
    g(f's_mul_i32 s{S_T1}, s{S_CB}, 384')
    g(f's_add_u32 s{S_T0}, s{S_T0}, s{S_T1}')
    g(f's_mov_b64 {pr(S_B)}, {pr(S_DOWN)}')
    add_base(g, S_B, S_T0)
    l2_lane_offsets(g)
    WD = 88
    if not g.o.get('early'):
        if g.o.get('fgateA'):
            lds_wait_ge(g, 'facnt', C_ACNT, g.o.get('fgateA'), 12, sleep=2)
        else:
            lds_wait_ge(g, 'viss', C_VISS, g.o.get('fgate', 8), 12, sleep=4)
    if g.o.get('nolate'):
        g('s_branch L_end_stamp')
    if g.o.get('ggate'):
        count_in(g)
        global_gate(g, g.o.get('ggate'))
    if g.o.get('gg2'):
        count_in(g)
        go_wait(g)
    l2_issue(g, WD, 3)
    l2_prep(g, 48, S_RB, WS_F, 60, 62)
    lds_wait_ge(g, 'hf', C_HF, 1, 12)
    g(f'v_lshrrev_b32 v3, 3, v{V_N}')
    g('v_mul_u32_u24 v3, 96, v3')
    g(f'v_lshl_add_u32 v3, v{V_G}, 1, v3')
    g(f's_mul_i32 s{S_T0}, s{S_WAVE}, 24')
    g(f'v_add_u32 v3, s{S_T0}, v3')
    g('v_lshlrev_b32 v3, 2, v3')
    P = 16
    for i in range(3):
        g(f'ds_read_b64 v[{P+2*i}:{P+2*i+1}], v3 offset:{L_HD + 32*i}')
    l2_compute(g, WD, 3, P, 24, 40, waitvm=lambda i: 6 - 3*i)
    l2_finish(g, 24, 60, 62, 64)
    g('s_branch L_end_stamp')
    g.label('L_roleQtail')
    if g.o.get('ggate') or g.o.get('gg2'): count_in(g)
    if g.o.get('gg2'):
        sk = g.u('nodet')
        g(f's_cmp_lg_u32 s{S_WAVE}, 1')
        g(f's_cbranch_scc1 {sk}')
        g(f's_cmp_lg_u32 s{S_F}, 51')
        g(f's_cbranch_scc1 {sk}')
        detector(g, g.o.get('gg2'))
        g.label(sk)
    g(f's_and_b32 s{S_T0}, s{S_WAVE}, 1')
    if g.o.get('fin2'):
        g(f's_cmp_lg_u32 s{S_T0}, 0')
    else:
        g(f's_cmp_lg_u32 s{S_WAVE}, 0')
    g('s_cbranch_scc1 L_end_stamp')
    if not g.o.get('remap', True):
        g(f's_sub_u32 s{S_F}, s{S_SLOT}, 18')
        g(f's_lshl_b32 s{S_F}, s{S_F}, 3')
        g(f's_add_u32 s{S_F}, s{S_F}, s{S_XCD}')
    g(f's_cmp_ge_u32 s{S_F}, 36')
    g('s_cbranch_scc1 L_end_stamp')
    if g.o.get('fin2'):
        g(f's_cmp_eq_u32 s{S_WAVE}, 2')
        g('s_cbranch_scc1 L_ffg')
        emit_final(g)
        g('s_branch L_end_stamp')
        g.label('L_ffg')
        emit_ffgather(g)
    else:
        emit_final_old(g)
    g('s_branch L_end_stamp')
    g.label('L_roleO')
    emit_roleO(g)
    g('s_branch L_end_stamp')
    g.label('L_attn')
    emit_attn(g)
    g.label('L_end_stamp')
    if stamps:
        g.stamp(7)
        g('s_waitcnt lgkmcnt(0) vmcnt(0)')
        g('s_mov_b64 exec, -1')
        g('v_cmp_eq_u32_e32 vcc, 0, v0')
        g(f's_and_saveexec_b64 {pr(S_SV)}, vcc')
        g('s_cbranch_execz L_end')
        g(f's_mul_i32 s{S_T0}, s2, 12')
        g(f's_add_u32 s{S_T0}, s{S_T0}, s{S_WAVE}')
        g(f's_lshl_b32 s{S_T0}, s{S_T0}, 6')
        g(f's_add_u32 s{S_T0}, s{S_T0}, 0x{WS_STAMP:x}')
        add_base(g, S_WS, S_T0)
        g('v_mov_b32 v1, 0')
        for j in range(8):
            g(f'v_mov_b32 v2, s{64+2*j}'); g(f'v_mov_b32 v3, s{65+2*j}')
            g(f'global_store_dwordx2 v1, v[2:3], {pr(S_WS)} offset:{8*j}')
            g.nop(2)
    g.label('L_end')
    g('s_endpgm')
    return g

if __name__ == '__main__':
    ap = argparse.ArgumentParser()
    ap.add_argument('-o', default='k.s')
    ap.add_argument('--stamps', action='store_true')
    ap.add_argument('--pol', default='nt')
    ap.add_argument('--nopoll', default='')
    ap.add_argument('--nopub', action='store_true')
    ap.add_argument('--early', action='store_true')
    ap.add_argument('--dbl', action='store_true')
    ap.add_argument('--noremap', action='store_true')
    ap.add_argument('--fastA', action='store_true')
    ap.add_argument('--habk', default='')
    ap.add_argument('--abmask', type=int, default=3)
    ap.add_argument('--ybar', action='store_true')
    ap.add_argument('--touchB', action='store_true')
    ap.add_argument('--qfast', action='store_true')
    ap.add_argument('--xpos', type=int, default=0)
    ap.add_argument('--xpol', default='')
    ap.add_argument('--tlb', action='store_true')
    ap.add_argument('--gg2', type=int, default=0)
    ap.add_argument('--ogg2', action='store_true')
    ap.add_argument('--nolate', type=int, default=0)
    ap.add_argument('--fin2', action='store_true')
    ap.add_argument('--osplit', type=int, default=0)
    ap.add_argument('--skew', action='store_true')
    ap.add_argument('--qprobe', type=int, default=0)
    ap.add_argument('--fgateA', type=int, default=0)
    ap.add_argument('--ggate', type=int, default=0)
    ap.add_argument('--ogg', type=int, default=0)
    ap.add_argument('--warm', action='store_true')
    ap.add_argument('--ownwait', type=int, default=8)
    ap.add_argument('--ogate', type=int, default=8)
    ap.add_argument('--fgate', type=int, default=8)
    ap.add_argument('--oearly', type=int, default=0)
    ap.add_argument('--stO', action='store_true')
    ap.add_argument('--finpipe', type=int, default=0)
    ap.add_argument('--nokvil', action='store_true')
    ap.add_argument('--qdelay', type=int, default=0)
    ap.add_argument('--qdelayO', type=int, default=0)
    a = ap.parse_args()
    opts = {}
    if a.nopoll: opts['nopoll'] = a.nopoll.split(',')
    if a.early: opts['early'] = True
    opts['remap'] = not a.noremap; opts['fastA'] = a.fastA; opts['abmask'] = a.abmask; opts['habk'] = tuple(int(x) for x in a.habk.split(',')) if a.habk else None; opts['ybar'] = a.ybar; opts['touchB'] = a.touchB; opts['qfast'] = a.qfast; opts['xpos'] = a.xpos; opts['xpol'] = a.xpol; opts['tlb'] = a.tlb; opts['gg2'] = a.gg2; opts['ogg2'] = a.ogg2; opts['nolate'] = a.nolate; opts['fin2'] = a.fin2; opts['osplit'] = a.osplit; opts['skew'] = a.skew; opts['qprobe'] = a.qprobe; opts['fgateA'] = a.fgateA; opts['ggate'] = a.ggate; opts['ogg'] = a.ogg; opts['warm'] = a.warm; opts['ownwait'] = a.ownwait; opts['ogate'] = a.ogate; opts['fgate'] = a.fgate; opts['oearly'] = a.oearly; opts['stO'] = a.stO; opts['finpipe'] = a.finpipe; opts['kvil'] = not a.nokvil
    opts['dbl'] = a.dbl; opts['qdelay'] = a.qdelay; opts['qdelayO'] = a.qdelayO
    pol = a.pol
    g = generate(a.stamps, a.pol, opts)
    if a.nopub:
        g.L = [l for l in g.L if not ('global_store_dwordx4' in l and 'sc1' in l)]
    open(a.o, 'w').write(header(256, 768, LDS_SIZE) + '\n'.join(g.L) + '\n' + footer(168))
    print(a.o, len(g.L), 'lines')
```

```python
import sys, argparse
from genlib import *

V_LANE, V_N, V_G = 0, 1, 2
WS_ALT = 0x300000 - WS_A
MK = 8
VTAG = 14

def arrive_last(g, cnt_off, last_val, skip_label):
    g('s_waitcnt lgkmcnt(0)')
    g('v_mov_b32 v12, 0')
    g('v_mov_b32 v13, 1')
    g(f's_mov_b64 {pr(S_SV)}, exec')
    g('s_mov_b64 exec, 1')
    g(f'ds_add_rtn_u32 v13, v12, v13 offset:{cnt_off}')
    g('s_waitcnt lgkmcnt(0)')
    g(f'v_readfirstlane_b32 s{S_T0}, v13')
    g(f's_mov_b64 exec, {pr(S_SV)}')
    g(f's_cmp_lg_u32 s{S_T0}, {last_val}')
    g(f's_cbranch_scc1 {skip_label}')

def set_ws_base(g, dst, off_sreg, const):
    g(f's_add_u32 s{off_sreg}, s{off_sreg}, {const}')
    g(f's_mov_b64 {pr(dst)}, {pr(S_WS)}')
    add_base(g, dst, off_sreg)

def strip(g, regs):
    for r in regs: g(f'v_and_b32 v{r}, 0xffffff00, v{r}')

def pub_store(g, addr, data, base, local):
    if local and g.o.get('dbl'):
        g(f'global_store_dwordx4 {addr}, {data}, {base}')
    g(f'global_store_dwordx4 {addr}, {data}, {base} sc1')

def count_in(g):
    sk = g.u('ci')
    g(f's_cmp_lg_u32 s{S_WAVE}, 3')
    g(f's_cbranch_scc1 {sk}')
    lds_wait_ge(g, 'vi8', C_VISS, 8, 12, sleep=4)
    g('v_mov_b32 v12, 0')
    g('v_mov_b32 v13, 1')
    g(f's_mov_b64 {pr(S_SV)}, exec')
    g('s_mov_b64 exec, 1')
    g(f'global_atomic_add v12, v13, {pr(S_DBG)} sc1')
    g(f's_mov_b64 exec, {pr(S_SV)}')
    g.label(sk)

WS_QALT = 0x3A0000 - WS_L1
WS_G = 0x380000
C_GO = 44
def detector(g, thr):
    lp = g.u('dt_lp'); ok = g.u('dt_ok')
    g(f's_mov_b32 s{S_CNT}, {SPIN_LIMIT}')
    g.label(lp)
    g(f's_load_dword s{S_T0}, {pr(S_DBG)}, 0 glc')
    g('s_waitcnt lgkmcnt(0)')
    g(f's_cmp_ge_u32 s{S_T0}, {thr}')
    g(f's_cbranch_scc1 {ok}')
    g(f's_sub_u32 s{S_CNT}, s{S_CNT}, 1')
    g(f's_cbranch_scc1 {ok}')
    g('s_sleep 2')
    g(f's_branch {lp}')
    g.label(ok)
    g('v_lshlrev_b32 v4, 7, v0')
    g(f'v_mov_b32 v5, s{S_TAG}')
    g(f's_mov_b64 {pr(S_B2)}, {pr(S_WS)}')
    add_base_imm(g, S_B2, WS_G)
    g(f's_mov_b64 {pr(S_SV)}, exec')
    g('s_mov_b64 exec, 0xff')
    g(f'global_store_dword v4, v5, {pr(S_B2)} sc1')
    g(f's_mov_b64 exec, {pr(S_SV)}')

def go_wait(g):
    sk = g.u('gw_sk'); lp = g.u('gw_lp'); ok = g.u('gw_ok')
    g(f's_cmp_lg_u32 s{S_WAVE}, 2')
    g(f's_cbranch_scc1 {sk}')
    g(f's_lshl_b32 s{S_T0}, s{S_XCD}, 7')
    set_ws_base(g, S_B2, S_T0, WS_G)
    g(f's_mov_b32 s{S_CNT}, {SPIN_LIMIT}')
    g.label(lp)
    g(f's_load_dword s{S_T0}, {pr(S_B2)}, 0 glc')
    g('s_waitcnt lgkmcnt(0)')
    g(f's_cmp_eq_u32 s{S_T0}, s{S_TAG}')
    g(f's_cbranch_scc1 {ok}')
    g(f's_sub_u32 s{S_CNT}, s{S_CNT}, 1')
    g(f's_cbranch_scc1 {ok}')
    g('s_sleep 6')
    g(f's_branch {lp}')
    g.label(ok)
    g('v_mov_b32 v12, 0'); g('v_mov_b32 v13, 1')
    g(f'ds_write_b32 v12, v13 offset:{C_GO}')
    g.label(sk)
    lds_wait_ge(g, 'go', C_GO, 1, 12, sleep=2)

def global_gate(g, thr):
    lp = g.u('gg_lp'); ok = g.u('gg_ok')
    g(f's_mov_b32 s{S_CNT}, {SPIN_LIMIT}')
    g.label(lp)
    g(f's_load_dword s{S_T0}, {pr(S_DBG)}, 0 glc')
    g('s_waitcnt lgkmcnt(0)')
    g(f's_cmp_ge_u32 s{S_T0}, {thr}')
    g(f's_cbranch_scc1 {ok}')
    g(f's_sub_u32 s{S_CNT}, s{S_CNT}, 1')
    g(f's_cbranch_scc1 {ok}')
    g('s_sleep 2')
    g(f's_branch {lp}')
    g.label(ok)

def kernarg_ready(g, lab):
    g('s_waitcnt lgkmcnt(0)')
    g.stamp(1)
    g(f's_cmp_lg_u32 s{S_WAVE}, 1')
    g(f's_cbranch_scc1 {lab}')
    g(f's_load_dword s{S_TAG}, {pr(S_WS)}, {WS_GEN}')
    g.label(lab)

def emit_tag_publish(g):
    g('s_waitcnt lgkmcnt(0)')
    g(f's_add_u32 s{S_TAG}, s{S_TAG}, 1')
    g(f's_and_b32 s{S_T0}, s{S_TAG}, 0xff')
    g(f's_mul_i32 s{S_T0}, s{S_T0}, 0x01010100')
    g(f's_mov_b32 s{S_T1}, s{S_TAG}')
    g(f's_xor_b32 s{S_TAG}, s{S_TAG}, s{S_T0}')
    g('v_mov_b32 v4, 0')
    g(f'v_mov_b32 v5, s{S_TAG}')
    g(f'v_mov_b32 v6, s{S_T1}')
    g(f'ds_write_b32 v4, v5 offset:{C_TAG}')
    g(f'ds_write_b32 v4, v6 offset:{C_RAWG}')
    g('s_waitcnt lgkmcnt(0)')
    g('v_mov_b32 v5, 1')
    g(f'ds_write_b32 v4, v5 offset:{C_TAGF}')

def emit_layernorm(g, XR, XF):
    for k in range(9):
        g(f'v_lshlrev_b32 v{XF+2*k}, 16, v{XR+k}')
        g(f'v_and_b32 v{XF+2*k+1}, 0xffff0000, v{XR+k}')
    S, T = 154, 155
    g(f'v_add_f32 v{S}, v{XF}, v{XF+1}')
    for k in range(2, 18): g(f'v_add_f32 v{S}, v{S}, v{XF+k}')
    row_reduce(g, 'v_add_f32', S)
    xor16_op(g, 'v_add_f32', S, T)
    g(f'v_mul_f32 v{S}, 0x{INV576:08x}, v{S}')
    Q, D = 156, 157
    g(f'v_sub_f32 v{D}, v{XF}, v{S}')
    g(f'v_mul_f32 v{Q}, v{D}, v{D}')
    for k in range(1, 18):
        g(f'v_sub_f32 v{D}, v{XF+k}, v{S}')
        g(f'v_fmac_f32 v{Q}, v{D}, v{D}')
    row_reduce(g, 'v_add_f32', Q)
    xor16_op(g, 'v_add_f32', Q, T)
    g(f'v_mul_f32 v{Q}, 0x{INV576:08x}, v{Q}')
    bf16_round(g, Q, Q)
    g(f'v_add_f32 v{Q}, 0x{EPS:08x}, v{Q}')
    bf16_round(g, Q, Q)
    g(f'v_sqrt_f32 v{Q}, v{Q}')
    g.nop(1)
    bf16_round(g, Q, Q)
    g(f'v_rcp_f32 v{Q}, v{Q}')
    bf16_round(g, S, S)
    for k in range(18):
        g(f'v_sub_f32 v{XF+k}, v{XF+k}, v{S}')
    for k in range(0, 18, 2):
        g(f'v_cvt_pk_bf16_f32 v{XR+k//2}, v{XF+k}, v{XF+k+1}')
    for k in range(9):
        g(f'v_lshlrev_b32 v{XF+2*k}, 16, v{XR+k}')
        g(f'v_and_b32 v{XF+2*k+1}, 0xffff0000, v{XR+k}')
    for k in range(18):
        g(f'v_mul_f32 v{XF+k}, v{XF+k}, v{Q}')
    for k in range(18):
        g(f'v_cvt_pk_bf16_f32 v{XF+k}, v{XF+k}, v{XF+k}')
    g('v_lshrrev_b32 v3, 5, v0')
    g('v_and_b32 v4, 31, v0')
    g('v_mul_u32_u24 v3, 576, v3')
    g('v_mad_u32_u24 v3, v4, 18, v3')
    g('v_lshlrev_b32 v3, 2, v3')
    for k in range(0, 18, 2):
        g(f'ds_write_b64 v3, v[{XF+k}:{XF+k+1}] offset:{L_XD + 4*k}')
    g('s_waitcnt lgkmcnt(0)')

def emit_qpoll(g, presleep=0):
    g(f's_lshl_b32 s{S_T0}, s{S_HKV}, 12')
    g(f's_lshl_b32 s{S_T1}, s{S_BB}, 7')
    g(f's_add_u32 s{S_T0}, s{S_T0}, s{S_T1}')
    set_ws_base(g, S_B2, S_T0, WS_L1 + 144*1024)
    g('v_lshrrev_b32 v3, 5, v0')
    g('v_lshlrev_b32 v3, 11, v3')
    g('v_bfe_u32 v4, v0, 3, 2')
    g('v_lshl_add_u32 v3, v4, 8, v3')
    g('v_and_b32 v4, 7, v0')
    g('v_lshl_add_u32 v3, v4, 4, v3')
    D = 124
    if g.o.get('qprobe'):
        lp = g.u('qp_lp'); ok = g.u('qp_ok')
        g(f's_and_b32 s{S_T4}, s{S_TAG}, 0xff')
        g(f's_mov_b32 s{S_CNT}, {SPIN_LIMIT}')
        g.label(lp)
        for k in range(4):
            g(f's_load_dword s{84+k}, {pr(S_B2)}, {1024*k} glc')
        g('s_waitcnt lgkmcnt(0)')
        for k in range(4):
            g(f's_and_b32 s{84+k}, s{84+k}, 0xff')
            g(f's_xor_b32 s{84+k}, s{84+k}, s{S_T4}')
        g('s_or_b32 s84, s84, s85')
        g('s_or_b32 s86, s86, s87')
        g('s_or_b32 s84, s84, s86')
        g('s_cmp_eq_u32 s84, 0')
        g(f's_cbranch_scc1 {ok}')
        g(f's_sub_u32 s{S_CNT}, s{S_CNT}, 1')
        g(f's_cbranch_scc1 {ok}')
        g(f's_sleep {g.o.get("qprobe")}')
        g(f's_branch {lp}')
        g.label(ok)
        presleep = 0
    if presleep:
        n = presleep
        while n > 0:
            g(f's_sleep {min(n,127)}'); n -= 127
    pre = None
    if g.o.get('qfast'):
        g(f'v_add_u32 v156, {WS_QALT}, v3')
        g('v_mov_b32 v157, v3')
        def pre():
            g(f's_and_b32 s{S_T0}, s{S_CNT}, {g.o.get("qmask", 1)}')
            g(f's_cmp_eq_u32 s{S_T0}, 1')
            g(f's_cselect_b64 vcc, -1, 0')
            g('v_cndmask_b32_e32 v3, v156, v157, vcc')
    loads = [f'global_load_dwordx4 {vr(D+4*h)}, v3, {pr(S_B2)} offset:{1024*h} sc1' for h in range(2)]
    poll_retry(g, 'q', loads, D, 5, 6, sleep=g.o.get('qsleep', 4), st_first=5, st_cnt=1, pre_iter=pre)
    g.stamp(6)
    strip(g, range(D, D+8))
    for r in range(4):
        g(f'v_add_f32 v{D+r}, v{D+r}, v{D+4+r}')
    g(f'v_cvt_pk_bf16_f32 v{D}, v{D}, v{D+1}')
    g(f'v_cvt_pk_bf16_f32 v{D+2}, v{D+2}, v{D+3}')
    g('v_lshrrev_b32 v3, 5, v0')
    g('v_lshlrev_b32 v3, 8, v3')
    g('v_bfe_u32 v4, v0, 3, 2')
    g('v_lshl_add_u32 v3, v4, 6, v3')
    g('v_and_b32 v4, 7, v0')
    g('v_lshl_add_u32 v3, v4, 1, v3')
    g(f'ds_write_b16 v3, v{D} offset:{L_QL}')
    g(f'ds_write_b16_d16_hi v3, v{D} offset:{L_QL+16}')
    g(f'ds_write_b16 v3, v{D+2} offset:{L_QL+32}')
    g(f'ds_write_b16_d16_hi v3, v{D+2} offset:{L_QL+48}')
    g('s_waitcnt lgkmcnt(0)')
    g('v_mov_b32 v4, 0')
    g('v_mov_b32 v5, 1')
    g(f'ds_write_b32 v4, v5 offset:{C_QF}')

def emit_hpoll(g, S_RB):
    set_off = []
    g(f's_mul_i32 s{S_T2}, s{S_RB}, 3')
    g('v_lshrrev_b32 v3, 5, v0')
    g(f'v_mul_u32_u24 v3, {72*1024}, v3')
    g('v_bfe_u32 v4, v0, 4, 1')
    g('v_lshl_add_u32 v3, v4, 10, v3')
    g('v_lshl_add_u32 v3, v1, 4, v3')
    for k in range(3):
        g(f's_add_u32 s{S_T0}, s{S_T2}, {k}')
        g(f's_lshr_b32 s{S_T1}, s{S_T0}, 2')
        g(f's_lshl_b32 s{S_T1}, s{S_T1}, 11')
        g(f's_and_b32 s{S_T0}, s{S_T0}, 3')
        g(f's_lshl_b32 s{S_T0}, s{S_T0}, 8')
        g(f's_add_u32 s{S_T0}, s{S_T0}, s{S_T1}')
        g(f'v_add_u32 v{156+k}, s{S_T0}, v3')
    g(f's_mov_b64 {pr(S_B2)}, {pr(S_WS)}')
    add_base_imm(g, S_B2, WS_L1)
    D = 124
    loads = [f'global_load_dwordx4 {vr(D+4*k)}, v{156+k}, {pr(S_B2)} sc1' for k in range(3)]
    poll_retry(g, 'h', loads, D, 5, 6, sleep=g.o.get('hsleep', 8), st_first=5, st_cnt=1)
    g.stamp(6)
    N = 12
    strip(g, range(D, D+12))
    T = D + 12
    U = D + 24
    for j in range(N): g(f'v_mov_b32 v{T+j}, v{D+j}')
    g.nop(2)
    for j in range(N): g(f'v_permlane16_swap_b32 v{D+j}, v{T+j}')
    g.nop(1)
    for j in range(N): g(f'v_add_f32 v{D+j}, v{D+j}, v{T+j}')
    for j in range(N): bf16_round(g, D+j, D+j)
    for j in range(N): g(f'v_mov_b32 v{U+j}, v{D+j}')
    g.nop(2)
    for j in range(N): g(f'v_permlane32_swap_b32 v{D+j}, v{U+j}')
    g.nop(1)
    for j in range(N): g(f'v_mul_f32 v{T+j}, s{S_L2E}, v{D+j}')
    for j in range(N): g(f'v_exp_f32 v{T+j}, -v{T+j}')
    g.nop(1)
    for j in range(N): g(f'v_add_f32 v{T+j}, 1.0, v{T+j}')
    for j in range(N): g(f'v_rcp_f32 v{T+j}, v{T+j}')
    g.nop(1)
    for j in range(N): g(f'v_mul_f32 v{T+j}, v{D+j}, v{T+j}')
    for j in range(N): bf16_round(g, T+j, T+j)
    for j in range(N): g(f'v_mul_f32 v{T+j}, v{T+j}, v{U+j}')
    for j in range(N): g(f'v_cvt_pk_bf16_f32 v{T+j}, v{T+j}, v{T+j}')
    g('v_lshrrev_b32 v3, 3, v1')
    g('v_mul_u32_u24 v3, 96, v3')
    g('v_and_b32 v4, 7, v1')
    g('v_add_u32 v3, v3, v4')
    g('v_lshlrev_b32 v3, 2, v3')
    for k in range(3):
        for r in range(4):
            g(f'ds_write_b32 v3, v{T+4*k+r} offset:{L_HD + 128*k + 32*r}')
    g('s_waitcnt lgkmcnt(0)')
    g('v_mov_b32 v4, 0')
    g('v_mov_b32 v5, 1')
    g(f'ds_write_b32 v4, v5 offset:{C_HF}')

def l2_lane_offsets(g):
    g('v_mul_u32_u24 v5, 2304, v2')
    g('v_lshl_add_u32 v5, v1, 4, v5')
    g('v_add_u32 v6, 256, v5')
    g('v_add_u32 v7, 1024, v5')
    g('v_cmp_gt_u32_e32 vcc, 8, v1')
    g.nop(2)
    g('v_cndmask_b32_e32 v6, v7, v6, vcc')

def l2_issue(g, W0, ng, base=None, a0=5, a1=6, last_adv=False):
    pol = g.pol
    base = S_B if base is None else base
    for i in range(ng):
        g(f'global_load_dwordx4 {vr(W0+12*i)}, v{a0}, {pr(base)} {pol}')
        g(f'global_load_dwordx4 {vr(W0+12*i+4)}, v{a1}, {pr(base)} {pol}')
        g(f'global_load_dwordx4 {vr(W0+12*i+8)}, v{a0}, {pr(base)} offset:1280 {pol}')
        if i < ng-1 or last_adv: add_base_imm(g, base, 9216)

def l2_compute(g, W0, ng, P, AC, BE0, waitvm=None):
    def band(i, k):
        be = BE0 + 8*(i & 1)
        src = P + 2*i + (k >> 1)
        for r in (2*(k & 1), 2*(k & 1) + 1):
            g(f'v_and_b32 v{be + 4*(k >> 1) + r}, v{src}, v{MK+r}')
    g(f's_waitcnt lgkmcnt({ng-1})')
    for k in range(4): band(0, k)
    for i in range(ng):
        be = BE0 + 8*(i & 1); bo = be + 4
        if i + 1 < ng: g(f's_waitcnt lgkmcnt({ng-2-i})')
        if waitvm is not None:
            g(f's_waitcnt vmcnt({waitvm(i)})')
        if i == 0 and waitvm is None and ng == 1: g.nop(2)
        c = (lambda k: '0') if i == 0 else (lambda k: vr(AC+k))
        ms = [f'v_mfma_f32_16x16x32_bf16 {vr(AC)}, {vr(W0+12*i)}, {vr(be)}, {c(0)}',
              f'v_mfma_f32_16x16x32_bf16 {vr(AC+4)}, {vr(W0+12*i+4)}, {vr(be)}, {c(4)}',
              f'v_mfma_f32_16x16x32_bf16 {vr(AC+8)}, {vr(W0+12*i+4)}, {vr(bo)}, {c(8)}',
              f'v_mfma_f32_16x16x32_bf16 {vr(AC+12)}, {vr(W0+12*i+8)}, {vr(bo)}, {c(12)}']
        if i == 0: g.nop(1)
        for k in range(4):
            g(ms[k])
            if i + 1 < ng: band(i + 1, k)

S_PB = 80
def l2_prep(g, nprod, prod_sreg, ws_const, VI, VP):
    fs = nprod*128
    g(f's_mul_i32 s{S_T0}, s{S_WAVE}, 3072')
    g(f'v_lshlrev_b32 v{VI}, 4, v0')
    g(f'v_add_u32 v{VI}, s{S_T0}, v{VI}')
    g(f's_mul_i32 s{S_T0}, s{S_WAVE}, 24')
    g(f'v_add_u32 v{VP}, s{S_T0}, v0')
    g(f'v_lshlrev_b32 v{VI+1}, 4, v{VP}')
    g(f'v_lshrrev_b32 v6, 4, v{VP}')
    g(f'v_bfe_u32 v7, v{VP}, 3, 1')
    g('v_mad_u32_u24 v6, v7, 18, v6')
    g(f'v_mul_u32_u24 v6, {fs}, v6')
    g(f'v_and_b32 v7, 7, v{VP}')
    g(f'v_lshl_add_u32 v{VP}, v7, 4, v6')
    g(f's_mul_i32 s{S_T0}, s{S_CB}, {6*fs}')
    g(f's_lshl_b32 s{S_T1}, s{prod_sreg}, 7')
    g(f's_add_u32 s{S_T0}, s{S_T0}, s{S_T1}')
    set_ws_base(g, S_PB, S_T0, ws_const)

def l2_finish(g, AC, VI, VP, R0, st_a=None, st_b=None):
    g('v_cmp_gt_u32_e32 vcc, 2, v2')
    g('v_mov_b32 v12, 0')
    g('v_mov_b32 v13, 1')
    g.nop(5)
    g(f'ds_write_b128 v{VI}, {vr(AC)} offset:{L_Y}')
    for r in range(4):
        g(f'v_cndmask_b32_e32 v{AC+4+r}, v{AC+8+r}, v{AC+4+r}, vcc')
    g(f'ds_write_b128 v{VI}, {vr(AC+12)} offset:{L_Y + 2048}')
    g(f'ds_write_b128 v{VI}, {vr(AC+4)} offset:{L_Y + 1024}')
    if st_a is not None: g.stamp(st_a)
    g(f's_mov_b64 {pr(S_SV)}, exec')
    if g.o.get('ybar'):
        g('s_waitcnt lgkmcnt(0)')
        g('s_barrier')
        g(f's_mov_b64 exec, 0xffffff')
    else:
        g('s_waitcnt lgkmcnt(0)')
        g('s_mov_b64 exec, 1')
        g(f'ds_add_u32 v12, v13 offset:{C_YCNT}')
        g(f's_mov_b64 exec, 0xffffff')
        lp = g.u('ys'); ok = g.u('yok')
        g(f's_mov_b32 s{S_CNT}, {SPIN_LIMIT*8}')
        g.label(lp)
        g(f'ds_read_b32 v13, v12 offset:{C_YCNT}')
        g('s_waitcnt lgkmcnt(0)')
        g(f'v_readfirstlane_b32 s{S_T0}, v13')
        g(f's_cmp_ge_u32 s{S_T0}, 4')
        g(f's_cbranch_scc1 {ok}')
        g(f's_sub_u32 s{S_CNT}, s{S_CNT}, 1')
        g(f's_cbranch_scc0 {lp}')
        g.label(ok)
    for w in range(4):
        g(f'ds_read_b128 {vr(R0+8*w)}, v{VI+1} offset:{L_Y + 3072*w}')
        g(f'ds_read_b128 {vr(R0+4+8*w)}, v{VI+1} offset:{L_Y + 3072*w + 6*256}')
    for stage in range(4):
        g(f's_waitcnt lgkmcnt({6-2*stage})')
        for r in range(4):
            if stage == 0:
                g(f'v_add_f32 v{R0+r}, v{R0+r}, v{R0+4+r}')
            else:
                g(f'v_add_f32 v{R0+8*stage+r}, v{R0+8*stage+r}, v{R0+8*stage+4+r}')
                g(f'v_add_f32 v{R0+r}, v{R0+r}, v{R0+8*stage+r}')
    tag_insert(g, R0+4, R0, VTAG)
    g(f'global_store_dwordx4 v{VP}, {vr(R0+4)}, {pr(S_PB)} sc1')
    g(f's_mov_b64 exec, {pr(S_SV)}')
    if st_b is not None: g.stamp(st_b)

def reduce_hh(g, d, t):
    g.nop(2)
    for r in range(4):
        g(f'v_add_f32_dpp v{d+r}, v{d+r}, v{d+r} row_ror:8 row_mask:0xf bank_mask:0xf')
    for r in range(4): g(f'v_mov_b32 v{t+r}, v{d+r}')
    g.nop(2)
    for r in range(4): g(f'v_permlane16_swap_b32 v{d+r}, v{t+r}')
    g.nop(1)
    for r in range(4): g(f'v_add_f32 v{d+r}, v{d+r}, v{t+r}')
    for r in range(4): g(f'v_mov_b32 v{t+r}, v{d+r}')
    g.nop(2)
    for r in range(4): g(f'v_permlane32_swap_b32 v{d+r}, v{t+r}')
    g.nop(1)
    for r in range(4): g(f'v_add_f32 v{d+r}, v{d+r}, v{t+r}')

def emit_final_old(g):
    g('v_and_b32 v3, 7, v0')
    g('v_lshlrev_b32 v3, 1, v3')
    g(f's_lshl_b32 s{S_T0}, s{S_F}, 6')
    g(f'v_add_u32 v3, s{S_T0}, v3')
    for r in range(4):
        g(f'global_load_ushort v{124+r}, v3, {pr(S_X)} offset:{16*r}')
    g('v_lshlrev_b32 v4, 4, v0')
    g('v_add_u32 v5, 4096, v4')
    g(f's_mul_i32 s{S_T0}, s{S_F}, 6144')
    set_ws_base(g, S_B, S_T0, WS_F)
    g(f's_lshl_b32 s{S_T0}, s{S_F}, 11')
    set_ws_base(g, S_B2, S_T0, WS_B)
    lds_wait_ge(g, 'own', C_ACNT, 8, 12, sleep=8)
    g.stamp(5)
    D = 16
    loads = [f'global_load_dwordx4 {vr(D+4*k)}, v{4 if k < 4 else 5}, {pr(S_B)} offset:{1024*(k%4)} sc1' for k in range(6)]
    if 'fin' in g.o.get('nopoll', ()): g.o['finpipe'] = 0
    if not g.o.get('finpipe'):
        loads += [f'global_load_dwordx4 {vr(D+24+4*k)}, v4, {pr(S_B2)} offset:{1024*k} sc1' for k in range(2)]
        poll_retry(g, 'fin', loads, D, 13, 15, sleep=0, st_cnt=1)
    else:
        poll_retry(g, 'fin', loads, D, 13, 15, sleep=2)
        g.stamp(4)
        strip(g, range(D, D+24))
        for k in range(1, 6):
            for r in range(4): g(f'v_add_f32 v{D+r}, v{D+r}, v{D+4*k+r}')
        reduce_hh(g, D, 96)
        for r in range(4): bf16_round(g, D+r, D+r)
        for r in range(4): g(f'v_lshlrev_b32 v{124+r}, 16, v{124+r}')
        NS = g.o.get('finpipe')
        SETS = [64 + 8*j for j in range(NS)]
        def iss(j):
            for k in range(2):
                g(f'global_load_dwordx4 {vr(SETS[j]+4*k)}, v4, {pr(S_B2)} offset:{1024*k} sc1')
        lp = g.u('fp_lp'); done = g.u('fp_done')
        oks = [g.u('fp_ok') for _ in range(NS)]
        g(f's_mov_b32 s{S_CNT}, {SPIN_LIMIT}')
        for j in range(NS-1): iss(j)
        g.label(lp)
        for j in range(NS):
            iss((j + NS - 1) % NS)
            g(f's_waitcnt vmcnt({2*(NS-1)})')
            tag_check(g, SETS[j], 13, 15, True)
            tag_check(g, SETS[j]+4, 13, 15, False)
            g(f's_cmp_eq_u64 {pr(S_OK)}, -1')
            g(f's_cbranch_scc1 {oks[j]}')
        g(f's_sub_u32 s{S_CNT}, s{S_CNT}, 1')
        g(f's_cbranch_scc0 {lp}')
        for j in range(NS):
            g.label(oks[j])
            strip(g, range(SETS[j], SETS[j]+8))
            for r in range(4): g(f'v_add_f32 v{D+24+r}, v{SETS[j]+r}, v{SETS[j]+4+r}')
            if j < NS-1: g(f's_branch {done}')
        g.label(done)
    g.stamp(6)
    FF = D; AT = D + 24
    if not g.o.get('finpipe'):
        for k in range(1, 6):
            for r in range(4): g(f'v_add_f32 v{FF+r}, v{FF+r}, v{FF+4*k+r}')
        for r in range(4): g(f'v_add_f32 v{AT+r}, v{AT+r}, v{AT+4+r}')
    if g.o.get('finpipe'):
        reduce_hh(g, AT, 96)
        for r in range(4): bf16_round(g, AT+r, AT+r)
    else:
        vals = [FF+r for r in range(4)] + [AT+r for r in range(4)]
        T = 96
        g.nop(2)
        for v in vals: g(f'v_add_f32_dpp v{v}, v{v}, v{v} row_ror:8 row_mask:0xf bank_mask:0xf')
        for j, v in enumerate(vals): g(f'v_mov_b32 v{T+j}, v{v}')
        g.nop(2)
        for j, v in enumerate(vals): g(f'v_permlane16_swap_b32 v{v}, v{T+j}')
        g.nop(1)
        for j, v in enumerate(vals): g(f'v_add_f32 v{v}, v{v}, v{T+j}')
        for j, v in enumerate(vals): g(f'v_mov_b32 v{T+j}, v{v}')
        g.nop(2)
        for j, v in enumerate(vals): g(f'v_permlane32_swap_b32 v{v}, v{T+j}')
        g.nop(1)
        for j, v in enumerate(vals): g(f'v_add_f32 v{v}, v{v}, v{T+j}')
        for v in vals: bf16_round(g, v, v)
        for r in range(4): g(f'v_lshlrev_b32 v{124+r}, 16, v{124+r}')
    for r in range(4): g(f'v_add_f32 v{AT+r}, v{124+r}, v{AT+r}')
    for r in range(4): bf16_round(g, AT+r, AT+r)
    for r in range(4): g(f'v_add_f32 v{AT+r}, v{AT+r}, v{FF+r}')
    g(f'v_cvt_pk_bf16_f32 v28, v{AT}, v{AT+1}')
    g(f'v_cvt_pk_bf16_f32 v29, v{AT+2}, v{AT+3}')
    g('v_cmp_gt_u32_e32 vcc, 8, v0')
    g(f's_and_saveexec_b64 {pr(S_SV)}, vcc')
    g(f'global_store_short v3, v28, {pr(S_OUT)}')
    g(f'global_store_short_d16_hi v3, v28, {pr(S_OUT)} offset:16')
    g(f'global_store_short v3, v29, {pr(S_OUT)} offset:32')
    g(f'global_store_short_d16_hi v3, v29, {pr(S_OUT)} offset:48')
    g(f's_cmp_lg_u32 s{S_F}, 0')
    g('s_cbranch_scc1 L_nobump')
    g('s_mov_b64 exec, 1')
    g('v_mov_b32 v4, 0')
    g(f'ds_read_b32 v5, v4 offset:{C_RAWG}')
    g('s_waitcnt lgkmcnt(0)')
    g(f'global_store_dword v4, v5, {pr(S_WS)} sc1')
    g.label('L_nobump')
    g(f's_mov_b64 exec, {pr(S_SV)}')

C_FFF = 40
L_FF = L_QL + 0
def emit_ffgather(g):
    g('v_lshlrev_b32 v4, 4, v0')
    g('v_add_u32 v5, 4096, v4')
    g(f's_mul_i32 s{S_T0}, s{S_F}, 6144')
    set_ws_base(g, S_B, S_T0, WS_F)
    lds_wait_ge(g, 'own', C_ACNT, g.o.get('ffown', 4), 12, sleep=8)
    g.stamp(5)
    D = 16
    loads = [f'global_load_dwordx4 {vr(D+4*k)}, v{4 if k < 4 else 5}, {pr(S_B)} offset:{1024*(k%4)} sc1' for k in range(6)]
    poll_retry(g, 'fin', loads, D, 13, 15, sleep=g.o.get('ffsleep', 1), st_cnt=1)
    g.stamp(4)
    for k in range(1, 6):
        for r in range(4): g(f'v_add_f32 v{D+r}, v{D+r}, v{D+4*k+r}')
    reduce_hh(g, D, 96)
    for r in range(4): bf16_round(g, D+r, D+r)
    g('v_lshlrev_b32 v4, 4, v0')
    g('v_cmp_gt_u32_e32 vcc, 8, v0')
    g(f's_and_saveexec_b64 {pr(S_SV)}, vcc')
    g(f'ds_write_b128 v4, {vr(D)} offset:{L_Y}')
    g('s_waitcnt lgkmcnt(0)')
    g('v_mov_b32 v12, 0'); g('v_mov_b32 v13, 1')
    g(f'ds_write_b32 v12, v13 offset:{C_FFF}')
    g(f's_mov_b64 exec, {pr(S_SV)}')
    g.stamp(6)

def emit_final(g):
    g('v_and_b32 v3, 7, v0')
    g('v_lshlrev_b32 v3, 1, v3')
    g(f's_lshl_b32 s{S_T0}, s{S_F}, 6')
    g(f'v_add_u32 v3, s{S_T0}, v3')
    for r in range(4):
        g(f'global_load_ushort v{124+r}, v3, {pr(S_X)} offset:{16*r}')
    g('v_lshlrev_b32 v4, 4, v0')
    g(f's_lshl_b32 s{S_T0}, s{S_F}, 11')
    set_ws_base(g, S_B2, S_T0, WS_B)
    g('v_mov_b32 v12, 0')
    g(f'ds_read_b32 v30, v12 offset:{C_RAWG}')
    lds_wait_ge(g, 'own', C_ACNT, 8, 12, sleep=8)
    g.stamp(5)
    g('s_waitcnt vmcnt(0)')
    for r in range(4): g(f'v_lshlrev_b32 v{124+r}, 16, v{124+r}')
    AT = 40
    NS = g.o.get('finpipe') or 3
    SETS = [64 + 8*j for j in range(NS)]
    def iss(j):
        for k in range(2):
            g(f'global_load_dwordx4 {vr(SETS[j]+4*k)}, v4, {pr(S_B2)} offset:{1024*k} sc1')
    if 'fin' not in g.o.get('nopoll', ()):
        lp = g.u('fp_lp'); done = g.u('fp_done')
        oks = [g.u('fp_ok') for _ in range(NS)]
        g(f's_mov_b32 s{S_CNT}, {SPIN_LIMIT}')
        for j in range(NS-1): iss(j)
        g.label(lp)
        for j in range(NS):
            iss((j + NS - 1) % NS)
            g(f's_waitcnt vmcnt({2*(NS-1)})')
            tag_check(g, SETS[j], 13, 15, True)
            tag_check(g, SETS[j]+4, 13, 15, False)
            g(f's_cmp_eq_u64 {pr(S_OK)}, -1')
            g(f's_cbranch_scc1 {oks[j]}')
        g(f's_sub_u32 s{S_CNT}, s{S_CNT}, 1')
        g(f's_cbranch_scc0 {lp}')
        for j in range(NS):
            g.label(oks[j])
            for r in range(4): g(f'v_add_f32 v{AT+r}, v{SETS[j]+r}, v{SETS[j]+4+r}')
            if j < NS-1: g(f's_branch {done}')
        g.label(done)
    g.stamp(6)
    reduce_hh(g, AT, 48)
    for r in range(4): bf16_round(g, AT+r, AT+r)
    for r in range(4): g(f'v_add_f32 v{AT+r}, v{124+r}, v{AT+r}')
    for r in range(4): bf16_round(g, AT+r, AT+r)
    if 'fin' not in g.o.get('nopoll', ()):
        lds_wait_ge(g, 'fff', C_FFF, 1, 12, sleep=0)
    g('v_lshlrev_b32 v4, 4, v0')
    g(f'ds_read_b128 {vr(52)}, v4 offset:{L_Y}')
    g('v_cmp_gt_u32_e32 vcc, 8, v0')
    g('s_waitcnt lgkmcnt(0)')
    for r in range(4): g(f'v_add_f32 v{AT+r}, v{AT+r}, v{52+r}')
    g(f'v_cvt_pk_bf16_f32 v28, v{AT}, v{AT+1}')
    g(f'v_cvt_pk_bf16_f32 v29, v{AT+2}, v{AT+3}')
    g(f's_and_saveexec_b64 {pr(S_SV)}, vcc')
    g(f'global_store_short v3, v28, {pr(S_OUT)}')
    g(f'global_store_short_d16_hi v3, v28, {pr(S_OUT)} offset:16')
    g(f'global_store_short v3, v29, {pr(S_OUT)} offset:32')
    g(f'global_store_short_d16_hi v3, v29, {pr(S_OUT)} offset:48')
    g(f's_cmp_lg_u32 s{S_F}, 0')
    g('s_cbranch_scc1 L_nobump')
    g('s_mov_b64 exec, 1')
    g('v_mov_b32 v4, 0')
    g(f'global_store_dword v4, v30, {pr(S_WS)} sc1')
    g.label('L_nobump')
    g(f's_mov_b64 exec, {pr(S_SV)}')

def emit_roleO(g):
    S_HO = S_ID
    g(f's_sub_u32 s{S_CB}, s{S_SLOT}, 26')
    g(f's_cmp_ge_u32 s{S_CB}, 3')
    g(f's_cselect_b32 s{S_T0}, 1, 0')
    g(f's_mul_i32 s{S_T1}, s{S_T0}, 3')
    g(f's_sub_u32 s{S_CB}, s{S_CB}, s{S_T1}')
    g(f's_lshl_b32 s{S_HO}, s{S_XCD}, 1')
    g(f's_add_u32 s{S_HO}, s{S_HO}, s{S_T0}')
    NE = g.o.get('oearly', 0)
    W0 = 16
    kernarg_ready(g, 'L_nogenO')
    g(f's_mul_i32 s{S_T0}, s{S_HO}, {256*1152}')
    g(f's_mul_i32 s{S_T1}, s{S_CB}, 384')
    g(f's_add_u32 s{S_T0}, s{S_T0}, s{S_T1}')
    g(f's_mul_i32 s{S_T1}, s{S_WAVE}, {64*1152}')
    g(f's_add_u32 s{S_T0}, s{S_T0}, s{S_T1}')
    g(f's_mov_b64 s[82:83], {pr(S_WO)}')
    add_base(g, 82, S_T0)
    l2_lane_offsets(g)
    g('v_mov_b32 v165, v5'); g('v_mov_b32 v166, v6')
    l2_issue(g, W0, NE, base=82, a0=165, a1=166, last_adv=True)
    g('s_barrier')
    g.stamp(2)
    g(f's_cmp_lg_u32 s{S_WAVE}, 1')
    g('s_cbranch_scc1 L_Onoq')
    emit_tag_publish(g)
    emit_qpoll(g, g.o.get('qdelayO', 0))
    g.label('L_Onoq')
    get_tag_from_lds(g, 12, VTAG)
    if g.o.get('touchB'):
        l2_prep(g, 16, S_HO, WS_B, 162, 164)
        g(f'v_not_b32 v15, v{VTAG}')
        tag_insert(g, 112, 112, 15)
        g(f's_mov_b64 {pr(S_SV)}, exec')
        g('s_mov_b64 exec, 0xffffff')
        g(f'global_store_dwordx4 v164, {vr(112)}, {pr(S_PB)} sc1')
        g(f's_mov_b64 exec, {pr(S_SV)}')
        g.nop(2)
    make_masks(g, MK, 1, 112)
    if g.o.get('nolate', 0) > 1:
        g('s_branch L_end_stamp')
    if NE < 8:
        if not g.o.get('early'):
            lds_wait_ge(g, 'viss', C_VISS, g.o.get('ogate', 8), 12, sleep=4)
        if g.o.get('ogg'):
            global_gate(g, g.o.get('ogg'))
        osp = g.o.get('osplit', 0)
        if g.o.get('gg2') and g.o.get('ogg2'):
            if osp: l2_issue(g, W0 + 12*NE, osp - NE, base=82, a0=165, a1=166, last_adv=True)
            lds_wait_ge(g, 'viss8', C_VISS, 8, 12, sleep=4)
            count_in(g)
            go_wait(g)
            l2_issue(g, W0 + 12*max(osp,NE), 8 - max(osp,NE), base=82, a0=165, a1=166)
        elif osp:
            l2_issue(g, W0 + 12*NE, osp - NE, base=82, a0=165, a1=166, last_adv=True)
            lds_wait_ge(g, 'viss8', C_VISS, 8, 12, sleep=4)
            l2_issue(g, W0 + 12*osp, 8 - osp, base=82, a0=165, a1=166)
            if g.o.get('gg2'): count_in(g)
        else:
            l2_issue(g, W0 + 12*NE, 8 - NE, base=82, a0=165, a1=166)
        if g.o.get('ggate'): count_in(g)
    else:
        lds_wait_ge(g, 'own', C_ACNT, 8, 12, sleep=4)
    if not g.o.get('stO'): g.stamp(3)
    g(f's_lshl_b32 s{S_T0}, s{S_HO}, 14')
    g(f's_and_b32 s{S_T1}, s{S_WAVE}, 1')
    g(f's_lshl_b32 s{S_T1}, s{S_T1}, 9')
    g(f's_add_u32 s{S_T0}, s{S_T0}, s{S_T1}')
    g(f's_lshr_b32 s{S_T1}, s{S_WAVE}, 1')
    g(f's_lshl_b32 s{S_T1}, s{S_T1}, 7')
    g(f's_add_u32 s{S_T0}, s{S_T0}, s{S_T1}')
    set_ws_base(g, S_B, S_T0, WS_A)
    g(f's_lshl_b32 s{S_T0}, s{S_HO}, 11')
    g(f's_lshr_b32 s{S_T1}, s{S_WAVE}, 1')
    g(f's_lshl_b32 s{S_T1}, s{S_T1}, 4')
    g(f's_add_u32 s{S_T0}, s{S_T0}, s{S_T1}')
    set_ws_base(g, S_B2, S_T0, WS_S)
    g('v_lshrrev_b32 v3, 5, v0')
    g('v_bfe_u32 v5, v0, 3, 1')
    g('v_lshl_add_u32 v4, v3, 1, v5')
    g('v_lshlrev_b32 v3, 12, v4')
    g('v_lshlrev_b32 v4, 9, v4')
    g('v_bfe_u32 v5, v0, 4, 1')
    g('v_lshl_add_u32 v3, v5, 8, v3')
    g('v_and_b32 v5, 7, v0')
    g('v_lshl_add_u32 v3, v5, 4, v3')
    g('v_lshrrev_b32 v160, 5, v0')
    g('v_lshlrev_b32 v160, 6, v160')
    g('v_bfe_u32 v5, v0, 4, 1')
    g('v_lshl_add_u32 v160, v5, 5, v160')
    g('v_and_b32 v5, 7, v0')
    g('v_add_u32 v160, v160, v5')
    g(f's_lshl_b32 s{S_T0}, s{S_WAVE}, 7')
    g(f'v_add_u32 v160, s{S_T0}, v160')
    g('v_lshlrev_b32 v160, 2, v160')
    g('v_lshrrev_b32 v161, 3, v1')
    g('v_lshlrev_b32 v161, 6, v161')
    g('v_lshl_add_u32 v161, v2, 1, v161')
    g(f'v_add_u32 v161, s{S_T0}, v161')
    g('v_lshlrev_b32 v161, 2, v161')
    l2_prep(g, 16, S_HO, WS_B, 162, 164)
    D = 112
    if g.o.get('fastA'):
        g(f'v_add_u32 v156, {WS_ALT}, v3')
        g(f'v_add_u32 v157, {WS_ALT}, v4')
        g('v_mov_b32 v158, v3'); g('v_mov_b32 v159, v4')
        def pre():
            g(f's_and_b32 s{S_T0}, s{S_CNT}, {g.o.get("abmask", 3)}')
            g(f's_cmp_eq_u32 s{S_T0}, 1')
            g(f's_cselect_b64 vcc, -1, 0')
            g('v_cndmask_b32_e32 v3, v156, v158, vcc')
            g('v_cndmask_b32_e32 v4, v157, v159, vcc')
    else:
        pre = None
    if g.stamps and g.o.get('stO'):
        pre0 = pre
        def pre():
            g('s_waitcnt lgkmcnt(0)')
            g('s_mov_b64 s[68:69], s[70:71]')
            g('s_mov_b64 s[70:71], s[74:75]')
            g('s_memrealtime s[74:75]')
            if pre0: pre0()
    loads = [f'global_load_dwordx4 {vr(D+4*i)}, v3, {pr(S_B)} offset:{1024*i} sc1' for i in range(4)]
    loads += [f'global_load_dwordx4 {vr(D+16+4*i)}, v4, {pr(S_B2)} offset:{128*i} sc1' for i in range(4)]
    if g.o.get('warm') and g.o.get('fastA'):
        for i in range(4): g(f'global_load_dwordx4 {vr(D+4*i)}, v156, {pr(S_B)} offset:{1024*i} sc1')
        for i in range(4): g(f'global_load_dwordx4 {vr(D+16+4*i)}, v157, {pr(S_B2)} offset:{128*i} sc1')
    if NE < 8 and g.o.get('ogate', 8) < 8 and g.o.get('ownwait', 8):
        lds_wait_ge(g, 'own', C_ACNT, g.o.get('ownwait', 8), 12, sleep=4)
    poll_retry(g, 'ha', loads, D, 5, 6, sleep=0, st_cnt=1, pre_iter=pre, backoff=g.o.get('habk'))
    g.stamp(4)
    ST = D + 16
    M = 144; LL = 145; O = 148
    for i in range(4):
        g(f'v_and_b32 v{ST+4*i}, 0xffffff00, v{ST+4*i}')
    g(f'v_max_f32 v{M}, v{ST}, v{ST+4}')
    g(f'v_max3_f32 v{M}, v{M}, v{ST+8}, v{ST+12}')
    strip(g, [ST+4*i+1 for i in range(4)])
    g(f'v_max_f32_dpp v{M}, v{M}, v{M} row_ror:8 row_mask:0xf bank_mask:0xf')
    strip(g, range(D, D+8))
    for i in range(4): g(f'v_sub_f32 v{ST+4*i}, v{ST+4*i}, v{M}')
    for i in range(4): g(f'v_exp_f32 v{ST+4*i}, v{ST+4*i}')
    strip(g, range(D+8, D+16))
    g(f'v_mul_f32 v{LL}, v{ST}, v{ST+1}')
    for r in range(4): g(f'v_mul_f32 v{O+r}, v{ST}, v{D+r}')
    for i in range(1, 4):
        g(f'v_fmac_f32 v{LL}, v{ST+4*i}, v{ST+4*i+1}')
        for r in range(4): g(f'v_fmac_f32 v{O+r}, v{ST+4*i}, v{D+4*i+r}')
    g.nop(1)
    g(f'v_add_f32_dpp v{LL}, v{LL}, v{LL} row_ror:8 row_mask:0xf bank_mask:0xf')
    for r in range(4):
        g(f'v_add_f32_dpp v{O+r}, v{O+r}, v{O+r} row_ror:8 row_mask:0xf bank_mask:0xf')
    g(f'v_rcp_f32 v{LL}, v{LL}')
    g.nop(1)
    for r in range(4): g(f'v_mul_f32 v{O+r}, v{O+r}, v{LL}')
    for r in range(4): g(f'v_cvt_pk_bf16_f32 v{O+r}, v{O+r}, v{O+r}')
    for r in range(4): g(f'ds_write_b32 v160, v{O+r} offset:{L_OD + 32*r}')
    g('s_waitcnt lgkmcnt(0)')
    P = 112
    for i in range(8):
        g(f'ds_read_b64 v[{P+2*i}:{P+2*i+1}], v161 offset:{L_OD + 32*i}')
    l2_compute(g, W0, 8, P, 128, 144)
    l2_finish(g, 128, 162, 164, 16, st_a=None if g.o.get('stO') else 5, st_b=6)

def emit_qk_softmax(g, extra):
    K0, V0 = 16, 80
    QF = 144
    g('v_lshrrev_b32 v4, 3, v1')
    g('v_lshlrev_b32 v4, 8, v4')
    g('v_lshl_add_u32 v4, v2, 4, v4')
    for s in range(4):
        g(f'ds_read_b128 {vr(QF+4*s)}, v4 offset:{L_QL + 64*s}')
    SCR = [8, 12, 160, 164]
    for T in range(4):
        for r in range(4): g(f'v_mov_b32 v{SCR[T]+r}, 0')
    g('s_waitcnt lgkmcnt(0)')
    for T in range(4):
        g(f's_waitcnt vmcnt({12 - 4*T + extra})')
        for s in range(4):
            g(f'v_mfma_f32_16x16x32_bf16 {vr(SCR[T])}, {vr(K0+16*T+4*s)}, {vr(QF+4*s)}, {vr(SCR[T])}')
    g.nop(8)
    g.stamp(4)
    sc = [SCR[T]+r for T in range(4) for r in range(4)]
    TP = 144
    for k in range(0, 16, 2):
        g(f'v_cvt_pk_bf16_f32 v{TP+k//2}, v{sc[k]}, v{sc[k+1]}')
    for k in range(0, 16, 2):
        g(f'v_lshlrev_b32 v{sc[k]}, 16, v{TP+k//2}')
        g(f'v_and_b32 v{sc[k+1]}, 0xffff0000, v{TP+k//2}')
    for k in range(16):
        g(f'v_mul_f32 v{sc[k]}, 0x{SCALE:08x}, v{sc[k]}')
    for k in range(0, 16, 2):
        g(f'v_cvt_pk_bf16_f32 v{TP+k//2}, v{sc[k]}, v{sc[k+1]}')
    for k in range(0, 16, 2):
        g(f'v_lshlrev_b32 v{sc[k]}, 16, v{TP+k//2}')
        g(f'v_and_b32 v{sc[k+1]}, 0xffff0000, v{TP+k//2}')
    M = 152; T1 = 153; LS = 154
    g(f'v_max3_f32 v{M}, v{sc[0]}, v{sc[1]}, v{sc[2]}')
    for k in range(3, 15, 2):
        g(f'v_max3_f32 v{M}, v{M}, v{sc[k]}, v{sc[k+1]}')
    g(f'v_max_f32 v{M}, v{M}, v{sc[15]}')
    xor16_op(g, 'v_max_f32', M, T1)
    xor32_op(g, 'v_max_f32', M, T1)
    g(f'v_mul_f32 v{M}, s{S_L2E}, v{M}')
    for k in range(16):
        g(f'v_fma_f32 v{sc[k]}, v{sc[k]}, s{S_L2E}, -v{M}')
    for k in range(16):
        g(f'v_exp_f32 v{sc[k]}, v{sc[k]}')
    g.nop(1)
    g(f'v_add_f32 v{LS}, v{sc[0]}, v{sc[1]}')
    for k in range(2, 16):
        g(f'v_add_f32 v{LS}, v{LS}, v{sc[k]}')
    for k in range(16):
        g(f'v_cvt_pk_bf16_f32 v{sc[k]}, v{sc[k]}, v{sc[k]}')
    xor16_op(g, 'v_add_f32', LS, T1)
    xor32_op(g, 'v_add_f32', LS, T1)
    AMK = 156
    make_masks(g, AMK, 1, 4)
    for T in range(4):
        for i in range(4):
            for r in range(4):
                g(f'v_and_b32 v{K0+16*T+4*i+r}, v{sc[4*T+i]}, v{AMK+r}')
    AC = 144
    for r in range(8): g(f'v_mov_b32 v{AC+r}, 0')
    g.stamp(5)

def issue_v(g, V0):
    pol = g.pol
    for T in range(4):
        for i in range(4):
            g(f'global_load_dwordx4 {vr(V0+16*T+4*i)}, v3, {pr(S_V)} offset:{256*i} {pol}')
        if T < 3: add_base_imm(g, S_V, 4096)
    g('v_mov_b32 v4, 0')
    g('v_mov_b32 v5, 1')
    g(f's_mov_b64 {pr(S_SV)}, exec')
    g('s_mov_b64 exec, 1')
    g(f'ds_add_u32 v4, v5 offset:{C_VISS}')
    g(f's_mov_b64 exec, {pr(S_SV)}')

def emit_attn(g):
    pol = g.pol
    K0, V0 = 16, 80
    QF = 144
    g('s_waitcnt lgkmcnt(0)')
    g(f's_lshl_b32 s{S_T0}, s{S_BB}, 4')
    g(f's_add_u32 s{S_T0}, s{S_T0}, s{S_HKV}')
    g(f's_lshl_b32 s{S_T0}, s{S_T0}, 20')
    il = g.o.get('kvil', True)
    g(f's_lshl_b32 s{S_T1}, s{S_SP}, {14 if il else 17}')
    g(f's_add_u32 s{S_T0}, s{S_T0}, s{S_T1}')
    g(f's_sub_u32 s{S_T1}, s{S_WAVE}, 4')
    g(f's_lshl_b32 s{S_T1}, s{S_T1}, {17 if il else 14}')
    g(f's_add_u32 s{S_T0}, s{S_T0}, s{S_T1}')
    add_base(g, S_K, S_T0)
    add_base(g, S_V, S_T0)
    g('v_lshlrev_b32 v4, 8, v1')
    g('v_lshl_add_u32 v4, v2, 4, v4')
    g('v_lshlrev_b32 v3, 10, v2')
    g('v_lshl_add_u32 v3, v1, 4, v3')
    if g.o.get('tlb'):
        g('v_mov_b32 v6, 0')
        g(f'global_load_dword v16, v6, {pr(S_K)} nt')
        g(f'global_load_dword v80, v6, {pr(S_V)} nt')
    g('s_barrier')
    g.stamp(1)
    g('s_setprio 2')
    for T in range(4):
        for s in range(4):
            g(f'global_load_dwordx4 {vr(K0+16*T+4*s)}, v4, {pr(S_K)} offset:{64*s} {pol}')
        if T < 3: add_base_imm(g, S_K, 4096)
    g('s_setprio 1')
    g(f's_cmp_ge_u32 s{S_WAVE}, 8')
    g('s_cbranch_scc1 L_grp2')
    issue_v(g, V0)
    g.stamp(2)
    lds_wait_ge(g, 'qf', C_QF, 1, 4, sleep=4)
    g.stamp(3)
    emit_qk_softmax(g, 16)
    g('s_branch L_pv')
    g.label('L_grp2')
    g.stamp(2)
    lds_wait_ge(g, 'qf', C_QF, 1, 4, sleep=4)
    g.stamp(3)
    emit_qk_softmax(g, 0)
    issue_v(g, V0)
    g.label('L_pv')
    M = 152; LS = 154; AC = 144
    g(f's_sub_u32 s{S_T2}, s{S_WAVE}, 4')
    g(f's_lshl_b32 s{S_T0}, s{S_T2}, 10')
    g('v_lshlrev_b32 v7, 4, v0')
    g(f'v_add_u32 v4, s{S_T0}, v7')
    g('v_lshrrev_b32 v6, 3, v1')
    g('v_lshlrev_b32 v6, 3, v6')
    g(f's_lshl_b32 s{S_T0}, s{S_T2}, 4')
    g(f'v_add_u32 v5, s{S_T0}, v6')
    g('v_mov_b32 v12, 0')
    g(f'ds_read_b32 v14, v12 offset:{C_TAG}')
    g(f'v_mov_b32 v10, v{M}')
    g(f'v_mov_b32 v11, v{LS}')
    g(f'ds_write_b64 v5, v[10:11] offset:{L_AS}')
    g(f's_lshl_b32 s{S_T0}, s{S_HKV}, 1')
    g(f's_add_u32 s{S_T0}, s{S_T0}, s{S_BB}')
    g(f's_lshl_b32 s{S_T0}, s{S_T0}, 3')
    g(f's_add_u32 s{S_T0}, s{S_T0}, s{S_SP}')
    g(f's_lshl_b32 s{S_T1}, s{S_T0}, 10')
    set_ws_base(g, S_B, S_T1, WS_A)
    g(f's_lshl_b32 s{S_T1}, s{S_T0}, 7')
    set_ws_base(g, S_B2, S_T1, WS_S)
    g('v_mov_b32 v13, 1')
    for T in range(4):
        g(f's_waitcnt vmcnt({12 - 4*T})')
        for i in range(4):
            a = AC + 4*(i & 1)
            g(f'v_mfma_f32_16x16x32_bf16 {vr(a)}, {vr(V0+16*T+4*i)}, {vr(K0+16*T+4*i)}, {vr(a)}')
    g.stamp(6)
    g.nop(8)
    for r in range(4): g(f'v_add_f32 v{AC+r}, v{AC+r}, v{AC+4+r}')
    g(f'ds_write_b128 v4, {vr(AC)} offset:{L_AO}')
    g(f's_mov_b64 {pr(S_SV)}, exec')
    g('s_waitcnt lgkmcnt(0)')
    g('s_mov_b64 exec, 1')
    g(f'ds_add_rtn_u32 v13, v12, v13 offset:{C_ACNT}')
    g('s_waitcnt lgkmcnt(0)')
    g(f'v_readfirstlane_b32 s{S_T0}, v13')
    g(f's_mov_b64 exec, {pr(S_SV)}')
    g(f's_cmp_lg_u32 s{S_T0}, 7')
    g('s_cbranch_scc1 L_end_stamp')
    ST = 16; OV = 32
    for w in range(8):
        g(f'ds_read_b64 v[{ST+2*w}:{ST+2*w+1}], v6 offset:{L_AS + 16*w}')
    for w in range(8):
        g(f'ds_read_b128 {vr(OV+4*w)}, v7 offset:{L_AO + 1024*w}')
    g('s_waitcnt lgkmcnt(8)')
    g(f'v_max3_f32 v8, v{ST}, v{ST+2}, v{ST+4}')
    g(f'v_max3_f32 v9, v{ST+6}, v{ST+8}, v{ST+10}')
    g(f'v_max3_f32 v8, v8, v{ST+12}, v{ST+14}')
    g(f'v_max_f32 v8, v8, v9')
    g('v_and_b32 v8, 0xffffff00, v8')
    for w in range(8): g(f'v_sub_f32 v{ST+2*w}, v{ST+2*w}, v8')
    for w in range(8): g(f'v_exp_f32 v{ST+2*w}, v{ST+2*w}')
    g('v_mov_b32 v10, 0')
    g('v_mov_b32 v11, 0')
    g(f'v_mul_f32 v9, v{ST}, v{ST+1}')
    for w in range(1, 8): g(f'v_fmac_f32 v9, v{ST+2*w}, v{ST+2*w+1}')
    g('s_waitcnt lgkmcnt(0)')
    for r in range(4):
        g(f'v_mul_f32 v{64+r}, v{ST}, v{OV+r}')
    for w in range(1, 8):
        for r in range(4):
            g(f'v_fmac_f32 v{64+r}, v{ST+2*w}, v{OV+4*w+r}')
    tag_insert(g, 68, 64, 14)
    tag_insert(g, 72, 8, 14)
    g('v_lshlrev_b32 v5, 1, v6')
    g('v_and_b32 v4, 0x37, v0')
    g('v_cmp_eq_u32_e32 vcc, 0, v4')
    if g.o.get('fastA'):
        g(f'v_add_u32 v13, {WS_ALT}, v7')
        g(f'v_add_u32 v12, {WS_ALT}, v5')
        g(f'global_store_dwordx4 v13, {vr(68)}, {pr(S_B)}')
        g(f's_and_saveexec_b64 {pr(S_SV)}, vcc')
        g(f'global_store_dwordx4 v12, {vr(72)}, {pr(S_B2)}')
        g(f'global_store_dwordx4 v5, {vr(72)}, {pr(S_B2)} sc1')
        g(f's_mov_b64 exec, {pr(S_SV)}')
        g(f'global_store_dwordx4 v7, {vr(68)}, {pr(S_B)} sc1')
    else:
        g(f'global_store_dwordx4 v7, {vr(68)}, {pr(S_B)} sc1')
        g(f's_and_saveexec_b64 {pr(S_SV)}, vcc')
        g(f'global_store_dwordx4 v5, {vr(72)}, {pr(S_B2)} sc1')
        g(f's_mov_b64 exec, {pr(S_SV)}')

def generate(stamps=False, pol='nt', opts=None):
    g = G(stamps, pol, opts)
    g('s_cmp_ge_u32 s2, 256')
    g('s_cbranch_scc1 L_end')
    g.stamp(0)
    g('s_load_dwordx16 s[4:19], s[0:1], 0')
    g('s_load_dwordx8 s[20:27], s[0:1], 64')
    g('v_lshrrev_b32 v3, 6, v0')
    g('v_and_b32 v0, 63, v0')
    g(f'v_readfirstlane_b32 s{S_WAVE}, v3')
    g(f'v_and_b32 v{V_N}, 15, v0')
    g(f'v_lshrrev_b32 v{V_G}, 4, v0')
    g(f's_and_b32 s{S_XCD}, s2, 7')
    g(f's_lshr_b32 s{S_SLOT}, s2, 3')
    g(f's_lshr_b32 s{S_HKV}, s{S_SLOT}, 4')
    g(f's_lshl_b32 s{S_T0}, s{S_XCD}, 1')
    g(f's_add_u32 s{S_HKV}, s{S_HKV}, s{S_T0}')
    g(f's_bfe_u32 s{S_BB}, s{S_SLOT}, 0x10003')
    g(f's_and_b32 s{S_SP}, s{S_SLOT}, 7')
    g(f's_mov_b32 s{S_L2E}, 0x{LOG2E:08x}')
    if g.o.get('skew'):
        g(f's_mul_i32 s91, s{S_XCD}, 13')
        g(f's_mov_b32 s92, s91')
        g(f's_mov_b32 s90, 13')
        g(f's_sub_u32 s{S_T0}, s{S_XCD}, 4')
        g(f's_mul_i32 s{S_T1}, s{S_T0}, 23')
        g(f's_add_u32 s{S_T1}, s{S_T1}, 52')
        g(f's_mul_i32 s{S_T2}, s{S_T0}, 3')
        g(f's_add_u32 s{S_T2}, s{S_T2}, 52')
        g(f's_cmp_ge_u32 s{S_XCD}, 4')
        g(f's_cselect_b32 s90, 23, s90')
        g(f's_cselect_b32 s91, s{S_T1}, s91')
        g(f's_cselect_b32 s92, s{S_T2}, s92')
    else:
        g(f's_mov_b32 s90, 18')
        g(f's_mul_i32 s91, s{S_XCD}, 18')
    tag_consts(g)
    g(f's_cmp_ge_u32 s{S_WAVE}, 4')
    g('s_cbranch_scc1 L_attn')
    g('s_setprio 3')
    g(f's_cmp_lg_u32 s{S_WAVE}, 0')
    g('s_cbranch_scc1 L_noinit')
    g('v_lshlrev_b32 v3, 4, v0')
    for r in range(4, 8): g(f'v_mov_b32 v{r}, 0')
    g('ds_write_b128 v3, v[4:7]')
    g.label('L_noinit')
    g(f's_cmp_ge_u32 s{S_SLOT}, 26')
    g('s_cbranch_scc1 L_roleO')
    XR = 124; XF = 136
    g('v_lshrrev_b32 v3, 5, v0')
    g('v_and_b32 v4, 31, v0')
    g('v_mul_u32_u24 v3, 1152, v3')
    g('v_mad_u32_u24 v3, v4, 36, v3')
    xp = g.o.get('xpol', '')
    g('v_mov_b32 v15, v3')
    def xloads():
        g(f'global_load_dwordx4 {vr(XR)}, v15, {pr(S_X)} {xp}')
        g(f'global_load_dwordx4 {vr(XR+4)}, v15, {pr(S_X)} offset:16 {xp}')
        g(f'global_load_dword v{XR+8}, v15, {pr(S_X)} offset:32 {xp}')
    XPOS = g.o.get('xpos', 0)
    S_HALF = S_RS
    S_A, S_R = S_T2, S_T3
    if g.o.get('remap', True):
        g(f's_cmp_ge_u32 s{S_SLOT}, s90')
        g('s_cbranch_scc1 L_tileLight')
        g(f's_add_u32 s{S_ID}, s91, s{S_SLOT}')
        g(f's_and_b32 s{S_HALF}, s{S_ID}, 1')
        g(f's_lshr_b32 s{S_A}, s{S_ID}, 2')
        g(f's_and_b32 s{S_R}, s{S_ID}, 2')
        g(f's_sub_u32 s{S_T0}, s{S_ID}, 104')
        g(f's_lshr_b32 s{S_T0}, s{S_T0}, 1')
        g(f's_add_u32 s{S_T0}, s{S_T0}, 6')
        g(f's_cmp_ge_u32 s{S_ID}, 104')
        g(f's_cselect_b32 s{S_A}, s{S_T0}, s{S_A}')
        g(f's_cselect_b32 s{S_R}, 3, s{S_R}')
        g('s_branch L_tileCT')
        g.label('L_tileLight')
        if g.o.get('skew'):
            g(f's_sub_u32 s{S_T0}, s{S_SLOT}, s90')
            g(f's_add_u32 s{S_T0}, s{S_T0}, s92')
        else:
            g(f's_sub_u32 s{S_T0}, s{S_SLOT}, 18')
            g(f's_lshl_b32 s{S_T0}, s{S_T0}, 3')
            g(f's_add_u32 s{S_T0}, s{S_T0}, s{S_XCD}')
        g(f's_mov_b32 s{S_F}, s{S_T0}')
        g(f's_and_b32 s{S_HALF}, s{S_T0}, 1')
        g(f's_lshr_b32 s{S_A}, s{S_T0}, 1')
        g(f's_sub_u32 s{S_T1}, s{S_A}, 26')
        g(f's_cmp_ge_u32 s{S_T0}, 52')
        g(f's_cselect_b32 s{S_A}, s{S_T1}, s{S_A}')
        g(f's_cselect_b32 s{S_R}, 3, 1')
        g.label('L_tileCT')
        g(f's_lshl_b32 s{S_T0}, s{S_A}, 2')
        g(f's_add_u32 s{S_T0}, s{S_T0}, s{S_R}')
    else:
        g(f's_cmp_ge_u32 s{S_SLOT}, 18')
        g('s_cbranch_scc1 L_tileLight')
        g(f's_mul_i32 s{S_ID}, s{S_XCD}, 18')
        g(f's_add_u32 s{S_ID}, s{S_ID}, s{S_SLOT}')
        g(f's_and_b32 s{S_HALF}, s{S_ID}, 1')
        g(f's_lshr_b32 s{S_T0}, s{S_ID}, 1')
        g('s_branch L_tileCT')
        g.label('L_tileLight')
        g(f's_sub_u32 s{S_T1}, s{S_SLOT}, 18')
        g(f's_and_b32 s{S_HALF}, s{S_T1}, 1')
        g(f's_lshl_b32 s{S_T0}, s{S_XCD}, 3')
        g(f's_add_u32 s{S_T0}, s{S_T0}, s{S_T1}')
        g(f's_lshr_b32 s{S_T0}, s{S_T0}, 1')
        g(f's_add_u32 s{S_T0}, s{S_T0}, 72')
        g.label('L_tileCT')
    g(f's_lshl_b32 s{S_TILE}, s{S_T0}, 1')
    g(f's_add_u32 s{S_TILE}, s{S_TILE}, s{S_HALF}')
    g(f's_mov_b32 s94, s{S_T0}')
    g(f's_mov_b32 s{S_STR}, 9216')
    g(f's_mov_b32 s{S_T1}, 0')
    g(f's_cmp_ge_u32 s{S_T0}, 36')
    g(f's_cselect_b32 s{S_T1}, 36, s{S_T1}')
    g(f's_cmp_ge_u32 s{S_T0}, 72')
    g(f's_cselect_b32 s{S_T1}, 72, s{S_T1}')
    g(f's_cselect_b32 s{S_STR}, 8192, s{S_STR}')
    g(f's_sub_u32 s{S_T0}, s{S_T0}, s{S_T1}')
    g(f's_mul_i32 s{S_T1}, s{S_HALF}, 288')
    g(f's_mul_i32 s{S_T2}, s{S_WAVE}, 72')
    g(f's_add_u32 s{S_RS}, s{S_T1}, s{S_T2}')
    g(f's_mul_i32 s{S_T1}, s{S_RS}, s{S_STR}')
    g(f's_lshl_b32 s{S_T0}, s{S_T0}, 8')
    g(f's_add_u32 s{S_T1}, s{S_T1}, s{S_T0}')
    g(f'v_mul_lo_u32 v3, v{V_G}, s{S_STR}')
    g(f'v_lshl_add_u32 v3, v{V_N}, 4, v3')
    g(f's_lshl_b32 s{S_STR}, s{S_STR}, 2')
    g(f's_mov_b32 s95, s{S_T1}')
    kernarg_ready(g, 'L_nogen')
    if XPOS == 0: xloads()
    g(f's_mov_b64 {pr(S_B)}, {pr(S_GATE)}')
    g('s_cmp_ge_u32 s94, 36')
    g(f's_cselect_b64 {pr(S_B)}, {pr(S_UP)}, {pr(S_B)}')
    g('s_cmp_ge_u32 s94, 72')
    g(f's_cselect_b64 {pr(S_B)}, {pr(S_WQ)}, {pr(S_B)}')
    add_base(g, S_B, 95)
    W0 = 16
    for i in range(18):
        g(f'global_load_dwordx4 {vr(W0+4*i)}, v3, {pr(S_B)} {pol}')
        if i < 17: add_base(g, S_B, S_STR)
        if XPOS == i + 1: xloads()
    g('s_barrier')
    g.stamp(2)
    g(f's_cmp_lg_u32 s{S_WAVE}, 1')
    g('s_cbranch_scc1 L_notag1')
    emit_tag_publish(g)
    g.label('L_notag1')
    g(f's_waitcnt vmcnt({18 - XPOS})')
    emit_layernorm(g, XR, XF)
    make_masks(g, MK, V_N, 12)
    g(f'v_lshrrev_b32 v3, 3, v{V_N}')
    g('v_mul_u32_u24 v3, 576, v3')
    g(f'v_add_u32 v3, v3, v{V_G}')
    g(f'v_add_u32 v3, s{S_RS}, v3')
    g('v_lshlrev_b32 v3, 2, v3')
    XV = 136
    for i in range(18):
        g(f'ds_read_b32 v{XV+i}, v3 offset:{L_XD + 16*i}')
    ACC = 156; BT = 160
    for r in range(4): g(f'v_mov_b32 v{ACC+r}, 0')
    g('s_waitcnt lgkmcnt(0)')
    for i in range(18):
        b = BT + 4*(i & 1)
        for r in range(4):
            g(f'v_and_b32 v{b+r}, v{XV+i}, v{MK+r}')
        g(f's_waitcnt vmcnt({17 - i})')
        g.nop(1)
        g(f'v_mfma_f32_16x16x32_bf16 {vr(ACC)}, {vr(W0+4*i)}, {vr(b)}, {vr(ACC)}')
    g.stamp(3)
    get_tag_from_lds(g, 12, VTAG)
    g(f's_lshl_b32 s{S_T0}, s{S_WAVE}, 10')
    g('v_lshlrev_b32 v3, 4, v0')
    g(f'v_add_u32 v4, s{S_T0}, v3')
    g(f'ds_write_b128 v4, {vr(ACC)} offset:{L_Y1}')
    arrive_last(g, C_L1CNT, 3, 'L_l1pubdone')
    g('v_lshlrev_b32 v3, 4, v0')
    for w in range(4):
        g(f'ds_read_b128 {vr(124+4*w)}, v3 offset:{L_Y1 + 1024*w}')
    g(f's_lshl_b32 s{S_T0}, s{S_TILE}, 10')
    set_ws_base(g, S_B, S_T0, WS_L1)
    g('s_waitcnt lgkmcnt(0)')
    for j in range(1, 4):
        for r in range(4): g(f'v_add_f32 v{124+r}, v{124+r}, v{124+4*j+r}')
    tag_insert(g, 160, 124, VTAG)
    if g.o.get('qfast'):
        g(f'v_add_u32 v4, {WS_QALT}, v3')
        g(f's_cmp_lt_u32 s{S_TILE}, 144')
        g('s_cbranch_scc1 L_noqalt')
        g(f'global_store_dwordx4 v4, {vr(160)}, {pr(S_B)}')
        g.label('L_noqalt')
    pub_store(g, 'v3', vr(160), pr(S_B), True)
    g.label('L_l1pubdone')
    g.stamp(4)
    g(f's_cmp_lg_u32 s{S_WAVE}, 1')
    g('s_cbranch_scc1 L_noq1')
    emit_qpoll(g, g.o.get('qdelay', 0))
    g.label('L_noq1')
    g(f's_cmp_ge_u32 s{S_SLOT}, s90')
    g('s_cbranch_scc1 L_roleQtail')
    S_RB = S_TILE
    g(f's_add_u32 s{S_T2}, s91, s{S_SLOT}')
    g(f's_mul_i32 s{S_RB}, s{S_T2}, 171')
    g(f's_lshr_b32 s{S_RB}, s{S_RB}, 9')
    g(f's_mul_i32 s{S_T1}, s{S_RB}, 3')
    g(f's_sub_u32 s{S_CB}, s{S_T2}, s{S_T1}')
    def hpoll_here():
        g(f's_cmp_lg_u32 s{S_WAVE}, 0')
        g('s_cbranch_scc1 L_noh')
        if g.o.get('hlate', 0) >= 2:
            lds_wait_ge(g, 'hv', C_VISS, g.o.get('hlate') - 1, 12, sleep=8)
        emit_hpoll(g, S_RB)
        g.label('L_noh')
    if g.o.get('hlate', 0) != 1: hpoll_here()
    g(f's_mul_i32 s{S_T0}, s{S_RB}, 96')
    g(f's_mul_i32 s{S_T1}, s{S_WAVE}, 24')
    g(f's_add_u32 s{S_T0}, s{S_T0}, s{S_T1}')
    g(f's_mul_i32 s{S_T0}, s{S_T0}, 1152')
    g(f's_mul_i32 s{S_T1}, s{S_CB}, 384')
    g(f's_add_u32 s{S_T0}, s{S_T0}, s{S_T1}')
    g(f's_mov_b64 {pr(S_B)}, {pr(S_DOWN)}')
    add_base(g, S_B, S_T0)
    l2_lane_offsets(g)
    WD = 88
    if not g.o.get('early'):
        if g.o.get('fgateA'):
            lds_wait_ge(g, 'facnt', C_ACNT, g.o.get('fgateA'), 12, sleep=2)
        else:
            lds_wait_ge(g, 'viss', C_VISS, g.o.get('fgate', 8), 12, sleep=4)
    if g.o.get('hlate') == 1:
        g(f's_mov_b64 s[86:87], {pr(S_B)}')
        g('v_mov_b32 v56, v5'); g('v_mov_b32 v57, v6')
        hpoll_here()
        g(f's_mov_b64 {pr(S_B)}, s[86:87]')
        g('v_mov_b32 v5, v56'); g('v_mov_b32 v6, v57')
    if g.o.get('nolate'):
        g('s_branch L_end_stamp')
    if g.o.get('ggate'):
        count_in(g)
        global_gate(g, g.o.get('ggate'))
    if g.o.get('gg2'):
        count_in(g)
        go_wait(g)
    l2_issue(g, WD, 3)
    l2_prep(g, 48, S_RB, WS_F, 60, 62)
    lds_wait_ge(g, 'hf', C_HF, 1, 12)
    g(f'v_lshrrev_b32 v3, 3, v{V_N}')
    g('v_mul_u32_u24 v3, 96, v3')
    g(f'v_lshl_add_u32 v3, v{V_G}, 1, v3')
    g(f's_mul_i32 s{S_T0}, s{S_WAVE}, 24')
    g(f'v_add_u32 v3, s{S_T0}, v3')
    g('v_lshlrev_b32 v3, 2, v3')
    P = 16
    for i in range(3):
        g(f'ds_read_b64 v[{P+2*i}:{P+2*i+1}], v3 offset:{L_HD + 32*i}')
    l2_compute(g, WD, 3, P, 24, 40, waitvm=lambda i: 6 - 3*i)
    l2_finish(g, 24, 60, 62, 64)
    g('s_branch L_end_stamp')
    g.label('L_roleQtail')
    if g.o.get('ggate') or g.o.get('gg2'): count_in(g)
    if g.o.get('gg2'):
        sk = g.u('nodet')
        g(f's_cmp_lg_u32 s{S_WAVE}, 1')
        g(f's_cbranch_scc1 {sk}')
        g(f's_cmp_lg_u32 s{S_F}, 51')
        g(f's_cbranch_scc1 {sk}')
        detector(g, g.o.get('gg2'))
        g.label(sk)
    g(f's_and_b32 s{S_T0}, s{S_WAVE}, 1')
    if g.o.get('fin2'):
        g(f's_cmp_lg_u32 s{S_T0}, 0')
    else:
        g(f's_cmp_lg_u32 s{S_WAVE}, 0')
    g('s_cbranch_scc1 L_end_stamp')
    if not g.o.get('remap', True):
        g(f's_sub_u32 s{S_F}, s{S_SLOT}, 18')
        g(f's_lshl_b32 s{S_F}, s{S_F}, 3')
        g(f's_add_u32 s{S_F}, s{S_F}, s{S_XCD}')
    g(f's_cmp_ge_u32 s{S_F}, 36')
    g('s_cbranch_scc1 L_end_stamp')
    if g.o.get('fin2'):
        g(f's_cmp_eq_u32 s{S_WAVE}, 2')
        g('s_cbranch_scc1 L_ffg')
        emit_final(g)
        g('s_branch L_end_stamp')
        g.label('L_ffg')
        emit_ffgather(g)
    else:
        emit_final_old(g)
    g('s_branch L_end_stamp')
    g.label('L_roleO')
    emit_roleO(g)
    g('s_branch L_end_stamp')
    g.label('L_attn')
    emit_attn(g)
    g.label('L_end_stamp')
    if stamps:
        g.stamp(7)
        g('s_waitcnt lgkmcnt(0) vmcnt(0)')
        g('s_mov_b64 exec, -1')
        g('v_cmp_eq_u32_e32 vcc, 0, v0')
        g(f's_and_saveexec_b64 {pr(S_SV)}, vcc')
        g('s_cbranch_execz L_end')
        g(f's_mul_i32 s{S_T0}, s2, 12')
        g(f's_add_u32 s{S_T0}, s{S_T0}, s{S_WAVE}')
        g(f's_lshl_b32 s{S_T0}, s{S_T0}, 6')
        g(f's_add_u32 s{S_T0}, s{S_T0}, 0x{WS_STAMP:x}')
        add_base(g, S_WS, S_T0)
        g('v_mov_b32 v1, 0')
        for j in range(8):
            g(f'v_mov_b32 v2, s{64+2*j}'); g(f'v_mov_b32 v3, s{65+2*j}')
            g(f'global_store_dwordx2 v1, v[2:3], {pr(S_WS)} offset:{8*j}')
            g.nop(2)
    g.label('L_end')
    g('s_endpgm')
    return g

if __name__ == '__main__':
    ap = argparse.ArgumentParser()
    ap.add_argument('-o', default='k.s')
    ap.add_argument('--stamps', action='store_true')
    ap.add_argument('--pol', default='nt')
    ap.add_argument('--nopoll', default='')
    ap.add_argument('--nopub', action='store_true')
    ap.add_argument('--early', action='store_true')
    ap.add_argument('--dbl', action='store_true')
    ap.add_argument('--noremap', action='store_true')
    ap.add_argument('--fastA', action='store_true')
    ap.add_argument('--qmask', type=int, default=1)
    ap.add_argument('--hlate', type=int, default=0)
    ap.add_argument('--habk', default='')
    ap.add_argument('--abmask', type=int, default=3)
    ap.add_argument('--ybar', action='store_true')
    ap.add_argument('--touchB', action='store_true')
    ap.add_argument('--qfast', action='store_true')
    ap.add_argument('--xpos', type=int, default=0)
    ap.add_argument('--xpol', default='')
    ap.add_argument('--tlb', action='store_true')
    ap.add_argument('--gg2', type=int, default=0)
    ap.add_argument('--ogg2', action='store_true')
    ap.add_argument('--nolate', type=int, default=0)
    ap.add_argument('--fin2', action='store_true')
    ap.add_argument('--osplit', type=int, default=0)
    ap.add_argument('--skew', action='store_true')
    ap.add_argument('--qprobe', type=int, default=0)
    ap.add_argument('--fgateA', type=int, default=0)
    ap.add_argument('--ggate', type=int, default=0)
    ap.add_argument('--ogg', type=int, default=0)
    ap.add_argument('--warm', action='store_true')
    ap.add_argument('--ownwait', type=int, default=8)
    ap.add_argument('--ogate', type=int, default=8)
    ap.add_argument('--fgate', type=int, default=8)
    ap.add_argument('--oearly', type=int, default=0)
    ap.add_argument('--stO', action='store_true')
    ap.add_argument('--finpipe', type=int, default=0)
    ap.add_argument('--nokvil', action='store_true')
    ap.add_argument('--qdelay', type=int, default=0)
    ap.add_argument('--qdelayO', type=int, default=0)
    a = ap.parse_args()
    opts = {}
    if a.nopoll: opts['nopoll'] = a.nopoll.split(',')
    if a.early: opts['early'] = True
    opts['remap'] = not a.noremap; opts['fastA'] = a.fastA; opts['qmask'] = a.qmask; opts['hlate'] = a.hlate; opts['abmask'] = a.abmask; opts['habk'] = tuple(int(x) for x in a.habk.split(',')) if a.habk else None; opts['ybar'] = a.ybar; opts['touchB'] = a.touchB; opts['qfast'] = a.qfast; opts['xpos'] = a.xpos; opts['xpol'] = a.xpol; opts['tlb'] = a.tlb; opts['gg2'] = a.gg2; opts['ogg2'] = a.ogg2; opts['nolate'] = a.nolate; opts['fin2'] = a.fin2; opts['osplit'] = a.osplit; opts['skew'] = a.skew; opts['qprobe'] = a.qprobe; opts['fgateA'] = a.fgateA; opts['ggate'] = a.ggate; opts['ogg'] = a.ogg; opts['warm'] = a.warm; opts['ownwait'] = a.ownwait; opts['ogate'] = a.ogate; opts['fgate'] = a.fgate; opts['oearly'] = a.oearly; opts['stO'] = a.stO; opts['finpipe'] = a.finpipe; opts['kvil'] = not a.nokvil
    opts['dbl'] = a.dbl; opts['qdelay'] = a.qdelay; opts['qdelayO'] = a.qdelayO
    pol = a.pol
    g = generate(a.stamps, a.pol, opts)
    if a.nopub:
        g.L = [l for l in g.L if not ('global_store_dwordx4' in l and 'sc1' in l)]
    open(a.o, 'w').write(header(256, 768, LDS_SIZE) + '\n'.join(g.L) + '\n' + footer(168))
    print(a.o, len(g.L), 'lines')
```

```python
import sys, argparse
from genlib import *

V_LANE, V_N, V_G = 0, 1, 2
WS_ALT = 0x300000 - WS_A
MK = 8
VTAG = 14

def arrive_last(g, cnt_off, last_val, skip_label):
    g('s_waitcnt lgkmcnt(0)')
    g('v_mov_b32 v12, 0')
    g('v_mov_b32 v13, 1')
    g(f's_mov_b64 {pr(S_SV)}, exec')
    g('s_mov_b64 exec, 1')
    g(f'ds_add_rtn_u32 v13, v12, v13 offset:{cnt_off}')
    g('s_waitcnt lgkmcnt(0)')
    g(f'v_readfirstlane_b32 s{S_T0}, v13')
    g(f's_mov_b64 exec, {pr(S_SV)}')
    g(f's_cmp_lg_u32 s{S_T0}, {last_val}')
    g(f's_cbranch_scc1 {skip_label}')

def set_ws_base(g, dst, off_sreg, const):
    g(f's_add_u32 s{off_sreg}, s{off_sreg}, {const}')
    g(f's_mov_b64 {pr(dst)}, {pr(S_WS)}')
    add_base(g, dst, off_sreg)

def strip(g, regs):
    for r in regs: g(f'v_and_b32 v{r}, 0xffffff00, v{r}')

def pub_store(g, addr, data, base, local):
    if local and g.o.get('dbl'):
        g(f'global_store_dwordx4 {addr}, {data}, {base}')
    g(f'global_store_dwordx4 {addr}, {data}, {base} sc1')

def count_in(g):
    sk = g.u('ci')
    g(f's_cmp_lg_u32 s{S_WAVE}, 3')
    g(f's_cbranch_scc1 {sk}')
    lds_wait_ge(g, 'vi8', C_VISS, 8, 12, sleep=4)
    g('v_mov_b32 v12, 0')
    g('v_mov_b32 v13, 1')
    g(f's_mov_b64 {pr(S_SV)}, exec')
    g('s_mov_b64 exec, 1')
    g(f'global_atomic_add v12, v13, {pr(S_DBG)} sc1')
    g(f's_mov_b64 exec, {pr(S_SV)}')
    g.label(sk)

WS_QALT = 0x3A0000 - WS_L1
WS_G = 0x380000
C_GO = 44
def detector(g, thr):
    lp = g.u('dt_lp'); ok = g.u('dt_ok')
    g(f's_mov_b32 s{S_CNT}, {SPIN_LIMIT}')
    g.label(lp)
    g(f's_load_dword s{S_T0}, {pr(S_DBG)}, 0 glc')
    g('s_waitcnt lgkmcnt(0)')
    g(f's_cmp_ge_u32 s{S_T0}, {thr}')
    g(f's_cbranch_scc1 {ok}')
    g(f's_sub_u32 s{S_CNT}, s{S_CNT}, 1')
    g(f's_cbranch_scc1 {ok}')
    g('s_sleep 2')
    g(f's_branch {lp}')
    g.label(ok)
    g('v_lshlrev_b32 v4, 7, v0')
    g(f'v_mov_b32 v5, s{S_TAG}')
    g(f's_mov_b64 {pr(S_B2)}, {pr(S_WS)}')
    add_base_imm(g, S_B2, WS_G)
    g(f's_mov_b64 {pr(S_SV)}, exec')
    g('s_mov_b64 exec, 0xff')
    g(f'global_store_dword v4, v5, {pr(S_B2)} sc1')
    g(f's_mov_b64 exec, {pr(S_SV)}')

def go_wait(g):
    sk = g.u('gw_sk'); lp = g.u('gw_lp'); ok = g.u('gw_ok')
    g(f's_cmp_lg_u32 s{S_WAVE}, 2')
    g(f's_cbranch_scc1 {sk}')
    g(f's_lshl_b32 s{S_T0}, s{S_XCD}, 7')
    set_ws_base(g, S_B2, S_T0, WS_G)
    g(f's_mov_b32 s{S_CNT}, {SPIN_LIMIT}')
    g.label(lp)
    g(f's_load_dword s{S_T0}, {pr(S_B2)}, 0 glc')
    g('s_waitcnt lgkmcnt(0)')
    g(f's_cmp_eq_u32 s{S_T0}, s{S_TAG}')
    g(f's_cbranch_scc1 {ok}')
    g(f's_sub_u32 s{S_CNT}, s{S_CNT}, 1')
    g(f's_cbranch_scc1 {ok}')
    g('s_sleep 6')
    g(f's_branch {lp}')
    g.label(ok)
    g('v_mov_b32 v12, 0'); g('v_mov_b32 v13, 1')
    g(f'ds_write_b32 v12, v13 offset:{C_GO}')
    g.label(sk)
    lds_wait_ge(g, 'go', C_GO, 1, 12, sleep=2)

def global_gate(g, thr):
    lp = g.u('gg_lp'); ok = g.u('gg_ok')
    g(f's_mov_b32 s{S_CNT}, {SPIN_LIMIT}')
    g.label(lp)
    g(f's_load_dword s{S_T0}, {pr(S_DBG)}, 0 glc')
    g('s_waitcnt lgkmcnt(0)')
    g(f's_cmp_ge_u32 s{S_T0}, {thr}')
    g(f's_cbranch_scc1 {ok}')
    g(f's_sub_u32 s{S_CNT}, s{S_CNT}, 1')
    g(f's_cbranch_scc1 {ok}')
    g('s_sleep 2')
    g(f's_branch {lp}')
    g.label(ok)

def kernarg_ready(g, lab):
    g('s_waitcnt lgkmcnt(0)')
    g.stamp(1)
    g(f's_cmp_lg_u32 s{S_WAVE}, 1')
    g(f's_cbranch_scc1 {lab}')
    g(f's_load_dword s{S_TAG}, {pr(S_WS)}, {WS_GEN}')
    g.label(lab)

def emit_tag_publish(g):
    g('s_waitcnt lgkmcnt(0)')
    g(f's_add_u32 s{S_TAG}, s{S_TAG}, 1')
    g(f's_and_b32 s{S_T0}, s{S_TAG}, 0xff')
    g(f's_mul_i32 s{S_T0}, s{S_T0}, 0x01010100')
    g(f's_mov_b32 s{S_T1}, s{S_TAG}')
    g(f's_xor_b32 s{S_TAG}, s{S_TAG}, s{S_T0}')
    g('v_mov_b32 v4, 0')
    g(f'v_mov_b32 v5, s{S_TAG}')
    g(f'v_mov_b32 v6, s{S_T1}')
    g(f'ds_write_b32 v4, v5 offset:{C_TAG}')
    g(f'ds_write_b32 v4, v6 offset:{C_RAWG}')
    g('s_waitcnt lgkmcnt(0)')
    g('v_mov_b32 v5, 1')
    g(f'ds_write_b32 v4, v5 offset:{C_TAGF}')

def emit_layernorm(g, XR, XF):
    for k in range(9):
        g(f'v_lshlrev_b32 v{XF+2*k}, 16, v{XR+k}')
        g(f'v_and_b32 v{XF+2*k+1}, 0xffff0000, v{XR+k}')
    S, T = 154, 155
    g(f'v_add_f32 v{S}, v{XF}, v{XF+1}')
    for k in range(2, 18): g(f'v_add_f32 v{S}, v{S}, v{XF+k}')
    row_reduce(g, 'v_add_f32', S)
    xor16_op(g, 'v_add_f32', S, T)
    g(f'v_mul_f32 v{S}, 0x{INV576:08x}, v{S}')
    Q, D = 156, 157
    g(f'v_sub_f32 v{D}, v{XF}, v{S}')
    g(f'v_mul_f32 v{Q}, v{D}, v{D}')
    for k in range(1, 18):
        g(f'v_sub_f32 v{D}, v{XF+k}, v{S}')
        g(f'v_fmac_f32 v{Q}, v{D}, v{D}')
    row_reduce(g, 'v_add_f32', Q)
    xor16_op(g, 'v_add_f32', Q, T)
    g(f'v_mul_f32 v{Q}, 0x{INV576:08x}, v{Q}')
    bf16_round(g, Q, Q)
    g(f'v_add_f32 v{Q}, 0x{EPS:08x}, v{Q}')
    bf16_round(g, Q, Q)
    g(f'v_sqrt_f32 v{Q}, v{Q}')
    g.nop(1)
    bf16_round(g, Q, Q)
    g(f'v_rcp_f32 v{Q}, v{Q}')
    bf16_round(g, S, S)
    for k in range(18):
        g(f'v_sub_f32 v{XF+k}, v{XF+k}, v{S}')
    for k in range(0, 18, 2):
        g(f'v_cvt_pk_bf16_f32 v{XR+k//2}, v{XF+k}, v{XF+k+1}')
    for k in range(9):
        g(f'v_lshlrev_b32 v{XF+2*k}, 16, v{XR+k}')
        g(f'v_and_b32 v{XF+2*k+1}, 0xffff0000, v{XR+k}')
    for k in range(18):
        g(f'v_mul_f32 v{XF+k}, v{XF+k}, v{Q}')
    for k in range(18):
        g(f'v_cvt_pk_bf16_f32 v{XF+k}, v{XF+k}, v{XF+k}')
    g('v_lshrrev_b32 v3, 5, v0')
    g('v_and_b32 v4, 31, v0')
    g('v_mul_u32_u24 v3, 576, v3')
    g('v_mad_u32_u24 v3, v4, 18, v3')
    g('v_lshlrev_b32 v3, 2, v3')
    for k in range(0, 18, 2):
        g(f'ds_write_b64 v3, v[{XF+k}:{XF+k+1}] offset:{L_XD + 4*k}')
    g('s_waitcnt lgkmcnt(0)')

def emit_qpoll(g, presleep=0, probe=None):
    g(f's_lshl_b32 s{S_T0}, s{S_HKV}, 12')
    g(f's_lshl_b32 s{S_T1}, s{S_BB}, 7')
    g(f's_add_u32 s{S_T0}, s{S_T0}, s{S_T1}')
    set_ws_base(g, S_B2, S_T0, WS_L1 + 144*1024)
    g('v_lshrrev_b32 v3, 5, v0')
    g('v_lshlrev_b32 v3, 11, v3')
    g('v_bfe_u32 v4, v0, 3, 2')
    g('v_lshl_add_u32 v3, v4, 8, v3')
    g('v_and_b32 v4, 7, v0')
    g('v_lshl_add_u32 v3, v4, 4, v3')
    D = 124
    if probe is None: probe = g.o.get('qprobe')
    if probe:
        lp = g.u('qp_lp'); ok = g.u('qp_ok')
        g(f's_and_b32 s{S_T4}, s{S_TAG}, 0xff')
        g(f's_mov_b32 s{S_CNT}, {SPIN_LIMIT}')
        g.label(lp)
        for k in range(4):
            g(f's_load_dword s{84+k}, {pr(S_B2)}, {1024*k} glc')
        g('s_waitcnt lgkmcnt(0)')
        for k in range(4):
            g(f's_and_b32 s{84+k}, s{84+k}, 0xff')
            g(f's_xor_b32 s{84+k}, s{84+k}, s{S_T4}')
        g('s_or_b32 s84, s84, s85')
        g('s_or_b32 s86, s86, s87')
        g('s_or_b32 s84, s84, s86')
        g('s_cmp_eq_u32 s84, 0')
        g(f's_cbranch_scc1 {ok}')
        g(f's_sub_u32 s{S_CNT}, s{S_CNT}, 1')
        g(f's_cbranch_scc1 {ok}')
        g(f's_sleep {probe}')
        g(f's_branch {lp}')
        g.label(ok)
        presleep = 0
    if presleep:
        n = presleep
        while n > 0:
            g(f's_sleep {min(n,127)}'); n -= 127
    pre = None
    if g.o.get('qfast'):
        g(f'v_add_u32 v156, {WS_QALT}, v3')
        g('v_mov_b32 v157, v3')
        def pre():
            g(f's_and_b32 s{S_T0}, s{S_CNT}, {g.o.get("qmask", 1)}')
            g(f's_cmp_eq_u32 s{S_T0}, 1')
            g(f's_cselect_b64 vcc, -1, 0')
            g('v_cndmask_b32_e32 v3, v156, v157, vcc')
    loads = [f'global_load_dwordx4 {vr(D+4*h)}, v3, {pr(S_B2)} offset:{1024*h} sc1' for h in range(2)]
    poll_retry(g, 'q', loads, D, 5, 6, sleep=g.o.get('qsleep', 4), st_first=5, st_cnt=1, pre_iter=pre)
    g.stamp(6)
    strip(g, range(D, D+8))
    for r in range(4):
        g(f'v_add_f32 v{D+r}, v{D+r}, v{D+4+r}')
    g(f'v_cvt_pk_bf16_f32 v{D}, v{D}, v{D+1}')
    g(f'v_cvt_pk_bf16_f32 v{D+2}, v{D+2}, v{D+3}')
    g('v_lshrrev_b32 v3, 5, v0')
    g('v_lshlrev_b32 v3, 8, v3')
    g('v_bfe_u32 v4, v0, 3, 2')
    g('v_lshl_add_u32 v3, v4, 6, v3')
    g('v_and_b32 v4, 7, v0')
    g('v_lshl_add_u32 v3, v4, 1, v3')
    g(f'ds_write_b16 v3, v{D} offset:{L_QL}')
    g(f'ds_write_b16_d16_hi v3, v{D} offset:{L_QL+16}')
    g(f'ds_write_b16 v3, v{D+2} offset:{L_QL+32}')
    g(f'ds_write_b16_d16_hi v3, v{D+2} offset:{L_QL+48}')
    g('s_waitcnt lgkmcnt(0)')
    g('v_mov_b32 v4, 0')
    g('v_mov_b32 v5, 1')
    g(f'ds_write_b32 v4, v5 offset:{C_QF}')

def emit_hpoll(g, S_RB):
    set_off = []
    g(f's_mul_i32 s{S_T2}, s{S_RB}, 3')
    g('v_lshrrev_b32 v3, 5, v0')
    g(f'v_mul_u32_u24 v3, {72*1024}, v3')
    g('v_bfe_u32 v4, v0, 4, 1')
    g('v_lshl_add_u32 v3, v4, 10, v3')
    g('v_lshl_add_u32 v3, v1, 4, v3')
    for k in range(3):
        g(f's_add_u32 s{S_T0}, s{S_T2}, {k}')
        g(f's_lshr_b32 s{S_T1}, s{S_T0}, 2')
        g(f's_lshl_b32 s{S_T1}, s{S_T1}, 11')
        g(f's_and_b32 s{S_T0}, s{S_T0}, 3')
        g(f's_lshl_b32 s{S_T0}, s{S_T0}, 8')
        g(f's_add_u32 s{S_T0}, s{S_T0}, s{S_T1}')
        g(f'v_add_u32 v{156+k}, s{S_T0}, v3')
    g(f's_mov_b64 {pr(S_B2)}, {pr(S_WS)}')
    add_base_imm(g, S_B2, WS_L1)
    D = 124
    loads = [f'global_load_dwordx4 {vr(D+4*k)}, v{156+k}, {pr(S_B2)} sc1' for k in range(3)]
    poll_retry(g, 'h', loads, D, 5, 6, sleep=g.o.get('hsleep', 8), st_first=5, st_cnt=1)
    g.stamp(6)
    N = 12
    strip(g, range(D, D+12))
    T = D + 12
    U = D + 24
    for j in range(N): g(f'v_mov_b32 v{T+j}, v{D+j}')
    g.nop(2)
    for j in range(N): g(f'v_permlane16_swap_b32 v{D+j}, v{T+j}')
    g.nop(1)
    for j in range(N): g(f'v_add_f32 v{D+j}, v{D+j}, v{T+j}')
    for j in range(N): bf16_round(g, D+j, D+j)
    for j in range(N): g(f'v_mov_b32 v{U+j}, v{D+j}')
    g.nop(2)
    for j in range(N): g(f'v_permlane32_swap_b32 v{D+j}, v{U+j}')
    g.nop(1)
    for j in range(N): g(f'v_mul_f32 v{T+j}, s{S_L2E}, v{D+j}')
    for j in range(N): g(f'v_exp_f32 v{T+j}, -v{T+j}')
    g.nop(1)
    for j in range(N): g(f'v_add_f32 v{T+j}, 1.0, v{T+j}')
    for j in range(N): g(f'v_rcp_f32 v{T+j}, v{T+j}')
    g.nop(1)
    for j in range(N): g(f'v_mul_f32 v{T+j}, v{D+j}, v{T+j}')
    for j in range(N): bf16_round(g, T+j, T+j)
    for j in range(N): g(f'v_mul_f32 v{T+j}, v{T+j}, v{U+j}')
    for j in range(N): g(f'v_cvt_pk_bf16_f32 v{T+j}, v{T+j}, v{T+j}')
    g('v_lshrrev_b32 v3, 3, v1')
    g('v_mul_u32_u24 v3, 96, v3')
    g('v_and_b32 v4, 7, v1')
    g('v_add_u32 v3, v3, v4')
    g('v_lshlrev_b32 v3, 2, v3')
    for k in range(3):
        for r in range(4):
            g(f'ds_write_b32 v3, v{T+4*k+r} offset:{L_HD + 128*k + 32*r}')
    g('s_waitcnt lgkmcnt(0)')
    g('v_mov_b32 v4, 0')
    g('v_mov_b32 v5, 1')
    g(f'ds_write_b32 v4, v5 offset:{C_HF}')

def l2_lane_offsets(g):
    g('v_mul_u32_u24 v5, 2304, v2')
    g('v_lshl_add_u32 v5, v1, 4, v5')
    g('v_add_u32 v6, 256, v5')
    g('v_add_u32 v7, 1024, v5')
    g('v_cmp_gt_u32_e32 vcc, 8, v1')
    g.nop(2)
    g('v_cndmask_b32_e32 v6, v7, v6, vcc')

def l2_issue(g, W0, ng, base=None, a0=5, a1=6, last_adv=False):
    pol = g.pol
    base = S_B if base is None else base
    for i in range(ng):
        g(f'global_load_dwordx4 {vr(W0+12*i)}, v{a0}, {pr(base)} {pol}')
        g(f'global_load_dwordx4 {vr(W0+12*i+4)}, v{a1}, {pr(base)} {pol}')
        g(f'global_load_dwordx4 {vr(W0+12*i+8)}, v{a0}, {pr(base)} offset:1280 {pol}')
        if i < ng-1 or last_adv: add_base_imm(g, base, 9216)

def l2_compute(g, W0, ng, P, AC, BE0, waitvm=None):
    def band(i, k):
        be = BE0 + 8*(i & 1)
        src = P + 2*i + (k >> 1)
        for r in (2*(k & 1), 2*(k & 1) + 1):
            g(f'v_and_b32 v{be + 4*(k >> 1) + r}, v{src}, v{MK+r}')
    g(f's_waitcnt lgkmcnt({ng-1})')
    for k in range(4): band(0, k)
    for i in range(ng):
        be = BE0 + 8*(i & 1); bo = be + 4
        if i + 1 < ng: g(f's_waitcnt lgkmcnt({ng-2-i})')
        if waitvm is not None:
            g(f's_waitcnt vmcnt({waitvm(i)})')
        if i == 0 and waitvm is None and ng == 1: g.nop(2)
        c = (lambda k: '0') if i == 0 else (lambda k: vr(AC+k))
        ms = [f'v_mfma_f32_16x16x32_bf16 {vr(AC)}, {vr(W0+12*i)}, {vr(be)}, {c(0)}',
              f'v_mfma_f32_16x16x32_bf16 {vr(AC+4)}, {vr(W0+12*i+4)}, {vr(be)}, {c(4)}',
              f'v_mfma_f32_16x16x32_bf16 {vr(AC+8)}, {vr(W0+12*i+4)}, {vr(bo)}, {c(8)}',
              f'v_mfma_f32_16x16x32_bf16 {vr(AC+12)}, {vr(W0+12*i+8)}, {vr(bo)}, {c(12)}']
        if i == 0: g.nop(1)
        for k in range(4):
            g(ms[k])
            if i + 1 < ng: band(i + 1, k)

S_PB = 80
def l2_prep(g, nprod, prod_sreg, ws_const, VI, VP):
    fs = nprod*128
    g(f's_mul_i32 s{S_T0}, s{S_WAVE}, 3072')
    g(f'v_lshlrev_b32 v{VI}, 4, v0')
    g(f'v_add_u32 v{VI}, s{S_T0}, v{VI}')
    g(f's_mul_i32 s{S_T0}, s{S_WAVE}, 24')
    g(f'v_add_u32 v{VP}, s{S_T0}, v0')
    g(f'v_lshlrev_b32 v{VI+1}, 4, v{VP}')
    g(f'v_lshrrev_b32 v6, 4, v{VP}')
    g(f'v_bfe_u32 v7, v{VP}, 3, 1')
    g('v_mad_u32_u24 v6, v7, 18, v6')
    g(f'v_mul_u32_u24 v6, {fs}, v6')
    g(f'v_and_b32 v7, 7, v{VP}')
    g(f'v_lshl_add_u32 v{VP}, v7, 4, v6')
    g(f's_mul_i32 s{S_T0}, s{S_CB}, {6*fs}')
    g(f's_lshl_b32 s{S_T1}, s{prod_sreg}, 7')
    g(f's_add_u32 s{S_T0}, s{S_T0}, s{S_T1}')
    set_ws_base(g, S_PB, S_T0, ws_const)

def l2_finish(g, AC, VI, VP, R0, st_a=None, st_b=None):
    g('v_cmp_gt_u32_e32 vcc, 2, v2')
    g('v_mov_b32 v12, 0')
    g('v_mov_b32 v13, 1')
    g.nop(5)
    g(f'ds_write_b128 v{VI}, {vr(AC)} offset:{L_Y}')
    for r in range(4):
        g(f'v_cndmask_b32_e32 v{AC+4+r}, v{AC+8+r}, v{AC+4+r}, vcc')
    g(f'ds_write_b128 v{VI}, {vr(AC+12)} offset:{L_Y + 2048}')
    g(f'ds_write_b128 v{VI}, {vr(AC+4)} offset:{L_Y + 1024}')
    if st_a is not None: g.stamp(st_a)
    g(f's_mov_b64 {pr(S_SV)}, exec')
    if g.o.get('ybar'):
        g('s_waitcnt lgkmcnt(0)')
        g('s_barrier')
        g(f's_mov_b64 exec, 0xffffff')
    else:
        g('s_waitcnt lgkmcnt(0)')
        g('s_mov_b64 exec, 1')
        g(f'ds_add_u32 v12, v13 offset:{C_YCNT}')
        g(f's_mov_b64 exec, 0xffffff')
        lp = g.u('ys'); ok = g.u('yok')
        g(f's_mov_b32 s{S_CNT}, {SPIN_LIMIT*8}')
        g.label(lp)
        g(f'ds_read_b32 v13, v12 offset:{C_YCNT}')
        g('s_waitcnt lgkmcnt(0)')
        g(f'v_readfirstlane_b32 s{S_T0}, v13')
        g(f's_cmp_ge_u32 s{S_T0}, 4')
        g(f's_cbranch_scc1 {ok}')
        g(f's_sub_u32 s{S_CNT}, s{S_CNT}, 1')
        g(f's_cbranch_scc0 {lp}')
        g.label(ok)
    for w in range(4):
        g(f'ds_read_b128 {vr(R0+8*w)}, v{VI+1} offset:{L_Y + 3072*w}')
        g(f'ds_read_b128 {vr(R0+4+8*w)}, v{VI+1} offset:{L_Y + 3072*w + 6*256}')
    for stage in range(4):
        g(f's_waitcnt lgkmcnt({6-2*stage})')
        for r in range(4):
            if stage == 0:
                g(f'v_add_f32 v{R0+r}, v{R0+r}, v{R0+4+r}')
            else:
                g(f'v_add_f32 v{R0+8*stage+r}, v{R0+8*stage+r}, v{R0+8*stage+4+r}')
                g(f'v_add_f32 v{R0+r}, v{R0+r}, v{R0+8*stage+r}')
    tag_insert(g, R0+4, R0, VTAG)
    g(f'global_store_dwordx4 v{VP}, {vr(R0+4)}, {pr(S_PB)} sc1')
    g(f's_mov_b64 exec, {pr(S_SV)}')
    if st_b is not None: g.stamp(st_b)

def reduce_hh(g, d, t):
    g.nop(2)
    for r in range(4):
        g(f'v_add_f32_dpp v{d+r}, v{d+r}, v{d+r} row_ror:8 row_mask:0xf bank_mask:0xf')
    for r in range(4): g(f'v_mov_b32 v{t+r}, v{d+r}')
    g.nop(2)
    for r in range(4): g(f'v_permlane16_swap_b32 v{d+r}, v{t+r}')
    g.nop(1)
    for r in range(4): g(f'v_add_f32 v{d+r}, v{d+r}, v{t+r}')
    for r in range(4): g(f'v_mov_b32 v{t+r}, v{d+r}')
    g.nop(2)
    for r in range(4): g(f'v_permlane32_swap_b32 v{d+r}, v{t+r}')
    g.nop(1)
    for r in range(4): g(f'v_add_f32 v{d+r}, v{d+r}, v{t+r}')

def emit_final_old(g):
    g('v_and_b32 v3, 7, v0')
    g('v_lshlrev_b32 v3, 1, v3')
    g(f's_lshl_b32 s{S_T0}, s{S_F}, 6')
    g(f'v_add_u32 v3, s{S_T0}, v3')
    for r in range(4):
        g(f'global_load_ushort v{124+r}, v3, {pr(S_X)} offset:{16*r}')
    g('v_lshlrev_b32 v4, 4, v0')
    g('v_add_u32 v5, 4096, v4')
    g(f's_mul_i32 s{S_T0}, s{S_F}, 6144')
    set_ws_base(g, S_B, S_T0, WS_F)
    g(f's_lshl_b32 s{S_T0}, s{S_F}, 11')
    set_ws_base(g, S_B2, S_T0, WS_B)
    lds_wait_ge(g, 'own', C_ACNT, 8, 12, sleep=8)
    g.stamp(5)
    D = 16
    loads = [f'global_load_dwordx4 {vr(D+4*k)}, v{4 if k < 4 else 5}, {pr(S_B)} offset:{1024*(k%4)} sc1' for k in range(6)]
    if 'fin' in g.o.get('nopoll', ()): g.o['finpipe'] = 0
    if not g.o.get('finpipe'):
        loads += [f'global_load_dwordx4 {vr(D+24+4*k)}, v4, {pr(S_B2)} offset:{1024*k} sc1' for k in range(2)]
        poll_retry(g, 'fin', loads, D, 13, 15, sleep=0, st_cnt=1)
    else:
        poll_retry(g, 'fin', loads, D, 13, 15, sleep=2)
        g.stamp(4)
        strip(g, range(D, D+24))
        for k in range(1, 6):
            for r in range(4): g(f'v_add_f32 v{D+r}, v{D+r}, v{D+4*k+r}')
        reduce_hh(g, D, 96)
        for r in range(4): bf16_round(g, D+r, D+r)
        for r in range(4): g(f'v_lshlrev_b32 v{124+r}, 16, v{124+r}')
        NS = g.o.get('finpipe')
        SETS = [64 + 8*j for j in range(NS)]
        def iss(j):
            for k in range(2):
                g(f'global_load_dwordx4 {vr(SETS[j]+4*k)}, v4, {pr(S_B2)} offset:{1024*k} sc1')
        lp = g.u('fp_lp'); done = g.u('fp_done')
        oks = [g.u('fp_ok') for _ in range(NS)]
        g(f's_mov_b32 s{S_CNT}, {SPIN_LIMIT}')
        for j in range(NS-1): iss(j)
        g.label(lp)
        for j in range(NS):
            iss((j + NS - 1) % NS)
            g(f's_waitcnt vmcnt({2*(NS-1)})')
            tag_check(g, SETS[j], 13, 15, True)
            tag_check(g, SETS[j]+4, 13, 15, False)
            g(f's_cmp_eq_u64 {pr(S_OK)}, -1')
            g(f's_cbranch_scc1 {oks[j]}')
        g(f's_sub_u32 s{S_CNT}, s{S_CNT}, 1')
        g(f's_cbranch_scc0 {lp}')
        for j in range(NS):
            g.label(oks[j])
            strip(g, range(SETS[j], SETS[j]+8))
            for r in range(4): g(f'v_add_f32 v{D+24+r}, v{SETS[j]+r}, v{SETS[j]+4+r}')
            if j < NS-1: g(f's_branch {done}')
        g.label(done)
    g.stamp(6)
    FF = D; AT = D + 24
    if not g.o.get('finpipe'):
        for k in range(1, 6):
            for r in range(4): g(f'v_add_f32 v{FF+r}, v{FF+r}, v{FF+4*k+r}')
        for r in range(4): g(f'v_add_f32 v{AT+r}, v{AT+r}, v{AT+4+r}')
    if g.o.get('finpipe'):
        reduce_hh(g, AT, 96)
        for r in range(4): bf16_round(g, AT+r, AT+r)
    else:
        vals = [FF+r for r in range(4)] + [AT+r for r in range(4)]
        T = 96
        g.nop(2)
        for v in vals: g(f'v_add_f32_dpp v{v}, v{v}, v{v} row_ror:8 row_mask:0xf bank_mask:0xf')
        for j, v in enumerate(vals): g(f'v_mov_b32 v{T+j}, v{v}')
        g.nop(2)
        for j, v in enumerate(vals): g(f'v_permlane16_swap_b32 v{v}, v{T+j}')
        g.nop(1)
        for j, v in enumerate(vals): g(f'v_add_f32 v{v}, v{v}, v{T+j}')
        for j, v in enumerate(vals): g(f'v_mov_b32 v{T+j}, v{v}')
        g.nop(2)
        for j, v in enumerate(vals): g(f'v_permlane32_swap_b32 v{v}, v{T+j}')
        g.nop(1)
        for j, v in enumerate(vals): g(f'v_add_f32 v{v}, v{v}, v{T+j}')
        for v in vals: bf16_round(g, v, v)
        for r in range(4): g(f'v_lshlrev_b32 v{124+r}, 16, v{124+r}')
    for r in range(4): g(f'v_add_f32 v{AT+r}, v{124+r}, v{AT+r}')
    for r in range(4): bf16_round(g, AT+r, AT+r)
    for r in range(4): g(f'v_add_f32 v{AT+r}, v{AT+r}, v{FF+r}')
    g(f'v_cvt_pk_bf16_f32 v28, v{AT}, v{AT+1}')
    g(f'v_cvt_pk_bf16_f32 v29, v{AT+2}, v{AT+3}')
    g('v_cmp_gt_u32_e32 vcc, 8, v0')
    g(f's_and_saveexec_b64 {pr(S_SV)}, vcc')
    g(f'global_store_short v3, v28, {pr(S_OUT)}')
    g(f'global_store_short_d16_hi v3, v28, {pr(S_OUT)} offset:16')
    g(f'global_store_short v3, v29, {pr(S_OUT)} offset:32')
    g(f'global_store_short_d16_hi v3, v29, {pr(S_OUT)} offset:48')
    g(f's_cmp_lg_u32 s{S_F}, 0')
    g('s_cbranch_scc1 L_nobump')
    g('s_mov_b64 exec, 1')
    g('v_mov_b32 v4, 0')
    g(f'ds_read_b32 v5, v4 offset:{C_RAWG}')
    g('s_waitcnt lgkmcnt(0)')
    g(f'global_store_dword v4, v5, {pr(S_WS)} sc1')
    g.label('L_nobump')
    g(f's_mov_b64 exec, {pr(S_SV)}')

C_FFF = 40
L_FF = L_QL + 0
def emit_ffgather(g):
    g('v_lshlrev_b32 v4, 4, v0')
    g('v_add_u32 v5, 4096, v4')
    g(f's_mul_i32 s{S_T0}, s{S_F}, 6144')
    set_ws_base(g, S_B, S_T0, WS_F)
    lds_wait_ge(g, 'own', C_ACNT, g.o.get('ffown', 4), 12, sleep=8)
    g.stamp(5)
    D = 16
    loads = [f'global_load_dwordx4 {vr(D+4*k)}, v{4 if k < 4 else 5}, {pr(S_B)} offset:{1024*(k%4)} sc1' for k in range(6)]
    poll_retry(g, 'fin', loads, D, 13, 15, sleep=g.o.get('ffsleep', 1), st_cnt=1)
    g.stamp(4)
    for k in range(1, 6):
        for r in range(4): g(f'v_add_f32 v{D+r}, v{D+r}, v{D+4*k+r}')
    reduce_hh(g, D, 96)
    for r in range(4): bf16_round(g, D+r, D+r)
    g('v_lshlrev_b32 v4, 4, v0')
    g('v_cmp_gt_u32_e32 vcc, 8, v0')
    g(f's_and_saveexec_b64 {pr(S_SV)}, vcc')
    g(f'ds_write_b128 v4, {vr(D)} offset:{L_Y}')
    g('s_waitcnt lgkmcnt(0)')
    g('v_mov_b32 v12, 0'); g('v_mov_b32 v13, 1')
    g(f'ds_write_b32 v12, v13 offset:{C_FFF}')
    g(f's_mov_b64 exec, {pr(S_SV)}')
    g.stamp(6)

def emit_final(g):
    g('v_and_b32 v3, 7, v0')
    g('v_lshlrev_b32 v3, 1, v3')
    g(f's_lshl_b32 s{S_T0}, s{S_F}, 6')
    g(f'v_add_u32 v3, s{S_T0}, v3')
    for r in range(4):
        g(f'global_load_ushort v{124+r}, v3, {pr(S_X)} offset:{16*r}')
    g('v_lshlrev_b32 v4, 4, v0')
    g(f's_lshl_b32 s{S_T0}, s{S_F}, 11')
    set_ws_base(g, S_B2, S_T0, WS_B)
    g('v_mov_b32 v12, 0')
    g(f'ds_read_b32 v30, v12 offset:{C_RAWG}')
    lds_wait_ge(g, 'own', C_ACNT, 8, 12, sleep=8)
    g.stamp(5)
    g('s_waitcnt vmcnt(0)')
    for r in range(4): g(f'v_lshlrev_b32 v{124+r}, 16, v{124+r}')
    AT = 40
    NS = g.o.get('finpipe') or 3
    SETS = [64 + 8*j for j in range(NS)]
    def iss(j):
        for k in range(2):
            g(f'global_load_dwordx4 {vr(SETS[j]+4*k)}, v4, {pr(S_B2)} offset:{1024*k} sc1')
    if 'fin' not in g.o.get('nopoll', ()):
        lp = g.u('fp_lp'); done = g.u('fp_done')
        oks = [g.u('fp_ok') for _ in range(NS)]
        g(f's_mov_b32 s{S_CNT}, {SPIN_LIMIT}')
        for j in range(NS-1): iss(j)
        g.label(lp)
        for j in range(NS):
            iss((j + NS - 1) % NS)
            g(f's_waitcnt vmcnt({2*(NS-1)})')
            tag_check(g, SETS[j], 13, 15, True)
            tag_check(g, SETS[j]+4, 13, 15, False)
            g(f's_cmp_eq_u64 {pr(S_OK)}, -1')
            g(f's_cbranch_scc1 {oks[j]}')
        g(f's_sub_u32 s{S_CNT}, s{S_CNT}, 1')
        g(f's_cbranch_scc0 {lp}')
        for j in range(NS):
            g.label(oks[j])
            for r in range(4): g(f'v_add_f32 v{AT+r}, v{SETS[j]+r}, v{SETS[j]+4+r}')
            if j < NS-1: g(f's_branch {done}')
        g.label(done)
    g.stamp(6)
    reduce_hh(g, AT, 48)
    for r in range(4): bf16_round(g, AT+r, AT+r)
    for r in range(4): g(f'v_add_f32 v{AT+r}, v{124+r}, v{AT+r}')
    for r in range(4): bf16_round(g, AT+r, AT+r)
    if 'fin' not in g.o.get('nopoll', ()):
        lds_wait_ge(g, 'fff', C_FFF, 1, 12, sleep=0)
    g('v_lshlrev_b32 v4, 4, v0')
    g(f'ds_read_b128 {vr(52)}, v4 offset:{L_Y}')
    g('v_cmp_gt_u32_e32 vcc, 8, v0')
    g('s_waitcnt lgkmcnt(0)')
    for r in range(4): g(f'v_add_f32 v{AT+r}, v{AT+r}, v{52+r}')
    g(f'v_cvt_pk_bf16_f32 v28, v{AT}, v{AT+1}')
    g(f'v_cvt_pk_bf16_f32 v29, v{AT+2}, v{AT+3}')
    g(f's_and_saveexec_b64 {pr(S_SV)}, vcc')
    g(f'global_store_short v3, v28, {pr(S_OUT)}')
    g(f'global_store_short_d16_hi v3, v28, {pr(S_OUT)} offset:16')
    g(f'global_store_short v3, v29, {pr(S_OUT)} offset:32')
    g(f'global_store_short_d16_hi v3, v29, {pr(S_OUT)} offset:48')
    g(f's_cmp_lg_u32 s{S_F}, 0')
    g('s_cbranch_scc1 L_nobump')
    g('s_mov_b64 exec, 1')
    g('v_mov_b32 v4, 0')
    g(f'global_store_dword v4, v30, {pr(S_WS)} sc1')
    g.label('L_nobump')
    g(f's_mov_b64 exec, {pr(S_SV)}')

def emit_roleO(g):
    S_HO = S_ID
    g(f's_sub_u32 s{S_CB}, s{S_SLOT}, 26')
    g(f's_cmp_ge_u32 s{S_CB}, 3')
    g(f's_cselect_b32 s{S_T0}, 1, 0')
    g(f's_mul_i32 s{S_T1}, s{S_T0}, 3')
    g(f's_sub_u32 s{S_CB}, s{S_CB}, s{S_T1}')
    g(f's_lshl_b32 s{S_HO}, s{S_XCD}, 1')
    g(f's_add_u32 s{S_HO}, s{S_HO}, s{S_T0}')
    NE = g.o.get('oearly', 0)
    W0 = 16
    kernarg_ready(g, 'L_nogenO')
    g(f's_mul_i32 s{S_T0}, s{S_HO}, {256*1152}')
    g(f's_mul_i32 s{S_T1}, s{S_CB}, 384')
    g(f's_add_u32 s{S_T0}, s{S_T0}, s{S_T1}')
    g(f's_mul_i32 s{S_T1}, s{S_WAVE}, {64*1152}')
    g(f's_add_u32 s{S_T0}, s{S_T0}, s{S_T1}')
    g(f's_mov_b64 s[82:83], {pr(S_WO)}')
    add_base(g, 82, S_T0)
    l2_lane_offsets(g)
    g('v_mov_b32 v165, v5'); g('v_mov_b32 v166, v6')
    l2_issue(g, W0, NE, base=82, a0=165, a1=166, last_adv=True)
    g('s_barrier')
    g.stamp(2)
    g(f's_cmp_lg_u32 s{S_WAVE}, 1')
    g('s_cbranch_scc1 L_Onoq')
    emit_tag_publish(g)
    emit_qpoll(g, g.o.get('qdelayO', 0), probe=(g.o.get('qprobeO') or None))
    g.label('L_Onoq')
    get_tag_from_lds(g, 12, VTAG)
    if g.o.get('touchB'):
        l2_prep(g, 16, S_HO, WS_B, 162, 164)
        g(f'v_not_b32 v15, v{VTAG}')
        tag_insert(g, 112, 112, 15)
        g(f's_mov_b64 {pr(S_SV)}, exec')
        g('s_mov_b64 exec, 0xffffff')
        g(f'global_store_dwordx4 v164, {vr(112)}, {pr(S_PB)} sc1')
        g(f's_mov_b64 exec, {pr(S_SV)}')
        g.nop(2)
    make_masks(g, MK, 1, 112)
    if g.o.get('nolate', 0) > 1:
        g('s_branch L_end_stamp')
    if NE < 8:
        if not g.o.get('early'):
            lds_wait_ge(g, 'viss', C_VISS, g.o.get('ogate', 8), 12, sleep=4)
        if g.o.get('ogg'):
            global_gate(g, g.o.get('ogg'))
        osp = g.o.get('osplit', 0)
        if g.o.get('gg2') and g.o.get('ogg2'):
            if osp: l2_issue(g, W0 + 12*NE, osp - NE, base=82, a0=165, a1=166, last_adv=True)
            lds_wait_ge(g, 'viss8', C_VISS, 8, 12, sleep=4)
            count_in(g)
            go_wait(g)
            l2_issue(g, W0 + 12*max(osp,NE), 8 - max(osp,NE), base=82, a0=165, a1=166)
        elif osp:
            l2_issue(g, W0 + 12*NE, osp - NE, base=82, a0=165, a1=166, last_adv=True)
            lds_wait_ge(g, 'viss8', C_VISS, 8, 12, sleep=4)
            l2_issue(g, W0 + 12*osp, 8 - osp, base=82, a0=165, a1=166)
            if g.o.get('gg2'): count_in(g)
        else:
            l2_issue(g, W0 + 12*NE, 8 - NE, base=82, a0=165, a1=166)
        if g.o.get('ggate'): count_in(g)
    else:
        lds_wait_ge(g, 'own', C_ACNT, 8, 12, sleep=4)
    if not g.o.get('stO'): g.stamp(3)
    g(f's_lshl_b32 s{S_T0}, s{S_HO}, 14')
    g(f's_and_b32 s{S_T1}, s{S_WAVE}, 1')
    g(f's_lshl_b32 s{S_T1}, s{S_T1}, 9')
    g(f's_add_u32 s{S_T0}, s{S_T0}, s{S_T1}')
    g(f's_lshr_b32 s{S_T1}, s{S_WAVE}, 1')
    g(f's_lshl_b32 s{S_T1}, s{S_T1}, 7')
    g(f's_add_u32 s{S_T0}, s{S_T0}, s{S_T1}')
    set_ws_base(g, S_B, S_T0, WS_A)
    g(f's_lshl_b32 s{S_T0}, s{S_HO}, 11')
    g(f's_lshr_b32 s{S_T1}, s{S_WAVE}, 1')
    g(f's_lshl_b32 s{S_T1}, s{S_T1}, 4')
    g(f's_add_u32 s{S_T0}, s{S_T0}, s{S_T1}')
    set_ws_base(g, S_B2, S_T0, WS_S)
    g('v_lshrrev_b32 v3, 5, v0')
    g('v_bfe_u32 v5, v0, 3, 1')
    g('v_lshl_add_u32 v4, v3, 1, v5')
    g('v_lshlrev_b32 v3, 12, v4')
    g('v_lshlrev_b32 v4, 9, v4')
    g('v_bfe_u32 v5, v0, 4, 1')
    g('v_lshl_add_u32 v3, v5, 8, v3')
    g('v_and_b32 v5, 7, v0')
    g('v_lshl_add_u32 v3, v5, 4, v3')
    g('v_lshrrev_b32 v160, 5, v0')
    g('v_lshlrev_b32 v160, 6, v160')
    g('v_bfe_u32 v5, v0, 4, 1')
    g('v_lshl_add_u32 v160, v5, 5, v160')
    g('v_and_b32 v5, 7, v0')
    g('v_add_u32 v160, v160, v5')
    g(f's_lshl_b32 s{S_T0}, s{S_WAVE}, 7')
    g(f'v_add_u32 v160, s{S_T0}, v160')
    g('v_lshlrev_b32 v160, 2, v160')
    g('v_lshrrev_b32 v161, 3, v1')
    g('v_lshlrev_b32 v161, 6, v161')
    g('v_lshl_add_u32 v161, v2, 1, v161')
    g(f'v_add_u32 v161, s{S_T0}, v161')
    g('v_lshlrev_b32 v161, 2, v161')
    l2_prep(g, 16, S_HO, WS_B, 162, 164)
    D = 112
    if g.o.get('fastA'):
        g(f'v_add_u32 v156, {WS_ALT}, v3')
        g(f'v_add_u32 v157, {WS_ALT}, v4')
        g('v_mov_b32 v158, v3'); g('v_mov_b32 v159, v4')
        def pre():
            g(f's_and_b32 s{S_T0}, s{S_CNT}, {g.o.get("abmask", 3)}')
            g(f's_cmp_eq_u32 s{S_T0}, 1')
            g(f's_cselect_b64 vcc, -1, 0')
            g('v_cndmask_b32_e32 v3, v156, v158, vcc')
            g('v_cndmask_b32_e32 v4, v157, v159, vcc')
    else:
        pre = None
    if g.stamps and g.o.get('stO'):
        pre0 = pre
        def pre():
            g('s_waitcnt lgkmcnt(0)')
            g('s_mov_b64 s[68:69], s[70:71]')
            g('s_mov_b64 s[70:71], s[74:75]')
            g('s_memrealtime s[74:75]')
            if pre0: pre0()
    loads = [f'global_load_dwordx4 {vr(D+4*i)}, v3, {pr(S_B)} offset:{1024*i} sc1' for i in range(4)]
    loads += [f'global_load_dwordx4 {vr(D+16+4*i)}, v4, {pr(S_B2)} offset:{128*i} sc1' for i in range(4)]
    if g.o.get('warm') and g.o.get('fastA'):
        for i in range(4): g(f'global_load_dwordx4 {vr(D+4*i)}, v156, {pr(S_B)} offset:{1024*i} sc1')
        for i in range(4): g(f'global_load_dwordx4 {vr(D+16+4*i)}, v157, {pr(S_B2)} offset:{128*i} sc1')
    if NE < 8 and g.o.get('ogate', 8) < 8 and g.o.get('ownwait', 8):
        lds_wait_ge(g, 'own', C_ACNT, g.o.get('ownwait', 8), 12, sleep=4)
    poll_retry(g, 'ha', loads, D, 5, 6, sleep=0, st_cnt=1, pre_iter=pre, backoff=g.o.get('habk'))
    g.stamp(4)
    ST = D + 16
    M = 144; LL = 145; O = 148
    for i in range(4):
        g(f'v_and_b32 v{ST+4*i}, 0xffffff00, v{ST+4*i}')
    g(f'v_max_f32 v{M}, v{ST}, v{ST+4}')
    g(f'v_max3_f32 v{M}, v{M}, v{ST+8}, v{ST+12}')
    strip(g, [ST+4*i+1 for i in range(4)])
    g(f'v_max_f32_dpp v{M}, v{M}, v{M} row_ror:8 row_mask:0xf bank_mask:0xf')
    strip(g, range(D, D+8))
    for i in range(4): g(f'v_sub_f32 v{ST+4*i}, v{ST+4*i}, v{M}')
    for i in range(4): g(f'v_exp_f32 v{ST+4*i}, v{ST+4*i}')
    strip(g, range(D+8, D+16))
    g(f'v_mul_f32 v{LL}, v{ST}, v{ST+1}')
    for r in range(4): g(f'v_mul_f32 v{O+r}, v{ST}, v{D+r}')
    for i in range(1, 4):
        g(f'v_fmac_f32 v{LL}, v{ST+4*i}, v{ST+4*i+1}')
        for r in range(4): g(f'v_fmac_f32 v{O+r}, v{ST+4*i}, v{D+4*i+r}')
    g.nop(1)
    g(f'v_add_f32_dpp v{LL}, v{LL}, v{LL} row_ror:8 row_mask:0xf bank_mask:0xf')
    for r in range(4):
        g(f'v_add_f32_dpp v{O+r}, v{O+r}, v{O+r} row_ror:8 row_mask:0xf bank_mask:0xf')
    g(f'v_rcp_f32 v{LL}, v{LL}')
    g.nop(1)
    for r in range(4): g(f'v_mul_f32 v{O+r}, v{O+r}, v{LL}')
    for r in range(4): g(f'v_cvt_pk_bf16_f32 v{O+r}, v{O+r}, v{O+r}')
    for r in range(4): g(f'ds_write_b32 v160, v{O+r} offset:{L_OD + 32*r}')
    g('s_waitcnt lgkmcnt(0)')
    P = 112
    for i in range(8):
        g(f'ds_read_b64 v[{P+2*i}:{P+2*i+1}], v161 offset:{L_OD + 32*i}')
    l2_compute(g, W0, 8, P, 128, 144)
    l2_finish(g, 128, 162, 164, 16, st_a=None if g.o.get('stO') else 5, st_b=6)

def emit_qk_softmax(g, extra):
    K0, V0 = 16, 80
    QF = 144
    g('v_lshrrev_b32 v4, 3, v1')
    g('v_lshlrev_b32 v4, 8, v4')
    g('v_lshl_add_u32 v4, v2, 4, v4')
    for s in range(4):
        g(f'ds_read_b128 {vr(QF+4*s)}, v4 offset:{L_QL + 64*s}')
    SCR = [8, 12, 160, 164]
    for T in range(4):
        for r in range(4): g(f'v_mov_b32 v{SCR[T]+r}, 0')
    g('s_waitcnt lgkmcnt(0)')
    for T in range(4):
        g(f's_waitcnt vmcnt({12 - 4*T + extra})')
        for s in range(4):
            g(f'v_mfma_f32_16x16x32_bf16 {vr(SCR[T])}, {vr(K0+16*T+4*s)}, {vr(QF+4*s)}, {vr(SCR[T])}')
    g.nop(8)
    g.stamp(4)
    sc = [SCR[T]+r for T in range(4) for r in range(4)]
    TP = 144
    for k in range(0, 16, 2):
        g(f'v_cvt_pk_bf16_f32 v{TP+k//2}, v{sc[k]}, v{sc[k+1]}')
    for k in range(0, 16, 2):
        g(f'v_lshlrev_b32 v{sc[k]}, 16, v{TP+k//2}')
        g(f'v_and_b32 v{sc[k+1]}, 0xffff0000, v{TP+k//2}')
    for k in range(16):
        g(f'v_mul_f32 v{sc[k]}, 0x{SCALE:08x}, v{sc[k]}')
    for k in range(0, 16, 2):
        g(f'v_cvt_pk_bf16_f32 v{TP+k//2}, v{sc[k]}, v{sc[k+1]}')
    for k in range(0, 16, 2):
        g(f'v_lshlrev_b32 v{sc[k]}, 16, v{TP+k//2}')
        g(f'v_and_b32 v{sc[k+1]}, 0xffff0000, v{TP+k//2}')
    M = 152; T1 = 153; LS = 154
    g(f'v_max3_f32 v{M}, v{sc[0]}, v{sc[1]}, v{sc[2]}')
    for k in range(3, 15, 2):
        g(f'v_max3_f32 v{M}, v{M}, v{sc[k]}, v{sc[k+1]}')
    g(f'v_max_f32 v{M}, v{M}, v{sc[15]}')
    xor16_op(g, 'v_max_f32', M, T1)
    xor32_op(g, 'v_max_f32', M, T1)
    g(f'v_mul_f32 v{M}, s{S_L2E}, v{M}')
    for k in range(16):
        g(f'v_fma_f32 v{sc[k]}, v{sc[k]}, s{S_L2E}, -v{M}')
    for k in range(16):
        g(f'v_exp_f32 v{sc[k]}, v{sc[k]}')
    g.nop(1)
    g(f'v_add_f32 v{LS}, v{sc[0]}, v{sc[1]}')
    for k in range(2, 16):
        g(f'v_add_f32 v{LS}, v{LS}, v{sc[k]}')
    for k in range(16):
        g(f'v_cvt_pk_bf16_f32 v{sc[k]}, v{sc[k]}, v{sc[k]}')
    xor16_op(g, 'v_add_f32', LS, T1)
    xor32_op(g, 'v_add_f32', LS, T1)
    AMK = 156
    make_masks(g, AMK, 1, 4)
    for T in range(4):
        for i in range(4):
            for r in range(4):
                g(f'v_and_b32 v{K0+16*T+4*i+r}, v{sc[4*T+i]}, v{AMK+r}')
    AC = 144
    for r in range(8): g(f'v_mov_b32 v{AC+r}, 0')
    g.stamp(5)

def issue_v(g, V0):
    pol = g.pol
    for T in range(4):
        for i in range(4):
            g(f'global_load_dwordx4 {vr(V0+16*T+4*i)}, v3, {pr(S_V)} offset:{256*i} {pol}')
        if T < 3: add_base_imm(g, S_V, 4096)
    g('v_mov_b32 v4, 0')
    g('v_mov_b32 v5, 1')
    g(f's_mov_b64 {pr(S_SV)}, exec')
    g('s_mov_b64 exec, 1')
    g(f'ds_add_u32 v4, v5 offset:{C_VISS}')
    g(f's_mov_b64 exec, {pr(S_SV)}')

def emit_attn(g):
    pol = g.pol
    K0, V0 = 16, 80
    QF = 144
    g('s_waitcnt lgkmcnt(0)')
    g(f's_lshl_b32 s{S_T0}, s{S_BB}, 4')
    g(f's_add_u32 s{S_T0}, s{S_T0}, s{S_HKV}')
    g(f's_lshl_b32 s{S_T0}, s{S_T0}, 20')
    il = g.o.get('kvil', True)
    g(f's_lshl_b32 s{S_T1}, s{S_SP}, {14 if il else 17}')
    g(f's_add_u32 s{S_T0}, s{S_T0}, s{S_T1}')
    g(f's_sub_u32 s{S_T1}, s{S_WAVE}, 4')
    g(f's_lshl_b32 s{S_T1}, s{S_T1}, {17 if il else 14}')
    g(f's_add_u32 s{S_T0}, s{S_T0}, s{S_T1}')
    add_base(g, S_K, S_T0)
    add_base(g, S_V, S_T0)
    g('v_lshlrev_b32 v4, 8, v1')
    g('v_lshl_add_u32 v4, v2, 4, v4')
    g('v_lshlrev_b32 v3, 10, v2')
    g('v_lshl_add_u32 v3, v1, 4, v3')
    if g.o.get('tlb'):
        g('v_mov_b32 v6, 0')
        g(f'global_load_dword v16, v6, {pr(S_K)} nt')
        g(f'global_load_dword v80, v6, {pr(S_V)} nt')
    g('s_barrier')
    g.stamp(1)
    g('s_setprio 2')
    for T in range(4):
        for s in range(4):
            g(f'global_load_dwordx4 {vr(K0+16*T+4*s)}, v4, {pr(S_K)} offset:{64*s} {pol}')
        if T < 3: add_base_imm(g, S_K, 4096)
    g('s_setprio 1')
    g(f's_cmp_ge_u32 s{S_WAVE}, 8')
    g('s_cbranch_scc1 L_grp2')
    issue_v(g, V0)
    g.stamp(2)
    lds_wait_ge(g, 'qf', C_QF, 1, 4, sleep=4)
    g.stamp(3)
    emit_qk_softmax(g, 16)
    g('s_branch L_pv')
    g.label('L_grp2')
    g.stamp(2)
    lds_wait_ge(g, 'qf', C_QF, 1, 4, sleep=4)
    g.stamp(3)
    emit_qk_softmax(g, 0)
    issue_v(g, V0)
    g.label('L_pv')
    M = 152; LS = 154; AC = 144
    g(f's_sub_u32 s{S_T2}, s{S_WAVE}, 4')
    g(f's_lshl_b32 s{S_T0}, s{S_T2}, 10')
    g('v_lshlrev_b32 v7, 4, v0')
    g(f'v_add_u32 v4, s{S_T0}, v7')
    g('v_lshrrev_b32 v6, 3, v1')
    g('v_lshlrev_b32 v6, 3, v6')
    g(f's_lshl_b32 s{S_T0}, s{S_T2}, 4')
    g(f'v_add_u32 v5, s{S_T0}, v6')
    g('v_mov_b32 v12, 0')
    g(f'ds_read_b32 v14, v12 offset:{C_TAG}')
    g(f'v_mov_b32 v10, v{M}')
    g(f'v_mov_b32 v11, v{LS}')
    g(f'ds_write_b64 v5, v[10:11] offset:{L_AS}')
    g(f's_lshl_b32 s{S_T0}, s{S_HKV}, 1')
    g(f's_add_u32 s{S_T0}, s{S_T0}, s{S_BB}')
    g(f's_lshl_b32 s{S_T0}, s{S_T0}, 3')
    g(f's_add_u32 s{S_T0}, s{S_T0}, s{S_SP}')
    g(f's_lshl_b32 s{S_T1}, s{S_T0}, 10')
    set_ws_base(g, S_B, S_T1, WS_A)
    g(f's_lshl_b32 s{S_T1}, s{S_T0}, 7')
    set_ws_base(g, S_B2, S_T1, WS_S)
    g('v_mov_b32 v13, 1')
    for T in range(4):
        g(f's_waitcnt vmcnt({12 - 4*T})')
        for i in range(4):
            a = AC + 4*(i & 1)
            g(f'v_mfma_f32_16x16x32_bf16 {vr(a)}, {vr(V0+16*T+4*i)}, {vr(K0+16*T+4*i)}, {vr(a)}')
    g.stamp(6)
    g.nop(8)
    for r in range(4): g(f'v_add_f32 v{AC+r}, v{AC+r}, v{AC+4+r}')
    g(f'ds_write_b128 v4, {vr(AC)} offset:{L_AO}')
    g(f's_mov_b64 {pr(S_SV)}, exec')
    g('s_waitcnt lgkmcnt(0)')
    g('s_mov_b64 exec, 1')
    g(f'ds_add_rtn_u32 v13, v12, v13 offset:{C_ACNT}')
    g('s_waitcnt lgkmcnt(0)')
    g(f'v_readfirstlane_b32 s{S_T0}, v13')
    g(f's_mov_b64 exec, {pr(S_SV)}')
    g(f's_cmp_lg_u32 s{S_T0}, 7')
    g('s_cbranch_scc1 L_end_stamp')
    ST = 16; OV = 32
    for w in range(8):
        g(f'ds_read_b64 v[{ST+2*w}:{ST+2*w+1}], v6 offset:{L_AS + 16*w}')
    for w in range(8):
        g(f'ds_read_b128 {vr(OV+4*w)}, v7 offset:{L_AO + 1024*w}')
    g('s_waitcnt lgkmcnt(8)')
    g(f'v_max3_f32 v8, v{ST}, v{ST+2}, v{ST+4}')
    g(f'v_max3_f32 v9, v{ST+6}, v{ST+8}, v{ST+10}')
    g(f'v_max3_f32 v8, v8, v{ST+12}, v{ST+14}')
    g(f'v_max_f32 v8, v8, v9')
    g('v_and_b32 v8, 0xffffff00, v8')
    for w in range(8): g(f'v_sub_f32 v{ST+2*w}, v{ST+2*w}, v8')
    for w in range(8): g(f'v_exp_f32 v{ST+2*w}, v{ST+2*w}')
    g('v_mov_b32 v10, 0')
    g('v_mov_b32 v11, 0')
    g(f'v_mul_f32 v9, v{ST}, v{ST+1}')
    for w in range(1, 8): g(f'v_fmac_f32 v9, v{ST+2*w}, v{ST+2*w+1}')
    g('s_waitcnt lgkmcnt(0)')
    for r in range(4):
        g(f'v_mul_f32 v{64+r}, v{ST}, v{OV+r}')
    for w in range(1, 8):
        for r in range(4):
            g(f'v_fmac_f32 v{64+r}, v{ST+2*w}, v{OV+4*w+r}')
    tag_insert(g, 68, 64, 14)
    tag_insert(g, 72, 8, 14)
    g('v_lshlrev_b32 v5, 1, v6')
    g('v_and_b32 v4, 0x37, v0')
    g('v_cmp_eq_u32_e32 vcc, 0, v4')
    if g.o.get('fastA'):
        g(f'v_add_u32 v13, {WS_ALT}, v7')
        g(f'v_add_u32 v12, {WS_ALT}, v5')
        g(f'global_store_dwordx4 v13, {vr(68)}, {pr(S_B)}')
        g(f's_and_saveexec_b64 {pr(S_SV)}, vcc')
        g(f'global_store_dwordx4 v12, {vr(72)}, {pr(S_B2)}')
        g(f'global_store_dwordx4 v5, {vr(72)}, {pr(S_B2)} sc1')
        g(f's_mov_b64 exec, {pr(S_SV)}')
        g(f'global_store_dwordx4 v7, {vr(68)}, {pr(S_B)} sc1')
    else:
        g(f'global_store_dwordx4 v7, {vr(68)}, {pr(S_B)} sc1')
        g(f's_and_saveexec_b64 {pr(S_SV)}, vcc')
        g(f'global_store_dwordx4 v5, {vr(72)}, {pr(S_B2)} sc1')
        g(f's_mov_b64 exec, {pr(S_SV)}')

def generate(stamps=False, pol='nt', opts=None):
    g = G(stamps, pol, opts)
    g('s_cmp_ge_u32 s2, 256')
    g('s_cbranch_scc1 L_end')
    g.stamp(0)
    g('s_load_dwordx16 s[4:19], s[0:1], 0')
    g('s_load_dwordx8 s[20:27], s[0:1], 64')
    g('v_lshrrev_b32 v3, 6, v0')
    g('v_and_b32 v0, 63, v0')
    g(f'v_readfirstlane_b32 s{S_WAVE}, v3')
    g(f'v_and_b32 v{V_N}, 15, v0')
    g(f'v_lshrrev_b32 v{V_G}, 4, v0')
    g(f's_and_b32 s{S_XCD}, s2, 7')
    g(f's_lshr_b32 s{S_SLOT}, s2, 3')
    g(f's_lshr_b32 s{S_HKV}, s{S_SLOT}, 4')
    g(f's_lshl_b32 s{S_T0}, s{S_XCD}, 1')
    g(f's_add_u32 s{S_HKV}, s{S_HKV}, s{S_T0}')
    g(f's_bfe_u32 s{S_BB}, s{S_SLOT}, 0x10003')
    g(f's_and_b32 s{S_SP}, s{S_SLOT}, 7')
    g(f's_mov_b32 s{S_L2E}, 0x{LOG2E:08x}')
    if g.o.get('skew'):
        g(f's_mul_i32 s91, s{S_XCD}, 13')
        g(f's_mov_b32 s92, s91')
        g(f's_mov_b32 s90, 13')
        g(f's_sub_u32 s{S_T0}, s{S_XCD}, 4')
        g(f's_mul_i32 s{S_T1}, s{S_T0}, 23')
        g(f's_add_u32 s{S_T1}, s{S_T1}, 52')
        g(f's_mul_i32 s{S_T2}, s{S_T0}, 3')
        g(f's_add_u32 s{S_T2}, s{S_T2}, 52')
        g(f's_cmp_ge_u32 s{S_XCD}, 4')
        g(f's_cselect_b32 s90, 23, s90')
        g(f's_cselect_b32 s91, s{S_T1}, s91')
        g(f's_cselect_b32 s92, s{S_T2}, s92')
    else:
        g(f's_mov_b32 s90, 18')
        g(f's_mul_i32 s91, s{S_XCD}, 18')
    tag_consts(g)
    g(f's_cmp_ge_u32 s{S_WAVE}, 4')
    g('s_cbranch_scc1 L_attn')
    g('s_setprio 3')
    g(f's_cmp_lg_u32 s{S_WAVE}, 0')
    g('s_cbranch_scc1 L_noinit')
    g('v_lshlrev_b32 v3, 4, v0')
    for r in range(4, 8): g(f'v_mov_b32 v{r}, 0')
    g('ds_write_b128 v3, v[4:7]')
    g.label('L_noinit')
    g(f's_cmp_ge_u32 s{S_SLOT}, 26')
    g('s_cbranch_scc1 L_roleO')
    XR = 124; XF = 136
    g('v_lshrrev_b32 v3, 5, v0')
    g('v_and_b32 v4, 31, v0')
    g('v_mul_u32_u24 v3, 1152, v3')
    g('v_mad_u32_u24 v3, v4, 36, v3')
    xp = g.o.get('xpol', '')
    g('v_mov_b32 v15, v3')
    def xloads():
        g(f'global_load_dwordx4 {vr(XR)}, v15, {pr(S_X)} {xp}')
        g(f'global_load_dwordx4 {vr(XR+4)}, v15, {pr(S_X)} offset:16 {xp}')
        g(f'global_load_dword v{XR+8}, v15, {pr(S_X)} offset:32 {xp}')
    XPOS = g.o.get('xpos', 0)
    S_HALF = S_RS
    S_A, S_R = S_T2, S_T3
    if g.o.get('remap', True):
        g(f's_cmp_ge_u32 s{S_SLOT}, s90')
        g('s_cbranch_scc1 L_tileLight')
        g(f's_add_u32 s{S_ID}, s91, s{S_SLOT}')
        g(f's_and_b32 s{S_HALF}, s{S_ID}, 1')
        g(f's_lshr_b32 s{S_A}, s{S_ID}, 2')
        g(f's_and_b32 s{S_R}, s{S_ID}, 2')
        g(f's_sub_u32 s{S_T0}, s{S_ID}, 104')
        g(f's_lshr_b32 s{S_T0}, s{S_T0}, 1')
        g(f's_add_u32 s{S_T0}, s{S_T0}, 6')
        g(f's_cmp_ge_u32 s{S_ID}, 104')
        g(f's_cselect_b32 s{S_A}, s{S_T0}, s{S_A}')
        g(f's_cselect_b32 s{S_R}, 3, s{S_R}')
        g('s_branch L_tileCT')
        g.label('L_tileLight')
        if g.o.get('skew'):
            g(f's_sub_u32 s{S_T0}, s{S_SLOT}, s90')
            g(f's_add_u32 s{S_T0}, s{S_T0}, s92')
        else:
            g(f's_sub_u32 s{S_T0}, s{S_SLOT}, 18')
            g(f's_lshl_b32 s{S_T0}, s{S_T0}, 3')
            g(f's_add_u32 s{S_T0}, s{S_T0}, s{S_XCD}')
        g(f's_mov_b32 s{S_F}, s{S_T0}')
        g(f's_and_b32 s{S_HALF}, s{S_T0}, 1')
        g(f's_lshr_b32 s{S_A}, s{S_T0}, 1')
        g(f's_sub_u32 s{S_T1}, s{S_A}, 26')
        g(f's_cmp_ge_u32 s{S_T0}, 52')
        g(f's_cselect_b32 s{S_A}, s{S_T1}, s{S_A}')
        g(f's_cselect_b32 s{S_R}, 3, 1')
        g.label('L_tileCT')
        g(f's_lshl_b32 s{S_T0}, s{S_A}, 2')
        g(f's_add_u32 s{S_T0}, s{S_T0}, s{S_R}')
    elif g.o.get('lremap'):
        K0s, TT, MM = 96, 97, 98
        g(f's_lshl_b32 s{K0s}, s{S_XCD}, 1')
        g(f's_sub_u32 s{K0s}, 2, s{K0s}')
        g(f's_and_b32 s{K0s}, s{K0s}, 7')
        g(f's_cmp_ge_u32 s{S_SLOT}, 18')
        g('s_cbranch_scc1 L_tileLight')
        g(f's_sub_u32 s{TT}, s{S_SLOT}, s{K0s}')
        g(f's_and_b32 s{MM}, s{TT}, 7')
        g(f's_cmp_lt_u32 s{MM}, 2')
        g('s_cbranch_scc0 L_lrGU')
        g(f's_cmp_lt_u32 s{S_SLOT}, s{K0s}')
        g('s_cbranch_scc1 L_lrGU')
        g(f's_lshr_b32 s{TT}, s{TT}, 3')
        g(f's_lshl_b32 s{TT}, s{TT}, 1')
        g(f's_add_u32 s{MM}, s{MM}, s{TT}')
        g(f's_add_u32 s{TT}, s{MM}, 2')
        g(f's_cmp_lt_u32 s{MM}, 2')
        g(f's_cselect_b32 s{TT}, s{MM}, s{TT}')
        g('s_branch L_lrQ')
        g.label('L_lrGU')
        g(f's_mov_b32 s{TT}, s{S_SLOT}')
        g.label('L_lrGU2')
        g(f's_mul_i32 s{S_T0}, s{S_XCD}, 18')
        g(f's_add_u32 s{S_T0}, s{S_T0}, s{TT}')
        g(f's_and_b32 s{S_HALF}, s{S_T0}, 1')
        g(f's_lshr_b32 s{S_T0}, s{S_T0}, 1')
        g('s_branch L_tileCT')
        g.label('L_tileLight')
        g(f's_sub_u32 s{MM}, s{S_SLOT}, 18')
        g(f's_add_u32 s{TT}, s{MM}, 2')
        g(f's_cmp_lt_u32 s{MM}, 2')
        g('s_cbranch_scc1 L_lrQ')
        g(f's_sub_u32 s{MM}, s{MM}, 2')
        g(f's_cmp_eq_u32 s{K0s}, 0')
        g(f's_cselect_b32 s{S_T1}, 6, 4')
        g(f's_add_u32 s{TT}, s{MM}, 2')
        g(f's_cmp_ge_u32 s{MM}, s{S_T1}')
        g('s_cbranch_scc1 L_lrQ')
        g(f's_lshr_b32 s{TT}, s{MM}, 1')
        g(f's_lshl_b32 s{TT}, s{TT}, 3')
        g(f's_and_b32 s{MM}, s{MM}, 1')
        g(f's_add_u32 s{TT}, s{TT}, s{MM}')
        g(f's_add_u32 s{TT}, s{TT}, s{K0s}')
        g('s_branch L_lrGU2')
        g.label('L_lrQ')
        g(f's_and_b32 s{S_HALF}, s{TT}, 1')
        g(f's_lshl_b32 s{S_T0}, s{S_XCD}, 3')
        g(f's_add_u32 s{S_T0}, s{S_T0}, s{TT}')
        g(f's_lshr_b32 s{S_T0}, s{S_T0}, 1')
        g(f's_add_u32 s{S_T0}, s{S_T0}, 72')
        g.label('L_tileCT')
    else:
        g(f's_cmp_ge_u32 s{S_SLOT}, 18')
        g('s_cbranch_scc1 L_tileLight')
        g(f's_mul_i32 s{S_ID}, s{S_XCD}, 18')
        g(f's_add_u32 s{S_ID}, s{S_ID}, s{S_SLOT}')
        g(f's_and_b32 s{S_HALF}, s{S_ID}, 1')
        g(f's_lshr_b32 s{S_T0}, s{S_ID}, 1')
        g('s_branch L_tileCT')
        g.label('L_tileLight')
        g(f's_sub_u32 s{S_T1}, s{S_SLOT}, 18')
        g(f's_and_b32 s{S_HALF}, s{S_T1}, 1')
        g(f's_lshl_b32 s{S_T0}, s{S_XCD}, 3')
        g(f's_add_u32 s{S_T0}, s{S_T0}, s{S_T1}')
        g(f's_lshr_b32 s{S_T0}, s{S_T0}, 1')
        g(f's_add_u32 s{S_T0}, s{S_T0}, 72')
        g.label('L_tileCT')
    g(f's_lshl_b32 s{S_TILE}, s{S_T0}, 1')
    g(f's_add_u32 s{S_TILE}, s{S_TILE}, s{S_HALF}')
    g(f's_mov_b32 s94, s{S_T0}')
    g(f's_mov_b32 s{S_STR}, 9216')
    g(f's_mov_b32 s{S_T1}, 0')
    g(f's_cmp_ge_u32 s{S_T0}, 36')
    g(f's_cselect_b32 s{S_T1}, 36, s{S_T1}')
    g(f's_cmp_ge_u32 s{S_T0}, 72')
    g(f's_cselect_b32 s{S_T1}, 72, s{S_T1}')
    g(f's_cselect_b32 s{S_STR}, 8192, s{S_STR}')
    g(f's_sub_u32 s{S_T0}, s{S_T0}, s{S_T1}')
    g(f's_mul_i32 s{S_T1}, s{S_HALF}, 288')
    g(f's_mul_i32 s{S_T2}, s{S_WAVE}, 72')
    g(f's_add_u32 s{S_RS}, s{S_T1}, s{S_T2}')
    g(f's_mul_i32 s{S_T1}, s{S_RS}, s{S_STR}')
    g(f's_lshl_b32 s{S_T0}, s{S_T0}, 8')
    g(f's_add_u32 s{S_T1}, s{S_T1}, s{S_T0}')
    g(f'v_mul_lo_u32 v3, v{V_G}, s{S_STR}')
    g(f'v_lshl_add_u32 v3, v{V_N}, 4, v3')
    g(f's_lshl_b32 s{S_STR}, s{S_STR}, 2')
    g(f's_mov_b32 s95, s{S_T1}')
    kernarg_ready(g, 'L_nogen')
    if XPOS == 0: xloads()
    g(f's_mov_b64 {pr(S_B)}, {pr(S_GATE)}')
    g('s_cmp_ge_u32 s94, 36')
    g(f's_cselect_b64 {pr(S_B)}, {pr(S_UP)}, {pr(S_B)}')
    g('s_cmp_ge_u32 s94, 72')
    g(f's_cselect_b64 {pr(S_B)}, {pr(S_WQ)}, {pr(S_B)}')
    add_base(g, S_B, 95)
    W0 = 16
    for i in range(18):
        g(f'global_load_dwordx4 {vr(W0+4*i)}, v3, {pr(S_B)} {pol}')
        if i < 17: add_base(g, S_B, S_STR)
        if XPOS == i + 1: xloads()
    g('s_barrier')
    g.stamp(2)
    g(f's_cmp_lg_u32 s{S_WAVE}, 1')
    g('s_cbranch_scc1 L_notag1')
    emit_tag_publish(g)
    g.label('L_notag1')
    g(f's_waitcnt vmcnt({18 - XPOS})')
    emit_layernorm(g, XR, XF)
    make_masks(g, MK, V_N, 12)
    g(f'v_lshrrev_b32 v3, 3, v{V_N}')
    g('v_mul_u32_u24 v3, 576, v3')
    g(f'v_add_u32 v3, v3, v{V_G}')
    g(f'v_add_u32 v3, s{S_RS}, v3')
    g('v_lshlrev_b32 v3, 2, v3')
    XV = 136
    for i in range(18):
        g(f'ds_read_b32 v{XV+i}, v3 offset:{L_XD + 16*i}')
    ACC = 156; BT = 160
    for r in range(4): g(f'v_mov_b32 v{ACC+r}, 0')
    g('s_waitcnt lgkmcnt(0)')
    for i in range(18):
        b = BT + 4*(i & 1)
        for r in range(4):
            g(f'v_and_b32 v{b+r}, v{XV+i}, v{MK+r}')
        g(f's_waitcnt vmcnt({17 - i})')
        g.nop(1)
        g(f'v_mfma_f32_16x16x32_bf16 {vr(ACC)}, {vr(W0+4*i)}, {vr(b)}, {vr(ACC)}')
    g.stamp(3)
    get_tag_from_lds(g, 12, VTAG)
    g(f's_lshl_b32 s{S_T0}, s{S_WAVE}, 10')
    g('v_lshlrev_b32 v3, 4, v0')
    g(f'v_add_u32 v4, s{S_T0}, v3')
    g(f'ds_write_b128 v4, {vr(ACC)} offset:{L_Y1}')
    arrive_last(g, C_L1CNT, 3, 'L_l1pubdone')
    g('v_lshlrev_b32 v3, 4, v0')
    for w in range(4):
        g(f'ds_read_b128 {vr(124+4*w)}, v3 offset:{L_Y1 + 1024*w}')
    g(f's_lshl_b32 s{S_T0}, s{S_TILE}, 10')
    set_ws_base(g, S_B, S_T0, WS_L1)
    g('s_waitcnt lgkmcnt(0)')
    for j in range(1, 4):
        for r in range(4): g(f'v_add_f32 v{124+r}, v{124+r}, v{124+4*j+r}')
    tag_insert(g, 160, 124, VTAG)
    if g.o.get('qfast'):
        g(f'v_add_u32 v4, {WS_QALT}, v3')
        g(f's_cmp_lt_u32 s{S_TILE}, 144')
        g('s_cbranch_scc1 L_noqalt')
        g(f'global_store_dwordx4 v4, {vr(160)}, {pr(S_B)}')
        g.label('L_noqalt')
    pub_store(g, 'v3', vr(160), pr(S_B), True)
    g.label('L_l1pubdone')
    g.stamp(4)
    g(f's_cmp_lg_u32 s{S_WAVE}, 1')
    g('s_cbranch_scc1 L_noq1')
    emit_qpoll(g, g.o.get('qdelay', 0))
    g.label('L_noq1')
    g(f's_cmp_ge_u32 s{S_SLOT}, s90')
    g('s_cbranch_scc1 L_roleQtail')
    S_RB = S_TILE
    g(f's_add_u32 s{S_T2}, s91, s{S_SLOT}')
    g(f's_mul_i32 s{S_RB}, s{S_T2}, 171')
    g(f's_lshr_b32 s{S_RB}, s{S_RB}, 9')
    g(f's_mul_i32 s{S_T1}, s{S_RB}, 3')
    g(f's_sub_u32 s{S_CB}, s{S_T2}, s{S_T1}')
    def hpoll_here():
        g(f's_cmp_lg_u32 s{S_WAVE}, 0')
        g('s_cbranch_scc1 L_noh')
        if g.o.get('hlate', 0) >= 2:
            lds_wait_ge(g, 'hv', C_VISS, g.o.get('hlate') - 1, 12, sleep=8)
        emit_hpoll(g, S_RB)
        g.label('L_noh')
    if g.o.get('hlate', 0) != 1: hpoll_here()
    g(f's_mul_i32 s{S_T0}, s{S_RB}, 96')
    g(f's_mul_i32 s{S_T1}, s{S_WAVE}, 24')
    g(f's_add_u32 s{S_T0}, s{S_T0}, s{S_T1}')
    g(f's_mul_i32 s{S_T0}, s{S_T0}, 1152')
    g(f's_mul_i32 s{S_T1}, s{S_CB}, 384')
    g(f's_add_u32 s{S_T0}, s{S_T0}, s{S_T1}')
    g(f's_mov_b64 {pr(S_B)}, {pr(S_DOWN)}')
    add_base(g, S_B, S_T0)
    l2_lane_offsets(g)
    WD = 88
    if not g.o.get('early'):
        if g.o.get('fgateA'):
            lds_wait_ge(g, 'facnt', C_ACNT, g.o.get('fgateA'), 12, sleep=2)
        else:
            lds_wait_ge(g, 'viss', C_VISS, g.o.get('fgate', 8), 12, sleep=4)
    if g.o.get('hlate') == 1:
        g(f's_mov_b64 s[86:87], {pr(S_B)}')
        g('v_mov_b32 v56, v5'); g('v_mov_b32 v57, v6')
        hpoll_here()
        g(f's_mov_b64 {pr(S_B)}, s[86:87]')
        g('v_mov_b32 v5, v56'); g('v_mov_b32 v6, v57')
    if g.o.get('nolate'):
        g('s_branch L_end_stamp')
    if g.o.get('ggate'):
        count_in(g)
        global_gate(g, g.o.get('ggate'))
    if g.o.get('gg2'):
        count_in(g)
        go_wait(g)
    l2_issue(g, WD, 3)
    l2_prep(g, 48, S_RB, WS_F, 60, 62)
    lds_wait_ge(g, 'hf', C_HF, 1, 12)
    g(f'v_lshrrev_b32 v3, 3, v{V_N}')
    g('v_mul_u32_u24 v3, 96, v3')
    g(f'v_lshl_add_u32 v3, v{V_G}, 1, v3')
    g(f's_mul_i32 s{S_T0}, s{S_WAVE}, 24')
    g(f'v_add_u32 v3, s{S_T0}, v3')
    g('v_lshlrev_b32 v3, 2, v3')
    P = 16
    for i in range(3):
        g(f'ds_read_b64 v[{P+2*i}:{P+2*i+1}], v3 offset:{L_HD + 32*i}')
    l2_compute(g, WD, 3, P, 24, 40, waitvm=lambda i: 6 - 3*i)
    l2_finish(g, 24, 60, 62, 64)
    g('s_branch L_end_stamp')
    g.label('L_roleQtail')
    if g.o.get('ggate') or g.o.get('gg2'): count_in(g)
    if g.o.get('gg2'):
        sk = g.u('nodet')
        g(f's_cmp_lg_u32 s{S_WAVE}, 1')
        g(f's_cbranch_scc1 {sk}')
        g(f's_cmp_lg_u32 s{S_F}, 51')
        g(f's_cbranch_scc1 {sk}')
        detector(g, g.o.get('gg2'))
        g.label(sk)
    g(f's_and_b32 s{S_T0}, s{S_WAVE}, 1')
    if g.o.get('fin2'):
        g(f's_cmp_lg_u32 s{S_T0}, 0')
    else:
        g(f's_cmp_lg_u32 s{S_WAVE}, 0')
    g('s_cbranch_scc1 L_end_stamp')
    if not g.o.get('remap', True):
        g(f's_sub_u32 s{S_F}, s{S_SLOT}, 18')
        g(f's_lshl_b32 s{S_F}, s{S_F}, 3')
        g(f's_add_u32 s{S_F}, s{S_F}, s{S_XCD}')
    g(f's_cmp_ge_u32 s{S_F}, 36')
    g('s_cbranch_scc1 L_end_stamp')
    if g.o.get('fin2'):
        g(f's_cmp_eq_u32 s{S_WAVE}, 2')
        g('s_cbranch_scc1 L_ffg')
        emit_final(g)
        g('s_branch L_end_stamp')
        g.label('L_ffg')
        emit_ffgather(g)
    else:
        emit_final_old(g)
    g('s_branch L_end_stamp')
    g.label('L_roleO')
    emit_roleO(g)
    g('s_branch L_end_stamp')
    g.label('L_attn')
    emit_attn(g)
    g.label('L_end_stamp')
    if stamps:
        g.stamp(7)
        g('s_waitcnt lgkmcnt(0) vmcnt(0)')
        g('s_mov_b64 exec, -1')
        g('v_cmp_eq_u32_e32 vcc, 0, v0')
        g(f's_and_saveexec_b64 {pr(S_SV)}, vcc')
        g('s_cbranch_execz L_end')
        g(f's_mul_i32 s{S_T0}, s2, 12')
        g(f's_add_u32 s{S_T0}, s{S_T0}, s{S_WAVE}')
        g(f's_lshl_b32 s{S_T0}, s{S_T0}, 6')
        g(f's_add_u32 s{S_T0}, s{S_T0}, 0x{WS_STAMP:x}')
        add_base(g, S_WS, S_T0)
        g('v_mov_b32 v1, 0')
        for j in range(8):
            g(f'v_mov_b32 v2, s{64+2*j}'); g(f'v_mov_b32 v3, s{65+2*j}')
            g(f'global_store_dwordx2 v1, v[2:3], {pr(S_WS)} offset:{8*j}')
            g.nop(2)
    g.label('L_end')
    g('s_endpgm')
    return g

if __name__ == '__main__':
    ap = argparse.ArgumentParser()
    ap.add_argument('-o', default='k.s')
    ap.add_argument('--stamps', action='store_true')
    ap.add_argument('--pol', default='nt')
    ap.add_argument('--nopoll', default='')
    ap.add_argument('--nopub', action='store_true')
    ap.add_argument('--early', action='store_true')
    ap.add_argument('--dbl', action='store_true')
    ap.add_argument('--noremap', action='store_true')
    ap.add_argument('--fastA', action='store_true')
    ap.add_argument('--lremap', action='store_true')
    ap.add_argument('--qprobeO', type=int, default=0)
    ap.add_argument('--qmask', type=int, default=1)
    ap.add_argument('--hlate', type=int, default=0)
    ap.add_argument('--habk', default='')
    ap.add_argument('--abmask', type=int, default=3)
    ap.add_argument('--ybar', action='store_true')
    ap.add_argument('--touchB', action='store_true')
    ap.add_argument('--qfast', action='store_true')
    ap.add_argument('--xpos', type=int, default=0)
    ap.add_argument('--xpol', default='')
    ap.add_argument('--tlb', action='store_true')
    ap.add_argument('--gg2', type=int, default=0)
    ap.add_argument('--ogg2', action='store_true')
    ap.add_argument('--nolate', type=int, default=0)
    ap.add_argument('--fin2', action='store_true')
    ap.add_argument('--osplit', type=int, default=0)
    ap.add_argument('--skew', action='store_true')
    ap.add_argument('--qprobe', type=int, default=0)
    ap.add_argument('--fgateA', type=int, default=0)
    ap.add_argument('--ggate', type=int, default=0)
    ap.add_argument('--ogg', type=int, default=0)
    ap.add_argument('--warm', action='store_true')
    ap.add_argument('--ownwait', type=int, default=8)
    ap.add_argument('--ogate', type=int, default=8)
    ap.add_argument('--fgate', type=int, default=8)
    ap.add_argument('--oearly', type=int, default=0)
    ap.add_argument('--stO', action='store_true')
    ap.add_argument('--finpipe', type=int, default=0)
    ap.add_argument('--nokvil', action='store_true')
    ap.add_argument('--qdelay', type=int, default=0)
    ap.add_argument('--qdelayO', type=int, default=0)
    a = ap.parse_args()
    opts = {}
    if a.nopoll: opts['nopoll'] = a.nopoll.split(',')
    if a.early: opts['early'] = True
    opts['remap'] = not a.noremap; opts['fastA'] = a.fastA; opts['lremap'] = a.lremap; opts['qprobeO'] = a.qprobeO; opts['qmask'] = a.qmask; opts['hlate'] = a.hlate; opts['abmask'] = a.abmask; opts['habk'] = tuple(int(x) for x in a.habk.split(',')) if a.habk else None; opts['ybar'] = a.ybar; opts['touchB'] = a.touchB; opts['qfast'] = a.qfast; opts['xpos'] = a.xpos; opts['xpol'] = a.xpol; opts['tlb'] = a.tlb; opts['gg2'] = a.gg2; opts['ogg2'] = a.ogg2; opts['nolate'] = a.nolate; opts['fin2'] = a.fin2; opts['osplit'] = a.osplit; opts['skew'] = a.skew; opts['qprobe'] = a.qprobe; opts['fgateA'] = a.fgateA; opts['ggate'] = a.ggate; opts['ogg'] = a.ogg; opts['warm'] = a.warm; opts['ownwait'] = a.ownwait; opts['ogate'] = a.ogate; opts['fgate'] = a.fgate; opts['oearly'] = a.oearly; opts['stO'] = a.stO; opts['finpipe'] = a.finpipe; opts['kvil'] = not a.nokvil
    opts['dbl'] = a.dbl; opts['qdelay'] = a.qdelay; opts['qdelayO'] = a.qdelayO
    pol = a.pol
    g = generate(a.stamps, a.pol, opts)
    if a.nopub:
        g.L = [l for l in g.L if not ('global_store_dwordx4' in l and 'sc1' in l)]
    open(a.o, 'w').write(header(256, 768, LDS_SIZE) + '\n'.join(g.L) + '\n' + footer(168))
    print(a.o, len(g.L), 'lines')
```

```python
import sys, argparse
from genlib import *

V_LANE, V_N, V_G = 0, 1, 2
WS_ALT = 0x300000 - WS_A
MK = 8
VTAG = 14

def arrive_last(g, cnt_off, last_val, skip_label):
    g('s_waitcnt lgkmcnt(0)')
    g('v_mov_b32 v12, 0')
    g('v_mov_b32 v13, 1')
    g(f's_mov_b64 {pr(S_SV)}, exec')
    g('s_mov_b64 exec, 1')
    g(f'ds_add_rtn_u32 v13, v12, v13 offset:{cnt_off}')
    g('s_waitcnt lgkmcnt(0)')
    g(f'v_readfirstlane_b32 s{S_T0}, v13')
    g(f's_mov_b64 exec, {pr(S_SV)}')
    g(f's_cmp_lg_u32 s{S_T0}, {last_val}')
    g(f's_cbranch_scc1 {skip_label}')

def set_ws_base(g, dst, off_sreg, const):
    g(f's_add_u32 s{off_sreg}, s{off_sreg}, {const}')
    g(f's_mov_b64 {pr(dst)}, {pr(S_WS)}')
    add_base(g, dst, off_sreg)

def strip(g, regs):
    for r in regs: g(f'v_and_b32 v{r}, 0xffffff00, v{r}')

def pub_store(g, addr, data, base, local):
    if local and g.o.get('dbl'):
        g(f'global_store_dwordx4 {addr}, {data}, {base}')
    g(f'global_store_dwordx4 {addr}, {data}, {base} sc1')

def count_in(g):
    sk = g.u('ci')
    g(f's_cmp_lg_u32 s{S_WAVE}, 3')
    g(f's_cbranch_scc1 {sk}')
    lds_wait_ge(g, 'vi8', C_VISS, 8, 12, sleep=4)
    g('v_mov_b32 v12, 0')
    g('v_mov_b32 v13, 1')
    g(f's_mov_b64 {pr(S_SV)}, exec')
    g('s_mov_b64 exec, 1')
    g(f'global_atomic_add v12, v13, {pr(S_DBG)} sc1')
    g(f's_mov_b64 exec, {pr(S_SV)}')
    g.label(sk)

WS_QW = 0x40000
WS_QALT = 0x3A0000 - WS_L1
WS_G = 0x380000
C_GO = 44
def detector(g, thr):
    lp = g.u('dt_lp'); ok = g.u('dt_ok')
    g(f's_mov_b32 s{S_CNT}, {SPIN_LIMIT}')
    g.label(lp)
    g(f's_load_dword s{S_T0}, {pr(S_DBG)}, 0 glc')
    g('s_waitcnt lgkmcnt(0)')
    g(f's_cmp_ge_u32 s{S_T0}, {thr}')
    g(f's_cbranch_scc1 {ok}')
    g(f's_sub_u32 s{S_CNT}, s{S_CNT}, 1')
    g(f's_cbranch_scc1 {ok}')
    g('s_sleep 2')
    g(f's_branch {lp}')
    g.label(ok)
    g('v_lshlrev_b32 v4, 7, v0')
    g(f'v_mov_b32 v5, s{S_TAG}')
    g(f's_mov_b64 {pr(S_B2)}, {pr(S_WS)}')
    add_base_imm(g, S_B2, WS_G)
    g(f's_mov_b64 {pr(S_SV)}, exec')
    g('s_mov_b64 exec, 0xff')
    g(f'global_store_dword v4, v5, {pr(S_B2)} sc1')
    g(f's_mov_b64 exec, {pr(S_SV)}')

def go_wait(g):
    sk = g.u('gw_sk'); lp = g.u('gw_lp'); ok = g.u('gw_ok')
    g(f's_cmp_lg_u32 s{S_WAVE}, 2')
    g(f's_cbranch_scc1 {sk}')
    g(f's_lshl_b32 s{S_T0}, s{S_XCD}, 7')
    set_ws_base(g, S_B2, S_T0, WS_G)
    g(f's_mov_b32 s{S_CNT}, {SPIN_LIMIT}')
    g.label(lp)
    g(f's_load_dword s{S_T0}, {pr(S_B2)}, 0 glc')
    g('s_waitcnt lgkmcnt(0)')
    g(f's_cmp_eq_u32 s{S_T0}, s{S_TAG}')
    g(f's_cbranch_scc1 {ok}')
    g(f's_sub_u32 s{S_CNT}, s{S_CNT}, 1')
    g(f's_cbranch_scc1 {ok}')
    g('s_sleep 6')
    g(f's_branch {lp}')
    g.label(ok)
    g('v_mov_b32 v12, 0'); g('v_mov_b32 v13, 1')
    g(f'ds_write_b32 v12, v13 offset:{C_GO}')
    g.label(sk)
    lds_wait_ge(g, 'go', C_GO, 1, 12, sleep=2)

def global_gate(g, thr):
    lp = g.u('gg_lp'); ok = g.u('gg_ok')
    g(f's_mov_b32 s{S_CNT}, {SPIN_LIMIT}')
    g.label(lp)
    g(f's_load_dword s{S_T0}, {pr(S_DBG)}, 0 glc')
    g('s_waitcnt lgkmcnt(0)')
    g(f's_cmp_ge_u32 s{S_T0}, {thr}')
    g(f's_cbranch_scc1 {ok}')
    g(f's_sub_u32 s{S_CNT}, s{S_CNT}, 1')
    g(f's_cbranch_scc1 {ok}')
    g('s_sleep 2')
    g(f's_branch {lp}')
    g.label(ok)

def kernarg_ready(g, lab):
    g('s_waitcnt lgkmcnt(0)')
    g.stamp(1)
    g(f's_cmp_lg_u32 s{S_WAVE}, 1')
    g(f's_cbranch_scc1 {lab}')
    g(f's_load_dword s{S_TAG}, {pr(S_WS)}, {WS_GEN}')
    g.label(lab)

def emit_tag_publish(g, qtile=False):
    g('s_waitcnt lgkmcnt(0)')
    g(f's_add_u32 s{S_TAG}, s{S_TAG}, 1')
    g(f's_and_b32 s{S_T0}, s{S_TAG}, 0xff')
    g(f's_mul_i32 s{S_T0}, s{S_T0}, 0x01010100')
    g(f's_mov_b32 s{S_T1}, s{S_TAG}')
    g(f's_xor_b32 s{S_TAG}, s{S_TAG}, s{S_T0}')
    g('v_mov_b32 v4, 0')
    g(f'v_mov_b32 v5, s{S_TAG}')
    g(f'v_mov_b32 v6, s{S_T1}')
    g(f'ds_write_b32 v4, v5 offset:{C_TAG}')
    g(f'ds_write_b32 v4, v6 offset:{C_RAWG}')
    g('s_waitcnt lgkmcnt(0)')
    g('v_mov_b32 v5, 1')
    g(f'ds_write_b32 v4, v5 offset:{C_TAGF}')
    if g.o.get('prew'):
        g(f's_not_b32 s{S_T0}, s{S_TAG}')
        g(f'v_mov_b32 v7, s{S_T0}')
        tag_insert(g, 144, 144, 7)
        g(f's_lshl_b32 s{S_T0}, s{S_HKV}, 1')
        g(f's_add_u32 s{S_T0}, s{S_T0}, s{S_BB}')
        g(f's_lshl_b32 s{S_T0}, s{S_T0}, 3')
        g(f's_add_u32 s{S_T0}, s{S_T0}, s{S_SP}')
        g(f's_lshl_b32 s{S_T1}, s{S_T0}, 10')
        set_ws_base(g, 86, S_T1, WS_A + WS_ALT)
        g('v_lshlrev_b32 v6, 4, v0')
        g(f'global_store_dwordx4 v6, {vr(144)}, s[86:87]')
        g(f's_lshl_b32 s{S_T1}, s{S_T0}, 7')
        set_ws_base(g, 86, S_T1, WS_S + WS_ALT)
        g(f's_mov_b64 {pr(S_SV)}, exec')
        g('s_mov_b64 exec, 0xff')
        g(f'global_store_dwordx4 v6, {vr(144)}, s[86:87]')
        g(f's_mov_b64 exec, {pr(S_SV)}')
        if qtile:
            sk = g.u('pw')
            g(f's_cmp_lt_u32 s{S_TILE}, 144')
            g(f's_cbranch_scc1 {sk}')
            g(f's_lshl_b32 s{S_T1}, s{S_TILE}, 10')
            set_ws_base(g, 86, S_T1, WS_L1 + WS_QALT)
            g(f'global_store_dwordx4 v6, {vr(144)}, s[86:87]')
            g.label(sk)

def emit_layernorm(g, XR, XF):
    for k in range(9):
        g(f'v_lshlrev_b32 v{XF+2*k}, 16, v{XR+k}')
        g(f'v_and_b32 v{XF+2*k+1}, 0xffff0000, v{XR+k}')
    S, T = 154, 155
    g(f'v_add_f32 v{S}, v{XF}, v{XF+1}')
    for k in range(2, 18): g(f'v_add_f32 v{S}, v{S}, v{XF+k}')
    row_reduce(g, 'v_add_f32', S)
    xor16_op(g, 'v_add_f32', S, T)
    g(f'v_mul_f32 v{S}, 0x{INV576:08x}, v{S}')
    Q, D = 156, 157
    g(f'v_sub_f32 v{D}, v{XF}, v{S}')
    g(f'v_mul_f32 v{Q}, v{D}, v{D}')
    for k in range(1, 18):
        g(f'v_sub_f32 v{D}, v{XF+k}, v{S}')
        g(f'v_fmac_f32 v{Q}, v{D}, v{D}')
    row_reduce(g, 'v_add_f32', Q)
    xor16_op(g, 'v_add_f32', Q, T)
    g(f'v_mul_f32 v{Q}, 0x{INV576:08x}, v{Q}')
    bf16_round(g, Q, Q)
    g(f'v_add_f32 v{Q}, 0x{EPS:08x}, v{Q}')
    bf16_round(g, Q, Q)
    g(f'v_sqrt_f32 v{Q}, v{Q}')
    g.nop(1)
    bf16_round(g, Q, Q)
    g(f'v_rcp_f32 v{Q}, v{Q}')
    bf16_round(g, S, S)
    for k in range(18):
        g(f'v_sub_f32 v{XF+k}, v{XF+k}, v{S}')
    for k in range(0, 18, 2):
        g(f'v_cvt_pk_bf16_f32 v{XR+k//2}, v{XF+k}, v{XF+k+1}')
    for k in range(9):
        g(f'v_lshlrev_b32 v{XF+2*k}, 16, v{XR+k}')
        g(f'v_and_b32 v{XF+2*k+1}, 0xffff0000, v{XR+k}')
    for k in range(18):
        g(f'v_mul_f32 v{XF+k}, v{XF+k}, v{Q}')
    for k in range(18):
        g(f'v_cvt_pk_bf16_f32 v{XF+k}, v{XF+k}, v{XF+k}')
    g('v_lshrrev_b32 v3, 5, v0')
    g('v_and_b32 v4, 31, v0')
    g('v_mul_u32_u24 v3, 576, v3')
    g('v_mad_u32_u24 v3, v4, 18, v3')
    g('v_lshlrev_b32 v3, 2, v3')
    for k in range(0, 18, 2):
        g(f'ds_write_b64 v3, v[{XF+k}:{XF+k+1}] offset:{L_XD + 4*k}')
    g('s_waitcnt lgkmcnt(0)')

def emit_qpoll_wide(g, probe=None):
    g(f's_lshr_b32 s{S_T0}, s{S_HKV}, 1')
    g(f's_lshl_b32 s{S_T0}, s{S_T0}, 15')
    g(f's_and_b32 s{S_T1}, s{S_HKV}, 1')
    g(f's_lshl_b32 s{S_T1}, s{S_T1}, 11')
    g(f's_add_u32 s{S_T0}, s{S_T0}, s{S_T1}')
    g(f's_lshl_b32 s{S_T1}, s{S_BB}, 7')
    g(f's_add_u32 s{S_T0}, s{S_T0}, s{S_T1}')
    set_ws_base(g, 84, S_T0, WS_QW)
    g('s_add_u32 s86, s84, 0x40000')
    g('s_addc_u32 s87, s85, 0')
    g('v_lshrrev_b32 v3, 5, v0')
    g('v_lshlrev_b32 v3, 10, v3')
    g('v_bfe_u32 v4, v0, 3, 2')
    g('v_lshl_add_u32 v3, v4, 8, v3')
    g('v_and_b32 v4, 7, v0')
    g('v_lshl_add_u32 v3, v4, 4, v3')
    for rs in range(8): g(f'v_add_u32 v{156+rs}, {4096*rs}, v3')
    D = 124
    if probe:
        lp = g.u('qp_lp'); ok = g.u('qp_ok')
        g(f's_and_b32 s{S_T4}, s{S_TAG}, 0xff')
        g(f's_mov_b32 s{S_CNT}, {SPIN_LIMIT}')
        g.label(lp)
        for k in range(8): g(f's_load_dword s{64+k if not g.stamps else 88+k}, s[84:85], {4096*k} glc')
        g('s_waitcnt lgkmcnt(0)')
        b0 = 64 if not g.stamps else 88
        for k in range(8): g(f's_xor_b32 s{b0+k}, s{b0+k}, s{S_T4}')
        for k in range(1, 8): g(f's_or_b32 s{b0}, s{b0}, s{b0+k}')
        g(f's_and_b32 s{b0}, s{b0}, 0xff')
        g(f's_cmp_eq_u32 s{b0}, 0')
        g(f's_cbranch_scc1 {ok}')
        g(f's_sub_u32 s{S_CNT}, s{S_CNT}, 1')
        g(f's_cbranch_scc1 {ok}')
        g(f's_sleep {probe}')
        g(f's_branch {lp}')
        g.label(ok)
    def pre():
        g(f's_and_b32 s{S_T0}, s{S_CNT}, {g.o.get("qmask", 1)}')
        g(f's_cmp_eq_u32 s{S_T0}, 1')
        g(f's_cselect_b64 {pr(S_B2)}, s[84:85], s[86:87]')
    loads = [f'global_load_dwordx4 {vr(D+4*rs)}, v{156+rs}, {pr(S_B2)} sc1' for rs in range(8)]
    poll_retry(g, 'q', loads, D, 5, 6, sleep=g.o.get('qsleep', 4), st_first=5, st_cnt=1, pre_iter=pre)
    g.stamp(6)
    strip(g, range(D, D+32))
    for rs in range(1, 8):
        for r in range(4): g(f'v_add_f32 v{D+r}, v{D+r}, v{D+4*rs+r}')
    emit_q_to_lds(g, D)

def emit_q_to_lds(g, D):
    g(f'v_cvt_pk_bf16_f32 v{D}, v{D}, v{D+1}')
    g(f'v_cvt_pk_bf16_f32 v{D+2}, v{D+2}, v{D+3}')
    g('v_lshrrev_b32 v3, 5, v0')
    g('v_lshlrev_b32 v3, 8, v3')
    g('v_bfe_u32 v4, v0, 3, 2')
    g('v_lshl_add_u32 v3, v4, 6, v3')
    g('v_and_b32 v4, 7, v0')
    g('v_lshl_add_u32 v3, v4, 1, v3')
    g(f'ds_write_b16 v3, v{D} offset:{L_QL}')
    g(f'ds_write_b16_d16_hi v3, v{D} offset:{L_QL+16}')
    g(f'ds_write_b16 v3, v{D+2} offset:{L_QL+32}')
    g(f'ds_write_b16_d16_hi v3, v{D+2} offset:{L_QL+48}')
    g('s_waitcnt lgkmcnt(0)')
    g('v_mov_b32 v4, 0')
    g('v_mov_b32 v5, 1')
    g(f'ds_write_b32 v4, v5 offset:{C_QF}')

def emit_qpoll(g, presleep=0, probe=None):
    if g.o.get('qwide'):
        return emit_qpoll_wide(g, probe if probe is not None else g.o.get('qprobe'))
    g(f's_lshl_b32 s{S_T0}, s{S_HKV}, 12')
    g(f's_lshl_b32 s{S_T1}, s{S_BB}, 7')
    g(f's_add_u32 s{S_T0}, s{S_T0}, s{S_T1}')
    set_ws_base(g, S_B2, S_T0, WS_L1 + 144*1024)
    g('v_lshrrev_b32 v3, 5, v0')
    g('v_lshlrev_b32 v3, 11, v3')
    g('v_bfe_u32 v4, v0, 3, 2')
    g('v_lshl_add_u32 v3, v4, 8, v3')
    g('v_and_b32 v4, 7, v0')
    g('v_lshl_add_u32 v3, v4, 4, v3')
    D = 124
    if probe is None: probe = g.o.get('qprobe')
    if probe:
        lp = g.u('qp_lp'); ok = g.u('qp_ok')
        g(f's_and_b32 s{S_T4}, s{S_TAG}, 0xff')
        g(f's_mov_b32 s{S_CNT}, {SPIN_LIMIT}')
        g.label(lp)
        for k in range(4):
            g(f's_load_dword s{84+k}, {pr(S_B2)}, {1024*k} glc')
        g('s_waitcnt lgkmcnt(0)')
        for k in range(4):
            g(f's_and_b32 s{84+k}, s{84+k}, 0xff')
            g(f's_xor_b32 s{84+k}, s{84+k}, s{S_T4}')
        g('s_or_b32 s84, s84, s85')
        g('s_or_b32 s86, s86, s87')
        g('s_or_b32 s84, s84, s86')
        g('s_cmp_eq_u32 s84, 0')
        g(f's_cbranch_scc1 {ok}')
        g(f's_sub_u32 s{S_CNT}, s{S_CNT}, 1')
        g(f's_cbranch_scc1 {ok}')
        g(f's_sleep {probe}')
        g(f's_branch {lp}')
        g.label(ok)
        presleep = 0
    if presleep:
        n = presleep
        while n > 0:
            g(f's_sleep {min(n,127)}'); n -= 127
    pre = None
    if g.o.get('qfast'):
        g(f'v_add_u32 v156, {WS_QALT}, v3')
        g('v_mov_b32 v157, v3')
        def pre():
            g(f's_and_b32 s{S_T0}, s{S_CNT}, {g.o.get("qmask", 1)}')
            g(f's_cmp_eq_u32 s{S_T0}, 1')
            g(f's_cselect_b64 vcc, -1, 0')
            g('v_cndmask_b32_e32 v3, v156, v157, vcc')
    loads = [f'global_load_dwordx4 {vr(D+4*h)}, v3, {pr(S_B2)} offset:{1024*h} sc1' for h in range(2)]
    poll_retry(g, 'q', loads, D, 5, 6, sleep=g.o.get('qsleep', 4), st_first=5, st_cnt=1, pre_iter=pre)
    g.stamp(6)
    strip(g, range(D, D+8))
    for r in range(4):
        g(f'v_add_f32 v{D+r}, v{D+r}, v{D+4+r}')
    g(f'v_cvt_pk_bf16_f32 v{D}, v{D}, v{D+1}')
    g(f'v_cvt_pk_bf16_f32 v{D+2}, v{D+2}, v{D+3}')
    g('v_lshrrev_b32 v3, 5, v0')
    g('v_lshlrev_b32 v3, 8, v3')
    g('v_bfe_u32 v4, v0, 3, 2')
    g('v_lshl_add_u32 v3, v4, 6, v3')
    g('v_and_b32 v4, 7, v0')
    g('v_lshl_add_u32 v3, v4, 1, v3')
    g(f'ds_write_b16 v3, v{D} offset:{L_QL}')
    g(f'ds_write_b16_d16_hi v3, v{D} offset:{L_QL+16}')
    g(f'ds_write_b16 v3, v{D+2} offset:{L_QL+32}')
    g(f'ds_write_b16_d16_hi v3, v{D+2} offset:{L_QL+48}')
    g('s_waitcnt lgkmcnt(0)')
    g('v_mov_b32 v4, 0')
    g('v_mov_b32 v5, 1')
    g(f'ds_write_b32 v4, v5 offset:{C_QF}')

def emit_hpoll(g, S_RB):
    set_off = []
    g(f's_mul_i32 s{S_T2}, s{S_RB}, 3')
    g('v_lshrrev_b32 v3, 5, v0')
    g(f'v_mul_u32_u24 v3, {72*1024}, v3')
    g('v_bfe_u32 v4, v0, 4, 1')
    g('v_lshl_add_u32 v3, v4, 10, v3')
    g('v_lshl_add_u32 v3, v1, 4, v3')
    for k in range(3):
        g(f's_add_u32 s{S_T0}, s{S_T2}, {k}')
        g(f's_lshr_b32 s{S_T1}, s{S_T0}, 2')
        g(f's_lshl_b32 s{S_T1}, s{S_T1}, 11')
        g(f's_and_b32 s{S_T0}, s{S_T0}, 3')
        g(f's_lshl_b32 s{S_T0}, s{S_T0}, 8')
        g(f's_add_u32 s{S_T0}, s{S_T0}, s{S_T1}')
        g(f'v_add_u32 v{156+k}, s{S_T0}, v3')
    g(f's_mov_b64 {pr(S_B2)}, {pr(S_WS)}')
    add_base_imm(g, S_B2, WS_L1)
    D = 124
    loads = [f'global_load_dwordx4 {vr(D+4*k)}, v{156+k}, {pr(S_B2)} sc1' for k in range(3)]
    poll_retry(g, 'h', loads, D, 5, 6, sleep=g.o.get('hsleep', 8), st_first=5, st_cnt=1)
    g.stamp(6)
    N = 12
    strip(g, range(D, D+12))
    T = D + 12
    U = D + 24
    for j in range(N): g(f'v_mov_b32 v{T+j}, v{D+j}')
    g.nop(2)
    for j in range(N): g(f'v_permlane16_swap_b32 v{D+j}, v{T+j}')
    g.nop(1)
    for j in range(N): g(f'v_add_f32 v{D+j}, v{D+j}, v{T+j}')
    for j in range(N): bf16_round(g, D+j, D+j)
    for j in range(N): g(f'v_mov_b32 v{U+j}, v{D+j}')
    g.nop(2)
    for j in range(N): g(f'v_permlane32_swap_b32 v{D+j}, v{U+j}')
    g.nop(1)
    for j in range(N): g(f'v_mul_f32 v{T+j}, s{S_L2E}, v{D+j}')
    for j in range(N): g(f'v_exp_f32 v{T+j}, -v{T+j}')
    g.nop(1)
    for j in range(N): g(f'v_add_f32 v{T+j}, 1.0, v{T+j}')
    for j in range(N): g(f'v_rcp_f32 v{T+j}, v{T+j}')
    g.nop(1)
    for j in range(N): g(f'v_mul_f32 v{T+j}, v{D+j}, v{T+j}')
    for j in range(N): bf16_round(g, T+j, T+j)
    for j in range(N): g(f'v_mul_f32 v{T+j}, v{T+j}, v{U+j}')
    for j in range(N): g(f'v_cvt_pk_bf16_f32 v{T+j}, v{T+j}, v{T+j}')
    g('v_lshrrev_b32 v3, 3, v1')
    g('v_mul_u32_u24 v3, 96, v3')
    g('v_and_b32 v4, 7, v1')
    g('v_add_u32 v3, v3, v4')
    g('v_lshlrev_b32 v3, 2, v3')
    for k in range(3):
        for r in range(4):
            g(f'ds_write_b32 v3, v{T+4*k+r} offset:{L_HD + 128*k + 32*r}')
    g('s_waitcnt lgkmcnt(0)')
    g('v_mov_b32 v4, 0')
    g('v_mov_b32 v5, 1')
    g(f'ds_write_b32 v4, v5 offset:{C_HF}')

def l2_lane_offsets(g):
    g('v_mul_u32_u24 v5, 2304, v2')
    g('v_lshl_add_u32 v5, v1, 4, v5')
    g('v_add_u32 v6, 256, v5')
    g('v_add_u32 v7, 1024, v5')
    g('v_cmp_gt_u32_e32 vcc, 8, v1')
    g.nop(2)
    g('v_cndmask_b32_e32 v6, v7, v6, vcc')

def l2_issue(g, W0, ng, base=None, a0=5, a1=6, last_adv=False):
    pol = g.pol
    base = S_B if base is None else base
    for i in range(ng):
        g(f'global_load_dwordx4 {vr(W0+12*i)}, v{a0}, {pr(base)} {pol}')
        g(f'global_load_dwordx4 {vr(W0+12*i+4)}, v{a1}, {pr(base)} {pol}')
        g(f'global_load_dwordx4 {vr(W0+12*i+8)}, v{a0}, {pr(base)} offset:1280 {pol}')
        if i < ng-1 or last_adv: add_base_imm(g, base, 9216)

def l2_compute(g, W0, ng, P, AC, BE0, waitvm=None):
    def band(i, k):
        be = BE0 + 8*(i & 1)
        src = P + 2*i + (k >> 1)
        for r in (2*(k & 1), 2*(k & 1) + 1):
            g(f'v_and_b32 v{be + 4*(k >> 1) + r}, v{src}, v{MK+r}')
    g(f's_waitcnt lgkmcnt({ng-1})')
    for k in range(4): band(0, k)
    for i in range(ng):
        be = BE0 + 8*(i & 1); bo = be + 4
        if i + 1 < ng: g(f's_waitcnt lgkmcnt({ng-2-i})')
        if waitvm is not None:
            g(f's_waitcnt vmcnt({waitvm(i)})')
        if i == 0 and waitvm is None and ng == 1: g.nop(2)
        c = (lambda k: '0') if i == 0 else (lambda k: vr(AC+k))
        ms = [f'v_mfma_f32_16x16x32_bf16 {vr(AC)}, {vr(W0+12*i)}, {vr(be)}, {c(0)}',
              f'v_mfma_f32_16x16x32_bf16 {vr(AC+4)}, {vr(W0+12*i+4)}, {vr(be)}, {c(4)}',
              f'v_mfma_f32_16x16x32_bf16 {vr(AC+8)}, {vr(W0+12*i+4)}, {vr(bo)}, {c(8)}',
              f'v_mfma_f32_16x16x32_bf16 {vr(AC+12)}, {vr(W0+12*i+8)}, {vr(bo)}, {c(12)}']
        if i == 0: g.nop(1)
        for k in range(4):
            g(ms[k])
            if i + 1 < ng: band(i + 1, k)

S_PB = 80
def l2_prep(g, nprod, prod_sreg, ws_const, VI, VP):
    fs = nprod*128
    g(f's_mul_i32 s{S_T0}, s{S_WAVE}, 3072')
    g(f'v_lshlrev_b32 v{VI}, 4, v0')
    g(f'v_add_u32 v{VI}, s{S_T0}, v{VI}')
    g(f's_mul_i32 s{S_T0}, s{S_WAVE}, 24')
    g(f'v_add_u32 v{VP}, s{S_T0}, v0')
    g(f'v_lshlrev_b32 v{VI+1}, 4, v{VP}')
    g(f'v_lshrrev_b32 v6, 4, v{VP}')
    g(f'v_bfe_u32 v7, v{VP}, 3, 1')
    g('v_mad_u32_u24 v6, v7, 18, v6')
    g(f'v_mul_u32_u24 v6, {fs}, v6')
    g(f'v_and_b32 v7, 7, v{VP}')
    g(f'v_lshl_add_u32 v{VP}, v7, 4, v6')
    g(f's_mul_i32 s{S_T0}, s{S_CB}, {6*fs}')
    g(f's_lshl_b32 s{S_T1}, s{prod_sreg}, 7')
    g(f's_add_u32 s{S_T0}, s{S_T0}, s{S_T1}')
    set_ws_base(g, S_PB, S_T0, ws_const)

def l2_finish(g, AC, VI, VP, R0, st_a=None, st_b=None):
    g('v_cmp_gt_u32_e32 vcc, 2, v2')
    g('v_mov_b32 v12, 0')
    g('v_mov_b32 v13, 1')
    g.nop(5)
    g(f'ds_write_b128 v{VI}, {vr(AC)} offset:{L_Y}')
    for r in range(4):
        g(f'v_cndmask_b32_e32 v{AC+4+r}, v{AC+8+r}, v{AC+4+r}, vcc')
    g(f'ds_write_b128 v{VI}, {vr(AC+12)} offset:{L_Y + 2048}')
    g(f'ds_write_b128 v{VI}, {vr(AC+4)} offset:{L_Y + 1024}')
    if st_a is not None: g.stamp(st_a)
    g(f's_mov_b64 {pr(S_SV)}, exec')
    if g.o.get('ybar'):
        g('s_waitcnt lgkmcnt(0)')
        g('s_barrier')
        g(f's_mov_b64 exec, 0xffffff')
    else:
        g('s_waitcnt lgkmcnt(0)')
        g('s_mov_b64 exec, 1')
        g(f'ds_add_u32 v12, v13 offset:{C_YCNT}')
        g(f's_mov_b64 exec, 0xffffff')
        lp = g.u('ys'); ok = g.u('yok')
        g(f's_mov_b32 s{S_CNT}, {SPIN_LIMIT*8}')
        g.label(lp)
        g(f'ds_read_b32 v13, v12 offset:{C_YCNT}')
        g('s_waitcnt lgkmcnt(0)')
        g(f'v_readfirstlane_b32 s{S_T0}, v13')
        g(f's_cmp_ge_u32 s{S_T0}, 4')
        g(f's_cbranch_scc1 {ok}')
        g(f's_sub_u32 s{S_CNT}, s{S_CNT}, 1')
        g(f's_cbranch_scc0 {lp}')
        g.label(ok)
    for w in range(4):
        g(f'ds_read_b128 {vr(R0+8*w)}, v{VI+1} offset:{L_Y + 3072*w}')
        g(f'ds_read_b128 {vr(R0+4+8*w)}, v{VI+1} offset:{L_Y + 3072*w + 6*256}')
    for stage in range(4):
        g(f's_waitcnt lgkmcnt({6-2*stage})')
        for r in range(4):
            if stage == 0:
                g(f'v_add_f32 v{R0+r}, v{R0+r}, v{R0+4+r}')
            else:
                g(f'v_add_f32 v{R0+8*stage+r}, v{R0+8*stage+r}, v{R0+8*stage+4+r}')
                g(f'v_add_f32 v{R0+r}, v{R0+r}, v{R0+8*stage+r}')
    tag_insert(g, R0+4, R0, VTAG)
    g(f'global_store_dwordx4 v{VP}, {vr(R0+4)}, {pr(S_PB)} sc1')
    g(f's_mov_b64 exec, {pr(S_SV)}')
    if st_b is not None: g.stamp(st_b)

def reduce_hh(g, d, t):
    g.nop(2)
    for r in range(4):
        g(f'v_add_f32_dpp v{d+r}, v{d+r}, v{d+r} row_ror:8 row_mask:0xf bank_mask:0xf')
    for r in range(4): g(f'v_mov_b32 v{t+r}, v{d+r}')
    g.nop(2)
    for r in range(4): g(f'v_permlane16_swap_b32 v{d+r}, v{t+r}')
    g.nop(1)
    for r in range(4): g(f'v_add_f32 v{d+r}, v{d+r}, v{t+r}')
    for r in range(4): g(f'v_mov_b32 v{t+r}, v{d+r}')
    g.nop(2)
    for r in range(4): g(f'v_permlane32_swap_b32 v{d+r}, v{t+r}')
    g.nop(1)
    for r in range(4): g(f'v_add_f32 v{d+r}, v{d+r}, v{t+r}')

def emit_final_old(g):
    g('v_and_b32 v3, 7, v0')
    g('v_lshlrev_b32 v3, 1, v3')
    g(f's_lshl_b32 s{S_T0}, s{S_F}, 6')
    g(f'v_add_u32 v3, s{S_T0}, v3')
    for r in range(4):
        g(f'global_load_ushort v{124+r}, v3, {pr(S_X)} offset:{16*r}')
    g('v_lshlrev_b32 v4, 4, v0')
    g('v_add_u32 v5, 4096, v4')
    g(f's_mul_i32 s{S_T0}, s{S_F}, 6144')
    set_ws_base(g, S_B, S_T0, WS_F)
    g(f's_lshl_b32 s{S_T0}, s{S_F}, 11')
    set_ws_base(g, S_B2, S_T0, WS_B)
    lds_wait_ge(g, 'own', C_ACNT, 8, 12, sleep=8)
    g.stamp(5)
    D = 16
    loads = [f'global_load_dwordx4 {vr(D+4*k)}, v{4 if k < 4 else 5}, {pr(S_B)} offset:{1024*(k%4)} sc1' for k in range(6)]
    if 'fin' in g.o.get('nopoll', ()): g.o['finpipe'] = 0
    if not g.o.get('finpipe'):
        loads += [f'global_load_dwordx4 {vr(D+24+4*k)}, v4, {pr(S_B2)} offset:{1024*k} sc1' for k in range(2)]
        poll_retry(g, 'fin', loads, D, 13, 15, sleep=0, st_cnt=1)
    else:
        poll_retry(g, 'fin', loads, D, 13, 15, sleep=g.o.get('ffsl', 2))
        g.stamp(4)
        strip(g, range(D, D+24))
        for k in range(1, 6):
            for r in range(4): g(f'v_add_f32 v{D+r}, v{D+r}, v{D+4*k+r}')
        reduce_hh(g, D, 96)
        for r in range(4): bf16_round(g, D+r, D+r)
        for r in range(4): g(f'v_lshlrev_b32 v{124+r}, 16, v{124+r}')
        NS = g.o.get('finpipe')
        SETS = [64 + 8*j for j in range(NS)]
        def iss(j):
            for k in range(2):
                g(f'global_load_dwordx4 {vr(SETS[j]+4*k)}, v4, {pr(S_B2)} offset:{1024*k} sc1')
        lp = g.u('fp_lp'); done = g.u('fp_done')
        oks = [g.u('fp_ok') for _ in range(NS)]
        g(f's_mov_b32 s{S_CNT}, {SPIN_LIMIT}')
        for j in range(NS-1): iss(j)
        g.label(lp)
        for j in range(NS):
            iss((j + NS - 1) % NS)
            g(f's_waitcnt vmcnt({2*(NS-1)})')
            tag_check(g, SETS[j], 13, 15, True)
            tag_check(g, SETS[j]+4, 13, 15, False)
            g(f's_cmp_eq_u64 {pr(S_OK)}, -1')
            g(f's_cbranch_scc1 {oks[j]}')
        g(f's_sub_u32 s{S_CNT}, s{S_CNT}, 1')
        g(f's_cbranch_scc0 {lp}')
        for j in range(NS):
            g.label(oks[j])
            strip(g, range(SETS[j], SETS[j]+8))
            for r in range(4): g(f'v_add_f32 v{D+24+r}, v{SETS[j]+r}, v{SETS[j]+4+r}')
            if j < NS-1: g(f's_branch {done}')
        g.label(done)
    g.stamp(6)
    FF = D; AT = D + 24
    if not g.o.get('finpipe'):
        for k in range(1, 6):
            for r in range(4): g(f'v_add_f32 v{FF+r}, v{FF+r}, v{FF+4*k+r}')
        for r in range(4): g(f'v_add_f32 v{AT+r}, v{AT+r}, v{AT+4+r}')
    if g.o.get('finpipe'):
        reduce_hh(g, AT, 96)
        for r in range(4): bf16_round(g, AT+r, AT+r)
    else:
        vals = [FF+r for r in range(4)] + [AT+r for r in range(4)]
        T = 96
        g.nop(2)
        for v in vals: g(f'v_add_f32_dpp v{v}, v{v}, v{v} row_ror:8 row_mask:0xf bank_mask:0xf')
        for j, v in enumerate(vals): g(f'v_mov_b32 v{T+j}, v{v}')
        g.nop(2)
        for j, v in enumerate(vals): g(f'v_permlane16_swap_b32 v{v}, v{T+j}')
        g.nop(1)
        for j, v in enumerate(vals): g(f'v_add_f32 v{v}, v{v}, v{T+j}')
        for j, v in enumerate(vals): g(f'v_mov_b32 v{T+j}, v{v}')
        g.nop(2)
        for j, v in enumerate(vals): g(f'v_permlane32_swap_b32 v{v}, v{T+j}')
        g.nop(1)
        for j, v in enumerate(vals): g(f'v_add_f32 v{v}, v{v}, v{T+j}')
        for v in vals: bf16_round(g, v, v)
        for r in range(4): g(f'v_lshlrev_b32 v{124+r}, 16, v{124+r}')
    for r in range(4): g(f'v_add_f32 v{AT+r}, v{124+r}, v{AT+r}')
    for r in range(4): bf16_round(g, AT+r, AT+r)
    for r in range(4): g(f'v_add_f32 v{AT+r}, v{AT+r}, v{FF+r}')
    g(f'v_cvt_pk_bf16_f32 v28, v{AT}, v{AT+1}')
    g(f'v_cvt_pk_bf16_f32 v29, v{AT+2}, v{AT+3}')
    g('v_cmp_gt_u32_e32 vcc, 8, v0')
    g(f's_and_saveexec_b64 {pr(S_SV)}, vcc')
    g(f'global_store_short v3, v28, {pr(S_OUT)}')
    g(f'global_store_short_d16_hi v3, v28, {pr(S_OUT)} offset:16')
    g(f'global_store_short v3, v29, {pr(S_OUT)} offset:32')
    g(f'global_store_short_d16_hi v3, v29, {pr(S_OUT)} offset:48')
    g(f's_cmp_lg_u32 s{S_F}, 0')
    g('s_cbranch_scc1 L_nobump')
    g('s_mov_b64 exec, 1')
    g('v_mov_b32 v4, 0')
    g(f'ds_read_b32 v5, v4 offset:{C_RAWG}')
    g('s_waitcnt lgkmcnt(0)')
    g(f'global_store_dword v4, v5, {pr(S_WS)} sc1')
    g.label('L_nobump')
    g(f's_mov_b64 exec, {pr(S_SV)}')

C_FFF = 40
L_FF = L_QL + 0
def emit_ffgather(g):
    g('v_lshlrev_b32 v4, 4, v0')
    g('v_add_u32 v5, 4096, v4')
    g(f's_mul_i32 s{S_T0}, s{S_F}, 6144')
    set_ws_base(g, S_B, S_T0, WS_F)
    lds_wait_ge(g, 'own', C_ACNT, g.o.get('ffown', 4), 12, sleep=8)
    g.stamp(5)
    D = 16
    loads = [f'global_load_dwordx4 {vr(D+4*k)}, v{4 if k < 4 else 5}, {pr(S_B)} offset:{1024*(k%4)} sc1' for k in range(6)]
    poll_retry(g, 'fin', loads, D, 13, 15, sleep=g.o.get('ffsleep', 1), st_cnt=1)
    g.stamp(4)
    for k in range(1, 6):
        for r in range(4): g(f'v_add_f32 v{D+r}, v{D+r}, v{D+4*k+r}')
    reduce_hh(g, D, 96)
    for r in range(4): bf16_round(g, D+r, D+r)
    g('v_lshlrev_b32 v4, 4, v0')
    g('v_cmp_gt_u32_e32 vcc, 8, v0')
    g(f's_and_saveexec_b64 {pr(S_SV)}, vcc')
    g(f'ds_write_b128 v4, {vr(D)} offset:{L_Y}')
    g('s_waitcnt lgkmcnt(0)')
    g('v_mov_b32 v12, 0'); g('v_mov_b32 v13, 1')
    g(f'ds_write_b32 v12, v13 offset:{C_FFF}')
    g(f's_mov_b64 exec, {pr(S_SV)}')
    g.stamp(6)

def emit_final(g):
    g('v_and_b32 v3, 7, v0')
    g('v_lshlrev_b32 v3, 1, v3')
    g(f's_lshl_b32 s{S_T0}, s{S_F}, 6')
    g(f'v_add_u32 v3, s{S_T0}, v3')
    for r in range(4):
        g(f'global_load_ushort v{124+r}, v3, {pr(S_X)} offset:{16*r}')
    g('v_lshlrev_b32 v4, 4, v0')
    g(f's_lshl_b32 s{S_T0}, s{S_F}, 11')
    set_ws_base(g, S_B2, S_T0, WS_B)
    g('v_mov_b32 v12, 0')
    g(f'ds_read_b32 v30, v12 offset:{C_RAWG}')
    lds_wait_ge(g, 'own', C_ACNT, 8, 12, sleep=8)
    g.stamp(5)
    g('s_waitcnt vmcnt(0)')
    for r in range(4): g(f'v_lshlrev_b32 v{124+r}, 16, v{124+r}')
    AT = 40
    NS = g.o.get('finpipe') or 3
    SETS = [64 + 8*j for j in range(NS)]
    def iss(j):
        for k in range(2):
            g(f'global_load_dwordx4 {vr(SETS[j]+4*k)}, v4, {pr(S_B2)} offset:{1024*k} sc1')
    if 'fin' not in g.o.get('nopoll', ()):
        lp = g.u('fp_lp'); done = g.u('fp_done')
        oks = [g.u('fp_ok') for _ in range(NS)]
        g(f's_mov_b32 s{S_CNT}, {SPIN_LIMIT}')
        for j in range(NS-1): iss(j)
        g.label(lp)
        for j in range(NS):
            iss((j + NS - 1) % NS)
            g(f's_waitcnt vmcnt({2*(NS-1)})')
            tag_check(g, SETS[j], 13, 15, True)
            tag_check(g, SETS[j]+4, 13, 15, False)
            g(f's_cmp_eq_u64 {pr(S_OK)}, -1')
            g(f's_cbranch_scc1 {oks[j]}')
        g(f's_sub_u32 s{S_CNT}, s{S_CNT}, 1')
        g(f's_cbranch_scc0 {lp}')
        for j in range(NS):
            g.label(oks[j])
            for r in range(4): g(f'v_add_f32 v{AT+r}, v{SETS[j]+r}, v{SETS[j]+4+r}')
            if j < NS-1: g(f's_branch {done}')
        g.label(done)
    g.stamp(6)
    reduce_hh(g, AT, 48)
    for r in range(4): bf16_round(g, AT+r, AT+r)
    for r in range(4): g(f'v_add_f32 v{AT+r}, v{124+r}, v{AT+r}')
    for r in range(4): bf16_round(g, AT+r, AT+r)
    if 'fin' not in g.o.get('nopoll', ()):
        lds_wait_ge(g, 'fff', C_FFF, 1, 12, sleep=0)
    g('v_lshlrev_b32 v4, 4, v0')
    g(f'ds_read_b128 {vr(52)}, v4 offset:{L_Y}')
    g('v_cmp_gt_u32_e32 vcc, 8, v0')
    g('s_waitcnt lgkmcnt(0)')
    for r in range(4): g(f'v_add_f32 v{AT+r}, v{AT+r}, v{52+r}')
    g(f'v_cvt_pk_bf16_f32 v28, v{AT}, v{AT+1}')
    g(f'v_cvt_pk_bf16_f32 v29, v{AT+2}, v{AT+3}')
    g(f's_and_saveexec_b64 {pr(S_SV)}, vcc')
    g(f'global_store_short v3, v28, {pr(S_OUT)}')
    g(f'global_store_short_d16_hi v3, v28, {pr(S_OUT)} offset:16')
    g(f'global_store_short v3, v29, {pr(S_OUT)} offset:32')
    g(f'global_store_short_d16_hi v3, v29, {pr(S_OUT)} offset:48')
    g(f's_cmp_lg_u32 s{S_F}, 0')
    g('s_cbranch_scc1 L_nobump')
    g('s_mov_b64 exec, 1')
    g('v_mov_b32 v4, 0')
    g(f'global_store_dword v4, v30, {pr(S_WS)} sc1')
    g.label('L_nobump')
    g(f's_mov_b64 exec, {pr(S_SV)}')

def emit_roleO(g):
    S_HO = S_ID
    g(f's_sub_u32 s{S_CB}, s{S_SLOT}, 26')
    g(f's_cmp_ge_u32 s{S_CB}, 3')
    g(f's_cselect_b32 s{S_T0}, 1, 0')
    g(f's_mul_i32 s{S_T1}, s{S_T0}, 3')
    g(f's_sub_u32 s{S_CB}, s{S_CB}, s{S_T1}')
    g(f's_lshl_b32 s{S_HO}, s{S_XCD}, 1')
    g(f's_add_u32 s{S_HO}, s{S_HO}, s{S_T0}')
    NE = g.o.get('oearly', 0)
    W0 = 16
    kernarg_ready(g, 'L_nogenO')
    g(f's_mul_i32 s{S_T0}, s{S_HO}, {256*1152}')
    g(f's_mul_i32 s{S_T1}, s{S_CB}, 384')
    g(f's_add_u32 s{S_T0}, s{S_T0}, s{S_T1}')
    g(f's_mul_i32 s{S_T1}, s{S_WAVE}, {64*1152}')
    g(f's_add_u32 s{S_T0}, s{S_T0}, s{S_T1}')
    g(f's_mov_b64 s[82:83], {pr(S_WO)}')
    add_base(g, 82, S_T0)
    l2_lane_offsets(g)
    g('v_mov_b32 v165, v5'); g('v_mov_b32 v166, v6')
    l2_issue(g, W0, NE, base=82, a0=165, a1=166, last_adv=True)
    g('s_barrier')
    g.stamp(2)
    g(f's_cmp_lg_u32 s{S_WAVE}, 1')
    g('s_cbranch_scc1 L_Onoq')
    emit_tag_publish(g)
    emit_qpoll(g, g.o.get('qdelayO', 0), probe=(g.o.get('qprobeO') or None))
    g.label('L_Onoq')
    get_tag_from_lds(g, 12, VTAG)
    if g.o.get('touchB'):
        l2_prep(g, 16, S_HO, WS_B, 162, 164)
        g(f'v_not_b32 v15, v{VTAG}')
        tag_insert(g, 112, 112, 15)
        g(f's_mov_b64 {pr(S_SV)}, exec')
        g('s_mov_b64 exec, 0xffffff')
        g(f'global_store_dwordx4 v164, {vr(112)}, {pr(S_PB)} sc1')
        g(f's_mov_b64 exec, {pr(S_SV)}')
        g.nop(2)
    make_masks(g, MK, 1, 112)
    if g.o.get('nolate', 0) > 1:
        g('s_branch L_end_stamp')
    if NE < 8:
        if not g.o.get('early'):
            lds_wait_ge(g, 'viss', C_VISS, g.o.get('ogate', 8), 12, sleep=4)
        if g.o.get('ogg'):
            global_gate(g, g.o.get('ogg'))
        osp = g.o.get('osplit', 0)
        if g.o.get('gg2') and g.o.get('ogg2'):
            if osp: l2_issue(g, W0 + 12*NE, osp - NE, base=82, a0=165, a1=166, last_adv=True)
            lds_wait_ge(g, 'viss8', C_VISS, 8, 12, sleep=4)
            count_in(g)
            go_wait(g)
            l2_issue(g, W0 + 12*max(osp,NE), 8 - max(osp,NE), base=82, a0=165, a1=166)
        elif osp:
            l2_issue(g, W0 + 12*NE, osp - NE, base=82, a0=165, a1=166, last_adv=True)
            lds_wait_ge(g, 'viss8', C_VISS, 8, 12, sleep=4)
            l2_issue(g, W0 + 12*osp, 8 - osp, base=82, a0=165, a1=166)
            if g.o.get('gg2'): count_in(g)
        else:
            l2_issue(g, W0 + 12*NE, 8 - NE, base=82, a0=165, a1=166)
        if g.o.get('ggate'): count_in(g)
    else:
        lds_wait_ge(g, 'own', C_ACNT, 8, 12, sleep=4)
    if not g.o.get('stO'): g.stamp(3)
    g(f's_lshl_b32 s{S_T0}, s{S_HO}, 14')
    g(f's_and_b32 s{S_T1}, s{S_WAVE}, 1')
    g(f's_lshl_b32 s{S_T1}, s{S_T1}, 9')
    g(f's_add_u32 s{S_T0}, s{S_T0}, s{S_T1}')
    g(f's_lshr_b32 s{S_T1}, s{S_WAVE}, 1')
    g(f's_lshl_b32 s{S_T1}, s{S_T1}, 7')
    g(f's_add_u32 s{S_T0}, s{S_T0}, s{S_T1}')
    set_ws_base(g, S_B, S_T0, WS_A)
    g(f's_lshl_b32 s{S_T0}, s{S_HO}, 11')
    g(f's_lshr_b32 s{S_T1}, s{S_WAVE}, 1')
    g(f's_lshl_b32 s{S_T1}, s{S_T1}, 4')
    g(f's_add_u32 s{S_T0}, s{S_T0}, s{S_T1}')
    set_ws_base(g, S_B2, S_T0, WS_S)
    g('v_lshrrev_b32 v3, 5, v0')
    g('v_bfe_u32 v5, v0, 3, 1')
    g('v_lshl_add_u32 v4, v3, 1, v5')
    g('v_lshlrev_b32 v3, 12, v4')
    g('v_lshlrev_b32 v4, 9, v4')
    g('v_bfe_u32 v5, v0, 4, 1')
    g('v_lshl_add_u32 v3, v5, 8, v3')
    g('v_and_b32 v5, 7, v0')
    g('v_lshl_add_u32 v3, v5, 4, v3')
    g('v_lshrrev_b32 v160, 5, v0')
    g('v_lshlrev_b32 v160, 6, v160')
    g('v_bfe_u32 v5, v0, 4, 1')
    g('v_lshl_add_u32 v160, v5, 5, v160')
    g('v_and_b32 v5, 7, v0')
    g('v_add_u32 v160, v160, v5')
    g(f's_lshl_b32 s{S_T0}, s{S_WAVE}, 7')
    g(f'v_add_u32 v160, s{S_T0}, v160')
    g('v_lshlrev_b32 v160, 2, v160')
    g('v_lshrrev_b32 v161, 3, v1')
    g('v_lshlrev_b32 v161, 6, v161')
    g('v_lshl_add_u32 v161, v2, 1, v161')
    g(f'v_add_u32 v161, s{S_T0}, v161')
    g('v_lshlrev_b32 v161, 2, v161')
    l2_prep(g, 16, S_HO, WS_B, 162, 164)
    D = 112
    if g.o.get('fastA'):
        g(f'v_add_u32 v156, {WS_ALT}, v3')
        g(f'v_add_u32 v157, {WS_ALT}, v4')
        g('v_mov_b32 v158, v3'); g('v_mov_b32 v159, v4')
        def pre():
            g(f's_and_b32 s{S_T0}, s{S_CNT}, {g.o.get("abmask", 3)}')
            g(f's_cmp_eq_u32 s{S_T0}, 1')
            g(f's_cselect_b64 vcc, -1, 0')
            g('v_cndmask_b32_e32 v3, v156, v158, vcc')
            g('v_cndmask_b32_e32 v4, v157, v159, vcc')
    else:
        pre = None
    if g.stamps and g.o.get('stO'):
        pre0 = pre
        def pre():
            g('s_waitcnt lgkmcnt(0)')
            g('s_mov_b64 s[68:69], s[70:71]')
            g('s_mov_b64 s[70:71], s[74:75]')
            g('s_memrealtime s[74:75]')
            if pre0: pre0()
    loads = [f'global_load_dwordx4 {vr(D+4*i)}, v3, {pr(S_B)} offset:{1024*i} sc1' for i in range(4)]
    loads += [f'global_load_dwordx4 {vr(D+16+4*i)}, v4, {pr(S_B2)} offset:{128*i} sc1' for i in range(4)]
    if g.o.get('warm') and g.o.get('fastA'):
        for i in range(4): g(f'global_load_dwordx4 {vr(D+4*i)}, v156, {pr(S_B)} offset:{1024*i} sc1')
        for i in range(4): g(f'global_load_dwordx4 {vr(D+16+4*i)}, v157, {pr(S_B2)} offset:{128*i} sc1')
    if NE < 8 and g.o.get('ogate', 8) < 8 and g.o.get('ownwait', 8):
        lds_wait_ge(g, 'own', C_ACNT, g.o.get('ownwait', 8), 12, sleep=g.o.get('ownsl', 4))
    poll_retry(g, 'ha', loads, D, 5, 6, sleep=0, st_cnt=1, pre_iter=pre, backoff=g.o.get('habk'))
    g.stamp(4)
    ST = D + 16
    M = 144; LL = 145; O = 148
    for i in range(4):
        g(f'v_and_b32 v{ST+4*i}, 0xffffff00, v{ST+4*i}')
    g(f'v_max_f32 v{M}, v{ST}, v{ST+4}')
    g(f'v_max3_f32 v{M}, v{M}, v{ST+8}, v{ST+12}')
    strip(g, [ST+4*i+1 for i in range(4)])
    g(f'v_max_f32_dpp v{M}, v{M}, v{M} row_ror:8 row_mask:0xf bank_mask:0xf')
    strip(g, range(D, D+8))
    for i in range(4): g(f'v_sub_f32 v{ST+4*i}, v{ST+4*i}, v{M}')
    for i in range(4): g(f'v_exp_f32 v{ST+4*i}, v{ST+4*i}')
    strip(g, range(D+8, D+16))
    g(f'v_mul_f32 v{LL}, v{ST}, v{ST+1}')
    for r in range(4): g(f'v_mul_f32 v{O+r}, v{ST}, v{D+r}')
    for i in range(1, 4):
        g(f'v_fmac_f32 v{LL}, v{ST+4*i}, v{ST+4*i+1}')
        for r in range(4): g(f'v_fmac_f32 v{O+r}, v{ST+4*i}, v{D+4*i+r}')
    g.nop(1)
    g(f'v_add_f32_dpp v{LL}, v{LL}, v{LL} row_ror:8 row_mask:0xf bank_mask:0xf')
    for r in range(4):
        g(f'v_add_f32_dpp v{O+r}, v{O+r}, v{O+r} row_ror:8 row_mask:0xf bank_mask:0xf')
    g(f'v_rcp_f32 v{LL}, v{LL}')
    g.nop(1)
    for r in range(4): g(f'v_mul_f32 v{O+r}, v{O+r}, v{LL}')
    for r in range(4): g(f'v_cvt_pk_bf16_f32 v{O+r}, v{O+r}, v{O+r}')
    for r in range(4): g(f'ds_write_b32 v160, v{O+r} offset:{L_OD + 32*r}')
    g('s_waitcnt lgkmcnt(0)')
    P = 112
    for i in range(8):
        g(f'ds_read_b64 v[{P+2*i}:{P+2*i+1}], v161 offset:{L_OD + 32*i}')
    l2_compute(g, W0, 8, P, 128, 144)
    l2_finish(g, 128, 162, 164, 16, st_a=None if g.o.get('stO') else 5, st_b=6)

def emit_qk_softmax(g, extra):
    K0, V0 = 16, 80
    QF = 144
    g('v_lshrrev_b32 v4, 3, v1')
    g('v_lshlrev_b32 v4, 8, v4')
    g('v_lshl_add_u32 v4, v2, 4, v4')
    for s in range(4):
        g(f'ds_read_b128 {vr(QF+4*s)}, v4 offset:{L_QL + 64*s}')
    SCR = [8, 12, 160, 164]
    for T in range(4):
        for r in range(4): g(f'v_mov_b32 v{SCR[T]+r}, 0')
    g('s_waitcnt lgkmcnt(0)')
    for T in range(4):
        g(f's_waitcnt vmcnt({12 - 4*T + extra})')
        for s in range(4):
            g(f'v_mfma_f32_16x16x32_bf16 {vr(SCR[T])}, {vr(K0+16*T+4*s)}, {vr(QF+4*s)}, {vr(SCR[T])}')
    g.nop(8)
    g.stamp(4)
    sc = [SCR[T]+r for T in range(4) for r in range(4)]
    TP = 144
    for k in range(0, 16, 2):
        g(f'v_cvt_pk_bf16_f32 v{TP+k//2}, v{sc[k]}, v{sc[k+1]}')
    for k in range(0, 16, 2):
        g(f'v_lshlrev_b32 v{sc[k]}, 16, v{TP+k//2}')
        g(f'v_and_b32 v{sc[k+1]}, 0xffff0000, v{TP+k//2}')
    for k in range(16):
        g(f'v_mul_f32 v{sc[k]}, 0x{SCALE:08x}, v{sc[k]}')
    for k in range(0, 16, 2):
        g(f'v_cvt_pk_bf16_f32 v{TP+k//2}, v{sc[k]}, v{sc[k+1]}')
    for k in range(0, 16, 2):
        g(f'v_lshlrev_b32 v{sc[k]}, 16, v{TP+k//2}')
        g(f'v_and_b32 v{sc[k+1]}, 0xffff0000, v{TP+k//2}')
    M = 152; T1 = 153; LS = 154
    g(f'v_max3_f32 v{M}, v{sc[0]}, v{sc[1]}, v{sc[2]}')
    for k in range(3, 15, 2):
        g(f'v_max3_f32 v{M}, v{M}, v{sc[k]}, v{sc[k+1]}')
    g(f'v_max_f32 v{M}, v{M}, v{sc[15]}')
    xor16_op(g, 'v_max_f32', M, T1)
    xor32_op(g, 'v_max_f32', M, T1)
    g(f'v_mul_f32 v{M}, s{S_L2E}, v{M}')
    for k in range(16):
        g(f'v_fma_f32 v{sc[k]}, v{sc[k]}, s{S_L2E}, -v{M}')
    for k in range(16):
        g(f'v_exp_f32 v{sc[k]}, v{sc[k]}')
    g.nop(1)
    g(f'v_add_f32 v{LS}, v{sc[0]}, v{sc[1]}')
    for k in range(2, 16):
        g(f'v_add_f32 v{LS}, v{LS}, v{sc[k]}')
    for k in range(16):
        g(f'v_cvt_pk_bf16_f32 v{sc[k]}, v{sc[k]}, v{sc[k]}')
    xor16_op(g, 'v_add_f32', LS, T1)
    xor32_op(g, 'v_add_f32', LS, T1)
    AMK = 156
    make_masks(g, AMK, 1, 4)
    for T in range(4):
        for i in range(4):
            for r in range(4):
                g(f'v_and_b32 v{K0+16*T+4*i+r}, v{sc[4*T+i]}, v{AMK+r}')
    AC = 144
    for r in range(8): g(f'v_mov_b32 v{AC+r}, 0')
    g.stamp(5)

def issue_v(g, V0):
    pol = g.pol
    for T in range(4):
        for i in range(4):
            g(f'global_load_dwordx4 {vr(V0+16*T+4*i)}, v3, {pr(S_V)} offset:{256*i} {pol}')
        if T < 3: add_base_imm(g, S_V, 4096)
    g('v_mov_b32 v4, 0')
    g('v_mov_b32 v5, 1')
    g(f's_mov_b64 {pr(S_SV)}, exec')
    g('s_mov_b64 exec, 1')
    g(f'ds_add_u32 v4, v5 offset:{C_VISS}')
    g(f's_mov_b64 exec, {pr(S_SV)}')

def emit_attn(g):
    pol = g.pol
    K0, V0 = 16, 80
    QF = 144
    g('s_waitcnt lgkmcnt(0)')
    g(f's_lshl_b32 s{S_T0}, s{S_BB}, 4')
    g(f's_add_u32 s{S_T0}, s{S_T0}, s{S_HKV}')
    g(f's_lshl_b32 s{S_T0}, s{S_T0}, 20')
    il = g.o.get('kvil', True)
    g(f's_lshl_b32 s{S_T1}, s{S_SP}, {14 if il else 17}')
    g(f's_add_u32 s{S_T0}, s{S_T0}, s{S_T1}')
    g(f's_sub_u32 s{S_T1}, s{S_WAVE}, 4')
    g(f's_lshl_b32 s{S_T1}, s{S_T1}, {17 if il else 14}')
    g(f's_add_u32 s{S_T0}, s{S_T0}, s{S_T1}')
    add_base(g, S_K, S_T0)
    add_base(g, S_V, S_T0)
    g('v_lshlrev_b32 v4, 8, v1')
    g('v_lshl_add_u32 v4, v2, 4, v4')
    g('v_lshlrev_b32 v3, 10, v2')
    g('v_lshl_add_u32 v3, v1, 4, v3')
    if g.o.get('tlb'):
        g('v_mov_b32 v6, 0')
        g(f'global_load_dword v16, v6, {pr(S_K)} nt')
        g(f'global_load_dword v80, v6, {pr(S_V)} nt')
    g('s_barrier')
    g.stamp(1)
    g('s_setprio 2')
    for T in range(4):
        for s in range(4):
            g(f'global_load_dwordx4 {vr(K0+16*T+4*s)}, v4, {pr(S_K)} offset:{64*s} {pol}')
        if T < 3: add_base_imm(g, S_K, 4096)
    g('s_setprio 1')
    g(f's_cmp_ge_u32 s{S_WAVE}, 8')
    g('s_cbranch_scc1 L_grp2')
    if g.o.get('onecopy'):
        issue_v(g, V0)
        g.label('L_grp2')
        g.stamp(2)
        lds_wait_ge(g, 'qf', C_QF, 1, 4, sleep=4)
        g.stamp(3)
        emit_qk_softmax(g, 0)
        g(f's_cmp_lt_u32 s{S_WAVE}, 8')
        g('s_cbranch_scc1 L_pv')
        issue_v(g, V0)
    else:
        issue_v(g, V0)
        g.stamp(2)
        lds_wait_ge(g, 'qf', C_QF, 1, 4, sleep=4)
        g.stamp(3)
        emit_qk_softmax(g, 16)
        g('s_branch L_pv')
        g.label('L_grp2')
        g.stamp(2)
        lds_wait_ge(g, 'qf', C_QF, 1, 4, sleep=4)
        g.stamp(3)
        emit_qk_softmax(g, 0)
        issue_v(g, V0)
    g.label('L_pv')
    M = 152; LS = 154; AC = 144
    g(f's_sub_u32 s{S_T2}, s{S_WAVE}, 4')
    g(f's_lshl_b32 s{S_T0}, s{S_T2}, 10')
    g('v_lshlrev_b32 v7, 4, v0')
    g(f'v_add_u32 v4, s{S_T0}, v7')
    g('v_lshrrev_b32 v6, 3, v1')
    g('v_lshlrev_b32 v6, 3, v6')
    g(f's_lshl_b32 s{S_T0}, s{S_T2}, 4')
    g(f'v_add_u32 v5, s{S_T0}, v6')
    g('v_mov_b32 v12, 0')
    g(f'ds_read_b32 v14, v12 offset:{C_TAG}')
    g(f'v_mov_b32 v10, v{M}')
    g(f'v_mov_b32 v11, v{LS}')
    g(f'ds_write_b64 v5, v[10:11] offset:{L_AS}')
    g(f's_lshl_b32 s{S_T0}, s{S_HKV}, 1')
    g(f's_add_u32 s{S_T0}, s{S_T0}, s{S_BB}')
    g(f's_lshl_b32 s{S_T0}, s{S_T0}, 3')
    g(f's_add_u32 s{S_T0}, s{S_T0}, s{S_SP}')
    g(f's_lshl_b32 s{S_T1}, s{S_T0}, 10')
    set_ws_base(g, S_B, S_T1, WS_A)
    g(f's_lshl_b32 s{S_T1}, s{S_T0}, 7')
    set_ws_base(g, S_B2, S_T1, WS_S)
    g('v_mov_b32 v13, 1')
    for T in range(4):
        g(f's_waitcnt vmcnt({12 - 4*T})')
        for i in range(4):
            a = AC + 4*(i & 1)
            g(f'v_mfma_f32_16x16x32_bf16 {vr(a)}, {vr(V0+16*T+4*i)}, {vr(K0+16*T+4*i)}, {vr(a)}')
    g.stamp(6)
    g.nop(8)
    for r in range(4): g(f'v_add_f32 v{AC+r}, v{AC+r}, v{AC+4+r}')
    g(f'ds_write_b128 v4, {vr(AC)} offset:{L_AO}')
    g(f's_mov_b64 {pr(S_SV)}, exec')
    g('s_waitcnt lgkmcnt(0)')
    g('s_mov_b64 exec, 1')
    g(f'ds_add_rtn_u32 v13, v12, v13 offset:{C_ACNT}')
    g('s_waitcnt lgkmcnt(0)')
    g(f'v_readfirstlane_b32 s{S_T0}, v13')
    g(f's_mov_b64 exec, {pr(S_SV)}')
    g(f's_cmp_lg_u32 s{S_T0}, 7')
    g('s_cbranch_scc1 L_end_stamp')
    ST = 16; OV = 32
    for w in range(8):
        g(f'ds_read_b64 v[{ST+2*w}:{ST+2*w+1}], v6 offset:{L_AS + 16*w}')
    for w in range(8):
        g(f'ds_read_b128 {vr(OV+4*w)}, v7 offset:{L_AO + 1024*w}')
    g('s_waitcnt lgkmcnt(8)')
    g(f'v_max3_f32 v8, v{ST}, v{ST+2}, v{ST+4}')
    g(f'v_max3_f32 v9, v{ST+6}, v{ST+8}, v{ST+10}')
    g(f'v_max3_f32 v8, v8, v{ST+12}, v{ST+14}')
    g(f'v_max_f32 v8, v8, v9')
    g('v_and_b32 v8, 0xffffff00, v8')
    for w in range(8): g(f'v_sub_f32 v{ST+2*w}, v{ST+2*w}, v8')
    for w in range(8): g(f'v_exp_f32 v{ST+2*w}, v{ST+2*w}')
    g('v_mov_b32 v10, 0')
    g('v_mov_b32 v11, 0')
    g(f'v_mul_f32 v9, v{ST}, v{ST+1}')
    for w in range(1, 8): g(f'v_fmac_f32 v9, v{ST+2*w}, v{ST+2*w+1}')
    g('s_waitcnt lgkmcnt(0)')
    for r in range(4):
        g(f'v_mul_f32 v{64+r}, v{ST}, v{OV+r}')
    for w in range(1, 8):
        for r in range(4):
            g(f'v_fmac_f32 v{64+r}, v{ST+2*w}, v{OV+4*w+r}')
    tag_insert(g, 68, 64, 14)
    tag_insert(g, 72, 8, 14)
    g('v_lshlrev_b32 v5, 1, v6')
    g('v_and_b32 v4, 0x37, v0')
    g('v_cmp_eq_u32_e32 vcc, 0, v4')
    if g.o.get('fastA'):
        g(f'v_add_u32 v13, {WS_ALT}, v7')
        g(f'v_add_u32 v12, {WS_ALT}, v5')
        g(f'global_store_dwordx4 v13, {vr(68)}, {pr(S_B)}')
        g(f's_and_saveexec_b64 {pr(S_SV)}, vcc')
        g(f'global_store_dwordx4 v12, {vr(72)}, {pr(S_B2)}')
        g(f'global_store_dwordx4 v5, {vr(72)}, {pr(S_B2)} sc1')
        g(f's_mov_b64 exec, {pr(S_SV)}')
        g(f'global_store_dwordx4 v7, {vr(68)}, {pr(S_B)} sc1')
    else:
        g(f'global_store_dwordx4 v7, {vr(68)}, {pr(S_B)} sc1')
        g(f's_and_saveexec_b64 {pr(S_SV)}, vcc')
        g(f'global_store_dwordx4 v5, {vr(72)}, {pr(S_B2)} sc1')
        g(f's_mov_b64 exec, {pr(S_SV)}')

def generate(stamps=False, pol='nt', opts=None):
    g = G(stamps, pol, opts)
    g('s_cmp_ge_u32 s2, 256')
    g('s_cbranch_scc1 L_end')
    g.stamp(0)
    g('s_load_dwordx16 s[4:19], s[0:1], 0')
    g('s_load_dwordx8 s[20:27], s[0:1], 64')
    g('v_lshrrev_b32 v3, 6, v0')
    g('v_and_b32 v0, 63, v0')
    g(f'v_readfirstlane_b32 s{S_WAVE}, v3')
    g(f'v_and_b32 v{V_N}, 15, v0')
    g(f'v_lshrrev_b32 v{V_G}, 4, v0')
    g(f's_and_b32 s{S_XCD}, s2, 7')
    g(f's_lshr_b32 s{S_SLOT}, s2, 3')
    g(f's_lshr_b32 s{S_HKV}, s{S_SLOT}, 4')
    g(f's_lshl_b32 s{S_T0}, s{S_XCD}, 1')
    g(f's_add_u32 s{S_HKV}, s{S_HKV}, s{S_T0}')
    g(f's_bfe_u32 s{S_BB}, s{S_SLOT}, 0x10003')
    g(f's_and_b32 s{S_SP}, s{S_SLOT}, 7')
    g(f's_mov_b32 s{S_L2E}, 0x{LOG2E:08x}')
    if g.o.get('skew'):
        g(f's_mul_i32 s91, s{S_XCD}, 13')
        g(f's_mov_b32 s92, s91')
        g(f's_mov_b32 s90, 13')
        g(f's_sub_u32 s{S_T0}, s{S_XCD}, 4')
        g(f's_mul_i32 s{S_T1}, s{S_T0}, 23')
        g(f's_add_u32 s{S_T1}, s{S_T1}, 52')
        g(f's_mul_i32 s{S_T2}, s{S_T0}, 3')
        g(f's_add_u32 s{S_T2}, s{S_T2}, 52')
        g(f's_cmp_ge_u32 s{S_XCD}, 4')
        g(f's_cselect_b32 s90, 23, s90')
        g(f's_cselect_b32 s91, s{S_T1}, s91')
        g(f's_cselect_b32 s92, s{S_T2}, s92')
    else:
        g(f's_mov_b32 s90, 18')
        g(f's_mul_i32 s91, s{S_XCD}, 18')
    tag_consts(g)
    g(f's_cmp_ge_u32 s{S_WAVE}, 4')
    g('s_cbranch_scc1 L_attn')
    g('s_setprio 3')
    g(f's_cmp_lg_u32 s{S_WAVE}, 0')
    g('s_cbranch_scc1 L_noinit')
    g('v_lshlrev_b32 v3, 4, v0')
    for r in range(4, 8): g(f'v_mov_b32 v{r}, 0')
    g('ds_write_b128 v3, v[4:7]')
    g.label('L_noinit')
    g(f's_cmp_ge_u32 s{S_SLOT}, 26')
    g('s_cbranch_scc1 L_roleO')
    XR = 124; XF = 136
    g('v_lshrrev_b32 v3, 5, v0')
    g('v_and_b32 v4, 31, v0')
    g('v_mul_u32_u24 v3, 1152, v3')
    g('v_mad_u32_u24 v3, v4, 36, v3')
    xp = g.o.get('xpol', '')
    g('v_mov_b32 v15, v3')
    def xloads():
        g(f'global_load_dwordx4 {vr(XR)}, v15, {pr(S_X)} {xp}')
        g(f'global_load_dwordx4 {vr(XR+4)}, v15, {pr(S_X)} offset:16 {xp}')
        g(f'global_load_dword v{XR+8}, v15, {pr(S_X)} offset:32 {xp}')
    XPOS = g.o.get('xpos', 0)
    S_HALF = S_RS
    S_A, S_R = S_T2, S_T3
    if g.o.get('remap', True):
        g(f's_cmp_ge_u32 s{S_SLOT}, s90')
        g('s_cbranch_scc1 L_tileLight')
        g(f's_add_u32 s{S_ID}, s91, s{S_SLOT}')
        g(f's_and_b32 s{S_HALF}, s{S_ID}, 1')
        g(f's_lshr_b32 s{S_A}, s{S_ID}, 2')
        g(f's_and_b32 s{S_R}, s{S_ID}, 2')
        g(f's_sub_u32 s{S_T0}, s{S_ID}, 104')
        g(f's_lshr_b32 s{S_T0}, s{S_T0}, 1')
        g(f's_add_u32 s{S_T0}, s{S_T0}, 6')
        g(f's_cmp_ge_u32 s{S_ID}, 104')
        g(f's_cselect_b32 s{S_A}, s{S_T0}, s{S_A}')
        g(f's_cselect_b32 s{S_R}, 3, s{S_R}')
        g('s_branch L_tileCT')
        g.label('L_tileLight')
        if g.o.get('skew'):
            g(f's_sub_u32 s{S_T0}, s{S_SLOT}, s90')
            g(f's_add_u32 s{S_T0}, s{S_T0}, s92')
        else:
            g(f's_sub_u32 s{S_T0}, s{S_SLOT}, 18')
            g(f's_lshl_b32 s{S_T0}, s{S_T0}, 3')
            g(f's_add_u32 s{S_T0}, s{S_T0}, s{S_XCD}')
        g(f's_mov_b32 s{S_F}, s{S_T0}')
        g(f's_and_b32 s{S_HALF}, s{S_T0}, 1')
        g(f's_lshr_b32 s{S_A}, s{S_T0}, 1')
        g(f's_sub_u32 s{S_T1}, s{S_A}, 26')
        g(f's_cmp_ge_u32 s{S_T0}, 52')
        g(f's_cselect_b32 s{S_A}, s{S_T1}, s{S_A}')
        g(f's_cselect_b32 s{S_R}, 3, 1')
        g.label('L_tileCT')
        g(f's_lshl_b32 s{S_T0}, s{S_A}, 2')
        g(f's_add_u32 s{S_T0}, s{S_T0}, s{S_R}')
    elif g.o.get('lremap'):
        K0s, TT, MM = 96, 97, 98
        g(f's_lshl_b32 s{K0s}, s{S_XCD}, 1')
        g(f's_sub_u32 s{K0s}, 2, s{K0s}')
        g(f's_and_b32 s{K0s}, s{K0s}, 7')
        g(f's_cmp_ge_u32 s{S_SLOT}, 18')
        g('s_cbranch_scc1 L_tileLight')
        g(f's_sub_u32 s{TT}, s{S_SLOT}, s{K0s}')
        g(f's_and_b32 s{MM}, s{TT}, 7')
        g(f's_cmp_lt_u32 s{MM}, 2')
        g('s_cbranch_scc0 L_lrGU')
        g(f's_cmp_lt_u32 s{S_SLOT}, s{K0s}')
        g('s_cbranch_scc1 L_lrGU')
        g(f's_lshr_b32 s{TT}, s{TT}, 3')
        g(f's_lshl_b32 s{TT}, s{TT}, 1')
        g(f's_add_u32 s{MM}, s{MM}, s{TT}')
        g(f's_add_u32 s{TT}, s{MM}, 2')
        g(f's_cmp_lt_u32 s{MM}, 2')
        g(f's_cselect_b32 s{TT}, s{MM}, s{TT}')
        g('s_branch L_lrQ')
        g.label('L_lrGU')
        g(f's_mov_b32 s{TT}, s{S_SLOT}')
        g.label('L_lrGU2')
        g(f's_mul_i32 s{S_T0}, s{S_XCD}, 18')
        g(f's_add_u32 s{S_T0}, s{S_T0}, s{TT}')
        g(f's_and_b32 s{S_HALF}, s{S_T0}, 1')
        g(f's_lshr_b32 s{S_T0}, s{S_T0}, 1')
        g('s_branch L_tileCT')
        g.label('L_tileLight')
        g(f's_sub_u32 s{MM}, s{S_SLOT}, 18')
        g(f's_add_u32 s{TT}, s{MM}, 2')
        g(f's_cmp_lt_u32 s{MM}, 2')
        g('s_cbranch_scc1 L_lrQ')
        g(f's_sub_u32 s{MM}, s{MM}, 2')
        g(f's_cmp_eq_u32 s{K0s}, 0')
        g(f's_cselect_b32 s{S_T1}, 6, 4')
        g(f's_add_u32 s{TT}, s{MM}, 2')
        g(f's_cmp_ge_u32 s{MM}, s{S_T1}')
        g('s_cbranch_scc1 L_lrQ')
        g(f's_lshr_b32 s{TT}, s{MM}, 1')
        g(f's_lshl_b32 s{TT}, s{TT}, 3')
        g(f's_and_b32 s{MM}, s{MM}, 1')
        g(f's_add_u32 s{TT}, s{TT}, s{MM}')
        g(f's_add_u32 s{TT}, s{TT}, s{K0s}')
        g('s_branch L_lrGU2')
        g.label('L_lrQ')
        g(f's_and_b32 s{S_HALF}, s{TT}, 1')
        g(f's_lshl_b32 s{S_T0}, s{S_XCD}, 3')
        g(f's_add_u32 s{S_T0}, s{S_T0}, s{TT}')
        g(f's_lshr_b32 s{S_T0}, s{S_T0}, 1')
        g(f's_add_u32 s{S_T0}, s{S_T0}, 72')
        g.label('L_tileCT')
    else:
        g(f's_cmp_ge_u32 s{S_SLOT}, 18')
        g('s_cbranch_scc1 L_tileLight')
        g(f's_mul_i32 s{S_ID}, s{S_XCD}, 18')
        g(f's_add_u32 s{S_ID}, s{S_ID}, s{S_SLOT}')
        if g.o.get('fearly'):
            g(f's_sub_u32 s96, s{S_ID}, 72')
            g(f's_add_u32 s97, s{S_ID}, 36')
            g(f's_cmp_lt_u32 s{S_ID}, 72')
            g(f's_cselect_b32 s96, s97, s96')
            g(f's_mul_i32 s97, s96, 43')
            g(f's_lshr_b32 s97, s97, 8')
            g(f's_mul_i32 s98, s97, 6')
            g(f's_sub_u32 s96, s96, s98')
            g(f's_add_u32 s98, s96, 2')
            g(f's_cmp_lt_u32 s96, 2')
            g(f's_cselect_b32 s96, s96, s98')
            g(f's_lshl_b32 s97, s97, 3')
            g(f's_add_u32 s96, s96, s97')
            g(f's_lshr_b32 s97, s{S_ID}, 1')
            g(f's_lshl_b32 s97, s97, 3')
            g(f's_and_b32 s98, s{S_ID}, 1')
            g(f's_add_u32 s97, s97, s98')
            g(f's_add_u32 s97, s97, 2')
            g(f's_cmp_lt_u32 s{S_ID}, 36')
            g(f's_cselect_b32 s{S_ID}, s97, s96')
        g(f's_and_b32 s{S_HALF}, s{S_ID}, 1')
        g(f's_lshr_b32 s{S_T0}, s{S_ID}, 1')
        g('s_branch L_tileCT')
        g.label('L_tileLight')
        g(f's_sub_u32 s{S_T1}, s{S_SLOT}, 18')
        g(f's_and_b32 s{S_HALF}, s{S_T1}, 1')
        g(f's_lshl_b32 s{S_T0}, s{S_XCD}, 3')
        g(f's_add_u32 s{S_T0}, s{S_T0}, s{S_T1}')
        g(f's_lshr_b32 s{S_T0}, s{S_T0}, 1')
        g(f's_add_u32 s{S_T0}, s{S_T0}, 72')
        g.label('L_tileCT')
    g(f's_lshl_b32 s{S_TILE}, s{S_T0}, 1')
    g(f's_add_u32 s{S_TILE}, s{S_TILE}, s{S_HALF}')
    g(f's_mov_b32 s94, s{S_T0}')
    g(f's_mov_b32 s{S_STR}, 9216')
    g(f's_mov_b32 s{S_T1}, 0')
    g(f's_cmp_ge_u32 s{S_T0}, 36')
    g(f's_cselect_b32 s{S_T1}, 36, s{S_T1}')
    g(f's_cmp_ge_u32 s{S_T0}, 72')
    g(f's_cselect_b32 s{S_T1}, 72, s{S_T1}')
    g(f's_cselect_b32 s{S_STR}, 8192, s{S_STR}')
    g(f's_sub_u32 s{S_T0}, s{S_T0}, s{S_T1}')
    g(f's_mul_i32 s{S_T1}, s{S_HALF}, 288')
    g(f's_mul_i32 s{S_T2}, s{S_WAVE}, 72')
    g(f's_add_u32 s{S_RS}, s{S_T1}, s{S_T2}')
    if g.o.get('qwide'):
        g(f's_sub_u32 s96, s{S_SLOT}, 18')
        g(f's_mul_i32 s97, s96, 72')
        g(f's_lshl_b32 s98, s{S_XCD}, 2')
        g(f's_add_u32 s98, s98, s{S_WAVE}')
        g(f's_cmp_ge_u32 s{S_SLOT}, 18')
        g(f's_cselect_b32 s{S_RS}, s97, s{S_RS}')
        g(f's_cselect_b32 s{S_T0}, s98, s{S_T0}')
    g(f's_mul_i32 s{S_T1}, s{S_RS}, s{S_STR}')
    g(f's_lshl_b32 s{S_T0}, s{S_T0}, 8')
    g(f's_add_u32 s{S_T1}, s{S_T1}, s{S_T0}')
    g(f'v_mul_lo_u32 v3, v{V_G}, s{S_STR}')
    g(f'v_lshl_add_u32 v3, v{V_N}, 4, v3')
    g(f's_lshl_b32 s{S_STR}, s{S_STR}, 2')
    g(f's_mov_b32 s95, s{S_T1}')
    kernarg_ready(g, 'L_nogen')
    if XPOS == 0: xloads()
    g(f's_mov_b64 {pr(S_B)}, {pr(S_GATE)}')
    g('s_cmp_ge_u32 s94, 36')
    g(f's_cselect_b64 {pr(S_B)}, {pr(S_UP)}, {pr(S_B)}')
    g('s_cmp_ge_u32 s94, 72')
    g(f's_cselect_b64 {pr(S_B)}, {pr(S_WQ)}, {pr(S_B)}')
    add_base(g, S_B, 95)
    W0 = 16
    for i in range(18):
        g(f'global_load_dwordx4 {vr(W0+4*i)}, v3, {pr(S_B)} {pol}')
        if i < 17: add_base(g, S_B, S_STR)
        if XPOS == i + 1: xloads()
    g('s_barrier')
    g.stamp(2)
    g(f's_cmp_lg_u32 s{S_WAVE}, 1')
    g('s_cbranch_scc1 L_notag1')
    emit_tag_publish(g, qtile=(g.o.get('prew', 0) > 1))
    g.label('L_notag1')
    g(f's_waitcnt vmcnt({18 - XPOS})')
    emit_layernorm(g, XR, XF)
    make_masks(g, MK, V_N, 12)
    g(f'v_lshrrev_b32 v3, 3, v{V_N}')
    g('v_mul_u32_u24 v3, 576, v3')
    g(f'v_add_u32 v3, v3, v{V_G}')
    g(f'v_add_u32 v3, s{S_RS}, v3')
    g('v_lshlrev_b32 v3, 2, v3')
    XV = 136
    for i in range(18):
        g(f'ds_read_b32 v{XV+i}, v3 offset:{L_XD + 16*i}')
    ACC = 156; BT = 160
    for r in range(4): g(f'v_mov_b32 v{ACC+r}, 0')
    g('s_waitcnt lgkmcnt(0)')
    for i in range(18):
        b = BT + 4*(i & 1)
        for r in range(4):
            g(f'v_and_b32 v{b+r}, v{XV+i}, v{MK+r}')
        g(f's_waitcnt vmcnt({17 - i})')
        g.nop(1)
        g(f'v_mfma_f32_16x16x32_bf16 {vr(ACC)}, {vr(W0+4*i)}, {vr(b)}, {vr(ACC)}')
    g.stamp(3)
    get_tag_from_lds(g, 12, VTAG)
    if g.o.get('qwide'):
        g(f's_cmp_lt_u32 s{S_SLOT}, 18')
        g('s_cbranch_scc1 L_l1tall')
        tag_insert(g, 160, ACC, VTAG)
        g(f's_sub_u32 s{S_T0}, s{S_SLOT}, 18')
        g(f's_lshl_b32 s{S_T1}, s{S_XCD}, 3')
        g(f's_add_u32 s{S_T0}, s{S_T0}, s{S_T1}')
        g(f's_lshl_b32 s{S_T0}, s{S_T0}, 2')
        g(f's_add_u32 s{S_T0}, s{S_T0}, s{S_WAVE}')
        g(f's_lshl_b32 s{S_T0}, s{S_T0}, 10')
        set_ws_base(g, S_B, S_T0, WS_QW)
        g('v_lshlrev_b32 v3, 4, v0')
        g('v_add_u32 v4, 0x40000, v3')
        g(f'global_store_dwordx4 v4, {vr(160)}, {pr(S_B)}')
        g(f'global_store_dwordx4 v3, {vr(160)}, {pr(S_B)} sc1')
        g('s_branch L_l1pubdone')
        g.label('L_l1tall')
    g(f's_lshl_b32 s{S_T0}, s{S_WAVE}, 10')
    g('v_lshlrev_b32 v3, 4, v0')
    g(f'v_add_u32 v4, s{S_T0}, v3')
    g(f'ds_write_b128 v4, {vr(ACC)} offset:{L_Y1}')
    arrive_last(g, C_L1CNT, 3, 'L_l1pubdone')
    g('v_lshlrev_b32 v3, 4, v0')
    for w in range(4):
        g(f'ds_read_b128 {vr(124+4*w)}, v3 offset:{L_Y1 + 1024*w}')
    g(f's_lshl_b32 s{S_T0}, s{S_TILE}, 10')
    set_ws_base(g, S_B, S_T0, WS_L1)
    g('s_waitcnt lgkmcnt(0)')
    for j in range(1, 4):
        for r in range(4): g(f'v_add_f32 v{124+r}, v{124+r}, v{124+4*j+r}')
    tag_insert(g, 160, 124, VTAG)
    if g.o.get('qfast'):
        g(f'v_add_u32 v4, {WS_QALT}, v3')
        g(f's_cmp_lt_u32 s{S_TILE}, 144')
        g('s_cbranch_scc1 L_noqalt')
        g(f'global_store_dwordx4 v4, {vr(160)}, {pr(S_B)}')
        g.label('L_noqalt')
    pub_store(g, 'v3', vr(160), pr(S_B), True)
    g.label('L_l1pubdone')
    g.stamp(4)
    g(f's_cmp_lg_u32 s{S_WAVE}, 1')
    g('s_cbranch_scc1 L_noq1')
    emit_qpoll(g, g.o.get('qdelay', 0))
    g.label('L_noq1')
    g(f's_cmp_ge_u32 s{S_SLOT}, s90')
    g('s_cbranch_scc1 L_roleQtail')
    S_RB = S_TILE
    g(f's_add_u32 s{S_T2}, s91, s{S_SLOT}')
    g(f's_mul_i32 s{S_RB}, s{S_T2}, 171')
    g(f's_lshr_b32 s{S_RB}, s{S_RB}, 9')
    g(f's_mul_i32 s{S_T1}, s{S_RB}, 3')
    g(f's_sub_u32 s{S_CB}, s{S_T2}, s{S_T1}')
    def hpoll_here():
        g(f's_cmp_lg_u32 s{S_WAVE}, 0')
        g('s_cbranch_scc1 L_noh')
        if g.o.get('hlate', 0) >= 2:
            if g.o.get('hlate') == 100:
                lds_wait_ge(g, 'hv', C_QF, 1, 12, sleep=8)
            else:
                lds_wait_ge(g, 'hv', C_VISS, g.o.get('hlate') - 1, 12, sleep=8)
        emit_hpoll(g, S_RB)
        g.label('L_noh')
    if g.o.get('hlate', 0) != 1: hpoll_here()
    g(f's_mul_i32 s{S_T0}, s{S_RB}, 96')
    g(f's_mul_i32 s{S_T1}, s{S_WAVE}, 24')
    g(f's_add_u32 s{S_T0}, s{S_T0}, s{S_T1}')
    g(f's_mul_i32 s{S_T0}, s{S_T0}, 1152')
    g(f's_mul_i32 s{S_T1}, s{S_CB}, 384')
    g(f's_add_u32 s{S_T0}, s{S_T0}, s{S_T1}')
    g(f's_mov_b64 {pr(S_B)}, {pr(S_DOWN)}')
    add_base(g, S_B, S_T0)
    l2_lane_offsets(g)
    WD = 88
    if not g.o.get('early'):
        if g.o.get('fgateA'):
            lds_wait_ge(g, 'facnt', C_ACNT, g.o.get('fgateA'), 12, sleep=2)
        else:
            lds_wait_ge(g, 'viss', C_VISS, g.o.get('fgate', 8), 12, sleep=4)
    if g.o.get('hlate') == 1:
        g(f's_mov_b64 s[86:87], {pr(S_B)}')
        g('v_mov_b32 v56, v5'); g('v_mov_b32 v57, v6')
        hpoll_here()
        g(f's_mov_b64 {pr(S_B)}, s[86:87]')
        g('v_mov_b32 v5, v56'); g('v_mov_b32 v6, v57')
    if g.o.get('nolate'):
        g('s_branch L_end_stamp')
    if g.o.get('ggate'):
        count_in(g)
        global_gate(g, g.o.get('ggate'))
    if g.o.get('gg2'):
        count_in(g)
        go_wait(g)
    l2_issue(g, WD, 3)
    l2_prep(g, 48, S_RB, WS_F, 60, 62)
    lds_wait_ge(g, 'hf', C_HF, 1, 12)
    g(f'v_lshrrev_b32 v3, 3, v{V_N}')
    g('v_mul_u32_u24 v3, 96, v3')
    g(f'v_lshl_add_u32 v3, v{V_G}, 1, v3')
    g(f's_mul_i32 s{S_T0}, s{S_WAVE}, 24')
    g(f'v_add_u32 v3, s{S_T0}, v3')
    g('v_lshlrev_b32 v3, 2, v3')
    P = 16
    for i in range(3):
        g(f'ds_read_b64 v[{P+2*i}:{P+2*i+1}], v3 offset:{L_HD + 32*i}')
    l2_compute(g, WD, 3, P, 24, 40, waitvm=lambda i: 6 - 3*i)
    l2_finish(g, 24, 60, 62, 64)
    g('s_branch L_end_stamp')
    g.label('L_roleQtail')
    if g.o.get('ggate') or g.o.get('gg2'): count_in(g)
    if g.o.get('gg2'):
        sk = g.u('nodet')
        g(f's_cmp_lg_u32 s{S_WAVE}, 1')
        g(f's_cbranch_scc1 {sk}')
        g(f's_cmp_lg_u32 s{S_F}, 51')
        g(f's_cbranch_scc1 {sk}')
        detector(g, g.o.get('gg2'))
        g.label(sk)
    g(f's_and_b32 s{S_T0}, s{S_WAVE}, 1')
    if g.o.get('fin2'):
        g(f's_cmp_lg_u32 s{S_T0}, 0')
    else:
        g(f's_cmp_lg_u32 s{S_WAVE}, 0')
    g('s_cbranch_scc1 L_end_stamp')
    if not g.o.get('remap', True):
        g(f's_sub_u32 s{S_F}, s{S_SLOT}, 18')
        g(f's_lshl_b32 s{S_F}, s{S_F}, 3')
        g(f's_add_u32 s{S_F}, s{S_F}, s{S_XCD}')
    g(f's_cmp_ge_u32 s{S_F}, 36')
    g('s_cbranch_scc1 L_end_stamp')
    if g.o.get('fin2'):
        g(f's_cmp_eq_u32 s{S_WAVE}, 2')
        g('s_cbranch_scc1 L_ffg')
        emit_final(g)
        g('s_branch L_end_stamp')
        g.label('L_ffg')
        emit_ffgather(g)
    else:
        emit_final_old(g)
    g('s_branch L_end_stamp')
    g.label('L_roleO')
    emit_roleO(g)
    g('s_branch L_end_stamp')
    g.label('L_attn')
    emit_attn(g)
    g.label('L_end_stamp')
    if stamps:
        g.stamp(7)
        g('s_waitcnt lgkmcnt(0) vmcnt(0)')
        g('s_mov_b64 exec, -1')
        g('v_cmp_eq_u32_e32 vcc, 0, v0')
        g(f's_and_saveexec_b64 {pr(S_SV)}, vcc')
        g('s_cbranch_execz L_end')
        g(f's_mul_i32 s{S_T0}, s2, 12')
        g(f's_add_u32 s{S_T0}, s{S_T0}, s{S_WAVE}')
        g(f's_lshl_b32 s{S_T0}, s{S_T0}, 6')
        g(f's_add_u32 s{S_T0}, s{S_T0}, 0x{WS_STAMP:x}')
        add_base(g, S_WS, S_T0)
        g('v_mov_b32 v1, 0')
        for j in range(8):
            g(f'v_mov_b32 v2, s{64+2*j}'); g(f'v_mov_b32 v3, s{65+2*j}')
            g(f'global_store_dwordx2 v1, v[2:3], {pr(S_WS)} offset:{8*j}')
            g.nop(2)
    g.label('L_end')
    g('s_endpgm')
    return g


DOC = """
; ---------------------------------------------------------------------------------------------
;       slot 18..25  wq tile; 36 of these WGs also produce the final outputs
; consumers drop the tag bytes, so results never depend on the tag.  Write-through (sc1) copies
; ---------------------------------------------------------------------------------------------
"""

if __name__ == '__main__':
    ap = argparse.ArgumentParser()
    ap.add_argument('-o', default='k.s')
    ap.add_argument('--stamps', action='store_true')
    ap.add_argument('--pol', default='nt')
    ap.add_argument('--nopoll', default='')
    ap.add_argument('--nopub', action='store_true')
    ap.add_argument('--early', action='store_true')
    ap.add_argument('--dbl', action='store_true')
    ap.add_argument('--noremap', action='store_true')
    ap.add_argument('--fastA', action='store_true')
    ap.add_argument('--prew', type=int, default=0)
    ap.add_argument('--ffsl', type=int, default=2)
    ap.add_argument('--ownsl', type=int, default=4)
    ap.add_argument('--qwide', action='store_true')
    ap.add_argument('--fearly', action='store_true')
    ap.add_argument('--onecopy', action='store_true')
    ap.add_argument('--lremap', action='store_true')
    ap.add_argument('--qprobeO', type=int, default=0)
    ap.add_argument('--qmask', type=int, default=1)
    ap.add_argument('--hlate', type=int, default=0)
    ap.add_argument('--habk', default='')
    ap.add_argument('--abmask', type=int, default=3)
    ap.add_argument('--ybar', action='store_true')
    ap.add_argument('--touchB', action='store_true')
    ap.add_argument('--qfast', action='store_true')
    ap.add_argument('--xpos', type=int, default=0)
    ap.add_argument('--xpol', default='')
    ap.add_argument('--tlb', action='store_true')
    ap.add_argument('--gg2', type=int, default=0)
    ap.add_argument('--ogg2', action='store_true')
    ap.add_argument('--nolate', type=int, default=0)
    ap.add_argument('--fin2', action='store_true')
    ap.add_argument('--osplit', type=int, default=0)
    ap.add_argument('--skew', action='store_true')
    ap.add_argument('--qprobe', type=int, default=0)
    ap.add_argument('--fgateA', type=int, default=0)
    ap.add_argument('--ggate', type=int, default=0)
    ap.add_argument('--ogg', type=int, default=0)
    ap.add_argument('--warm', action='store_true')
    ap.add_argument('--ownwait', type=int, default=8)
    ap.add_argument('--ogate', type=int, default=8)
    ap.add_argument('--fgate', type=int, default=8)
    ap.add_argument('--oearly', type=int, default=0)
    ap.add_argument('--stO', action='store_true')
    ap.add_argument('--finpipe', type=int, default=0)
    ap.add_argument('--nokvil', action='store_true')
    ap.add_argument('--qdelay', type=int, default=0)
    ap.add_argument('--qdelayO', type=int, default=0)
    a = ap.parse_args()
    opts = {}
    if a.nopoll: opts['nopoll'] = a.nopoll.split(',')
    if a.early: opts['early'] = True
    opts['remap'] = not a.noremap; opts['fastA'] = a.fastA; opts['prew'] = a.prew; opts['ffsl'] = a.ffsl; opts['ownsl'] = a.ownsl; opts['qwide'] = a.qwide; opts['fearly'] = a.fearly; opts['onecopy'] = a.onecopy; opts['lremap'] = a.lremap; opts['qprobeO'] = a.qprobeO; opts['qmask'] = a.qmask; opts['hlate'] = a.hlate; opts['abmask'] = a.abmask; opts['habk'] = tuple(int(x) for x in a.habk.split(',')) if a.habk else None; opts['ybar'] = a.ybar; opts['touchB'] = a.touchB; opts['qfast'] = a.qfast; opts['xpos'] = a.xpos; opts['xpol'] = a.xpol; opts['tlb'] = a.tlb; opts['gg2'] = a.gg2; opts['ogg2'] = a.ogg2; opts['nolate'] = a.nolate; opts['fin2'] = a.fin2; opts['osplit'] = a.osplit; opts['skew'] = a.skew; opts['qprobe'] = a.qprobe; opts['fgateA'] = a.fgateA; opts['ggate'] = a.ggate; opts['ogg'] = a.ogg; opts['warm'] = a.warm; opts['ownwait'] = a.ownwait; opts['ogate'] = a.ogate; opts['fgate'] = a.fgate; opts['oearly'] = a.oearly; opts['stO'] = a.stO; opts['finpipe'] = a.finpipe; opts['kvil'] = not a.nokvil
    opts['dbl'] = a.dbl; opts['qdelay'] = a.qdelay; opts['qdelayO'] = a.qdelayO
    pol = a.pol
    g = generate(a.stamps, a.pol, opts)
    if a.nopub:
        g.L = [l for l in g.L if not ('global_store_dwordx4' in l and 'sc1' in l)]
    open(a.o, 'w').write(header(256, 768, LDS_SIZE) + DOC.lstrip('\n') + '\n'.join(g.L) + '\n' + footer(168))
    print(a.o, len(g.L), 'lines')
```

```python
import sys, argparse
from genlib import *

V_LANE, V_N, V_G = 0, 1, 2
WS_ALT = 0x300000 - WS_A
MK = 8
VTAG = 14

def arrive_last(g, cnt_off, last_val, skip_label):
    g('s_waitcnt lgkmcnt(0)')
    g('v_mov_b32 v12, 0')
    g('v_mov_b32 v13, 1')
    g(f's_mov_b64 {pr(S_SV)}, exec')
    g('s_mov_b64 exec, 1')
    g(f'ds_add_rtn_u32 v13, v12, v13 offset:{cnt_off}')
    g('s_waitcnt lgkmcnt(0)')
    g(f'v_readfirstlane_b32 s{S_T0}, v13')
    g(f's_mov_b64 exec, {pr(S_SV)}')
    g(f's_cmp_lg_u32 s{S_T0}, {last_val}')
    g(f's_cbranch_scc1 {skip_label}')

def set_ws_base(g, dst, off_sreg, const):
    g(f's_add_u32 s{off_sreg}, s{off_sreg}, {const}')
    g(f's_mov_b64 {pr(dst)}, {pr(S_WS)}')
    add_base(g, dst, off_sreg)

def dbgt(g, slot, invert=False):
    if not g.o.get('dbgt'): return
    g('s_memrealtime s[96:97]')
    g('s_waitcnt lgkmcnt(0)')
    if invert: g('s_not_b32 s96, s96')
    g('s_mov_b64 s[98:99], exec')
    g('s_mov_b64 exec, 1')
    g('v_mov_b32 v166, s96')
    g(f'v_mov_b32 v167, {4*slot}')
    g(f'global_atomic_umax v167, v166, {pr(S_DBG)} sc1')
    g('s_mov_b64 exec, s[98:99]')

def strip(g, regs):
    for r in regs: g(f'v_and_b32 v{r}, 0xffffff00, v{r}')

def pub_store(g, addr, data, base, local):
    if local and g.o.get('dbl'):
        g(f'global_store_dwordx4 {addr}, {data}, {base}')
    g(f'global_store_dwordx4 {addr}, {data}, {base} sc1')

def count_in(g):
    sk = g.u('ci')
    g(f's_cmp_lg_u32 s{S_WAVE}, 3')
    g(f's_cbranch_scc1 {sk}')
    lds_wait_ge(g, 'vi8', C_VISS, 8, 12, sleep=4)
    g('v_mov_b32 v12, 0')
    g('v_mov_b32 v13, 1')
    g(f's_mov_b64 {pr(S_SV)}, exec')
    g('s_mov_b64 exec, 1')
    g(f'global_atomic_add v12, v13, {pr(S_DBG)} sc1')
    g(f's_mov_b64 exec, {pr(S_SV)}')
    g.label(sk)

WS_QW = 0x40000
WS_QALT = 0x3A0000 - WS_L1
WS_G = 0x380000
C_GO = 44
def detector(g, thr):
    lp = g.u('dt_lp'); ok = g.u('dt_ok')
    g(f's_mov_b32 s{S_CNT}, {SPIN_LIMIT}')
    g.label(lp)
    g(f's_load_dword s{S_T0}, {pr(S_DBG)}, 0 glc')
    g('s_waitcnt lgkmcnt(0)')
    g(f's_cmp_ge_u32 s{S_T0}, {thr}')
    g(f's_cbranch_scc1 {ok}')
    g(f's_sub_u32 s{S_CNT}, s{S_CNT}, 1')
    g(f's_cbranch_scc1 {ok}')
    g('s_sleep 2')
    g(f's_branch {lp}')
    g.label(ok)
    g('v_lshlrev_b32 v4, 7, v0')
    g(f'v_mov_b32 v5, s{S_TAG}')
    g(f's_mov_b64 {pr(S_B2)}, {pr(S_WS)}')
    add_base_imm(g, S_B2, WS_G)
    g(f's_mov_b64 {pr(S_SV)}, exec')
    g('s_mov_b64 exec, 0xff')
    g(f'global_store_dword v4, v5, {pr(S_B2)} sc1')
    g(f's_mov_b64 exec, {pr(S_SV)}')

def go_wait(g):
    sk = g.u('gw_sk'); lp = g.u('gw_lp'); ok = g.u('gw_ok')
    g(f's_cmp_lg_u32 s{S_WAVE}, 2')
    g(f's_cbranch_scc1 {sk}')
    g(f's_lshl_b32 s{S_T0}, s{S_XCD}, 7')
    set_ws_base(g, S_B2, S_T0, WS_G)
    g(f's_mov_b32 s{S_CNT}, {SPIN_LIMIT}')
    g.label(lp)
    g(f's_load_dword s{S_T0}, {pr(S_B2)}, 0 glc')
    g('s_waitcnt lgkmcnt(0)')
    g(f's_cmp_eq_u32 s{S_T0}, s{S_TAG}')
    g(f's_cbranch_scc1 {ok}')
    g(f's_sub_u32 s{S_CNT}, s{S_CNT}, 1')
    g(f's_cbranch_scc1 {ok}')
    g('s_sleep 6')
    g(f's_branch {lp}')
    g.label(ok)
    g('v_mov_b32 v12, 0'); g('v_mov_b32 v13, 1')
    g(f'ds_write_b32 v12, v13 offset:{C_GO}')
    g.label(sk)
    lds_wait_ge(g, 'go', C_GO, 1, 12, sleep=2)

def global_gate(g, thr):
    lp = g.u('gg_lp'); ok = g.u('gg_ok')
    g(f's_mov_b32 s{S_CNT}, {SPIN_LIMIT}')
    g.label(lp)
    g(f's_load_dword s{S_T0}, {pr(S_DBG)}, 0 glc')
    g('s_waitcnt lgkmcnt(0)')
    g(f's_cmp_ge_u32 s{S_T0}, {thr}')
    g(f's_cbranch_scc1 {ok}')
    g(f's_sub_u32 s{S_CNT}, s{S_CNT}, 1')
    g(f's_cbranch_scc1 {ok}')
    g('s_sleep 2')
    g(f's_branch {lp}')
    g.label(ok)

def kernarg_ready(g, lab):
    g('s_waitcnt lgkmcnt(0)')
    g.stamp(1)
    dbgt(g, 0, invert=True)
    dbgt(g, 6)
    g(f's_cmp_lg_u32 s{S_WAVE}, 1')
    g(f's_cbranch_scc1 {lab}')
    g(f's_load_dword s{S_TAG}, {pr(S_WS)}, {WS_GEN}')
    g.label(lab)

def emit_tag_publish(g, qtile=False):
    g('s_waitcnt lgkmcnt(0)')
    g(f's_add_u32 s{S_TAG}, s{S_TAG}, 1')
    g(f's_and_b32 s{S_T0}, s{S_TAG}, 0xff')
    g(f's_mul_i32 s{S_T0}, s{S_T0}, 0x01010100')
    g(f's_mov_b32 s{S_T1}, s{S_TAG}')
    g(f's_xor_b32 s{S_TAG}, s{S_TAG}, s{S_T0}')
    g('v_mov_b32 v4, 0')
    g(f'v_mov_b32 v5, s{S_TAG}')
    g(f'v_mov_b32 v6, s{S_T1}')
    g(f'ds_write_b32 v4, v5 offset:{C_TAG}')
    g(f'ds_write_b32 v4, v6 offset:{C_RAWG}')
    g('s_waitcnt lgkmcnt(0)')
    g('v_mov_b32 v5, 1')
    g(f'ds_write_b32 v4, v5 offset:{C_TAGF}')
    if g.o.get('prew'):
        g(f's_not_b32 s{S_T0}, s{S_TAG}')
        g(f'v_mov_b32 v7, s{S_T0}')
        tag_insert(g, 144, 144, 7)
        g(f's_lshl_b32 s{S_T0}, s{S_HKV}, 1')
        g(f's_add_u32 s{S_T0}, s{S_T0}, s{S_BB}')
        g(f's_lshl_b32 s{S_T0}, s{S_T0}, 3')
        g(f's_add_u32 s{S_T0}, s{S_T0}, s{S_SP}')
        g(f's_lshl_b32 s{S_T1}, s{S_T0}, 10')
        set_ws_base(g, 86, S_T1, WS_A + WS_ALT)
        g('v_lshlrev_b32 v6, 4, v0')
        g(f'global_store_dwordx4 v6, {vr(144)}, s[86:87]')
        g(f's_lshl_b32 s{S_T1}, s{S_T0}, 7')
        set_ws_base(g, 86, S_T1, WS_S + WS_ALT)
        g(f's_mov_b64 {pr(S_SV)}, exec')
        g('s_mov_b64 exec, 0xff')
        g(f'global_store_dwordx4 v6, {vr(144)}, s[86:87]')
        g(f's_mov_b64 exec, {pr(S_SV)}')
        if qtile:
            sk = g.u('pw')
            g(f's_cmp_lt_u32 s{S_TILE}, 144')
            g(f's_cbranch_scc1 {sk}')
            g(f's_lshl_b32 s{S_T1}, s{S_TILE}, 10')
            set_ws_base(g, 86, S_T1, WS_L1 + WS_QALT)
            g(f'global_store_dwordx4 v6, {vr(144)}, s[86:87]')
            g.label(sk)

def emit_layernorm(g, XR, XF):
    for k in range(9):
        g(f'v_lshlrev_b32 v{XF+2*k}, 16, v{XR+k}')
        g(f'v_and_b32 v{XF+2*k+1}, 0xffff0000, v{XR+k}')
    S, T = 154, 155
    g(f'v_add_f32 v{S}, v{XF}, v{XF+1}')
    for k in range(2, 18): g(f'v_add_f32 v{S}, v{S}, v{XF+k}')
    row_reduce(g, 'v_add_f32', S)
    xor16_op(g, 'v_add_f32', S, T)
    g(f'v_mul_f32 v{S}, 0x{INV576:08x}, v{S}')
    Q, D = 156, 157
    g(f'v_sub_f32 v{D}, v{XF}, v{S}')
    g(f'v_mul_f32 v{Q}, v{D}, v{D}')
    for k in range(1, 18):
        g(f'v_sub_f32 v{D}, v{XF+k}, v{S}')
        g(f'v_fmac_f32 v{Q}, v{D}, v{D}')
    row_reduce(g, 'v_add_f32', Q)
    xor16_op(g, 'v_add_f32', Q, T)
    g(f'v_mul_f32 v{Q}, 0x{INV576:08x}, v{Q}')
    bf16_round(g, Q, Q)
    g(f'v_add_f32 v{Q}, 0x{EPS:08x}, v{Q}')
    bf16_round(g, Q, Q)
    g(f'v_sqrt_f32 v{Q}, v{Q}')
    g.nop(1)
    bf16_round(g, Q, Q)
    g(f'v_rcp_f32 v{Q}, v{Q}')
    bf16_round(g, S, S)
    for k in range(18):
        g(f'v_sub_f32 v{XF+k}, v{XF+k}, v{S}')
    for k in range(0, 18, 2):
        g(f'v_cvt_pk_bf16_f32 v{XR+k//2}, v{XF+k}, v{XF+k+1}')
    for k in range(9):
        g(f'v_lshlrev_b32 v{XF+2*k}, 16, v{XR+k}')
        g(f'v_and_b32 v{XF+2*k+1}, 0xffff0000, v{XR+k}')
    for k in range(18):
        g(f'v_mul_f32 v{XF+k}, v{XF+k}, v{Q}')
    for k in range(18):
        g(f'v_cvt_pk_bf16_f32 v{XF+k}, v{XF+k}, v{XF+k}')
    g('v_lshrrev_b32 v3, 5, v0')
    g('v_and_b32 v4, 31, v0')
    g('v_mul_u32_u24 v3, 576, v3')
    g('v_mad_u32_u24 v3, v4, 18, v3')
    g('v_lshlrev_b32 v3, 2, v3')
    for k in range(0, 18, 2):
        g(f'ds_write_b64 v3, v[{XF+k}:{XF+k+1}] offset:{L_XD + 4*k}')
    g('s_waitcnt lgkmcnt(0)')

def emit_qpoll_wide(g, probe=None):
    g(f's_lshr_b32 s{S_T0}, s{S_HKV}, 1')
    g(f's_lshl_b32 s{S_T0}, s{S_T0}, 15')
    g(f's_and_b32 s{S_T1}, s{S_HKV}, 1')
    g(f's_lshl_b32 s{S_T1}, s{S_T1}, 11')
    g(f's_add_u32 s{S_T0}, s{S_T0}, s{S_T1}')
    g(f's_lshl_b32 s{S_T1}, s{S_BB}, 7')
    g(f's_add_u32 s{S_T0}, s{S_T0}, s{S_T1}')
    set_ws_base(g, 84, S_T0, WS_QW)
    g('s_add_u32 s86, s84, 0x40000')
    g('s_addc_u32 s87, s85, 0')
    g('v_lshrrev_b32 v3, 5, v0')
    g('v_lshlrev_b32 v3, 10, v3')
    g('v_bfe_u32 v4, v0, 3, 2')
    g('v_lshl_add_u32 v3, v4, 8, v3')
    g('v_and_b32 v4, 7, v0')
    g('v_lshl_add_u32 v3, v4, 4, v3')
    for rs in range(8): g(f'v_add_u32 v{156+rs}, {4096*rs}, v3')
    D = 124
    if probe:
        lp = g.u('qp_lp'); ok = g.u('qp_ok')
        g(f's_and_b32 s{S_T4}, s{S_TAG}, 0xff')
        g(f's_mov_b32 s{S_CNT}, {SPIN_LIMIT}')
        g.label(lp)
        for k in range(8): g(f's_load_dword s{64+k if not g.stamps else 88+k}, s[84:85], {4096*k} glc')
        g('s_waitcnt lgkmcnt(0)')
        b0 = 64 if not g.stamps else 88
        for k in range(8): g(f's_xor_b32 s{b0+k}, s{b0+k}, s{S_T4}')
        for k in range(1, 8): g(f's_or_b32 s{b0}, s{b0}, s{b0+k}')
        g(f's_and_b32 s{b0}, s{b0}, 0xff')
        g(f's_cmp_eq_u32 s{b0}, 0')
        g(f's_cbranch_scc1 {ok}')
        g(f's_sub_u32 s{S_CNT}, s{S_CNT}, 1')
        g(f's_cbranch_scc1 {ok}')
        g(f's_sleep {probe}')
        g(f's_branch {lp}')
        g.label(ok)
    def pre():
        g(f's_and_b32 s{S_T0}, s{S_CNT}, {g.o.get("qmask", 1)}')
        g(f's_cmp_eq_u32 s{S_T0}, 1')
        g(f's_cselect_b64 {pr(S_B2)}, s[84:85], s[86:87]')
    loads = [f'global_load_dwordx4 {vr(D+4*rs)}, v{156+rs}, {pr(S_B2)} sc1' for rs in range(8)]
    poll_retry(g, 'q', loads, D, 5, 6, sleep=g.o.get('qsleep', 4), st_first=5, st_cnt=1, pre_iter=pre)
    g.stamp(6)
    strip(g, range(D, D+32))
    for rs in range(1, 8):
        for r in range(4): g(f'v_add_f32 v{D+r}, v{D+r}, v{D+4*rs+r}')
    emit_q_to_lds(g, D)

def emit_q_to_lds(g, D):
    g(f'v_cvt_pk_bf16_f32 v{D}, v{D}, v{D+1}')
    g(f'v_cvt_pk_bf16_f32 v{D+2}, v{D+2}, v{D+3}')
    g('v_lshrrev_b32 v3, 5, v0')
    g('v_lshlrev_b32 v3, 8, v3')
    g('v_bfe_u32 v4, v0, 3, 2')
    g('v_lshl_add_u32 v3, v4, 6, v3')
    g('v_and_b32 v4, 7, v0')
    g('v_lshl_add_u32 v3, v4, 1, v3')
    g(f'ds_write_b16 v3, v{D} offset:{L_QL}')
    g(f'ds_write_b16_d16_hi v3, v{D} offset:{L_QL+16}')
    g(f'ds_write_b16 v3, v{D+2} offset:{L_QL+32}')
    g(f'ds_write_b16_d16_hi v3, v{D+2} offset:{L_QL+48}')
    g('s_waitcnt lgkmcnt(0)')
    g('v_mov_b32 v4, 0')
    g('v_mov_b32 v5, 1')
    g(f'ds_write_b32 v4, v5 offset:{C_QF}')

def emit_qpoll(g, presleep=0, probe=None):
    if g.o.get('qwide'):
        return emit_qpoll_wide(g, probe if probe is not None else g.o.get('qprobe'))
    g(f's_lshl_b32 s{S_T0}, s{S_HKV}, 12')
    g(f's_lshl_b32 s{S_T1}, s{S_BB}, 7')
    g(f's_add_u32 s{S_T0}, s{S_T0}, s{S_T1}')
    set_ws_base(g, S_B2, S_T0, WS_L1 + 144*1024)
    g('v_lshrrev_b32 v3, 5, v0')
    g('v_lshlrev_b32 v3, 11, v3')
    g('v_bfe_u32 v4, v0, 3, 2')
    g('v_lshl_add_u32 v3, v4, 8, v3')
    g('v_and_b32 v4, 7, v0')
    g('v_lshl_add_u32 v3, v4, 4, v3')
    D = 124
    if probe is None: probe = g.o.get('qprobe')
    if probe:
        lp = g.u('qp_lp'); ok = g.u('qp_ok')
        g(f's_and_b32 s{S_T4}, s{S_TAG}, 0xff')
        g(f's_mov_b32 s{S_CNT}, {SPIN_LIMIT}')
        g.label(lp)
        for k in range(4):
            g(f's_load_dword s{84+k}, {pr(S_B2)}, {1024*k} glc')
        g('s_waitcnt lgkmcnt(0)')
        for k in range(4):
            g(f's_and_b32 s{84+k}, s{84+k}, 0xff')
            g(f's_xor_b32 s{84+k}, s{84+k}, s{S_T4}')
        g('s_or_b32 s84, s84, s85')
        g('s_or_b32 s86, s86, s87')
        g('s_or_b32 s84, s84, s86')
        g('s_cmp_eq_u32 s84, 0')
        g(f's_cbranch_scc1 {ok}')
        g(f's_sub_u32 s{S_CNT}, s{S_CNT}, 1')
        g(f's_cbranch_scc1 {ok}')
        g(f's_sleep {probe}')
        g(f's_branch {lp}')
        g.label(ok)
        presleep = 0
    if presleep:
        n = presleep
        while n > 0:
            g(f's_sleep {min(n,127)}'); n -= 127
    pre = None
    if g.o.get('qfast'):
        g(f'v_add_u32 v156, {WS_QALT}, v3')
        g('v_mov_b32 v157, v3')
        def pre():
            g(f's_and_b32 s{S_T0}, s{S_CNT}, {g.o.get("qmask", 1)}')
            g(f's_cmp_eq_u32 s{S_T0}, 1')
            g(f's_cselect_b64 vcc, -1, 0')
            g('v_cndmask_b32_e32 v3, v156, v157, vcc')
    loads = [f'global_load_dwordx4 {vr(D+4*h)}, v3, {pr(S_B2)} offset:{1024*h} sc1' for h in range(2)]
    poll_retry(g, 'q', loads, D, 5, 6, sleep=g.o.get('qsleep', 4), st_first=5, st_cnt=1, pre_iter=pre)
    g.stamp(6)
    strip(g, range(D, D+8))
    for r in range(4):
        g(f'v_add_f32 v{D+r}, v{D+r}, v{D+4+r}')
    g(f'v_cvt_pk_bf16_f32 v{D}, v{D}, v{D+1}')
    g(f'v_cvt_pk_bf16_f32 v{D+2}, v{D+2}, v{D+3}')
    g('v_lshrrev_b32 v3, 5, v0')
    g('v_lshlrev_b32 v3, 8, v3')
    g('v_bfe_u32 v4, v0, 3, 2')
    g('v_lshl_add_u32 v3, v4, 6, v3')
    g('v_and_b32 v4, 7, v0')
    g('v_lshl_add_u32 v3, v4, 1, v3')
    g(f'ds_write_b16 v3, v{D} offset:{L_QL}')
    g(f'ds_write_b16_d16_hi v3, v{D} offset:{L_QL+16}')
    g(f'ds_write_b16 v3, v{D+2} offset:{L_QL+32}')
    g(f'ds_write_b16_d16_hi v3, v{D+2} offset:{L_QL+48}')
    g('s_waitcnt lgkmcnt(0)')
    g('v_mov_b32 v4, 0')
    g('v_mov_b32 v5, 1')
    g(f'ds_write_b32 v4, v5 offset:{C_QF}')

def emit_hpoll(g, S_RB):
    set_off = []
    g(f's_mul_i32 s{S_T2}, s{S_RB}, 3')
    g('v_lshrrev_b32 v3, 5, v0')
    g(f'v_mul_u32_u24 v3, {72*1024}, v3')
    g('v_bfe_u32 v4, v0, 4, 1')
    g('v_lshl_add_u32 v3, v4, 10, v3')
    g('v_lshl_add_u32 v3, v1, 4, v3')
    for k in range(3):
        g(f's_add_u32 s{S_T0}, s{S_T2}, {k}')
        g(f's_lshr_b32 s{S_T1}, s{S_T0}, 2')
        g(f's_lshl_b32 s{S_T1}, s{S_T1}, 11')
        g(f's_and_b32 s{S_T0}, s{S_T0}, 3')
        g(f's_lshl_b32 s{S_T0}, s{S_T0}, 8')
        g(f's_add_u32 s{S_T0}, s{S_T0}, s{S_T1}')
        g(f'v_add_u32 v{156+k}, s{S_T0}, v3')
    g(f's_mov_b64 {pr(S_B2)}, {pr(S_WS)}')
    add_base_imm(g, S_B2, WS_L1)
    D = 124
    loads = [f'global_load_dwordx4 {vr(D+4*k)}, v{156+k}, {pr(S_B2)} sc1' for k in range(3)]
    poll_retry(g, 'h', loads, D, 5, 6, sleep=g.o.get('hsleep', 8), st_first=5, st_cnt=1)
    g.stamp(6)
    N = 12
    strip(g, range(D, D+12))
    T = D + 12
    U = D + 24
    for j in range(N): g(f'v_mov_b32 v{T+j}, v{D+j}')
    g.nop(2)
    for j in range(N): g(f'v_permlane16_swap_b32 v{D+j}, v{T+j}')
    g.nop(1)
    for j in range(N): g(f'v_add_f32 v{D+j}, v{D+j}, v{T+j}')
    for j in range(N): bf16_round(g, D+j, D+j)
    for j in range(N): g(f'v_mov_b32 v{U+j}, v{D+j}')
    g.nop(2)
    for j in range(N): g(f'v_permlane32_swap_b32 v{D+j}, v{U+j}')
    g.nop(1)
    for j in range(N): g(f'v_mul_f32 v{T+j}, s{S_L2E}, v{D+j}')
    for j in range(N): g(f'v_exp_f32 v{T+j}, -v{T+j}')
    g.nop(1)
    for j in range(N): g(f'v_add_f32 v{T+j}, 1.0, v{T+j}')
    for j in range(N): g(f'v_rcp_f32 v{T+j}, v{T+j}')
    g.nop(1)
    for j in range(N): g(f'v_mul_f32 v{T+j}, v{D+j}, v{T+j}')
    for j in range(N): bf16_round(g, T+j, T+j)
    for j in range(N): g(f'v_mul_f32 v{T+j}, v{T+j}, v{U+j}')
    for j in range(N): g(f'v_cvt_pk_bf16_f32 v{T+j}, v{T+j}, v{T+j}')
    g('v_lshrrev_b32 v3, 3, v1')
    g('v_mul_u32_u24 v3, 96, v3')
    g('v_and_b32 v4, 7, v1')
    g('v_add_u32 v3, v3, v4')
    g('v_lshlrev_b32 v3, 2, v3')
    for k in range(3):
        for r in range(4):
            g(f'ds_write_b32 v3, v{T+4*k+r} offset:{L_HD + 128*k + 32*r}')
    g('s_waitcnt lgkmcnt(0)')
    g('v_mov_b32 v4, 0')
    g('v_mov_b32 v5, 1')
    g(f'ds_write_b32 v4, v5 offset:{C_HF}')

def l2_lane_offsets(g):
    g('v_mul_u32_u24 v5, 2304, v2')
    g('v_lshl_add_u32 v5, v1, 4, v5')
    g('v_add_u32 v6, 256, v5')
    g('v_add_u32 v7, 1024, v5')
    g('v_cmp_gt_u32_e32 vcc, 8, v1')
    g.nop(2)
    g('v_cndmask_b32_e32 v6, v7, v6, vcc')

def l2_issue(g, W0, ng, base=None, a0=5, a1=6, last_adv=False):
    pol = g.pol
    base = S_B if base is None else base
    for i in range(ng):
        g(f'global_load_dwordx4 {vr(W0+12*i)}, v{a0}, {pr(base)} {pol}')
        g(f'global_load_dwordx4 {vr(W0+12*i+4)}, v{a1}, {pr(base)} {pol}')
        g(f'global_load_dwordx4 {vr(W0+12*i+8)}, v{a0}, {pr(base)} offset:1280 {pol}')
        if i < ng-1 or last_adv: add_base_imm(g, base, 9216)

def l2_compute(g, W0, ng, P, AC, BE0, waitvm=None):
    def band(i, k):
        be = BE0 + 8*(i & 1)
        src = P + 2*i + (k >> 1)
        for r in (2*(k & 1), 2*(k & 1) + 1):
            g(f'v_and_b32 v{be + 4*(k >> 1) + r}, v{src}, v{MK+r}')
    g(f's_waitcnt lgkmcnt({ng-1})')
    for k in range(4): band(0, k)
    for i in range(ng):
        be = BE0 + 8*(i & 1); bo = be + 4
        if i + 1 < ng: g(f's_waitcnt lgkmcnt({ng-2-i})')
        if waitvm is not None:
            g(f's_waitcnt vmcnt({waitvm(i)})')
        if i == 0 and waitvm is None and ng == 1: g.nop(2)
        c = (lambda k: '0') if i == 0 else (lambda k: vr(AC+k))
        ms = [f'v_mfma_f32_16x16x32_bf16 {vr(AC)}, {vr(W0+12*i)}, {vr(be)}, {c(0)}',
              f'v_mfma_f32_16x16x32_bf16 {vr(AC+4)}, {vr(W0+12*i+4)}, {vr(be)}, {c(4)}',
              f'v_mfma_f32_16x16x32_bf16 {vr(AC+8)}, {vr(W0+12*i+4)}, {vr(bo)}, {c(8)}',
              f'v_mfma_f32_16x16x32_bf16 {vr(AC+12)}, {vr(W0+12*i+8)}, {vr(bo)}, {c(12)}']
        if i == 0: g.nop(1)
        for k in range(4):
            g(ms[k])
            if i + 1 < ng: band(i + 1, k)

S_PB = 80
def l2_prep(g, nprod, prod_sreg, ws_const, VI, VP):
    fs = nprod*128
    g(f's_mul_i32 s{S_T0}, s{S_WAVE}, 3072')
    g(f'v_lshlrev_b32 v{VI}, 4, v0')
    g(f'v_add_u32 v{VI}, s{S_T0}, v{VI}')
    g(f's_mul_i32 s{S_T0}, s{S_WAVE}, 24')
    g(f'v_add_u32 v{VP}, s{S_T0}, v0')
    g(f'v_lshlrev_b32 v{VI+1}, 4, v{VP}')
    g(f'v_lshrrev_b32 v6, 4, v{VP}')
    g(f'v_bfe_u32 v7, v{VP}, 3, 1')
    g('v_mad_u32_u24 v6, v7, 18, v6')
    g(f'v_mul_u32_u24 v6, {fs}, v6')
    g(f'v_and_b32 v7, 7, v{VP}')
    g(f'v_lshl_add_u32 v{VP}, v7, 4, v6')
    g(f's_mul_i32 s{S_T0}, s{S_CB}, {6*fs}')
    g(f's_lshl_b32 s{S_T1}, s{prod_sreg}, 7')
    g(f's_add_u32 s{S_T0}, s{S_T0}, s{S_T1}')
    set_ws_base(g, S_PB, S_T0, ws_const)

def l2_finish(g, AC, VI, VP, R0, st_a=None, st_b=None):
    g('v_cmp_gt_u32_e32 vcc, 2, v2')
    g('v_mov_b32 v12, 0')
    g('v_mov_b32 v13, 1')
    g.nop(5)
    g(f'ds_write_b128 v{VI}, {vr(AC)} offset:{L_Y}')
    for r in range(4):
        g(f'v_cndmask_b32_e32 v{AC+4+r}, v{AC+8+r}, v{AC+4+r}, vcc')
    g(f'ds_write_b128 v{VI}, {vr(AC+12)} offset:{L_Y + 2048}')
    g(f'ds_write_b128 v{VI}, {vr(AC+4)} offset:{L_Y + 1024}')
    if st_a is not None: g.stamp(st_a)
    g(f's_mov_b64 {pr(S_SV)}, exec')
    if g.o.get('ybar'):
        g('s_waitcnt lgkmcnt(0)')
        g('s_barrier')
        g(f's_mov_b64 exec, 0xffffff')
    else:
        g('s_waitcnt lgkmcnt(0)')
        g('s_mov_b64 exec, 1')
        g(f'ds_add_u32 v12, v13 offset:{C_YCNT}')
        g(f's_mov_b64 exec, 0xffffff')
        lp = g.u('ys'); ok = g.u('yok')
        g(f's_mov_b32 s{S_CNT}, {SPIN_LIMIT*8}')
        g.label(lp)
        g(f'ds_read_b32 v13, v12 offset:{C_YCNT}')
        g('s_waitcnt lgkmcnt(0)')
        g(f'v_readfirstlane_b32 s{S_T0}, v13')
        g(f's_cmp_ge_u32 s{S_T0}, 4')
        g(f's_cbranch_scc1 {ok}')
        g(f's_sub_u32 s{S_CNT}, s{S_CNT}, 1')
        g(f's_cbranch_scc0 {lp}')
        g.label(ok)
    for w in range(4):
        g(f'ds_read_b128 {vr(R0+8*w)}, v{VI+1} offset:{L_Y + 3072*w}')
        g(f'ds_read_b128 {vr(R0+4+8*w)}, v{VI+1} offset:{L_Y + 3072*w + 6*256}')
    for stage in range(4):
        g(f's_waitcnt lgkmcnt({6-2*stage})')
        for r in range(4):
            if stage == 0:
                g(f'v_add_f32 v{R0+r}, v{R0+r}, v{R0+4+r}')
            else:
                g(f'v_add_f32 v{R0+8*stage+r}, v{R0+8*stage+r}, v{R0+8*stage+4+r}')
                g(f'v_add_f32 v{R0+r}, v{R0+r}, v{R0+8*stage+r}')
    tag_insert(g, R0+4, R0, VTAG)
    g(f'global_store_dwordx4 v{VP}, {vr(R0+4)}, {pr(S_PB)} sc1')
    g(f's_mov_b64 exec, {pr(S_SV)}')
    if st_b is not None: g.stamp(st_b)

def reduce_hh(g, d, t):
    g.nop(2)
    for r in range(4):
        g(f'v_add_f32_dpp v{d+r}, v{d+r}, v{d+r} row_ror:8 row_mask:0xf bank_mask:0xf')
    for r in range(4): g(f'v_mov_b32 v{t+r}, v{d+r}')
    g.nop(2)
    for r in range(4): g(f'v_permlane16_swap_b32 v{d+r}, v{t+r}')
    g.nop(1)
    for r in range(4): g(f'v_add_f32 v{d+r}, v{d+r}, v{t+r}')
    for r in range(4): g(f'v_mov_b32 v{t+r}, v{d+r}')
    g.nop(2)
    for r in range(4): g(f'v_permlane32_swap_b32 v{d+r}, v{t+r}')
    g.nop(1)
    for r in range(4): g(f'v_add_f32 v{d+r}, v{d+r}, v{t+r}')

def emit_final_old(g):
    g('v_and_b32 v3, 7, v0')
    g('v_lshlrev_b32 v3, 1, v3')
    g(f's_lshl_b32 s{S_T0}, s{S_F}, 6')
    g(f'v_add_u32 v3, s{S_T0}, v3')
    for r in range(4):
        g(f'global_load_ushort v{124+r}, v3, {pr(S_X)} offset:{16*r}')
    g('v_lshlrev_b32 v4, 4, v0')
    g('v_add_u32 v5, 4096, v4')
    g(f's_mul_i32 s{S_T0}, s{S_F}, 6144')
    set_ws_base(g, S_B, S_T0, WS_F)
    g(f's_lshl_b32 s{S_T0}, s{S_F}, 11')
    set_ws_base(g, S_B2, S_T0, WS_B)
    lds_wait_ge(g, 'own', C_ACNT, 8, 12, sleep=8)
    g.stamp(5)
    D = 16
    loads = [f'global_load_dwordx4 {vr(D+4*k)}, v{4 if k < 4 else 5}, {pr(S_B)} offset:{1024*(k%4)} sc1' for k in range(6)]
    if 'fin' in g.o.get('nopoll', ()): g.o['finpipe'] = 0
    if not g.o.get('finpipe'):
        loads += [f'global_load_dwordx4 {vr(D+24+4*k)}, v4, {pr(S_B2)} offset:{1024*k} sc1' for k in range(2)]
        poll_retry(g, 'fin', loads, D, 13, 15, sleep=0, st_cnt=1)
    else:
        poll_retry(g, 'fin', loads, D, 13, 15, sleep=g.o.get('ffsl', 2))
        g.stamp(4)
        strip(g, range(D, D+24))
        for k in range(1, 6):
            for r in range(4): g(f'v_add_f32 v{D+r}, v{D+r}, v{D+4*k+r}')
        reduce_hh(g, D, 96)
        for r in range(4): bf16_round(g, D+r, D+r)
        for r in range(4): g(f'v_lshlrev_b32 v{124+r}, 16, v{124+r}')
        NS = g.o.get('finpipe')
        SETS = [64 + 8*j for j in range(NS)]
        def iss(j):
            for k in range(2):
                g(f'global_load_dwordx4 {vr(SETS[j]+4*k)}, v4, {pr(S_B2)} offset:{1024*k} sc1')
        lp = g.u('fp_lp'); done = g.u('fp_done')
        oks = [g.u('fp_ok') for _ in range(NS)]
        g(f's_mov_b32 s{S_CNT}, {SPIN_LIMIT}')
        for j in range(NS-1): iss(j)
        g.label(lp)
        for j in range(NS):
            iss((j + NS - 1) % NS)
            g(f's_waitcnt vmcnt({2*(NS-1)})')
            tag_check(g, SETS[j], 13, 15, True)
            tag_check(g, SETS[j]+4, 13, 15, False)
            g(f's_cmp_eq_u64 {pr(S_OK)}, -1')
            g(f's_cbranch_scc1 {oks[j]}')
        g(f's_sub_u32 s{S_CNT}, s{S_CNT}, 1')
        g(f's_cbranch_scc0 {lp}')
        for j in range(NS):
            g.label(oks[j])
            strip(g, range(SETS[j], SETS[j]+8))
            for r in range(4): g(f'v_add_f32 v{D+24+r}, v{SETS[j]+r}, v{SETS[j]+4+r}')
            if j < NS-1: g(f's_branch {done}')
        g.label(done)
    g.stamp(6)
    FF = D; AT = D + 24
    if not g.o.get('finpipe'):
        for k in range(1, 6):
            for r in range(4): g(f'v_add_f32 v{FF+r}, v{FF+r}, v{FF+4*k+r}')
        for r in range(4): g(f'v_add_f32 v{AT+r}, v{AT+r}, v{AT+4+r}')
    if g.o.get('finpipe'):
        reduce_hh(g, AT, 96)
        for r in range(4): bf16_round(g, AT+r, AT+r)
    else:
        vals = [FF+r for r in range(4)] + [AT+r for r in range(4)]
        T = 96
        g.nop(2)
        for v in vals: g(f'v_add_f32_dpp v{v}, v{v}, v{v} row_ror:8 row_mask:0xf bank_mask:0xf')
        for j, v in enumerate(vals): g(f'v_mov_b32 v{T+j}, v{v}')
        g.nop(2)
        for j, v in enumerate(vals): g(f'v_permlane16_swap_b32 v{v}, v{T+j}')
        g.nop(1)
        for j, v in enumerate(vals): g(f'v_add_f32 v{v}, v{v}, v{T+j}')
        for j, v in enumerate(vals): g(f'v_mov_b32 v{T+j}, v{v}')
        g.nop(2)
        for j, v in enumerate(vals): g(f'v_permlane32_swap_b32 v{v}, v{T+j}')
        g.nop(1)
        for j, v in enumerate(vals): g(f'v_add_f32 v{v}, v{v}, v{T+j}')
        for v in vals: bf16_round(g, v, v)
        for r in range(4): g(f'v_lshlrev_b32 v{124+r}, 16, v{124+r}')
    for r in range(4): g(f'v_add_f32 v{AT+r}, v{124+r}, v{AT+r}')
    for r in range(4): bf16_round(g, AT+r, AT+r)
    for r in range(4): g(f'v_add_f32 v{AT+r}, v{AT+r}, v{FF+r}')
    g(f'v_cvt_pk_bf16_f32 v28, v{AT}, v{AT+1}')
    g(f'v_cvt_pk_bf16_f32 v29, v{AT+2}, v{AT+3}')
    g('v_cmp_gt_u32_e32 vcc, 8, v0')
    g(f's_and_saveexec_b64 {pr(S_SV)}, vcc')
    g(f'global_store_short v3, v28, {pr(S_OUT)}')
    g(f'global_store_short_d16_hi v3, v28, {pr(S_OUT)} offset:16')
    g(f'global_store_short v3, v29, {pr(S_OUT)} offset:32')
    g(f'global_store_short_d16_hi v3, v29, {pr(S_OUT)} offset:48')
    g(f's_cmp_lg_u32 s{S_F}, 0')
    g('s_cbranch_scc1 L_nobump')
    g('s_mov_b64 exec, 1')
    g('v_mov_b32 v4, 0')
    g(f'ds_read_b32 v5, v4 offset:{C_RAWG}')
    g('s_waitcnt lgkmcnt(0)')
    g(f'global_store_dword v4, v5, {pr(S_WS)} sc1')
    g.label('L_nobump')
    g(f's_mov_b64 exec, {pr(S_SV)}')

C_FFF = 40
L_FF = L_QL + 0
def emit_ffgather(g):
    g('v_lshlrev_b32 v4, 4, v0')
    g('v_add_u32 v5, 4096, v4')
    g(f's_mul_i32 s{S_T0}, s{S_F}, 6144')
    set_ws_base(g, S_B, S_T0, WS_F)
    lds_wait_ge(g, 'own', C_ACNT, g.o.get('ffown', 4), 12, sleep=8)
    g.stamp(5)
    D = 16
    loads = [f'global_load_dwordx4 {vr(D+4*k)}, v{4 if k < 4 else 5}, {pr(S_B)} offset:{1024*(k%4)} sc1' for k in range(6)]
    poll_retry(g, 'fin', loads, D, 13, 15, sleep=g.o.get('ffsleep', 1), st_cnt=1)
    g.stamp(4)
    for k in range(1, 6):
        for r in range(4): g(f'v_add_f32 v{D+r}, v{D+r}, v{D+4*k+r}')
    reduce_hh(g, D, 96)
    for r in range(4): bf16_round(g, D+r, D+r)
    g('v_lshlrev_b32 v4, 4, v0')
    g('v_cmp_gt_u32_e32 vcc, 8, v0')
    g(f's_and_saveexec_b64 {pr(S_SV)}, vcc')
    g(f'ds_write_b128 v4, {vr(D)} offset:{L_Y}')
    g('s_waitcnt lgkmcnt(0)')
    g('v_mov_b32 v12, 0'); g('v_mov_b32 v13, 1')
    g(f'ds_write_b32 v12, v13 offset:{C_FFF}')
    g(f's_mov_b64 exec, {pr(S_SV)}')
    g.stamp(6)

def emit_final(g):
    g('v_and_b32 v3, 7, v0')
    g('v_lshlrev_b32 v3, 1, v3')
    g(f's_lshl_b32 s{S_T0}, s{S_F}, 6')
    g(f'v_add_u32 v3, s{S_T0}, v3')
    for r in range(4):
        g(f'global_load_ushort v{124+r}, v3, {pr(S_X)} offset:{16*r}')
    g('v_lshlrev_b32 v4, 4, v0')
    g(f's_lshl_b32 s{S_T0}, s{S_F}, 11')
    set_ws_base(g, S_B2, S_T0, WS_B)
    g('v_mov_b32 v12, 0')
    g(f'ds_read_b32 v30, v12 offset:{C_RAWG}')
    lds_wait_ge(g, 'own', C_ACNT, 8, 12, sleep=8)
    g.stamp(5)
    g('s_waitcnt vmcnt(0)')
    for r in range(4): g(f'v_lshlrev_b32 v{124+r}, 16, v{124+r}')
    AT = 40
    NS = g.o.get('finpipe') or 3
    SETS = [64 + 8*j for j in range(NS)]
    def iss(j):
        for k in range(2):
            g(f'global_load_dwordx4 {vr(SETS[j]+4*k)}, v4, {pr(S_B2)} offset:{1024*k} sc1')
    if 'fin' not in g.o.get('nopoll', ()):
        lp = g.u('fp_lp'); done = g.u('fp_done')
        oks = [g.u('fp_ok') for _ in range(NS)]
        g(f's_mov_b32 s{S_CNT}, {SPIN_LIMIT}')
        for j in range(NS-1): iss(j)
        g.label(lp)
        for j in range(NS):
            iss((j + NS - 1) % NS)
            g(f's_waitcnt vmcnt({2*(NS-1)})')
            tag_check(g, SETS[j], 13, 15, True)
            tag_check(g, SETS[j]+4, 13, 15, False)
            g(f's_cmp_eq_u64 {pr(S_OK)}, -1')
            g(f's_cbranch_scc1 {oks[j]}')
        g(f's_sub_u32 s{S_CNT}, s{S_CNT}, 1')
        g(f's_cbranch_scc0 {lp}')
        for j in range(NS):
            g.label(oks[j])
            for r in range(4): g(f'v_add_f32 v{AT+r}, v{SETS[j]+r}, v{SETS[j]+4+r}')
            if j < NS-1: g(f's_branch {done}')
        g.label(done)
    g.stamp(6)
    reduce_hh(g, AT, 48)
    for r in range(4): bf16_round(g, AT+r, AT+r)
    for r in range(4): g(f'v_add_f32 v{AT+r}, v{124+r}, v{AT+r}')
    for r in range(4): bf16_round(g, AT+r, AT+r)
    if 'fin' not in g.o.get('nopoll', ()):
        lds_wait_ge(g, 'fff', C_FFF, 1, 12, sleep=0)
    g('v_lshlrev_b32 v4, 4, v0')
    g(f'ds_read_b128 {vr(52)}, v4 offset:{L_Y}')
    g('v_cmp_gt_u32_e32 vcc, 8, v0')
    g('s_waitcnt lgkmcnt(0)')
    for r in range(4): g(f'v_add_f32 v{AT+r}, v{AT+r}, v{52+r}')
    g(f'v_cvt_pk_bf16_f32 v28, v{AT}, v{AT+1}')
    g(f'v_cvt_pk_bf16_f32 v29, v{AT+2}, v{AT+3}')
    g(f's_and_saveexec_b64 {pr(S_SV)}, vcc')
    g(f'global_store_short v3, v28, {pr(S_OUT)}')
    g(f'global_store_short_d16_hi v3, v28, {pr(S_OUT)} offset:16')
    g(f'global_store_short v3, v29, {pr(S_OUT)} offset:32')
    g(f'global_store_short_d16_hi v3, v29, {pr(S_OUT)} offset:48')
    g(f's_cmp_lg_u32 s{S_F}, 0')
    g('s_cbranch_scc1 L_nobump')
    g('s_mov_b64 exec, 1')
    g('v_mov_b32 v4, 0')
    g(f'global_store_dword v4, v30, {pr(S_WS)} sc1')
    g.label('L_nobump')
    g(f's_mov_b64 exec, {pr(S_SV)}')

def emit_roleO(g):
    S_HO = S_ID
    g(f's_sub_u32 s{S_CB}, s{S_SLOT}, 26')
    g(f's_cmp_ge_u32 s{S_CB}, 3')
    g(f's_cselect_b32 s{S_T0}, 1, 0')
    g(f's_mul_i32 s{S_T1}, s{S_T0}, 3')
    g(f's_sub_u32 s{S_CB}, s{S_CB}, s{S_T1}')
    g(f's_lshl_b32 s{S_HO}, s{S_XCD}, 1')
    g(f's_add_u32 s{S_HO}, s{S_HO}, s{S_T0}')
    NE = g.o.get('oearly', 0)
    W0 = 16
    kernarg_ready(g, 'L_nogenO')
    g(f's_mul_i32 s{S_T0}, s{S_HO}, {256*1152}')
    g(f's_mul_i32 s{S_T1}, s{S_CB}, 384')
    g(f's_add_u32 s{S_T0}, s{S_T0}, s{S_T1}')
    g(f's_mul_i32 s{S_T1}, s{S_WAVE}, {64*1152}')
    g(f's_add_u32 s{S_T0}, s{S_T0}, s{S_T1}')
    g(f's_mov_b64 s[82:83], {pr(S_WO)}')
    add_base(g, 82, S_T0)
    l2_lane_offsets(g)
    g('v_mov_b32 v165, v5'); g('v_mov_b32 v166, v6')
    l2_issue(g, W0, NE, base=82, a0=165, a1=166, last_adv=True)
    g('s_barrier')
    g.stamp(2)
    g(f's_cmp_lg_u32 s{S_WAVE}, 1')
    g('s_cbranch_scc1 L_Onoq')
    emit_tag_publish(g)
    emit_qpoll(g, g.o.get('qdelayO', 0), probe=(g.o.get('qprobeO') or None))
    g.label('L_Onoq')
    get_tag_from_lds(g, 12, VTAG)
    if g.o.get('touchB'):
        l2_prep(g, 16, S_HO, WS_B, 162, 164)
        g(f'v_not_b32 v15, v{VTAG}')
        tag_insert(g, 112, 112, 15)
        g(f's_mov_b64 {pr(S_SV)}, exec')
        g('s_mov_b64 exec, 0xffffff')
        g(f'global_store_dwordx4 v164, {vr(112)}, {pr(S_PB)} sc1')
        g(f's_mov_b64 exec, {pr(S_SV)}')
        g.nop(2)
    make_masks(g, MK, 1, 112)
    if g.o.get('nolate', 0) > 1:
        g('s_branch L_end_stamp')
    if NE < 8:
        if not g.o.get('early'):
            lds_wait_ge(g, 'viss', C_VISS, g.o.get('ogate', 8), 12, sleep=4)
        if g.o.get('ogg'):
            global_gate(g, g.o.get('ogg'))
        osp = g.o.get('osplit', 0)
        if g.o.get('gg2') and g.o.get('ogg2'):
            if osp: l2_issue(g, W0 + 12*NE, osp - NE, base=82, a0=165, a1=166, last_adv=True)
            lds_wait_ge(g, 'viss8', C_VISS, 8, 12, sleep=4)
            count_in(g)
            go_wait(g)
            l2_issue(g, W0 + 12*max(osp,NE), 8 - max(osp,NE), base=82, a0=165, a1=166)
        elif osp:
            l2_issue(g, W0 + 12*NE, osp - NE, base=82, a0=165, a1=166, last_adv=True)
            lds_wait_ge(g, 'viss8', C_VISS, 8, 12, sleep=4)
            l2_issue(g, W0 + 12*osp, 8 - osp, base=82, a0=165, a1=166)
            if g.o.get('gg2'): count_in(g)
        else:
            l2_issue(g, W0 + 12*NE, 8 - NE, base=82, a0=165, a1=166)
        if g.o.get('ggate'): count_in(g)
    else:
        lds_wait_ge(g, 'own', C_ACNT, 8, 12, sleep=4)
    if not g.o.get('stO'): g.stamp(3)
    g(f's_lshl_b32 s{S_T0}, s{S_HO}, 14')
    g(f's_and_b32 s{S_T1}, s{S_WAVE}, 1')
    g(f's_lshl_b32 s{S_T1}, s{S_T1}, 9')
    g(f's_add_u32 s{S_T0}, s{S_T0}, s{S_T1}')
    g(f's_lshr_b32 s{S_T1}, s{S_WAVE}, 1')
    g(f's_lshl_b32 s{S_T1}, s{S_T1}, 7')
    g(f's_add_u32 s{S_T0}, s{S_T0}, s{S_T1}')
    set_ws_base(g, S_B, S_T0, WS_A)
    g(f's_lshl_b32 s{S_T0}, s{S_HO}, 11')
    g(f's_lshr_b32 s{S_T1}, s{S_WAVE}, 1')
    g(f's_lshl_b32 s{S_T1}, s{S_T1}, 4')
    g(f's_add_u32 s{S_T0}, s{S_T0}, s{S_T1}')
    set_ws_base(g, S_B2, S_T0, WS_S)
    g('v_lshrrev_b32 v3, 5, v0')
    g('v_bfe_u32 v5, v0, 3, 1')
    g('v_lshl_add_u32 v4, v3, 1, v5')
    g('v_lshlrev_b32 v3, 12, v4')
    g('v_lshlrev_b32 v4, 9, v4')
    g('v_bfe_u32 v5, v0, 4, 1')
    g('v_lshl_add_u32 v3, v5, 8, v3')
    g('v_and_b32 v5, 7, v0')
    g('v_lshl_add_u32 v3, v5, 4, v3')
    g('v_lshrrev_b32 v160, 5, v0')
    g('v_lshlrev_b32 v160, 6, v160')
    g('v_bfe_u32 v5, v0, 4, 1')
    g('v_lshl_add_u32 v160, v5, 5, v160')
    g('v_and_b32 v5, 7, v0')
    g('v_add_u32 v160, v160, v5')
    g(f's_lshl_b32 s{S_T0}, s{S_WAVE}, 7')
    g(f'v_add_u32 v160, s{S_T0}, v160')
    g('v_lshlrev_b32 v160, 2, v160')
    g('v_lshrrev_b32 v161, 3, v1')
    g('v_lshlrev_b32 v161, 6, v161')
    g('v_lshl_add_u32 v161, v2, 1, v161')
    g(f'v_add_u32 v161, s{S_T0}, v161')
    g('v_lshlrev_b32 v161, 2, v161')
    l2_prep(g, 16, S_HO, WS_B, 162, 164)
    D = 112
    if g.o.get('fastA'):
        g(f'v_add_u32 v156, {WS_ALT}, v3')
        g(f'v_add_u32 v157, {WS_ALT}, v4')
        g('v_mov_b32 v158, v3'); g('v_mov_b32 v159, v4')
        def pre():
            g(f's_and_b32 s{S_T0}, s{S_CNT}, {g.o.get("abmask", 3)}')
            g(f's_cmp_eq_u32 s{S_T0}, 1')
            g(f's_cselect_b64 vcc, -1, 0')
            g('v_cndmask_b32_e32 v3, v156, v158, vcc')
            g('v_cndmask_b32_e32 v4, v157, v159, vcc')
    else:
        pre = None
    if g.stamps and g.o.get('stO'):
        pre0 = pre
        def pre():
            g('s_waitcnt lgkmcnt(0)')
            g('s_mov_b64 s[68:69], s[70:71]')
            g('s_mov_b64 s[70:71], s[74:75]')
            g('s_memrealtime s[74:75]')
            if pre0: pre0()
    loads = [f'global_load_dwordx4 {vr(D+4*i)}, v3, {pr(S_B)} offset:{1024*i} sc1' for i in range(4)]
    loads += [f'global_load_dwordx4 {vr(D+16+4*i)}, v4, {pr(S_B2)} offset:{128*i} sc1' for i in range(4)]
    if g.o.get('warm') and g.o.get('fastA'):
        for i in range(4): g(f'global_load_dwordx4 {vr(D+4*i)}, v156, {pr(S_B)} offset:{1024*i} sc1')
        for i in range(4): g(f'global_load_dwordx4 {vr(D+16+4*i)}, v157, {pr(S_B2)} offset:{128*i} sc1')
    if NE < 8 and g.o.get('ogate', 8) < 8 and g.o.get('ownwait', 8):
        lds_wait_ge(g, 'own', C_ACNT, g.o.get('ownwait', 8), 12, sleep=g.o.get('ownsl', 4))
    poll_retry(g, 'ha', loads, D, 5, 6, sleep=0, st_cnt=1, pre_iter=pre, backoff=g.o.get('habk'))
    g.stamp(4)
    dbgt(g, 3)
    ST = D + 16
    M = 144; LL = 145; O = 148
    for i in range(4):
        g(f'v_and_b32 v{ST+4*i}, 0xffffff00, v{ST+4*i}')
    g(f'v_max_f32 v{M}, v{ST}, v{ST+4}')
    g(f'v_max3_f32 v{M}, v{M}, v{ST+8}, v{ST+12}')
    strip(g, [ST+4*i+1 for i in range(4)])
    g(f'v_max_f32_dpp v{M}, v{M}, v{M} row_ror:8 row_mask:0xf bank_mask:0xf')
    strip(g, range(D, D+8))
    for i in range(4): g(f'v_sub_f32 v{ST+4*i}, v{ST+4*i}, v{M}')
    for i in range(4): g(f'v_exp_f32 v{ST+4*i}, v{ST+4*i}')
    strip(g, range(D+8, D+16))
    g(f'v_mul_f32 v{LL}, v{ST}, v{ST+1}')
    for r in range(4): g(f'v_mul_f32 v{O+r}, v{ST}, v{D+r}')
    for i in range(1, 4):
        g(f'v_fmac_f32 v{LL}, v{ST+4*i}, v{ST+4*i+1}')
        for r in range(4): g(f'v_fmac_f32 v{O+r}, v{ST+4*i}, v{D+4*i+r}')
    g.nop(1)
    g(f'v_add_f32_dpp v{LL}, v{LL}, v{LL} row_ror:8 row_mask:0xf bank_mask:0xf')
    for r in range(4):
        g(f'v_add_f32_dpp v{O+r}, v{O+r}, v{O+r} row_ror:8 row_mask:0xf bank_mask:0xf')
    g(f'v_rcp_f32 v{LL}, v{LL}')
    g.nop(1)
    for r in range(4): g(f'v_mul_f32 v{O+r}, v{O+r}, v{LL}')
    for r in range(4): g(f'v_cvt_pk_bf16_f32 v{O+r}, v{O+r}, v{O+r}')
    for r in range(4): g(f'ds_write_b32 v160, v{O+r} offset:{L_OD + 32*r}')
    g('s_waitcnt lgkmcnt(0)')
    P = 112
    for i in range(8):
        g(f'ds_read_b64 v[{P+2*i}:{P+2*i+1}], v161 offset:{L_OD + 32*i}')
    l2_compute(g, W0, 8, P, 128, 144)
    l2_finish(g, 128, 162, 164, 16, st_a=None if g.o.get('stO') else 5, st_b=6)

def emit_qk_softmax(g, extra):
    K0, V0 = 16, 80
    QF = 144
    g('v_lshrrev_b32 v4, 3, v1')
    g('v_lshlrev_b32 v4, 8, v4')
    g('v_lshl_add_u32 v4, v2, 4, v4')
    for s in range(4):
        g(f'ds_read_b128 {vr(QF+4*s)}, v4 offset:{L_QL + 64*s}')
    SCR = [8, 12, 160, 164]
    for T in range(4):
        for r in range(4): g(f'v_mov_b32 v{SCR[T]+r}, 0')
    g('s_waitcnt lgkmcnt(0)')
    for T in range(4):
        g(f's_waitcnt vmcnt({12 - 4*T + extra})')
        for s in range(4):
            g(f'v_mfma_f32_16x16x32_bf16 {vr(SCR[T])}, {vr(K0+16*T+4*s)}, {vr(QF+4*s)}, {vr(SCR[T])}')
    g.nop(8)
    g.stamp(4)
    sc = [SCR[T]+r for T in range(4) for r in range(4)]
    TP = 144
    for k in range(0, 16, 2):
        g(f'v_cvt_pk_bf16_f32 v{TP+k//2}, v{sc[k]}, v{sc[k+1]}')
    for k in range(0, 16, 2):
        g(f'v_lshlrev_b32 v{sc[k]}, 16, v{TP+k//2}')
        g(f'v_and_b32 v{sc[k+1]}, 0xffff0000, v{TP+k//2}')
    for k in range(16):
        g(f'v_mul_f32 v{sc[k]}, 0x{SCALE:08x}, v{sc[k]}')
    for k in range(0, 16, 2):
        g(f'v_cvt_pk_bf16_f32 v{TP+k//2}, v{sc[k]}, v{sc[k+1]}')
    for k in range(0, 16, 2):
        g(f'v_lshlrev_b32 v{sc[k]}, 16, v{TP+k//2}')
        g(f'v_and_b32 v{sc[k+1]}, 0xffff0000, v{TP+k//2}')
    M = 152; T1 = 153; LS = 154
    g(f'v_max3_f32 v{M}, v{sc[0]}, v{sc[1]}, v{sc[2]}')
    for k in range(3, 15, 2):
        g(f'v_max3_f32 v{M}, v{M}, v{sc[k]}, v{sc[k+1]}')
    g(f'v_max_f32 v{M}, v{M}, v{sc[15]}')
    xor16_op(g, 'v_max_f32', M, T1)
    xor32_op(g, 'v_max_f32', M, T1)
    g(f'v_mul_f32 v{M}, s{S_L2E}, v{M}')
    for k in range(16):
        g(f'v_fma_f32 v{sc[k]}, v{sc[k]}, s{S_L2E}, -v{M}')
    for k in range(16):
        g(f'v_exp_f32 v{sc[k]}, v{sc[k]}')
    g.nop(1)
    g(f'v_add_f32 v{LS}, v{sc[0]}, v{sc[1]}')
    for k in range(2, 16):
        g(f'v_add_f32 v{LS}, v{LS}, v{sc[k]}')
    for k in range(16):
        g(f'v_cvt_pk_bf16_f32 v{sc[k]}, v{sc[k]}, v{sc[k]}')
    xor16_op(g, 'v_add_f32', LS, T1)
    xor32_op(g, 'v_add_f32', LS, T1)
    AMK = 156
    make_masks(g, AMK, 1, 4)
    for T in range(4):
        for i in range(4):
            for r in range(4):
                g(f'v_and_b32 v{K0+16*T+4*i+r}, v{sc[4*T+i]}, v{AMK+r}')
    AC = 144
    for r in range(8): g(f'v_mov_b32 v{AC+r}, 0')
    g.stamp(5)

def issue_v(g, V0):
    pol = g.pol
    for T in range(4):
        for i in range(4):
            g(f'global_load_dwordx4 {vr(V0+16*T+4*i)}, v3, {pr(S_V)} offset:{256*i} {pol}')
        if T < 3: add_base_imm(g, S_V, 4096)
    g('v_mov_b32 v4, 0')
    g('v_mov_b32 v5, 1')
    g(f's_mov_b64 {pr(S_SV)}, exec')
    g('s_mov_b64 exec, 1')
    g(f'ds_add_u32 v4, v5 offset:{C_VISS}')
    g(f's_mov_b64 exec, {pr(S_SV)}')

def emit_attn(g):
    pol = g.pol
    K0, V0 = 16, 80
    QF = 144
    g('s_waitcnt lgkmcnt(0)')
    g(f's_lshl_b32 s{S_T0}, s{S_BB}, 4')
    g(f's_add_u32 s{S_T0}, s{S_T0}, s{S_HKV}')
    g(f's_lshl_b32 s{S_T0}, s{S_T0}, 20')
    il = g.o.get('kvil', True)
    g(f's_lshl_b32 s{S_T1}, s{S_SP}, {14 if il else 17}')
    g(f's_add_u32 s{S_T0}, s{S_T0}, s{S_T1}')
    g(f's_sub_u32 s{S_T1}, s{S_WAVE}, 4')
    g(f's_lshl_b32 s{S_T1}, s{S_T1}, {17 if il else 14}')
    g(f's_add_u32 s{S_T0}, s{S_T0}, s{S_T1}')
    add_base(g, S_K, S_T0)
    add_base(g, S_V, S_T0)
    g('v_lshlrev_b32 v4, 8, v1')
    g('v_lshl_add_u32 v4, v2, 4, v4')
    g('v_lshlrev_b32 v3, 10, v2')
    g('v_lshl_add_u32 v3, v1, 4, v3')
    if g.o.get('tlb'):
        g('v_mov_b32 v6, 0')
        g(f'global_load_dword v16, v6, {pr(S_K)} nt')
        g(f'global_load_dword v80, v6, {pr(S_V)} nt')
    g('s_barrier')
    g.stamp(1)
    g('s_setprio 2')
    for T in range(4):
        for s in range(4):
            g(f'global_load_dwordx4 {vr(K0+16*T+4*s)}, v4, {pr(S_K)} offset:{64*s} {pol}')
        if T < 3: add_base_imm(g, S_K, 4096)
    g('s_setprio 1')
    g(f's_cmp_ge_u32 s{S_WAVE}, 8')
    g('s_cbranch_scc1 L_grp2')
    if g.o.get('onecopy'):
        issue_v(g, V0)
        g.label('L_grp2')
        g.stamp(2)
        lds_wait_ge(g, 'qf', C_QF, 1, 4, sleep=4)
        g.stamp(3)
        emit_qk_softmax(g, 0)
        g(f's_cmp_lt_u32 s{S_WAVE}, 8')
        g('s_cbranch_scc1 L_pv')
        issue_v(g, V0)
    else:
        issue_v(g, V0)
        g.stamp(2)
        lds_wait_ge(g, 'qf', C_QF, 1, 4, sleep=4)
        g.stamp(3)
        emit_qk_softmax(g, 16)
        g('s_branch L_pv')
        g.label('L_grp2')
        g.stamp(2)
        lds_wait_ge(g, 'qf', C_QF, 1, 4, sleep=4)
        g.stamp(3)
        emit_qk_softmax(g, 0)
        issue_v(g, V0)
    g.label('L_pv')
    M = 152; LS = 154; AC = 144
    g(f's_sub_u32 s{S_T2}, s{S_WAVE}, 4')
    g(f's_lshl_b32 s{S_T0}, s{S_T2}, 10')
    g('v_lshlrev_b32 v7, 4, v0')
    g(f'v_add_u32 v4, s{S_T0}, v7')
    g('v_lshrrev_b32 v6, 3, v1')
    g('v_lshlrev_b32 v6, 3, v6')
    g(f's_lshl_b32 s{S_T0}, s{S_T2}, 4')
    g(f'v_add_u32 v5, s{S_T0}, v6')
    g('v_mov_b32 v12, 0')
    g(f'ds_read_b32 v14, v12 offset:{C_TAG}')
    g(f'v_mov_b32 v10, v{M}')
    g(f'v_mov_b32 v11, v{LS}')
    g(f'ds_write_b64 v5, v[10:11] offset:{L_AS}')
    g(f's_lshl_b32 s{S_T0}, s{S_HKV}, 1')
    g(f's_add_u32 s{S_T0}, s{S_T0}, s{S_BB}')
    g(f's_lshl_b32 s{S_T0}, s{S_T0}, 3')
    g(f's_add_u32 s{S_T0}, s{S_T0}, s{S_SP}')
    g(f's_lshl_b32 s{S_T1}, s{S_T0}, 10')
    set_ws_base(g, S_B, S_T1, WS_A)
    g(f's_lshl_b32 s{S_T1}, s{S_T0}, 7')
    set_ws_base(g, S_B2, S_T1, WS_S)
    g('v_mov_b32 v13, 1')
    for T in range(4):
        g(f's_waitcnt vmcnt({12 - 4*T})')
        for i in range(4):
            a = AC + 4*(i & 1)
            g(f'v_mfma_f32_16x16x32_bf16 {vr(a)}, {vr(V0+16*T+4*i)}, {vr(K0+16*T+4*i)}, {vr(a)}')
    g.stamp(6)
    g.nop(8)
    dbgt(g, 2)
    for r in range(4): g(f'v_add_f32 v{AC+r}, v{AC+r}, v{AC+4+r}')
    g(f'ds_write_b128 v4, {vr(AC)} offset:{L_AO}')
    g(f's_mov_b64 {pr(S_SV)}, exec')
    g('s_waitcnt lgkmcnt(0)')
    g('s_mov_b64 exec, 1')
    g(f'ds_add_rtn_u32 v13, v12, v13 offset:{C_ACNT}')
    g('s_waitcnt lgkmcnt(0)')
    g(f'v_readfirstlane_b32 s{S_T0}, v13')
    g(f's_mov_b64 exec, {pr(S_SV)}')
    g(f's_cmp_lg_u32 s{S_T0}, 7')
    g('s_cbranch_scc1 L_end_stamp')
    ST = 16; OV = 32
    for w in range(8):
        g(f'ds_read_b64 v[{ST+2*w}:{ST+2*w+1}], v6 offset:{L_AS + 16*w}')
    for w in range(8):
        g(f'ds_read_b128 {vr(OV+4*w)}, v7 offset:{L_AO + 1024*w}')
    g('s_waitcnt lgkmcnt(8)')
    g(f'v_max3_f32 v8, v{ST}, v{ST+2}, v{ST+4}')
    g(f'v_max3_f32 v9, v{ST+6}, v{ST+8}, v{ST+10}')
    g(f'v_max3_f32 v8, v8, v{ST+12}, v{ST+14}')
    g(f'v_max_f32 v8, v8, v9')
    g('v_and_b32 v8, 0xffffff00, v8')
    for w in range(8): g(f'v_sub_f32 v{ST+2*w}, v{ST+2*w}, v8')
    for w in range(8): g(f'v_exp_f32 v{ST+2*w}, v{ST+2*w}')
    g('v_mov_b32 v10, 0')
    g('v_mov_b32 v11, 0')
    g(f'v_mul_f32 v9, v{ST}, v{ST+1}')
    for w in range(1, 8): g(f'v_fmac_f32 v9, v{ST+2*w}, v{ST+2*w+1}')
    g('s_waitcnt lgkmcnt(0)')
    for r in range(4):
        g(f'v_mul_f32 v{64+r}, v{ST}, v{OV+r}')
    for w in range(1, 8):
        for r in range(4):
            g(f'v_fmac_f32 v{64+r}, v{ST+2*w}, v{OV+4*w+r}')
    tag_insert(g, 68, 64, 14)
    tag_insert(g, 72, 8, 14)
    g('v_lshlrev_b32 v5, 1, v6')
    g('v_and_b32 v4, 0x37, v0')
    g('v_cmp_eq_u32_e32 vcc, 0, v4')
    if g.o.get('fastA'):
        g(f'v_add_u32 v13, {WS_ALT}, v7')
        g(f'v_add_u32 v12, {WS_ALT}, v5')
        g(f'global_store_dwordx4 v13, {vr(68)}, {pr(S_B)}')
        g(f's_and_saveexec_b64 {pr(S_SV)}, vcc')
        g(f'global_store_dwordx4 v12, {vr(72)}, {pr(S_B2)}')
        g(f'global_store_dwordx4 v5, {vr(72)}, {pr(S_B2)} sc1')
        g(f's_mov_b64 exec, {pr(S_SV)}')
        g(f'global_store_dwordx4 v7, {vr(68)}, {pr(S_B)} sc1')
    else:
        g(f'global_store_dwordx4 v7, {vr(68)}, {pr(S_B)} sc1')
        g(f's_and_saveexec_b64 {pr(S_SV)}, vcc')
        g(f'global_store_dwordx4 v5, {vr(72)}, {pr(S_B2)} sc1')
        g(f's_mov_b64 exec, {pr(S_SV)}')

def generate(stamps=False, pol='nt', opts=None):
    g = G(stamps, pol, opts)
    g('s_cmp_ge_u32 s2, 256')
    g('s_cbranch_scc1 L_end')
    g.stamp(0)
    g('s_load_dwordx16 s[4:19], s[0:1], 0')
    g('s_load_dwordx8 s[20:27], s[0:1], 64')
    g('v_lshrrev_b32 v3, 6, v0')
    g('v_and_b32 v0, 63, v0')
    g(f'v_readfirstlane_b32 s{S_WAVE}, v3')
    g(f'v_and_b32 v{V_N}, 15, v0')
    g(f'v_lshrrev_b32 v{V_G}, 4, v0')
    g(f's_and_b32 s{S_XCD}, s2, 7')
    g(f's_lshr_b32 s{S_SLOT}, s2, 3')
    g(f's_lshr_b32 s{S_HKV}, s{S_SLOT}, 4')
    g(f's_lshl_b32 s{S_T0}, s{S_XCD}, 1')
    g(f's_add_u32 s{S_HKV}, s{S_HKV}, s{S_T0}')
    g(f's_bfe_u32 s{S_BB}, s{S_SLOT}, 0x10003')
    g(f's_and_b32 s{S_SP}, s{S_SLOT}, 7')
    g(f's_mov_b32 s{S_L2E}, 0x{LOG2E:08x}')
    if g.o.get('skew'):
        g(f's_mul_i32 s91, s{S_XCD}, 13')
        g(f's_mov_b32 s92, s91')
        g(f's_mov_b32 s90, 13')
        g(f's_sub_u32 s{S_T0}, s{S_XCD}, 4')
        g(f's_mul_i32 s{S_T1}, s{S_T0}, 23')
        g(f's_add_u32 s{S_T1}, s{S_T1}, 52')
        g(f's_mul_i32 s{S_T2}, s{S_T0}, 3')
        g(f's_add_u32 s{S_T2}, s{S_T2}, 52')
        g(f's_cmp_ge_u32 s{S_XCD}, 4')
        g(f's_cselect_b32 s90, 23, s90')
        g(f's_cselect_b32 s91, s{S_T1}, s91')
        g(f's_cselect_b32 s92, s{S_T2}, s92')
    else:
        g(f's_mov_b32 s90, 18')
        g(f's_mul_i32 s91, s{S_XCD}, 18')
    tag_consts(g)
    g(f's_cmp_ge_u32 s{S_WAVE}, 4')
    g('s_cbranch_scc1 L_attn')
    g('s_setprio 3')
    g(f's_cmp_lg_u32 s{S_WAVE}, 0')
    g('s_cbranch_scc1 L_noinit')
    g('v_lshlrev_b32 v3, 4, v0')
    for r in range(4, 8): g(f'v_mov_b32 v{r}, 0')
    g('ds_write_b128 v3, v[4:7]')
    g.label('L_noinit')
    g(f's_cmp_ge_u32 s{S_SLOT}, 26')
    g('s_cbranch_scc1 L_roleO')
    XR = 124; XF = 136
    g('v_lshrrev_b32 v3, 5, v0')
    g('v_and_b32 v4, 31, v0')
    g('v_mul_u32_u24 v3, 1152, v3')
    g('v_mad_u32_u24 v3, v4, 36, v3')
    xp = g.o.get('xpol', '')
    g('v_mov_b32 v15, v3')
    def xloads():
        g(f'global_load_dwordx4 {vr(XR)}, v15, {pr(S_X)} {xp}')
        g(f'global_load_dwordx4 {vr(XR+4)}, v15, {pr(S_X)} offset:16 {xp}')
        g(f'global_load_dword v{XR+8}, v15, {pr(S_X)} offset:32 {xp}')
    XPOS = g.o.get('xpos', 0)
    S_HALF = S_RS
    S_A, S_R = S_T2, S_T3
    if g.o.get('remap', True):
        g(f's_cmp_ge_u32 s{S_SLOT}, s90')
        g('s_cbranch_scc1 L_tileLight')
        g(f's_add_u32 s{S_ID}, s91, s{S_SLOT}')
        g(f's_and_b32 s{S_HALF}, s{S_ID}, 1')
        g(f's_lshr_b32 s{S_A}, s{S_ID}, 2')
        g(f's_and_b32 s{S_R}, s{S_ID}, 2')
        g(f's_sub_u32 s{S_T0}, s{S_ID}, 104')
        g(f's_lshr_b32 s{S_T0}, s{S_T0}, 1')
        g(f's_add_u32 s{S_T0}, s{S_T0}, 6')
        g(f's_cmp_ge_u32 s{S_ID}, 104')
        g(f's_cselect_b32 s{S_A}, s{S_T0}, s{S_A}')
        g(f's_cselect_b32 s{S_R}, 3, s{S_R}')
        g('s_branch L_tileCT')
        g.label('L_tileLight')
        if g.o.get('skew'):
            g(f's_sub_u32 s{S_T0}, s{S_SLOT}, s90')
            g(f's_add_u32 s{S_T0}, s{S_T0}, s92')
        else:
            g(f's_sub_u32 s{S_T0}, s{S_SLOT}, 18')
            g(f's_lshl_b32 s{S_T0}, s{S_T0}, 3')
            g(f's_add_u32 s{S_T0}, s{S_T0}, s{S_XCD}')
        g(f's_mov_b32 s{S_F}, s{S_T0}')
        g(f's_and_b32 s{S_HALF}, s{S_T0}, 1')
        g(f's_lshr_b32 s{S_A}, s{S_T0}, 1')
        g(f's_sub_u32 s{S_T1}, s{S_A}, 26')
        g(f's_cmp_ge_u32 s{S_T0}, 52')
        g(f's_cselect_b32 s{S_A}, s{S_T1}, s{S_A}')
        g(f's_cselect_b32 s{S_R}, 3, 1')
        g.label('L_tileCT')
        g(f's_lshl_b32 s{S_T0}, s{S_A}, 2')
        g(f's_add_u32 s{S_T0}, s{S_T0}, s{S_R}')
    elif g.o.get('lremap'):
        K0s, TT, MM = 96, 97, 98
        g(f's_lshl_b32 s{K0s}, s{S_XCD}, 1')
        g(f's_sub_u32 s{K0s}, 2, s{K0s}')
        g(f's_and_b32 s{K0s}, s{K0s}, 7')
        g(f's_cmp_ge_u32 s{S_SLOT}, 18')
        g('s_cbranch_scc1 L_tileLight')
        g(f's_sub_u32 s{TT}, s{S_SLOT}, s{K0s}')
        g(f's_and_b32 s{MM}, s{TT}, 7')
        g(f's_cmp_lt_u32 s{MM}, 2')
        g('s_cbranch_scc0 L_lrGU')
        g(f's_cmp_lt_u32 s{S_SLOT}, s{K0s}')
        g('s_cbranch_scc1 L_lrGU')
        g(f's_lshr_b32 s{TT}, s{TT}, 3')
        g(f's_lshl_b32 s{TT}, s{TT}, 1')
        g(f's_add_u32 s{MM}, s{MM}, s{TT}')
        g(f's_add_u32 s{TT}, s{MM}, 2')
        g(f's_cmp_lt_u32 s{MM}, 2')
        g(f's_cselect_b32 s{TT}, s{MM}, s{TT}')
        g('s_branch L_lrQ')
        g.label('L_lrGU')
        g(f's_mov_b32 s{TT}, s{S_SLOT}')
        g.label('L_lrGU2')
        g(f's_mul_i32 s{S_T0}, s{S_XCD}, 18')
        g(f's_add_u32 s{S_T0}, s{S_T0}, s{TT}')
        g(f's_and_b32 s{S_HALF}, s{S_T0}, 1')
        g(f's_lshr_b32 s{S_T0}, s{S_T0}, 1')
        g('s_branch L_tileCT')
        g.label('L_tileLight')
        g(f's_sub_u32 s{MM}, s{S_SLOT}, 18')
        g(f's_add_u32 s{TT}, s{MM}, 2')
        g(f's_cmp_lt_u32 s{MM}, 2')
        g('s_cbranch_scc1 L_lrQ')
        g(f's_sub_u32 s{MM}, s{MM}, 2')
        g(f's_cmp_eq_u32 s{K0s}, 0')
        g(f's_cselect_b32 s{S_T1}, 6, 4')
        g(f's_add_u32 s{TT}, s{MM}, 2')
        g(f's_cmp_ge_u32 s{MM}, s{S_T1}')
        g('s_cbranch_scc1 L_lrQ')
        g(f's_lshr_b32 s{TT}, s{MM}, 1')
        g(f's_lshl_b32 s{TT}, s{TT}, 3')
        g(f's_and_b32 s{MM}, s{MM}, 1')
        g(f's_add_u32 s{TT}, s{TT}, s{MM}')
        g(f's_add_u32 s{TT}, s{TT}, s{K0s}')
        g('s_branch L_lrGU2')
        g.label('L_lrQ')
        g(f's_and_b32 s{S_HALF}, s{TT}, 1')
        g(f's_lshl_b32 s{S_T0}, s{S_XCD}, 3')
        g(f's_add_u32 s{S_T0}, s{S_T0}, s{TT}')
        g(f's_lshr_b32 s{S_T0}, s{S_T0}, 1')
        g(f's_add_u32 s{S_T0}, s{S_T0}, 72')
        g.label('L_tileCT')
    else:
        g(f's_cmp_ge_u32 s{S_SLOT}, 18')
        g('s_cbranch_scc1 L_tileLight')
        g(f's_mul_i32 s{S_ID}, s{S_XCD}, 18')
        g(f's_add_u32 s{S_ID}, s{S_ID}, s{S_SLOT}')
        if g.o.get('fearly'):
            g(f's_sub_u32 s96, s{S_ID}, 72')
            g(f's_add_u32 s97, s{S_ID}, 36')
            g(f's_cmp_lt_u32 s{S_ID}, 72')
            g(f's_cselect_b32 s96, s97, s96')
            g(f's_mul_i32 s97, s96, 43')
            g(f's_lshr_b32 s97, s97, 8')
            g(f's_mul_i32 s98, s97, 6')
            g(f's_sub_u32 s96, s96, s98')
            g(f's_add_u32 s98, s96, 2')
            g(f's_cmp_lt_u32 s96, 2')
            g(f's_cselect_b32 s96, s96, s98')
            g(f's_lshl_b32 s97, s97, 3')
            g(f's_add_u32 s96, s96, s97')
            g(f's_lshr_b32 s97, s{S_ID}, 1')
            g(f's_lshl_b32 s97, s97, 3')
            g(f's_and_b32 s98, s{S_ID}, 1')
            g(f's_add_u32 s97, s97, s98')
            g(f's_add_u32 s97, s97, 2')
            g(f's_cmp_lt_u32 s{S_ID}, 36')
            g(f's_cselect_b32 s{S_ID}, s97, s96')
        g(f's_and_b32 s{S_HALF}, s{S_ID}, 1')
        g(f's_lshr_b32 s{S_T0}, s{S_ID}, 1')
        g('s_branch L_tileCT')
        g.label('L_tileLight')
        g(f's_sub_u32 s{S_T1}, s{S_SLOT}, 18')
        g(f's_and_b32 s{S_HALF}, s{S_T1}, 1')
        g(f's_lshl_b32 s{S_T0}, s{S_XCD}, 3')
        g(f's_add_u32 s{S_T0}, s{S_T0}, s{S_T1}')
        g(f's_lshr_b32 s{S_T0}, s{S_T0}, 1')
        g(f's_add_u32 s{S_T0}, s{S_T0}, 72')
        g.label('L_tileCT')
    g(f's_lshl_b32 s{S_TILE}, s{S_T0}, 1')
    g(f's_add_u32 s{S_TILE}, s{S_TILE}, s{S_HALF}')
    g(f's_mov_b32 s94, s{S_T0}')
    g(f's_mov_b32 s{S_STR}, 9216')
    g(f's_mov_b32 s{S_T1}, 0')
    g(f's_cmp_ge_u32 s{S_T0}, 36')
    g(f's_cselect_b32 s{S_T1}, 36, s{S_T1}')
    g(f's_cmp_ge_u32 s{S_T0}, 72')
    g(f's_cselect_b32 s{S_T1}, 72, s{S_T1}')
    g(f's_cselect_b32 s{S_STR}, 8192, s{S_STR}')
    g(f's_sub_u32 s{S_T0}, s{S_T0}, s{S_T1}')
    g(f's_mul_i32 s{S_T1}, s{S_HALF}, 288')
    g(f's_mul_i32 s{S_T2}, s{S_WAVE}, 72')
    g(f's_add_u32 s{S_RS}, s{S_T1}, s{S_T2}')
    if g.o.get('qwide'):
        g(f's_sub_u32 s96, s{S_SLOT}, 18')
        g(f's_mul_i32 s97, s96, 72')
        g(f's_lshl_b32 s98, s{S_XCD}, 2')
        g(f's_add_u32 s98, s98, s{S_WAVE}')
        g(f's_cmp_ge_u32 s{S_SLOT}, 18')
        g(f's_cselect_b32 s{S_RS}, s97, s{S_RS}')
        g(f's_cselect_b32 s{S_T0}, s98, s{S_T0}')
    g(f's_mul_i32 s{S_T1}, s{S_RS}, s{S_STR}')
    g(f's_lshl_b32 s{S_T0}, s{S_T0}, 8')
    g(f's_add_u32 s{S_T1}, s{S_T1}, s{S_T0}')
    g(f'v_mul_lo_u32 v3, v{V_G}, s{S_STR}')
    g(f'v_lshl_add_u32 v3, v{V_N}, 4, v3')
    g(f's_lshl_b32 s{S_STR}, s{S_STR}, 2')
    g(f's_mov_b32 s95, s{S_T1}')
    kernarg_ready(g, 'L_nogen')
    if XPOS == 0: xloads()
    g(f's_mov_b64 {pr(S_B)}, {pr(S_GATE)}')
    g('s_cmp_ge_u32 s94, 36')
    g(f's_cselect_b64 {pr(S_B)}, {pr(S_UP)}, {pr(S_B)}')
    g('s_cmp_ge_u32 s94, 72')
    g(f's_cselect_b64 {pr(S_B)}, {pr(S_WQ)}, {pr(S_B)}')
    add_base(g, S_B, 95)
    W0 = 16
    for i in range(18):
        g(f'global_load_dwordx4 {vr(W0+4*i)}, v3, {pr(S_B)} {pol}')
        if i < 17: add_base(g, S_B, S_STR)
        if XPOS == i + 1: xloads()
    g('s_barrier')
    g.stamp(2)
    g(f's_cmp_lg_u32 s{S_WAVE}, 1')
    g('s_cbranch_scc1 L_notag1')
    emit_tag_publish(g, qtile=(g.o.get('prew', 0) > 1))
    g.label('L_notag1')
    g(f's_waitcnt vmcnt({18 - XPOS})')
    emit_layernorm(g, XR, XF)
    make_masks(g, MK, V_N, 12)
    g(f'v_lshrrev_b32 v3, 3, v{V_N}')
    g('v_mul_u32_u24 v3, 576, v3')
    g(f'v_add_u32 v3, v3, v{V_G}')
    g(f'v_add_u32 v3, s{S_RS}, v3')
    g('v_lshlrev_b32 v3, 2, v3')
    XV = 136
    for i in range(18):
        g(f'ds_read_b32 v{XV+i}, v3 offset:{L_XD + 16*i}')
    ACC = 156; BT = 160
    for r in range(4): g(f'v_mov_b32 v{ACC+r}, 0')
    g('s_waitcnt lgkmcnt(0)')
    for i in range(18):
        b = BT + 4*(i & 1)
        for r in range(4):
            g(f'v_and_b32 v{b+r}, v{XV+i}, v{MK+r}')
        g(f's_waitcnt vmcnt({17 - i})')
        g.nop(1)
        g(f'v_mfma_f32_16x16x32_bf16 {vr(ACC)}, {vr(W0+4*i)}, {vr(b)}, {vr(ACC)}')
    g.stamp(3)
    dbgt(g, 5)
    get_tag_from_lds(g, 12, VTAG)
    if g.o.get('qwide'):
        g(f's_cmp_lt_u32 s{S_SLOT}, 18')
        g('s_cbranch_scc1 L_l1tall')
        tag_insert(g, 160, ACC, VTAG)
        g(f's_sub_u32 s{S_T0}, s{S_SLOT}, 18')
        g(f's_lshl_b32 s{S_T1}, s{S_XCD}, 3')
        g(f's_add_u32 s{S_T0}, s{S_T0}, s{S_T1}')
        g(f's_lshl_b32 s{S_T0}, s{S_T0}, 2')
        g(f's_add_u32 s{S_T0}, s{S_T0}, s{S_WAVE}')
        g(f's_lshl_b32 s{S_T0}, s{S_T0}, 10')
        set_ws_base(g, S_B, S_T0, WS_QW)
        g('v_lshlrev_b32 v3, 4, v0')
        g('v_add_u32 v4, 0x40000, v3')
        g(f'global_store_dwordx4 v4, {vr(160)}, {pr(S_B)}')
        g(f'global_store_dwordx4 v3, {vr(160)}, {pr(S_B)} sc1')
        g('s_branch L_l1pubdone')
        g.label('L_l1tall')
    g(f's_lshl_b32 s{S_T0}, s{S_WAVE}, 10')
    g('v_lshlrev_b32 v3, 4, v0')
    g(f'v_add_u32 v4, s{S_T0}, v3')
    g(f'ds_write_b128 v4, {vr(ACC)} offset:{L_Y1}')
    arrive_last(g, C_L1CNT, 3, 'L_l1pubdone')
    g('v_lshlrev_b32 v3, 4, v0')
    for w in range(4):
        g(f'ds_read_b128 {vr(124+4*w)}, v3 offset:{L_Y1 + 1024*w}')
    g(f's_lshl_b32 s{S_T0}, s{S_TILE}, 10')
    set_ws_base(g, S_B, S_T0, WS_L1)
    g('s_waitcnt lgkmcnt(0)')
    for j in range(1, 4):
        for r in range(4): g(f'v_add_f32 v{124+r}, v{124+r}, v{124+4*j+r}')
    tag_insert(g, 160, 124, VTAG)
    if g.o.get('qfast'):
        g(f'v_add_u32 v4, {WS_QALT}, v3')
        g(f's_cmp_lt_u32 s{S_TILE}, 144')
        g('s_cbranch_scc1 L_noqalt')
        g(f'global_store_dwordx4 v4, {vr(160)}, {pr(S_B)}')
        g.label('L_noqalt')
    pub_store(g, 'v3', vr(160), pr(S_B), True)
    g.label('L_l1pubdone')
    g.stamp(4)
    g(f's_cmp_lg_u32 s{S_WAVE}, 1')
    g('s_cbranch_scc1 L_noq1')
    emit_qpoll(g, g.o.get('qdelay', 0))
    g.label('L_noq1')
    g(f's_cmp_ge_u32 s{S_SLOT}, s90')
    g('s_cbranch_scc1 L_roleQtail')
    S_RB = S_TILE
    g(f's_add_u32 s{S_T2}, s91, s{S_SLOT}')
    g(f's_mul_i32 s{S_RB}, s{S_T2}, 171')
    g(f's_lshr_b32 s{S_RB}, s{S_RB}, 9')
    g(f's_mul_i32 s{S_T1}, s{S_RB}, 3')
    g(f's_sub_u32 s{S_CB}, s{S_T2}, s{S_T1}')
    def hpoll_here():
        g(f's_cmp_lg_u32 s{S_WAVE}, 0')
        g('s_cbranch_scc1 L_noh')
        if g.o.get('hlate', 0) >= 2:
            if g.o.get('hlate') == 100:
                lds_wait_ge(g, 'hv', C_QF, 1, 12, sleep=8)
            else:
                lds_wait_ge(g, 'hv', C_VISS, g.o.get('hlate') - 1, 12, sleep=8)
        emit_hpoll(g, S_RB)
        g.label('L_noh')
    if g.o.get('hlate', 0) != 1: hpoll_here()
    g(f's_mul_i32 s{S_T0}, s{S_RB}, 96')
    g(f's_mul_i32 s{S_T1}, s{S_WAVE}, 24')
    g(f's_add_u32 s{S_T0}, s{S_T0}, s{S_T1}')
    g(f's_mul_i32 s{S_T0}, s{S_T0}, 1152')
    g(f's_mul_i32 s{S_T1}, s{S_CB}, 384')
    g(f's_add_u32 s{S_T0}, s{S_T0}, s{S_T1}')
    g(f's_mov_b64 {pr(S_B)}, {pr(S_DOWN)}')
    add_base(g, S_B, S_T0)
    l2_lane_offsets(g)
    WD = 88
    if not g.o.get('early'):
        if g.o.get('fgateA'):
            lds_wait_ge(g, 'facnt', C_ACNT, g.o.get('fgateA'), 12, sleep=2)
        else:
            lds_wait_ge(g, 'viss', C_VISS, g.o.get('fgate', 8), 12, sleep=4)
    if g.o.get('hlate') == 1:
        g(f's_mov_b64 s[86:87], {pr(S_B)}')
        g('v_mov_b32 v56, v5'); g('v_mov_b32 v57, v6')
        hpoll_here()
        g(f's_mov_b64 {pr(S_B)}, s[86:87]')
        g('v_mov_b32 v5, v56'); g('v_mov_b32 v6, v57')
    if g.o.get('nolate'):
        g('s_branch L_end_stamp')
    if g.o.get('ggate'):
        count_in(g)
        global_gate(g, g.o.get('ggate'))
    if g.o.get('gg2'):
        count_in(g)
        go_wait(g)
    l2_issue(g, WD, 3)
    l2_prep(g, 48, S_RB, WS_F, 60, 62)
    lds_wait_ge(g, 'hf', C_HF, 1, 12)
    g(f'v_lshrrev_b32 v3, 3, v{V_N}')
    g('v_mul_u32_u24 v3, 96, v3')
    g(f'v_lshl_add_u32 v3, v{V_G}, 1, v3')
    g(f's_mul_i32 s{S_T0}, s{S_WAVE}, 24')
    g(f'v_add_u32 v3, s{S_T0}, v3')
    g('v_lshlrev_b32 v3, 2, v3')
    P = 16
    for i in range(3):
        g(f'ds_read_b64 v[{P+2*i}:{P+2*i+1}], v3 offset:{L_HD + 32*i}')
    l2_compute(g, WD, 3, P, 24, 40, waitvm=lambda i: 6 - 3*i)
    l2_finish(g, 24, 60, 62, 64)
    g('s_branch L_end_stamp')
    g.label('L_roleQtail')
    if g.o.get('ggate') or g.o.get('gg2'): count_in(g)
    if g.o.get('gg2'):
        sk = g.u('nodet')
        g(f's_cmp_lg_u32 s{S_WAVE}, 1')
        g(f's_cbranch_scc1 {sk}')
        g(f's_cmp_lg_u32 s{S_F}, 51')
        g(f's_cbranch_scc1 {sk}')
        detector(g, g.o.get('gg2'))
        g.label(sk)
    g(f's_and_b32 s{S_T0}, s{S_WAVE}, 1')
    if g.o.get('fin2'):
        g(f's_cmp_lg_u32 s{S_T0}, 0')
    else:
        g(f's_cmp_lg_u32 s{S_WAVE}, 0')
    g('s_cbranch_scc1 L_end_stamp')
    if not g.o.get('remap', True):
        g(f's_sub_u32 s{S_F}, s{S_SLOT}, 18')
        g(f's_lshl_b32 s{S_F}, s{S_F}, 3')
        g(f's_add_u32 s{S_F}, s{S_F}, s{S_XCD}')
    g(f's_cmp_ge_u32 s{S_F}, 36')
    g('s_cbranch_scc1 L_end_stamp')
    if g.o.get('fin2'):
        g(f's_cmp_eq_u32 s{S_WAVE}, 2')
        g('s_cbranch_scc1 L_ffg')
        emit_final(g)
        g('s_branch L_end_stamp')
        g.label('L_ffg')
        emit_ffgather(g)
    else:
        emit_final_old(g)
    g('s_branch L_end_stamp')
    g.label('L_roleO')
    emit_roleO(g)
    g('s_branch L_end_stamp')
    g.label('L_attn')
    emit_attn(g)
    g.label('L_end_stamp')
    dbgt(g, 1)
    if stamps:
        g.stamp(7)
        g('s_waitcnt lgkmcnt(0) vmcnt(0)')
        g('s_mov_b64 exec, -1')
        g('v_cmp_eq_u32_e32 vcc, 0, v0')
        g(f's_and_saveexec_b64 {pr(S_SV)}, vcc')
        g('s_cbranch_execz L_end')
        g(f's_mul_i32 s{S_T0}, s2, 12')
        g(f's_add_u32 s{S_T0}, s{S_T0}, s{S_WAVE}')
        g(f's_lshl_b32 s{S_T0}, s{S_T0}, 6')
        g(f's_add_u32 s{S_T0}, s{S_T0}, 0x{WS_STAMP:x}')
        add_base(g, S_WS, S_T0)
        g('v_mov_b32 v1, 0')
        for j in range(8):
            g(f'v_mov_b32 v2, s{64+2*j}'); g(f'v_mov_b32 v3, s{65+2*j}')
            g(f'global_store_dwordx2 v1, v[2:3], {pr(S_WS)} offset:{8*j}')
            g.nop(2)
    g.label('L_end')
    g('s_endpgm')
    return g


DOC = """
; ---------------------------------------------------------------------------------------------
;       slot 18..25  wq tile; 36 of these WGs also produce the final outputs
; consumers drop the tag bytes, so results never depend on the tag.  Write-through (sc1) copies
; ---------------------------------------------------------------------------------------------
"""

if __name__ == '__main__':
    ap = argparse.ArgumentParser()
    ap.add_argument('-o', default='k.s')
    ap.add_argument('--stamps', action='store_true')
    ap.add_argument('--pol', default='nt')
    ap.add_argument('--nopoll', default='')
    ap.add_argument('--nopub', action='store_true')
    ap.add_argument('--early', action='store_true')
    ap.add_argument('--dbl', action='store_true')
    ap.add_argument('--noremap', action='store_true')
    ap.add_argument('--fastA', action='store_true')
    ap.add_argument('--dbgt', action='store_true')
    ap.add_argument('--prew', type=int, default=0)
    ap.add_argument('--ffsl', type=int, default=2)
    ap.add_argument('--ownsl', type=int, default=4)
    ap.add_argument('--qwide', action='store_true')
    ap.add_argument('--fearly', action='store_true')
    ap.add_argument('--onecopy', action='store_true')
    ap.add_argument('--lremap', action='store_true')
    ap.add_argument('--qprobeO', type=int, default=0)
    ap.add_argument('--qmask', type=int, default=1)
    ap.add_argument('--hlate', type=int, default=0)
    ap.add_argument('--habk', default='')
    ap.add_argument('--abmask', type=int, default=3)
    ap.add_argument('--ybar', action='store_true')
    ap.add_argument('--touchB', action='store_true')
    ap.add_argument('--qfast', action='store_true')
    ap.add_argument('--xpos', type=int, default=0)
    ap.add_argument('--xpol', default='')
    ap.add_argument('--tlb', action='store_true')
    ap.add_argument('--gg2', type=int, default=0)
    ap.add_argument('--ogg2', action='store_true')
    ap.add_argument('--nolate', type=int, default=0)
    ap.add_argument('--fin2', action='store_true')
    ap.add_argument('--osplit', type=int, default=0)
    ap.add_argument('--skew', action='store_true')
    ap.add_argument('--qprobe', type=int, default=0)
    ap.add_argument('--fgateA', type=int, default=0)
    ap.add_argument('--ggate', type=int, default=0)
    ap.add_argument('--ogg', type=int, default=0)
    ap.add_argument('--warm', action='store_true')
    ap.add_argument('--ownwait', type=int, default=8)
    ap.add_argument('--ogate', type=int, default=8)
    ap.add_argument('--fgate', type=int, default=8)
    ap.add_argument('--oearly', type=int, default=0)
    ap.add_argument('--stO', action='store_true')
    ap.add_argument('--finpipe', type=int, default=0)
    ap.add_argument('--nokvil', action='store_true')
    ap.add_argument('--qdelay', type=int, default=0)
    ap.add_argument('--qdelayO', type=int, default=0)
    a = ap.parse_args()
    opts = {}
    if a.nopoll: opts['nopoll'] = a.nopoll.split(',')
    if a.early: opts['early'] = True
    opts['remap'] = not a.noremap; opts['fastA'] = a.fastA; opts['dbgt'] = a.dbgt; opts['prew'] = a.prew; opts['ffsl'] = a.ffsl; opts['ownsl'] = a.ownsl; opts['qwide'] = a.qwide; opts['fearly'] = a.fearly; opts['onecopy'] = a.onecopy; opts['lremap'] = a.lremap; opts['qprobeO'] = a.qprobeO; opts['qmask'] = a.qmask; opts['hlate'] = a.hlate; opts['abmask'] = a.abmask; opts['habk'] = tuple(int(x) for x in a.habk.split(',')) if a.habk else None; opts['ybar'] = a.ybar; opts['touchB'] = a.touchB; opts['qfast'] = a.qfast; opts['xpos'] = a.xpos; opts['xpol'] = a.xpol; opts['tlb'] = a.tlb; opts['gg2'] = a.gg2; opts['ogg2'] = a.ogg2; opts['nolate'] = a.nolate; opts['fin2'] = a.fin2; opts['osplit'] = a.osplit; opts['skew'] = a.skew; opts['qprobe'] = a.qprobe; opts['fgateA'] = a.fgateA; opts['ggate'] = a.ggate; opts['ogg'] = a.ogg; opts['warm'] = a.warm; opts['ownwait'] = a.ownwait; opts['ogate'] = a.ogate; opts['fgate'] = a.fgate; opts['oearly'] = a.oearly; opts['stO'] = a.stO; opts['finpipe'] = a.finpipe; opts['kvil'] = not a.nokvil
    opts['dbl'] = a.dbl; opts['qdelay'] = a.qdelay; opts['qdelayO'] = a.qdelayO
    pol = a.pol
    g = generate(a.stamps, a.pol, opts)
    if a.nopub:
        g.L = [l for l in g.L if not ('global_store_dwordx4' in l and 'sc1' in l)]
    open(a.o, 'w').write(header(256, 768, LDS_SIZE) + DOC.lstrip('\n') + '\n'.join(g.L) + '\n' + footer(168))
    print(a.o, len(g.L), 'lines')
```

```python
import sys, argparse
from genlib import *

V_LANE, V_N, V_G = 0, 1, 2
WS_ALT = 0x300000 - WS_A
MK = 8
VTAG = 14

def arrive_last(g, cnt_off, last_val, skip_label):
    g('s_waitcnt lgkmcnt(0)')
    g('v_mov_b32 v12, 0')
    g('v_mov_b32 v13, 1')
    g(f's_mov_b64 {pr(S_SV)}, exec')
    g('s_mov_b64 exec, 1')
    g(f'ds_add_rtn_u32 v13, v12, v13 offset:{cnt_off}')
    g('s_waitcnt lgkmcnt(0)')
    g(f'v_readfirstlane_b32 s{S_T0}, v13')
    g(f's_mov_b64 exec, {pr(S_SV)}')
    g(f's_cmp_lg_u32 s{S_T0}, {last_val}')
    g(f's_cbranch_scc1 {skip_label}')

def set_ws_base(g, dst, off_sreg, const):
    g(f's_add_u32 s{off_sreg}, s{off_sreg}, {const}')
    g(f's_mov_b64 {pr(dst)}, {pr(S_WS)}')
    add_base(g, dst, off_sreg)

def strip(g, regs):
    for r in regs: g(f'v_and_b32 v{r}, 0xffffff00, v{r}')

def pub_store(g, addr, data, base, local):
    if local and g.o.get('dbl'):
        g(f'global_store_dwordx4 {addr}, {data}, {base}')
    g(f'global_store_dwordx4 {addr}, {data}, {base} sc1')

def count_in(g):
    sk = g.u('ci')
    g(f's_cmp_lg_u32 s{S_WAVE}, 3')
    g(f's_cbranch_scc1 {sk}')
    lds_wait_ge(g, 'vi8', C_VISS, 8, 12, sleep=4)
    g('v_mov_b32 v12, 0')
    g('v_mov_b32 v13, 1')
    g(f's_mov_b64 {pr(S_SV)}, exec')
    g('s_mov_b64 exec, 1')
    g(f'global_atomic_add v12, v13, {pr(S_DBG)} sc1')
    g(f's_mov_b64 exec, {pr(S_SV)}')
    g.label(sk)

WS_QW = 0x40000
WS_QALT = 0x3A0000 - WS_L1
WS_G = 0x380000
C_GO = 44
def detector(g, thr):
    lp = g.u('dt_lp'); ok = g.u('dt_ok')
    g(f's_mov_b32 s{S_CNT}, {SPIN_LIMIT}')
    g.label(lp)
    g(f's_load_dword s{S_T0}, {pr(S_DBG)}, 0 glc')
    g('s_waitcnt lgkmcnt(0)')
    g(f's_cmp_ge_u32 s{S_T0}, {thr}')
    g(f's_cbranch_scc1 {ok}')
    g(f's_sub_u32 s{S_CNT}, s{S_CNT}, 1')
    g(f's_cbranch_scc1 {ok}')
    g('s_sleep 2')
    g(f's_branch {lp}')
    g.label(ok)
    g('v_lshlrev_b32 v4, 7, v0')
    g(f'v_mov_b32 v5, s{S_TAG}')
    g(f's_mov_b64 {pr(S_B2)}, {pr(S_WS)}')
    add_base_imm(g, S_B2, WS_G)
    g(f's_mov_b64 {pr(S_SV)}, exec')
    g('s_mov_b64 exec, 0xff')
    g(f'global_store_dword v4, v5, {pr(S_B2)} sc1')
    g(f's_mov_b64 exec, {pr(S_SV)}')

def go_wait(g):
    sk = g.u('gw_sk'); lp = g.u('gw_lp'); ok = g.u('gw_ok')
    g(f's_cmp_lg_u32 s{S_WAVE}, 2')
    g(f's_cbranch_scc1 {sk}')
    g(f's_lshl_b32 s{S_T0}, s{S_XCD}, 7')
    set_ws_base(g, S_B2, S_T0, WS_G)
    g(f's_mov_b32 s{S_CNT}, {SPIN_LIMIT}')
    g.label(lp)
    g(f's_load_dword s{S_T0}, {pr(S_B2)}, 0 glc')
    g('s_waitcnt lgkmcnt(0)')
    g(f's_cmp_eq_u32 s{S_T0}, s{S_TAG}')
    g(f's_cbranch_scc1 {ok}')
    g(f's_sub_u32 s{S_CNT}, s{S_CNT}, 1')
    g(f's_cbranch_scc1 {ok}')
    g('s_sleep 6')
    g(f's_branch {lp}')
    g.label(ok)
    g('v_mov_b32 v12, 0'); g('v_mov_b32 v13, 1')
    g(f'ds_write_b32 v12, v13 offset:{C_GO}')
    g.label(sk)
    lds_wait_ge(g, 'go', C_GO, 1, 12, sleep=2)

def global_gate(g, thr):
    lp = g.u('gg_lp'); ok = g.u('gg_ok')
    g(f's_mov_b32 s{S_CNT}, {SPIN_LIMIT}')
    g.label(lp)
    g(f's_load_dword s{S_T0}, {pr(S_DBG)}, 0 glc')
    g('s_waitcnt lgkmcnt(0)')
    g(f's_cmp_ge_u32 s{S_T0}, {thr}')
    g(f's_cbranch_scc1 {ok}')
    g(f's_sub_u32 s{S_CNT}, s{S_CNT}, 1')
    g(f's_cbranch_scc1 {ok}')
    g('s_sleep 2')
    g(f's_branch {lp}')
    g.label(ok)

def kernarg_ready(g, lab):
    g('s_waitcnt lgkmcnt(0)')
    g.stamp(1)
    g(f's_cmp_lg_u32 s{S_WAVE}, 1')
    g(f's_cbranch_scc1 {lab}')
    g(f's_load_dword s{S_TAG}, {pr(S_WS)}, {WS_GEN}')
    g.label(lab)

def emit_tag_publish(g):
    g('s_waitcnt lgkmcnt(0)')
    g(f's_add_u32 s{S_TAG}, s{S_TAG}, 1')
    g(f's_and_b32 s{S_T0}, s{S_TAG}, 0xff')
    g(f's_mul_i32 s{S_T0}, s{S_T0}, 0x01010100')
    g(f's_mov_b32 s{S_T1}, s{S_TAG}')
    g(f's_xor_b32 s{S_TAG}, s{S_TAG}, s{S_T0}')
    g('v_mov_b32 v4, 0')
    g(f'v_mov_b32 v5, s{S_TAG}')
    g(f'v_mov_b32 v6, s{S_T1}')
    g(f'ds_write_b32 v4, v5 offset:{C_TAG}')
    g(f'ds_write_b32 v4, v6 offset:{C_RAWG}')
    g('s_waitcnt lgkmcnt(0)')
    g('v_mov_b32 v5, 1')
    g(f'ds_write_b32 v4, v5 offset:{C_TAGF}')

def emit_layernorm(g, XR, XF):
    for k in range(9):
        g(f'v_lshlrev_b32 v{XF+2*k}, 16, v{XR+k}')
        g(f'v_and_b32 v{XF+2*k+1}, 0xffff0000, v{XR+k}')
    S, T = 154, 155
    g(f'v_add_f32 v{S}, v{XF}, v{XF+1}')
    for k in range(2, 18): g(f'v_add_f32 v{S}, v{S}, v{XF+k}')
    row_reduce(g, 'v_add_f32', S)
    xor16_op(g, 'v_add_f32', S, T)
    g(f'v_mul_f32 v{S}, 0x{INV576:08x}, v{S}')
    Q, D = 156, 157
    g(f'v_sub_f32 v{D}, v{XF}, v{S}')
    g(f'v_mul_f32 v{Q}, v{D}, v{D}')
    for k in range(1, 18):
        g(f'v_sub_f32 v{D}, v{XF+k}, v{S}')
        g(f'v_fmac_f32 v{Q}, v{D}, v{D}')
    row_reduce(g, 'v_add_f32', Q)
    xor16_op(g, 'v_add_f32', Q, T)
    g(f'v_mul_f32 v{Q}, 0x{INV576:08x}, v{Q}')
    bf16_round(g, Q, Q)
    g(f'v_add_f32 v{Q}, 0x{EPS:08x}, v{Q}')
    bf16_round(g, Q, Q)
    g(f'v_sqrt_f32 v{Q}, v{Q}')
    g.nop(1)
    bf16_round(g, Q, Q)
    g(f'v_rcp_f32 v{Q}, v{Q}')
    bf16_round(g, S, S)
    for k in range(18):
        g(f'v_sub_f32 v{XF+k}, v{XF+k}, v{S}')
    for k in range(0, 18, 2):
        g(f'v_cvt_pk_bf16_f32 v{XR+k//2}, v{XF+k}, v{XF+k+1}')
    for k in range(9):
        g(f'v_lshlrev_b32 v{XF+2*k}, 16, v{XR+k}')
        g(f'v_and_b32 v{XF+2*k+1}, 0xffff0000, v{XR+k}')
    for k in range(18):
        g(f'v_mul_f32 v{XF+k}, v{XF+k}, v{Q}')
    for k in range(18):
        g(f'v_cvt_pk_bf16_f32 v{XF+k}, v{XF+k}, v{XF+k}')
    g('v_lshrrev_b32 v3, 5, v0')
    g('v_and_b32 v4, 31, v0')
    g('v_mul_u32_u24 v3, 576, v3')
    g('v_mad_u32_u24 v3, v4, 18, v3')
    g('v_lshlrev_b32 v3, 2, v3')
    for k in range(0, 18, 2):
        g(f'ds_write_b64 v3, v[{XF+k}:{XF+k+1}] offset:{L_XD + 4*k}')
    g('s_waitcnt lgkmcnt(0)')

def emit_qpoll_wide(g, probe=None):
    g(f's_lshr_b32 s{S_T0}, s{S_HKV}, 1')
    g(f's_lshl_b32 s{S_T0}, s{S_T0}, 15')
    g(f's_and_b32 s{S_T1}, s{S_HKV}, 1')
    g(f's_lshl_b32 s{S_T1}, s{S_T1}, 11')
    g(f's_add_u32 s{S_T0}, s{S_T0}, s{S_T1}')
    g(f's_lshl_b32 s{S_T1}, s{S_BB}, 7')
    g(f's_add_u32 s{S_T0}, s{S_T0}, s{S_T1}')
    set_ws_base(g, 84, S_T0, WS_QW)
    g('s_add_u32 s86, s84, 0x40000')
    g('s_addc_u32 s87, s85, 0')
    g('v_lshrrev_b32 v3, 5, v0')
    g('v_lshlrev_b32 v3, 10, v3')
    g('v_bfe_u32 v4, v0, 3, 2')
    g('v_lshl_add_u32 v3, v4, 8, v3')
    g('v_and_b32 v4, 7, v0')
    g('v_lshl_add_u32 v3, v4, 4, v3')
    for rs in range(8): g(f'v_add_u32 v{156+rs}, {4096*rs}, v3')
    D = 124
    if probe:
        lp = g.u('qp_lp'); ok = g.u('qp_ok')
        g(f's_and_b32 s{S_T4}, s{S_TAG}, 0xff')
        g(f's_mov_b32 s{S_CNT}, {SPIN_LIMIT}')
        g.label(lp)
        for k in range(8): g(f's_load_dword s{64+k if not g.stamps else 88+k}, s[84:85], {4096*k} glc')
        g('s_waitcnt lgkmcnt(0)')
        b0 = 64 if not g.stamps else 88
        for k in range(8): g(f's_xor_b32 s{b0+k}, s{b0+k}, s{S_T4}')
        for k in range(1, 8): g(f's_or_b32 s{b0}, s{b0}, s{b0+k}')
        g(f's_and_b32 s{b0}, s{b0}, 0xff')
        g(f's_cmp_eq_u32 s{b0}, 0')
        g(f's_cbranch_scc1 {ok}')
        g(f's_sub_u32 s{S_CNT}, s{S_CNT}, 1')
        g(f's_cbranch_scc1 {ok}')
        g(f's_sleep {probe}')
        g(f's_branch {lp}')
        g.label(ok)
    def pre():
        g(f's_and_b32 s{S_T0}, s{S_CNT}, {g.o.get("qmask", 1)}')
        g(f's_cmp_eq_u32 s{S_T0}, 1')
        g(f's_cselect_b64 {pr(S_B2)}, s[84:85], s[86:87]')
    loads = [f'global_load_dwordx4 {vr(D+4*rs)}, v{156+rs}, {pr(S_B2)} sc1' for rs in range(8)]
    poll_retry(g, 'q', loads, D, 5, 6, sleep=g.o.get('qsleep', 4), st_first=5, st_cnt=1, pre_iter=pre)
    g.stamp(6)
    strip(g, range(D, D+32))
    for rs in range(1, 8):
        for r in range(4): g(f'v_add_f32 v{D+r}, v{D+r}, v{D+4*rs+r}')
    emit_q_to_lds(g, D)

def emit_q_to_lds(g, D):
    g(f'v_cvt_pk_bf16_f32 v{D}, v{D}, v{D+1}')
    g(f'v_cvt_pk_bf16_f32 v{D+2}, v{D+2}, v{D+3}')
    g('v_lshrrev_b32 v3, 5, v0')
    g('v_lshlrev_b32 v3, 8, v3')
    g('v_bfe_u32 v4, v0, 3, 2')
    g('v_lshl_add_u32 v3, v4, 6, v3')
    g('v_and_b32 v4, 7, v0')
    g('v_lshl_add_u32 v3, v4, 1, v3')
    g(f'ds_write_b16 v3, v{D} offset:{L_QL}')
    g(f'ds_write_b16_d16_hi v3, v{D} offset:{L_QL+16}')
    g(f'ds_write_b16 v3, v{D+2} offset:{L_QL+32}')
    g(f'ds_write_b16_d16_hi v3, v{D+2} offset:{L_QL+48}')
    g('s_waitcnt lgkmcnt(0)')
    g('v_mov_b32 v4, 0')
    g('v_mov_b32 v5, 1')
    g(f'ds_write_b32 v4, v5 offset:{C_QF}')

def emit_qpoll(g, presleep=0, probe=None):
    if g.o.get('qwide'):
        return emit_qpoll_wide(g, probe if probe is not None else g.o.get('qprobe'))
    g(f's_lshl_b32 s{S_T0}, s{S_HKV}, 12')
    g(f's_lshl_b32 s{S_T1}, s{S_BB}, 7')
    g(f's_add_u32 s{S_T0}, s{S_T0}, s{S_T1}')
    set_ws_base(g, S_B2, S_T0, WS_L1 + 144*1024)
    g('v_lshrrev_b32 v3, 5, v0')
    g('v_lshlrev_b32 v3, 11, v3')
    g('v_bfe_u32 v4, v0, 3, 2')
    g('v_lshl_add_u32 v3, v4, 8, v3')
    g('v_and_b32 v4, 7, v0')
    g('v_lshl_add_u32 v3, v4, 4, v3')
    D = 124
    if probe is None: probe = g.o.get('qprobe')
    if probe:
        lp = g.u('qp_lp'); ok = g.u('qp_ok')
        g(f's_and_b32 s{S_T4}, s{S_TAG}, 0xff')
        g(f's_mov_b32 s{S_CNT}, {SPIN_LIMIT}')
        g.label(lp)
        for k in range(4):
            g(f's_load_dword s{84+k}, {pr(S_B2)}, {1024*k} glc')
        g('s_waitcnt lgkmcnt(0)')
        for k in range(4):
            g(f's_and_b32 s{84+k}, s{84+k}, 0xff')
            g(f's_xor_b32 s{84+k}, s{84+k}, s{S_T4}')
        g('s_or_b32 s84, s84, s85')
        g('s_or_b32 s86, s86, s87')
        g('s_or_b32 s84, s84, s86')
        g('s_cmp_eq_u32 s84, 0')
        g(f's_cbranch_scc1 {ok}')
        g(f's_sub_u32 s{S_CNT}, s{S_CNT}, 1')
        g(f's_cbranch_scc1 {ok}')
        g(f's_sleep {probe}')
        g(f's_branch {lp}')
        g.label(ok)
        presleep = 0
    if presleep:
        n = presleep
        while n > 0:
            g(f's_sleep {min(n,127)}'); n -= 127
    pre = None
    if g.o.get('qfast'):
        g(f'v_add_u32 v156, {WS_QALT}, v3')
        g('v_mov_b32 v157, v3')
        def pre():
            g(f's_and_b32 s{S_T0}, s{S_CNT}, {g.o.get("qmask", 1)}')
            g(f's_cmp_eq_u32 s{S_T0}, 1')
            g(f's_cselect_b64 vcc, -1, 0')
            g('v_cndmask_b32_e32 v3, v156, v157, vcc')
    loads = [f'global_load_dwordx4 {vr(D+4*h)}, v3, {pr(S_B2)} offset:{1024*h} sc1' for h in range(2)]
    poll_retry(g, 'q', loads, D, 5, 6, sleep=g.o.get('qsleep', 4), st_first=5, st_cnt=1, pre_iter=pre)
    g.stamp(6)
    strip(g, range(D, D+8))
    for r in range(4):
        g(f'v_add_f32 v{D+r}, v{D+r}, v{D+4+r}')
    g(f'v_cvt_pk_bf16_f32 v{D}, v{D}, v{D+1}')
    g(f'v_cvt_pk_bf16_f32 v{D+2}, v{D+2}, v{D+3}')
    g('v_lshrrev_b32 v3, 5, v0')
    g('v_lshlrev_b32 v3, 8, v3')
    g('v_bfe_u32 v4, v0, 3, 2')
    g('v_lshl_add_u32 v3, v4, 6, v3')
    g('v_and_b32 v4, 7, v0')
    g('v_lshl_add_u32 v3, v4, 1, v3')
    g(f'ds_write_b16 v3, v{D} offset:{L_QL}')
    g(f'ds_write_b16_d16_hi v3, v{D} offset:{L_QL+16}')
    g(f'ds_write_b16 v3, v{D+2} offset:{L_QL+32}')
    g(f'ds_write_b16_d16_hi v3, v{D+2} offset:{L_QL+48}')
    g('s_waitcnt lgkmcnt(0)')
    g('v_mov_b32 v4, 0')
    g('v_mov_b32 v5, 1')
    g(f'ds_write_b32 v4, v5 offset:{C_QF}')

def emit_hpoll(g, S_RB):
    set_off = []
    g(f's_mul_i32 s{S_T2}, s{S_RB}, 3')
    g('v_lshrrev_b32 v3, 5, v0')
    g(f'v_mul_u32_u24 v3, {72*1024}, v3')
    g('v_bfe_u32 v4, v0, 4, 1')
    g('v_lshl_add_u32 v3, v4, 10, v3')
    g('v_lshl_add_u32 v3, v1, 4, v3')
    for k in range(3):
        g(f's_add_u32 s{S_T0}, s{S_T2}, {k}')
        g(f's_lshr_b32 s{S_T1}, s{S_T0}, 2')
        g(f's_lshl_b32 s{S_T1}, s{S_T1}, 11')
        g(f's_and_b32 s{S_T0}, s{S_T0}, 3')
        g(f's_lshl_b32 s{S_T0}, s{S_T0}, 8')
        g(f's_add_u32 s{S_T0}, s{S_T0}, s{S_T1}')
        g(f'v_add_u32 v{156+k}, s{S_T0}, v3')
    g(f's_mov_b64 {pr(S_B2)}, {pr(S_WS)}')
    add_base_imm(g, S_B2, WS_L1)
    D = 124
    loads = [f'global_load_dwordx4 {vr(D+4*k)}, v{156+k}, {pr(S_B2)} sc1' for k in range(3)]
    poll_retry(g, 'h', loads, D, 5, 6, sleep=g.o.get('hsleep', 8), st_first=5, st_cnt=1)
    g.stamp(6)
    N = 12
    strip(g, range(D, D+12))
    T = D + 12
    U = D + 24
    for j in range(N): g(f'v_mov_b32 v{T+j}, v{D+j}')
    g.nop(2)
    for j in range(N): g(f'v_permlane16_swap_b32 v{D+j}, v{T+j}')
    g.nop(1)
    for j in range(N): g(f'v_add_f32 v{D+j}, v{D+j}, v{T+j}')
    for j in range(N): bf16_round(g, D+j, D+j)
    for j in range(N): g(f'v_mov_b32 v{U+j}, v{D+j}')
    g.nop(2)
    for j in range(N): g(f'v_permlane32_swap_b32 v{D+j}, v{U+j}')
    g.nop(1)
    for j in range(N): g(f'v_mul_f32 v{T+j}, s{S_L2E}, v{D+j}')
    for j in range(N): g(f'v_exp_f32 v{T+j}, -v{T+j}')
    g.nop(1)
    for j in range(N): g(f'v_add_f32 v{T+j}, 1.0, v{T+j}')
    for j in range(N): g(f'v_rcp_f32 v{T+j}, v{T+j}')
    g.nop(1)
    for j in range(N): g(f'v_mul_f32 v{T+j}, v{D+j}, v{T+j}')
    for j in range(N): bf16_round(g, T+j, T+j)
    for j in range(N): g(f'v_mul_f32 v{T+j}, v{T+j}, v{U+j}')
    for j in range(N): g(f'v_cvt_pk_bf16_f32 v{T+j}, v{T+j}, v{T+j}')
    g('v_lshrrev_b32 v3, 3, v1')
    g('v_mul_u32_u24 v3, 96, v3')
    g('v_and_b32 v4, 7, v1')
    g('v_add_u32 v3, v3, v4')
    g('v_lshlrev_b32 v3, 2, v3')
    for k in range(3):
        for r in range(4):
            g(f'ds_write_b32 v3, v{T+4*k+r} offset:{L_HD + 128*k + 32*r}')
    g('s_waitcnt lgkmcnt(0)')
    g('v_mov_b32 v4, 0')
    g('v_mov_b32 v5, 1')
    g(f'ds_write_b32 v4, v5 offset:{C_HF}')

def l2_lane_offsets(g):
    g('v_mul_u32_u24 v5, 2304, v2')
    g('v_lshl_add_u32 v5, v1, 4, v5')
    g('v_add_u32 v6, 256, v5')
    g('v_add_u32 v7, 1024, v5')
    g('v_cmp_gt_u32_e32 vcc, 8, v1')
    g.nop(2)
    g('v_cndmask_b32_e32 v6, v7, v6, vcc')

def l2_issue(g, W0, ng, base=None, a0=5, a1=6, last_adv=False):
    pol = g.pol
    base = S_B if base is None else base
    for i in range(ng):
        g(f'global_load_dwordx4 {vr(W0+12*i)}, v{a0}, {pr(base)} {pol}')
        g(f'global_load_dwordx4 {vr(W0+12*i+4)}, v{a1}, {pr(base)} {pol}')
        g(f'global_load_dwordx4 {vr(W0+12*i+8)}, v{a0}, {pr(base)} offset:1280 {pol}')
        if i < ng-1 or last_adv: add_base_imm(g, base, 9216)

def l2_compute(g, W0, ng, P, AC, BE0, waitvm=None):
    def band(i, k):
        be = BE0 + 8*(i & 1)
        src = P + 2*i + (k >> 1)
        for r in (2*(k & 1), 2*(k & 1) + 1):
            g(f'v_and_b32 v{be + 4*(k >> 1) + r}, v{src}, v{MK+r}')
    g(f's_waitcnt lgkmcnt({ng-1})')
    for k in range(4): band(0, k)
    for i in range(ng):
        be = BE0 + 8*(i & 1); bo = be + 4
        if i + 1 < ng: g(f's_waitcnt lgkmcnt({ng-2-i})')
        if waitvm is not None:
            g(f's_waitcnt vmcnt({waitvm(i)})')
        if i == 0 and waitvm is None and ng == 1: g.nop(2)
        c = (lambda k: '0') if i == 0 else (lambda k: vr(AC+k))
        ms = [f'v_mfma_f32_16x16x32_bf16 {vr(AC)}, {vr(W0+12*i)}, {vr(be)}, {c(0)}',
              f'v_mfma_f32_16x16x32_bf16 {vr(AC+4)}, {vr(W0+12*i+4)}, {vr(be)}, {c(4)}',
              f'v_mfma_f32_16x16x32_bf16 {vr(AC+8)}, {vr(W0+12*i+4)}, {vr(bo)}, {c(8)}',
              f'v_mfma_f32_16x16x32_bf16 {vr(AC+12)}, {vr(W0+12*i+8)}, {vr(bo)}, {c(12)}']
        if i == 0: g.nop(1)
        for k in range(4):
            g(ms[k])
            if i + 1 < ng: band(i + 1, k)

S_PB = 80
def l2_prep(g, nprod, prod_sreg, ws_const, VI, VP):
    fs = nprod*128
    g(f's_mul_i32 s{S_T0}, s{S_WAVE}, 3072')
    g(f'v_lshlrev_b32 v{VI}, 4, v0')
    g(f'v_add_u32 v{VI}, s{S_T0}, v{VI}')
    g(f's_mul_i32 s{S_T0}, s{S_WAVE}, 24')
    g(f'v_add_u32 v{VP}, s{S_T0}, v0')
    g(f'v_lshlrev_b32 v{VI+1}, 4, v{VP}')
    g(f'v_lshrrev_b32 v6, 4, v{VP}')
    g(f'v_bfe_u32 v7, v{VP}, 3, 1')
    g('v_mad_u32_u24 v6, v7, 18, v6')
    g(f'v_mul_u32_u24 v6, {fs}, v6')
    g(f'v_and_b32 v7, 7, v{VP}')
    g(f'v_lshl_add_u32 v{VP}, v7, 4, v6')
    g(f's_mul_i32 s{S_T0}, s{S_CB}, {6*fs}')
    g(f's_lshl_b32 s{S_T1}, s{prod_sreg}, 7')
    g(f's_add_u32 s{S_T0}, s{S_T0}, s{S_T1}')
    set_ws_base(g, S_PB, S_T0, ws_const)

def l2_finish(g, AC, VI, VP, R0, st_a=None, st_b=None):
    g('v_cmp_gt_u32_e32 vcc, 2, v2')
    g('v_mov_b32 v12, 0')
    g('v_mov_b32 v13, 1')
    g.nop(5)
    g(f'ds_write_b128 v{VI}, {vr(AC)} offset:{L_Y}')
    for r in range(4):
        g(f'v_cndmask_b32_e32 v{AC+4+r}, v{AC+8+r}, v{AC+4+r}, vcc')
    g(f'ds_write_b128 v{VI}, {vr(AC+12)} offset:{L_Y + 2048}')
    g(f'ds_write_b128 v{VI}, {vr(AC+4)} offset:{L_Y + 1024}')
    if st_a is not None: g.stamp(st_a)
    g(f's_mov_b64 {pr(S_SV)}, exec')
    if g.o.get('ybar'):
        g('s_waitcnt lgkmcnt(0)')
        g('s_barrier')
        g(f's_mov_b64 exec, 0xffffff')
    else:
        g('s_waitcnt lgkmcnt(0)')
        g('s_mov_b64 exec, 1')
        g(f'ds_add_u32 v12, v13 offset:{C_YCNT}')
        g(f's_mov_b64 exec, 0xffffff')
        lp = g.u('ys'); ok = g.u('yok')
        g(f's_mov_b32 s{S_CNT}, {SPIN_LIMIT*8}')
        g.label(lp)
        g(f'ds_read_b32 v13, v12 offset:{C_YCNT}')
        g('s_waitcnt lgkmcnt(0)')
        g(f'v_readfirstlane_b32 s{S_T0}, v13')
        g(f's_cmp_ge_u32 s{S_T0}, 4')
        g(f's_cbranch_scc1 {ok}')
        g(f's_sub_u32 s{S_CNT}, s{S_CNT}, 1')
        g(f's_cbranch_scc0 {lp}')
        g.label(ok)
    for w in range(4):
        g(f'ds_read_b128 {vr(R0+8*w)}, v{VI+1} offset:{L_Y + 3072*w}')
        g(f'ds_read_b128 {vr(R0+4+8*w)}, v{VI+1} offset:{L_Y + 3072*w + 6*256}')
    for stage in range(4):
        g(f's_waitcnt lgkmcnt({6-2*stage})')
        for r in range(4):
            if stage == 0:
                g(f'v_add_f32 v{R0+r}, v{R0+r}, v{R0+4+r}')
            else:
                g(f'v_add_f32 v{R0+8*stage+r}, v{R0+8*stage+r}, v{R0+8*stage+4+r}')
                g(f'v_add_f32 v{R0+r}, v{R0+r}, v{R0+8*stage+r}')
    tag_insert(g, R0+4, R0, VTAG)
    g(f'global_store_dwordx4 v{VP}, {vr(R0+4)}, {pr(S_PB)} sc1')
    g(f's_mov_b64 exec, {pr(S_SV)}')
    if st_b is not None: g.stamp(st_b)

def reduce_hh(g, d, t):
    g.nop(2)
    for r in range(4):
        g(f'v_add_f32_dpp v{d+r}, v{d+r}, v{d+r} row_ror:8 row_mask:0xf bank_mask:0xf')
    for r in range(4): g(f'v_mov_b32 v{t+r}, v{d+r}')
    g.nop(2)
    for r in range(4): g(f'v_permlane16_swap_b32 v{d+r}, v{t+r}')
    g.nop(1)
    for r in range(4): g(f'v_add_f32 v{d+r}, v{d+r}, v{t+r}')
    for r in range(4): g(f'v_mov_b32 v{t+r}, v{d+r}')
    g.nop(2)
    for r in range(4): g(f'v_permlane32_swap_b32 v{d+r}, v{t+r}')
    g.nop(1)
    for r in range(4): g(f'v_add_f32 v{d+r}, v{d+r}, v{t+r}')

def emit_final_old(g):
    g('v_and_b32 v3, 7, v0')
    g('v_lshlrev_b32 v3, 1, v3')
    g(f's_lshl_b32 s{S_T0}, s{S_F}, 6')
    g(f'v_add_u32 v3, s{S_T0}, v3')
    for r in range(4):
        g(f'global_load_ushort v{124+r}, v3, {pr(S_X)} offset:{16*r}')
    g('v_lshlrev_b32 v4, 4, v0')
    g('v_add_u32 v5, 4096, v4')
    g(f's_mul_i32 s{S_T0}, s{S_F}, 6144')
    set_ws_base(g, S_B, S_T0, WS_F)
    g(f's_lshl_b32 s{S_T0}, s{S_F}, 11')
    set_ws_base(g, S_B2, S_T0, WS_B)
    lds_wait_ge(g, 'own', C_ACNT, 8, 12, sleep=8)
    g.stamp(5)
    D = 16
    loads = [f'global_load_dwordx4 {vr(D+4*k)}, v{4 if k < 4 else 5}, {pr(S_B)} offset:{1024*(k%4)} sc1' for k in range(6)]
    if 'fin' in g.o.get('nopoll', ()): g.o['finpipe'] = 0
    if not g.o.get('finpipe'):
        loads += [f'global_load_dwordx4 {vr(D+24+4*k)}, v4, {pr(S_B2)} offset:{1024*k} sc1' for k in range(2)]
        poll_retry(g, 'fin', loads, D, 13, 15, sleep=0, st_cnt=1)
    else:
        poll_retry(g, 'fin', loads, D, 13, 15, sleep=g.o.get('ffsl', 2))
        g.stamp(4)
        strip(g, range(D, D+24))
        for k in range(1, 6):
            for r in range(4): g(f'v_add_f32 v{D+r}, v{D+r}, v{D+4*k+r}')
        reduce_hh(g, D, 96)
        for r in range(4): bf16_round(g, D+r, D+r)
        for r in range(4): g(f'v_lshlrev_b32 v{124+r}, 16, v{124+r}')
        NS = g.o.get('finpipe')
        SETS = [64 + 8*j for j in range(NS)]
        def iss(j):
            for k in range(2):
                g(f'global_load_dwordx4 {vr(SETS[j]+4*k)}, v4, {pr(S_B2)} offset:{1024*k} sc1')
        lp = g.u('fp_lp'); done = g.u('fp_done')
        oks = [g.u('fp_ok') for _ in range(NS)]
        g(f's_mov_b32 s{S_CNT}, {SPIN_LIMIT}')
        for j in range(NS-1): iss(j)
        g.label(lp)
        for j in range(NS):
            iss((j + NS - 1) % NS)
            g(f's_waitcnt vmcnt({2*(NS-1)})')
            tag_check(g, SETS[j], 13, 15, True)
            tag_check(g, SETS[j]+4, 13, 15, False)
            g(f's_cmp_eq_u64 {pr(S_OK)}, -1')
            g(f's_cbranch_scc1 {oks[j]}')
        g(f's_sub_u32 s{S_CNT}, s{S_CNT}, 1')
        g(f's_cbranch_scc0 {lp}')
        for j in range(NS):
            g.label(oks[j])
            strip(g, range(SETS[j], SETS[j]+8))
            for r in range(4): g(f'v_add_f32 v{D+24+r}, v{SETS[j]+r}, v{SETS[j]+4+r}')
            if j < NS-1: g(f's_branch {done}')
        g.label(done)
    g.stamp(6)
    FF = D; AT = D + 24
    if not g.o.get('finpipe'):
        for k in range(1, 6):
            for r in range(4): g(f'v_add_f32 v{FF+r}, v{FF+r}, v{FF+4*k+r}')
        for r in range(4): g(f'v_add_f32 v{AT+r}, v{AT+r}, v{AT+4+r}')
    if g.o.get('finpipe'):
        reduce_hh(g, AT, 96)
        for r in range(4): bf16_round(g, AT+r, AT+r)
    else:
        vals = [FF+r for r in range(4)] + [AT+r for r in range(4)]
        T = 96
        g.nop(2)
        for v in vals: g(f'v_add_f32_dpp v{v}, v{v}, v{v} row_ror:8 row_mask:0xf bank_mask:0xf')
        for j, v in enumerate(vals): g(f'v_mov_b32 v{T+j}, v{v}')
        g.nop(2)
        for j, v in enumerate(vals): g(f'v_permlane16_swap_b32 v{v}, v{T+j}')
        g.nop(1)
        for j, v in enumerate(vals): g(f'v_add_f32 v{v}, v{v}, v{T+j}')
        for j, v in enumerate(vals): g(f'v_mov_b32 v{T+j}, v{v}')
        g.nop(2)
        for j, v in enumerate(vals): g(f'v_permlane32_swap_b32 v{v}, v{T+j}')
        g.nop(1)
        for j, v in enumerate(vals): g(f'v_add_f32 v{v}, v{v}, v{T+j}')
        for v in vals: bf16_round(g, v, v)
        for r in range(4): g(f'v_lshlrev_b32 v{124+r}, 16, v{124+r}')
    for r in range(4): g(f'v_add_f32 v{AT+r}, v{124+r}, v{AT+r}')
    for r in range(4): bf16_round(g, AT+r, AT+r)
    for r in range(4): g(f'v_add_f32 v{AT+r}, v{AT+r}, v{FF+r}')
    g(f'v_cvt_pk_bf16_f32 v28, v{AT}, v{AT+1}')
    g(f'v_cvt_pk_bf16_f32 v29, v{AT+2}, v{AT+3}')
    g('v_cmp_gt_u32_e32 vcc, 8, v0')
    g(f's_and_saveexec_b64 {pr(S_SV)}, vcc')
    g(f'global_store_short v3, v28, {pr(S_OUT)}')
    g(f'global_store_short_d16_hi v3, v28, {pr(S_OUT)} offset:16')
    g(f'global_store_short v3, v29, {pr(S_OUT)} offset:32')
    g(f'global_store_short_d16_hi v3, v29, {pr(S_OUT)} offset:48')
    g(f's_cmp_lg_u32 s{S_F}, 0')
    g('s_cbranch_scc1 L_nobump')
    g('s_mov_b64 exec, 1')
    g('v_mov_b32 v4, 0')
    g(f'ds_read_b32 v5, v4 offset:{C_RAWG}')
    g('s_waitcnt lgkmcnt(0)')
    g(f'global_store_dword v4, v5, {pr(S_WS)} sc1')
    g.label('L_nobump')
    g(f's_mov_b64 exec, {pr(S_SV)}')

C_FFF = 40
L_FF = L_QL + 0
def emit_ffgather(g):
    g('v_lshlrev_b32 v4, 4, v0')
    g('v_add_u32 v5, 4096, v4')
    g(f's_mul_i32 s{S_T0}, s{S_F}, 6144')
    set_ws_base(g, S_B, S_T0, WS_F)
    lds_wait_ge(g, 'own', C_ACNT, g.o.get('ffown', 4), 12, sleep=8)
    g.stamp(5)
    D = 16
    loads = [f'global_load_dwordx4 {vr(D+4*k)}, v{4 if k < 4 else 5}, {pr(S_B)} offset:{1024*(k%4)} sc1' for k in range(6)]
    poll_retry(g, 'fin', loads, D, 13, 15, sleep=g.o.get('ffsleep', 1), st_cnt=1)
    g.stamp(4)
    for k in range(1, 6):
        for r in range(4): g(f'v_add_f32 v{D+r}, v{D+r}, v{D+4*k+r}')
    reduce_hh(g, D, 96)
    for r in range(4): bf16_round(g, D+r, D+r)
    g('v_lshlrev_b32 v4, 4, v0')
    g('v_cmp_gt_u32_e32 vcc, 8, v0')
    g(f's_and_saveexec_b64 {pr(S_SV)}, vcc')
    g(f'ds_write_b128 v4, {vr(D)} offset:{L_Y}')
    g('s_waitcnt lgkmcnt(0)')
    g('v_mov_b32 v12, 0'); g('v_mov_b32 v13, 1')
    g(f'ds_write_b32 v12, v13 offset:{C_FFF}')
    g(f's_mov_b64 exec, {pr(S_SV)}')
    g.stamp(6)

def emit_final(g):
    g('v_and_b32 v3, 7, v0')
    g('v_lshlrev_b32 v3, 1, v3')
    g(f's_lshl_b32 s{S_T0}, s{S_F}, 6')
    g(f'v_add_u32 v3, s{S_T0}, v3')
    for r in range(4):
        g(f'global_load_ushort v{124+r}, v3, {pr(S_X)} offset:{16*r}')
    g('v_lshlrev_b32 v4, 4, v0')
    g(f's_lshl_b32 s{S_T0}, s{S_F}, 11')
    set_ws_base(g, S_B2, S_T0, WS_B)
    g('v_mov_b32 v12, 0')
    g(f'ds_read_b32 v30, v12 offset:{C_RAWG}')
    lds_wait_ge(g, 'own', C_ACNT, 8, 12, sleep=8)
    g.stamp(5)
    g('s_waitcnt vmcnt(0)')
    for r in range(4): g(f'v_lshlrev_b32 v{124+r}, 16, v{124+r}')
    AT = 40
    NS = g.o.get('finpipe') or 3
    SETS = [64 + 8*j for j in range(NS)]
    def iss(j):
        for k in range(2):
            g(f'global_load_dwordx4 {vr(SETS[j]+4*k)}, v4, {pr(S_B2)} offset:{1024*k} sc1')
    if 'fin' not in g.o.get('nopoll', ()):
        lp = g.u('fp_lp'); done = g.u('fp_done')
        oks = [g.u('fp_ok') for _ in range(NS)]
        g(f's_mov_b32 s{S_CNT}, {SPIN_LIMIT}')
        for j in range(NS-1): iss(j)
        g.label(lp)
        for j in range(NS):
            iss((j + NS - 1) % NS)
            g(f's_waitcnt vmcnt({2*(NS-1)})')
            tag_check(g, SETS[j], 13, 15, True)
            tag_check(g, SETS[j]+4, 13, 15, False)
            g(f's_cmp_eq_u64 {pr(S_OK)}, -1')
            g(f's_cbranch_scc1 {oks[j]}')
        g(f's_sub_u32 s{S_CNT}, s{S_CNT}, 1')
        g(f's_cbranch_scc0 {lp}')
        for j in range(NS):
            g.label(oks[j])
            for r in range(4): g(f'v_add_f32 v{AT+r}, v{SETS[j]+r}, v{SETS[j]+4+r}')
            if j < NS-1: g(f's_branch {done}')
        g.label(done)
    g.stamp(6)
    reduce_hh(g, AT, 48)
    for r in range(4): bf16_round(g, AT+r, AT+r)
    for r in range(4): g(f'v_add_f32 v{AT+r}, v{124+r}, v{AT+r}')
    for r in range(4): bf16_round(g, AT+r, AT+r)
    if 'fin' not in g.o.get('nopoll', ()):
        lds_wait_ge(g, 'fff', C_FFF, 1, 12, sleep=0)
    g('v_lshlrev_b32 v4, 4, v0')
    g(f'ds_read_b128 {vr(52)}, v4 offset:{L_Y}')
    g('v_cmp_gt_u32_e32 vcc, 8, v0')
    g('s_waitcnt lgkmcnt(0)')
    for r in range(4): g(f'v_add_f32 v{AT+r}, v{AT+r}, v{52+r}')
    g(f'v_cvt_pk_bf16_f32 v28, v{AT}, v{AT+1}')
    g(f'v_cvt_pk_bf16_f32 v29, v{AT+2}, v{AT+3}')
    g(f's_and_saveexec_b64 {pr(S_SV)}, vcc')
    g(f'global_store_short v3, v28, {pr(S_OUT)}')
    g(f'global_store_short_d16_hi v3, v28, {pr(S_OUT)} offset:16')
    g(f'global_store_short v3, v29, {pr(S_OUT)} offset:32')
    g(f'global_store_short_d16_hi v3, v29, {pr(S_OUT)} offset:48')
    g(f's_cmp_lg_u32 s{S_F}, 0')
    g('s_cbranch_scc1 L_nobump')
    g('s_mov_b64 exec, 1')
    g('v_mov_b32 v4, 0')
    g(f'global_store_dword v4, v30, {pr(S_WS)} sc1')
    g.label('L_nobump')
    g(f's_mov_b64 exec, {pr(S_SV)}')

def emit_roleO(g):
    S_HO = S_ID
    g(f's_sub_u32 s{S_CB}, s{S_SLOT}, 26')
    g(f's_cmp_ge_u32 s{S_CB}, 3')
    g(f's_cselect_b32 s{S_T0}, 1, 0')
    g(f's_mul_i32 s{S_T1}, s{S_T0}, 3')
    g(f's_sub_u32 s{S_CB}, s{S_CB}, s{S_T1}')
    g(f's_lshl_b32 s{S_HO}, s{S_XCD}, 1')
    g(f's_add_u32 s{S_HO}, s{S_HO}, s{S_T0}')
    NE = g.o.get('oearly', 0)
    W0 = 16
    kernarg_ready(g, 'L_nogenO')
    g(f's_mul_i32 s{S_T0}, s{S_HO}, {256*1152}')
    g(f's_mul_i32 s{S_T1}, s{S_CB}, 384')
    g(f's_add_u32 s{S_T0}, s{S_T0}, s{S_T1}')
    g(f's_mul_i32 s{S_T1}, s{S_WAVE}, {64*1152}')
    g(f's_add_u32 s{S_T0}, s{S_T0}, s{S_T1}')
    g(f's_mov_b64 s[82:83], {pr(S_WO)}')
    add_base(g, 82, S_T0)
    l2_lane_offsets(g)
    g('v_mov_b32 v165, v5'); g('v_mov_b32 v166, v6')
    l2_issue(g, W0, NE, base=82, a0=165, a1=166, last_adv=True)
    g('s_barrier')
    g.stamp(2)
    g(f's_cmp_lg_u32 s{S_WAVE}, 1')
    g('s_cbranch_scc1 L_Onoq')
    emit_tag_publish(g)
    emit_qpoll(g, g.o.get('qdelayO', 0), probe=(g.o.get('qprobeO') or None))
    g.label('L_Onoq')
    get_tag_from_lds(g, 12, VTAG)
    if g.o.get('touchB'):
        l2_prep(g, 16, S_HO, WS_B, 162, 164)
        g(f'v_not_b32 v15, v{VTAG}')
        tag_insert(g, 112, 112, 15)
        g(f's_mov_b64 {pr(S_SV)}, exec')
        g('s_mov_b64 exec, 0xffffff')
        g(f'global_store_dwordx4 v164, {vr(112)}, {pr(S_PB)} sc1')
        g(f's_mov_b64 exec, {pr(S_SV)}')
        g.nop(2)
    make_masks(g, MK, 1, 112)
    if g.o.get('nolate', 0) > 1:
        g('s_branch L_end_stamp')
    if NE < 8:
        if not g.o.get('early'):
            lds_wait_ge(g, 'viss', C_VISS, g.o.get('ogate', 8), 12, sleep=4)
        if g.o.get('ogg'):
            global_gate(g, g.o.get('ogg'))
        osp = g.o.get('osplit', 0)
        if g.o.get('gg2') and g.o.get('ogg2'):
            if osp: l2_issue(g, W0 + 12*NE, osp - NE, base=82, a0=165, a1=166, last_adv=True)
            lds_wait_ge(g, 'viss8', C_VISS, 8, 12, sleep=4)
            count_in(g)
            go_wait(g)
            l2_issue(g, W0 + 12*max(osp,NE), 8 - max(osp,NE), base=82, a0=165, a1=166)
        elif osp:
            l2_issue(g, W0 + 12*NE, osp - NE, base=82, a0=165, a1=166, last_adv=True)
            lds_wait_ge(g, 'viss8', C_VISS, 8, 12, sleep=4)
            l2_issue(g, W0 + 12*osp, 8 - osp, base=82, a0=165, a1=166)
            if g.o.get('gg2'): count_in(g)
        else:
            l2_issue(g, W0 + 12*NE, 8 - NE, base=82, a0=165, a1=166)
        if g.o.get('ggate'): count_in(g)
    else:
        lds_wait_ge(g, 'own', C_ACNT, 8, 12, sleep=4)
    if not g.o.get('stO'): g.stamp(3)
    g(f's_lshl_b32 s{S_T0}, s{S_HO}, 14')
    g(f's_and_b32 s{S_T1}, s{S_WAVE}, 1')
    g(f's_lshl_b32 s{S_T1}, s{S_T1}, 9')
    g(f's_add_u32 s{S_T0}, s{S_T0}, s{S_T1}')
    g(f's_lshr_b32 s{S_T1}, s{S_WAVE}, 1')
    g(f's_lshl_b32 s{S_T1}, s{S_T1}, 7')
    g(f's_add_u32 s{S_T0}, s{S_T0}, s{S_T1}')
    set_ws_base(g, S_B, S_T0, WS_A)
    g(f's_lshl_b32 s{S_T0}, s{S_HO}, 11')
    g(f's_lshr_b32 s{S_T1}, s{S_WAVE}, 1')
    g(f's_lshl_b32 s{S_T1}, s{S_T1}, 4')
    g(f's_add_u32 s{S_T0}, s{S_T0}, s{S_T1}')
    set_ws_base(g, S_B2, S_T0, WS_S)
    g('v_lshrrev_b32 v3, 5, v0')
    g('v_bfe_u32 v5, v0, 3, 1')
    g('v_lshl_add_u32 v4, v3, 1, v5')
    g('v_lshlrev_b32 v3, 12, v4')
    g('v_lshlrev_b32 v4, 9, v4')
    g('v_bfe_u32 v5, v0, 4, 1')
    g('v_lshl_add_u32 v3, v5, 8, v3')
    g('v_and_b32 v5, 7, v0')
    g('v_lshl_add_u32 v3, v5, 4, v3')
    g('v_lshrrev_b32 v160, 5, v0')
    g('v_lshlrev_b32 v160, 6, v160')
    g('v_bfe_u32 v5, v0, 4, 1')
    g('v_lshl_add_u32 v160, v5, 5, v160')
    g('v_and_b32 v5, 7, v0')
    g('v_add_u32 v160, v160, v5')
    g(f's_lshl_b32 s{S_T0}, s{S_WAVE}, 7')
    g(f'v_add_u32 v160, s{S_T0}, v160')
    g('v_lshlrev_b32 v160, 2, v160')
    g('v_lshrrev_b32 v161, 3, v1')
    g('v_lshlrev_b32 v161, 6, v161')
    g('v_lshl_add_u32 v161, v2, 1, v161')
    g(f'v_add_u32 v161, s{S_T0}, v161')
    g('v_lshlrev_b32 v161, 2, v161')
    l2_prep(g, 16, S_HO, WS_B, 162, 164)
    D = 112
    if g.o.get('fastA'):
        g(f'v_add_u32 v156, {WS_ALT}, v3')
        g(f'v_add_u32 v157, {WS_ALT}, v4')
        g('v_mov_b32 v158, v3'); g('v_mov_b32 v159, v4')
        def pre():
            g(f's_and_b32 s{S_T0}, s{S_CNT}, {g.o.get("abmask", 3)}')
            g(f's_cmp_eq_u32 s{S_T0}, 1')
            g(f's_cselect_b64 vcc, -1, 0')
            g('v_cndmask_b32_e32 v3, v156, v158, vcc')
            g('v_cndmask_b32_e32 v4, v157, v159, vcc')
    else:
        pre = None
    if g.stamps and g.o.get('stO'):
        pre0 = pre
        def pre():
            g('s_waitcnt lgkmcnt(0)')
            g('s_mov_b64 s[68:69], s[70:71]')
            g('s_mov_b64 s[70:71], s[74:75]')
            g('s_memrealtime s[74:75]')
            if pre0: pre0()
    loads = [f'global_load_dwordx4 {vr(D+4*i)}, v3, {pr(S_B)} offset:{1024*i} sc1' for i in range(4)]
    loads += [f'global_load_dwordx4 {vr(D+16+4*i)}, v4, {pr(S_B2)} offset:{128*i} sc1' for i in range(4)]
    if g.o.get('warm') and g.o.get('fastA'):
        for i in range(4): g(f'global_load_dwordx4 {vr(D+4*i)}, v156, {pr(S_B)} offset:{1024*i} sc1')
        for i in range(4): g(f'global_load_dwordx4 {vr(D+16+4*i)}, v157, {pr(S_B2)} offset:{128*i} sc1')
    if NE < 8 and g.o.get('ogate', 8) < 8 and g.o.get('ownwait', 8):
        lds_wait_ge(g, 'own', C_ACNT, g.o.get('ownwait', 8), 12, sleep=g.o.get('ownsl', 4))
    poll_retry(g, 'ha', loads, D, 5, 6, sleep=0, st_cnt=1, pre_iter=pre, backoff=g.o.get('habk'))
    g.stamp(4)
    ST = D + 16
    M = 144; LL = 145; O = 148
    for i in range(4):
        g(f'v_and_b32 v{ST+4*i}, 0xffffff00, v{ST+4*i}')
    g(f'v_max_f32 v{M}, v{ST}, v{ST+4}')
    g(f'v_max3_f32 v{M}, v{M}, v{ST+8}, v{ST+12}')
    strip(g, [ST+4*i+1 for i in range(4)])
    g(f'v_max_f32_dpp v{M}, v{M}, v{M} row_ror:8 row_mask:0xf bank_mask:0xf')
    strip(g, range(D, D+8))
    for i in range(4): g(f'v_sub_f32 v{ST+4*i}, v{ST+4*i}, v{M}')
    for i in range(4): g(f'v_exp_f32 v{ST+4*i}, v{ST+4*i}')
    strip(g, range(D+8, D+16))
    g(f'v_mul_f32 v{LL}, v{ST}, v{ST+1}')
    for r in range(4): g(f'v_mul_f32 v{O+r}, v{ST}, v{D+r}')
    for i in range(1, 4):
        g(f'v_fmac_f32 v{LL}, v{ST+4*i}, v{ST+4*i+1}')
        for r in range(4): g(f'v_fmac_f32 v{O+r}, v{ST+4*i}, v{D+4*i+r}')
    g.nop(1)
    g(f'v_add_f32_dpp v{LL}, v{LL}, v{LL} row_ror:8 row_mask:0xf bank_mask:0xf')
    for r in range(4):
        g(f'v_add_f32_dpp v{O+r}, v{O+r}, v{O+r} row_ror:8 row_mask:0xf bank_mask:0xf')
    g(f'v_rcp_f32 v{LL}, v{LL}')
    g.nop(1)
    for r in range(4): g(f'v_mul_f32 v{O+r}, v{O+r}, v{LL}')
    for r in range(4): g(f'v_cvt_pk_bf16_f32 v{O+r}, v{O+r}, v{O+r}')
    for r in range(4): g(f'ds_write_b32 v160, v{O+r} offset:{L_OD + 32*r}')
    g('s_waitcnt lgkmcnt(0)')
    P = 112
    for i in range(8):
        g(f'ds_read_b64 v[{P+2*i}:{P+2*i+1}], v161 offset:{L_OD + 32*i}')
    l2_compute(g, W0, 8, P, 128, 144)
    l2_finish(g, 128, 162, 164, 16, st_a=None if g.o.get('stO') else 5, st_b=6)

def emit_qk_softmax(g, extra):
    K0, V0 = 16, 80
    QF = 144
    g('v_lshrrev_b32 v4, 3, v1')
    g('v_lshlrev_b32 v4, 8, v4')
    g('v_lshl_add_u32 v4, v2, 4, v4')
    for s in range(4):
        g(f'ds_read_b128 {vr(QF+4*s)}, v4 offset:{L_QL + 64*s}')
    SCR = [8, 12, 160, 164]
    for T in range(4):
        for r in range(4): g(f'v_mov_b32 v{SCR[T]+r}, 0')
    g('s_waitcnt lgkmcnt(0)')
    for T in range(4):
        g(f's_waitcnt vmcnt({12 - 4*T + extra})')
        for s in range(4):
            g(f'v_mfma_f32_16x16x32_bf16 {vr(SCR[T])}, {vr(K0+16*T+4*s)}, {vr(QF+4*s)}, {vr(SCR[T])}')
    g.nop(8)
    g.stamp(4)
    sc = [SCR[T]+r for T in range(4) for r in range(4)]
    TP = 144
    for k in range(0, 16, 2):
        g(f'v_cvt_pk_bf16_f32 v{TP+k//2}, v{sc[k]}, v{sc[k+1]}')
    for k in range(0, 16, 2):
        g(f'v_lshlrev_b32 v{sc[k]}, 16, v{TP+k//2}')
        g(f'v_and_b32 v{sc[k+1]}, 0xffff0000, v{TP+k//2}')
    for k in range(16):
        g(f'v_mul_f32 v{sc[k]}, 0x{SCALE:08x}, v{sc[k]}')
    for k in range(0, 16, 2):
        g(f'v_cvt_pk_bf16_f32 v{TP+k//2}, v{sc[k]}, v{sc[k+1]}')
    for k in range(0, 16, 2):
        g(f'v_lshlrev_b32 v{sc[k]}, 16, v{TP+k//2}')
        g(f'v_and_b32 v{sc[k+1]}, 0xffff0000, v{TP+k//2}')
    M = 152; T1 = 153; LS = 154
    g(f'v_max3_f32 v{M}, v{sc[0]}, v{sc[1]}, v{sc[2]}')
    for k in range(3, 15, 2):
        g(f'v_max3_f32 v{M}, v{M}, v{sc[k]}, v{sc[k+1]}')
    g(f'v_max_f32 v{M}, v{M}, v{sc[15]}')
    xor16_op(g, 'v_max_f32', M, T1)
    xor32_op(g, 'v_max_f32', M, T1)
    g(f'v_mul_f32 v{M}, s{S_L2E}, v{M}')
    for k in range(16):
        g(f'v_fma_f32 v{sc[k]}, v{sc[k]}, s{S_L2E}, -v{M}')
    for k in range(16):
        g(f'v_exp_f32 v{sc[k]}, v{sc[k]}')
    g.nop(1)
    g(f'v_add_f32 v{LS}, v{sc[0]}, v{sc[1]}')
    for k in range(2, 16):
        g(f'v_add_f32 v{LS}, v{LS}, v{sc[k]}')
    for k in range(16):
        g(f'v_cvt_pk_bf16_f32 v{sc[k]}, v{sc[k]}, v{sc[k]}')
    xor16_op(g, 'v_add_f32', LS, T1)
    xor32_op(g, 'v_add_f32', LS, T1)
    AMK = 156
    make_masks(g, AMK, 1, 4)
    for T in range(4):
        for i in range(4):
            for r in range(4):
                g(f'v_and_b32 v{K0+16*T+4*i+r}, v{sc[4*T+i]}, v{AMK+r}')
    AC = 144
    for r in range(8): g(f'v_mov_b32 v{AC+r}, 0')
    g.stamp(5)

def issue_v(g, V0):
    pol = g.pol
    for T in range(4):
        for i in range(4):
            g(f'global_load_dwordx4 {vr(V0+16*T+4*i)}, v3, {pr(S_V)} offset:{256*i} {pol}')
        if T < 3: add_base_imm(g, S_V, 4096)
    g('v_mov_b32 v4, 0')
    g('v_mov_b32 v5, 1')
    g(f's_mov_b64 {pr(S_SV)}, exec')
    g('s_mov_b64 exec, 1')
    g(f'ds_add_u32 v4, v5 offset:{C_VISS}')
    g(f's_mov_b64 exec, {pr(S_SV)}')

def emit_attn(g):
    pol = g.pol
    K0, V0 = 16, 80
    QF = 144
    g('s_waitcnt lgkmcnt(0)')
    g(f's_lshl_b32 s{S_T0}, s{S_BB}, 4')
    g(f's_add_u32 s{S_T0}, s{S_T0}, s{S_HKV}')
    g(f's_lshl_b32 s{S_T0}, s{S_T0}, 20')
    il = g.o.get('kvil', True)
    g(f's_lshl_b32 s{S_T1}, s{S_SP}, {14 if il else 17}')
    g(f's_add_u32 s{S_T0}, s{S_T0}, s{S_T1}')
    g(f's_sub_u32 s{S_T1}, s{S_WAVE}, 4')
    g(f's_lshl_b32 s{S_T1}, s{S_T1}, {17 if il else 14}')
    g(f's_add_u32 s{S_T0}, s{S_T0}, s{S_T1}')
    add_base(g, S_K, S_T0)
    add_base(g, S_V, S_T0)
    g('v_lshlrev_b32 v4, 8, v1')
    g('v_lshl_add_u32 v4, v2, 4, v4')
    g('v_lshlrev_b32 v3, 10, v2')
    g('v_lshl_add_u32 v3, v1, 4, v3')
    if g.o.get('tlb'):
        g('v_mov_b32 v6, 0')
        g(f'global_load_dword v16, v6, {pr(S_K)} nt')
        g(f'global_load_dword v80, v6, {pr(S_V)} nt')
    g('s_barrier')
    g.stamp(1)
    g('s_setprio 2')
    for T in range(4):
        for s in range(4):
            g(f'global_load_dwordx4 {vr(K0+16*T+4*s)}, v4, {pr(S_K)} offset:{64*s} {pol}')
        if T < 3: add_base_imm(g, S_K, 4096)
    g('s_setprio 1')
    g(f's_cmp_ge_u32 s{S_WAVE}, 8')
    g('s_cbranch_scc1 L_grp2')
    if g.o.get('onecopy'):
        issue_v(g, V0)
        g.label('L_grp2')
        g.stamp(2)
        lds_wait_ge(g, 'qf', C_QF, 1, 4, sleep=4)
        g.stamp(3)
        emit_qk_softmax(g, 0)
        g(f's_cmp_lt_u32 s{S_WAVE}, 8')
        g('s_cbranch_scc1 L_pv')
        issue_v(g, V0)
    else:
        issue_v(g, V0)
        g.stamp(2)
        lds_wait_ge(g, 'qf', C_QF, 1, 4, sleep=4)
        g.stamp(3)
        emit_qk_softmax(g, 16)
        g('s_branch L_pv')
        g.label('L_grp2')
        g.stamp(2)
        lds_wait_ge(g, 'qf', C_QF, 1, 4, sleep=4)
        g.stamp(3)
        emit_qk_softmax(g, 0)
        issue_v(g, V0)
    g.label('L_pv')
    M = 152; LS = 154; AC = 144
    g(f's_sub_u32 s{S_T2}, s{S_WAVE}, 4')
    g(f's_lshl_b32 s{S_T0}, s{S_T2}, 10')
    g('v_lshlrev_b32 v7, 4, v0')
    g(f'v_add_u32 v4, s{S_T0}, v7')
    g('v_lshrrev_b32 v6, 3, v1')
    g('v_lshlrev_b32 v6, 3, v6')
    g(f's_lshl_b32 s{S_T0}, s{S_T2}, 4')
    g(f'v_add_u32 v5, s{S_T0}, v6')
    g('v_mov_b32 v12, 0')
    g(f'ds_read_b32 v14, v12 offset:{C_TAG}')
    g(f'v_mov_b32 v10, v{M}')
    g(f'v_mov_b32 v11, v{LS}')
    g(f'ds_write_b64 v5, v[10:11] offset:{L_AS}')
    g(f's_lshl_b32 s{S_T0}, s{S_HKV}, 1')
    g(f's_add_u32 s{S_T0}, s{S_T0}, s{S_BB}')
    g(f's_lshl_b32 s{S_T0}, s{S_T0}, 3')
    g(f's_add_u32 s{S_T0}, s{S_T0}, s{S_SP}')
    g(f's_lshl_b32 s{S_T1}, s{S_T0}, 10')
    set_ws_base(g, S_B, S_T1, WS_A)
    g(f's_lshl_b32 s{S_T1}, s{S_T0}, 7')
    set_ws_base(g, S_B2, S_T1, WS_S)
    g('v_mov_b32 v13, 1')
    for T in range(4):
        g(f's_waitcnt vmcnt({12 - 4*T})')
        for i in range(4):
            a = AC + 4*(i & 1)
            g(f'v_mfma_f32_16x16x32_bf16 {vr(a)}, {vr(V0+16*T+4*i)}, {vr(K0+16*T+4*i)}, {vr(a)}')
    g.stamp(6)
    g.nop(8)
    for r in range(4): g(f'v_add_f32 v{AC+r}, v{AC+r}, v{AC+4+r}')
    g(f'ds_write_b128 v4, {vr(AC)} offset:{L_AO}')
    g(f's_mov_b64 {pr(S_SV)}, exec')
    g('s_waitcnt lgkmcnt(0)')
    g('s_mov_b64 exec, 1')
    g(f'ds_add_rtn_u32 v13, v12, v13 offset:{C_ACNT}')
    g('s_waitcnt lgkmcnt(0)')
    g(f'v_readfirstlane_b32 s{S_T0}, v13')
    g(f's_mov_b64 exec, {pr(S_SV)}')
    g(f's_cmp_lg_u32 s{S_T0}, 7')
    g('s_cbranch_scc1 L_end_stamp')
    ST = 16; OV = 32
    for w in range(8):
        g(f'ds_read_b64 v[{ST+2*w}:{ST+2*w+1}], v6 offset:{L_AS + 16*w}')
    for w in range(8):
        g(f'ds_read_b128 {vr(OV+4*w)}, v7 offset:{L_AO + 1024*w}')
    g('s_waitcnt lgkmcnt(8)')
    g(f'v_max3_f32 v8, v{ST}, v{ST+2}, v{ST+4}')
    g(f'v_max3_f32 v9, v{ST+6}, v{ST+8}, v{ST+10}')
    g(f'v_max3_f32 v8, v8, v{ST+12}, v{ST+14}')
    g(f'v_max_f32 v8, v8, v9')
    g('v_and_b32 v8, 0xffffff00, v8')
    for w in range(8): g(f'v_sub_f32 v{ST+2*w}, v{ST+2*w}, v8')
    for w in range(8): g(f'v_exp_f32 v{ST+2*w}, v{ST+2*w}')
    g('v_mov_b32 v10, 0')
    g('v_mov_b32 v11, 0')
    g(f'v_mul_f32 v9, v{ST}, v{ST+1}')
    for w in range(1, 8): g(f'v_fmac_f32 v9, v{ST+2*w}, v{ST+2*w+1}')
    g('s_waitcnt lgkmcnt(0)')
    for r in range(4):
        g(f'v_mul_f32 v{64+r}, v{ST}, v{OV+r}')
    for w in range(1, 8):
        for r in range(4):
            g(f'v_fmac_f32 v{64+r}, v{ST+2*w}, v{OV+4*w+r}')
    tag_insert(g, 68, 64, 14)
    tag_insert(g, 72, 8, 14)
    g('v_lshlrev_b32 v5, 1, v6')
    g('v_and_b32 v4, 0x37, v0')
    g('v_cmp_eq_u32_e32 vcc, 0, v4')
    if g.o.get('fastA'):
        g(f'v_add_u32 v13, {WS_ALT}, v7')
        g(f'v_add_u32 v12, {WS_ALT}, v5')
        g(f'global_store_dwordx4 v13, {vr(68)}, {pr(S_B)}')
        g(f's_and_saveexec_b64 {pr(S_SV)}, vcc')
        g(f'global_store_dwordx4 v12, {vr(72)}, {pr(S_B2)}')
        g(f'global_store_dwordx4 v5, {vr(72)}, {pr(S_B2)} sc1')
        g(f's_mov_b64 exec, {pr(S_SV)}')
        g(f'global_store_dwordx4 v7, {vr(68)}, {pr(S_B)} sc1')
    else:
        g(f'global_store_dwordx4 v7, {vr(68)}, {pr(S_B)} sc1')
        g(f's_and_saveexec_b64 {pr(S_SV)}, vcc')
        g(f'global_store_dwordx4 v5, {vr(72)}, {pr(S_B2)} sc1')
        g(f's_mov_b64 exec, {pr(S_SV)}')

def generate(stamps=False, pol='nt', opts=None):
    g = G(stamps, pol, opts)
    g('s_cmp_ge_u32 s2, 256')
    g('s_cbranch_scc1 L_end')
    g.stamp(0)
    g('s_load_dwordx16 s[4:19], s[0:1], 0')
    g('s_load_dwordx8 s[20:27], s[0:1], 64')
    g('v_lshrrev_b32 v3, 6, v0')
    g('v_and_b32 v0, 63, v0')
    g(f'v_readfirstlane_b32 s{S_WAVE}, v3')
    g(f'v_and_b32 v{V_N}, 15, v0')
    g(f'v_lshrrev_b32 v{V_G}, 4, v0')
    g(f's_and_b32 s{S_XCD}, s2, 7')
    g(f's_lshr_b32 s{S_SLOT}, s2, 3')
    g(f's_lshr_b32 s{S_HKV}, s{S_SLOT}, 4')
    g(f's_lshl_b32 s{S_T0}, s{S_XCD}, 1')
    g(f's_add_u32 s{S_HKV}, s{S_HKV}, s{S_T0}')
    g(f's_bfe_u32 s{S_BB}, s{S_SLOT}, 0x10003')
    g(f's_and_b32 s{S_SP}, s{S_SLOT}, 7')
    g(f's_mov_b32 s{S_L2E}, 0x{LOG2E:08x}')
    if g.o.get('skew'):
        g(f's_mul_i32 s91, s{S_XCD}, 13')
        g(f's_mov_b32 s92, s91')
        g(f's_mov_b32 s90, 13')
        g(f's_sub_u32 s{S_T0}, s{S_XCD}, 4')
        g(f's_mul_i32 s{S_T1}, s{S_T0}, 23')
        g(f's_add_u32 s{S_T1}, s{S_T1}, 52')
        g(f's_mul_i32 s{S_T2}, s{S_T0}, 3')
        g(f's_add_u32 s{S_T2}, s{S_T2}, 52')
        g(f's_cmp_ge_u32 s{S_XCD}, 4')
        g(f's_cselect_b32 s90, 23, s90')
        g(f's_cselect_b32 s91, s{S_T1}, s91')
        g(f's_cselect_b32 s92, s{S_T2}, s92')
    else:
        g(f's_mov_b32 s90, 18')
        g(f's_mul_i32 s91, s{S_XCD}, 18')
    tag_consts(g)
    g(f's_cmp_ge_u32 s{S_WAVE}, 4')
    g('s_cbranch_scc1 L_attn')
    g('s_setprio 3')
    g(f's_cmp_lg_u32 s{S_WAVE}, 0')
    g('s_cbranch_scc1 L_noinit')
    g('v_lshlrev_b32 v3, 4, v0')
    for r in range(4, 8): g(f'v_mov_b32 v{r}, 0')
    g('ds_write_b128 v3, v[4:7]')
    g.label('L_noinit')
    g(f's_cmp_ge_u32 s{S_SLOT}, 26')
    g('s_cbranch_scc1 L_roleO')
    XR = 124; XF = 136
    g('v_lshrrev_b32 v3, 5, v0')
    g('v_and_b32 v4, 31, v0')
    g('v_mul_u32_u24 v3, 1152, v3')
    g('v_mad_u32_u24 v3, v4, 36, v3')
    xp = g.o.get('xpol', '')
    g('v_mov_b32 v15, v3')
    def xloads():
        g(f'global_load_dwordx4 {vr(XR)}, v15, {pr(S_X)} {xp}')
        g(f'global_load_dwordx4 {vr(XR+4)}, v15, {pr(S_X)} offset:16 {xp}')
        g(f'global_load_dword v{XR+8}, v15, {pr(S_X)} offset:32 {xp}')
    XPOS = g.o.get('xpos', 0)
    S_HALF = S_RS
    S_A, S_R = S_T2, S_T3
    if g.o.get('remap', True):
        g(f's_cmp_ge_u32 s{S_SLOT}, s90')
        g('s_cbranch_scc1 L_tileLight')
        g(f's_add_u32 s{S_ID}, s91, s{S_SLOT}')
        g(f's_and_b32 s{S_HALF}, s{S_ID}, 1')
        g(f's_lshr_b32 s{S_A}, s{S_ID}, 2')
        g(f's_and_b32 s{S_R}, s{S_ID}, 2')
        g(f's_sub_u32 s{S_T0}, s{S_ID}, 104')
        g(f's_lshr_b32 s{S_T0}, s{S_T0}, 1')
        g(f's_add_u32 s{S_T0}, s{S_T0}, 6')
        g(f's_cmp_ge_u32 s{S_ID}, 104')
        g(f's_cselect_b32 s{S_A}, s{S_T0}, s{S_A}')
        g(f's_cselect_b32 s{S_R}, 3, s{S_R}')
        g('s_branch L_tileCT')
        g.label('L_tileLight')
        if g.o.get('skew'):
            g(f's_sub_u32 s{S_T0}, s{S_SLOT}, s90')
            g(f's_add_u32 s{S_T0}, s{S_T0}, s92')
        else:
            g(f's_sub_u32 s{S_T0}, s{S_SLOT}, 18')
            g(f's_lshl_b32 s{S_T0}, s{S_T0}, 3')
            g(f's_add_u32 s{S_T0}, s{S_T0}, s{S_XCD}')
        g(f's_mov_b32 s{S_F}, s{S_T0}')
        g(f's_and_b32 s{S_HALF}, s{S_T0}, 1')
        g(f's_lshr_b32 s{S_A}, s{S_T0}, 1')
        g(f's_sub_u32 s{S_T1}, s{S_A}, 26')
        g(f's_cmp_ge_u32 s{S_T0}, 52')
        g(f's_cselect_b32 s{S_A}, s{S_T1}, s{S_A}')
        g(f's_cselect_b32 s{S_R}, 3, 1')
        g.label('L_tileCT')
        g(f's_lshl_b32 s{S_T0}, s{S_A}, 2')
        g(f's_add_u32 s{S_T0}, s{S_T0}, s{S_R}')
    elif g.o.get('lremap'):
        K0s, TT, MM = 96, 97, 98
        g(f's_lshl_b32 s{K0s}, s{S_XCD}, 1')
        g(f's_sub_u32 s{K0s}, 2, s{K0s}')
        g(f's_and_b32 s{K0s}, s{K0s}, 7')
        g(f's_cmp_ge_u32 s{S_SLOT}, 18')
        g('s_cbranch_scc1 L_tileLight')
        g(f's_sub_u32 s{TT}, s{S_SLOT}, s{K0s}')
        g(f's_and_b32 s{MM}, s{TT}, 7')
        g(f's_cmp_lt_u32 s{MM}, 2')
        g('s_cbranch_scc0 L_lrGU')
        g(f's_cmp_lt_u32 s{S_SLOT}, s{K0s}')
        g('s_cbranch_scc1 L_lrGU')
        g(f's_lshr_b32 s{TT}, s{TT}, 3')
        g(f's_lshl_b32 s{TT}, s{TT}, 1')
        g(f's_add_u32 s{MM}, s{MM}, s{TT}')
        g(f's_add_u32 s{TT}, s{MM}, 2')
        g(f's_cmp_lt_u32 s{MM}, 2')
        g(f's_cselect_b32 s{TT}, s{MM}, s{TT}')
        g('s_branch L_lrQ')
        g.label('L_lrGU')
        g(f's_mov_b32 s{TT}, s{S_SLOT}')
        g.label('L_lrGU2')
        g(f's_mul_i32 s{S_T0}, s{S_XCD}, 18')
        g(f's_add_u32 s{S_T0}, s{S_T0}, s{TT}')
        g(f's_and_b32 s{S_HALF}, s{S_T0}, 1')
        g(f's_lshr_b32 s{S_T0}, s{S_T0}, 1')
        g('s_branch L_tileCT')
        g.label('L_tileLight')
        g(f's_sub_u32 s{MM}, s{S_SLOT}, 18')
        g(f's_add_u32 s{TT}, s{MM}, 2')
        g(f's_cmp_lt_u32 s{MM}, 2')
        g('s_cbranch_scc1 L_lrQ')
        g(f's_sub_u32 s{MM}, s{MM}, 2')
        g(f's_cmp_eq_u32 s{K0s}, 0')
        g(f's_cselect_b32 s{S_T1}, 6, 4')
        g(f's_add_u32 s{TT}, s{MM}, 2')
        g(f's_cmp_ge_u32 s{MM}, s{S_T1}')
        g('s_cbranch_scc1 L_lrQ')
        g(f's_lshr_b32 s{TT}, s{MM}, 1')
        g(f's_lshl_b32 s{TT}, s{TT}, 3')
        g(f's_and_b32 s{MM}, s{MM}, 1')
        g(f's_add_u32 s{TT}, s{TT}, s{MM}')
        g(f's_add_u32 s{TT}, s{TT}, s{K0s}')
        g('s_branch L_lrGU2')
        g.label('L_lrQ')
        g(f's_and_b32 s{S_HALF}, s{TT}, 1')
        g(f's_lshl_b32 s{S_T0}, s{S_XCD}, 3')
        g(f's_add_u32 s{S_T0}, s{S_T0}, s{TT}')
        g(f's_lshr_b32 s{S_T0}, s{S_T0}, 1')
        g(f's_add_u32 s{S_T0}, s{S_T0}, 72')
        g.label('L_tileCT')
    else:
        g(f's_cmp_ge_u32 s{S_SLOT}, 18')
        g('s_cbranch_scc1 L_tileLight')
        g(f's_mul_i32 s{S_ID}, s{S_XCD}, 18')
        g(f's_add_u32 s{S_ID}, s{S_ID}, s{S_SLOT}')
        if g.o.get('fearly'):
            g(f's_sub_u32 s96, s{S_ID}, 72')
            g(f's_add_u32 s97, s{S_ID}, 36')
            g(f's_cmp_lt_u32 s{S_ID}, 72')
            g(f's_cselect_b32 s96, s97, s96')
            g(f's_mul_i32 s97, s96, 43')
            g(f's_lshr_b32 s97, s97, 8')
            g(f's_mul_i32 s98, s97, 6')
            g(f's_sub_u32 s96, s96, s98')
            g(f's_add_u32 s98, s96, 2')
            g(f's_cmp_lt_u32 s96, 2')
            g(f's_cselect_b32 s96, s96, s98')
            g(f's_lshl_b32 s97, s97, 3')
            g(f's_add_u32 s96, s96, s97')
            g(f's_lshr_b32 s97, s{S_ID}, 1')
            g(f's_lshl_b32 s97, s97, 3')
            g(f's_and_b32 s98, s{S_ID}, 1')
            g(f's_add_u32 s97, s97, s98')
            g(f's_add_u32 s97, s97, 2')
            g(f's_cmp_lt_u32 s{S_ID}, 36')
            g(f's_cselect_b32 s{S_ID}, s97, s96')
        g(f's_and_b32 s{S_HALF}, s{S_ID}, 1')
        g(f's_lshr_b32 s{S_T0}, s{S_ID}, 1')
        g('s_branch L_tileCT')
        g.label('L_tileLight')
        g(f's_sub_u32 s{S_T1}, s{S_SLOT}, 18')
        g(f's_and_b32 s{S_HALF}, s{S_T1}, 1')
        g(f's_lshl_b32 s{S_T0}, s{S_XCD}, 3')
        g(f's_add_u32 s{S_T0}, s{S_T0}, s{S_T1}')
        g(f's_lshr_b32 s{S_T0}, s{S_T0}, 1')
        g(f's_add_u32 s{S_T0}, s{S_T0}, 72')
        g.label('L_tileCT')
    g(f's_lshl_b32 s{S_TILE}, s{S_T0}, 1')
    g(f's_add_u32 s{S_TILE}, s{S_TILE}, s{S_HALF}')
    g(f's_mov_b32 s94, s{S_T0}')
    g(f's_mov_b32 s{S_STR}, 9216')
    g(f's_mov_b32 s{S_T1}, 0')
    g(f's_cmp_ge_u32 s{S_T0}, 36')
    g(f's_cselect_b32 s{S_T1}, 36, s{S_T1}')
    g(f's_cmp_ge_u32 s{S_T0}, 72')
    g(f's_cselect_b32 s{S_T1}, 72, s{S_T1}')
    g(f's_cselect_b32 s{S_STR}, 8192, s{S_STR}')
    g(f's_sub_u32 s{S_T0}, s{S_T0}, s{S_T1}')
    g(f's_mul_i32 s{S_T1}, s{S_HALF}, 288')
    g(f's_mul_i32 s{S_T2}, s{S_WAVE}, 72')
    g(f's_add_u32 s{S_RS}, s{S_T1}, s{S_T2}')
    if g.o.get('qwide'):
        g(f's_sub_u32 s96, s{S_SLOT}, 18')
        g(f's_mul_i32 s97, s96, 72')
        g(f's_lshl_b32 s98, s{S_XCD}, 2')
        g(f's_add_u32 s98, s98, s{S_WAVE}')
        g(f's_cmp_ge_u32 s{S_SLOT}, 18')
        g(f's_cselect_b32 s{S_RS}, s97, s{S_RS}')
        g(f's_cselect_b32 s{S_T0}, s98, s{S_T0}')
    g(f's_mul_i32 s{S_T1}, s{S_RS}, s{S_STR}')
    g(f's_lshl_b32 s{S_T0}, s{S_T0}, 8')
    g(f's_add_u32 s{S_T1}, s{S_T1}, s{S_T0}')
    g(f'v_mul_lo_u32 v3, v{V_G}, s{S_STR}')
    g(f'v_lshl_add_u32 v3, v{V_N}, 4, v3')
    g(f's_lshl_b32 s{S_STR}, s{S_STR}, 2')
    g(f's_mov_b32 s95, s{S_T1}')
    kernarg_ready(g, 'L_nogen')
    if XPOS == 0: xloads()
    g(f's_mov_b64 {pr(S_B)}, {pr(S_GATE)}')
    g('s_cmp_ge_u32 s94, 36')
    g(f's_cselect_b64 {pr(S_B)}, {pr(S_UP)}, {pr(S_B)}')
    g('s_cmp_ge_u32 s94, 72')
    g(f's_cselect_b64 {pr(S_B)}, {pr(S_WQ)}, {pr(S_B)}')
    add_base(g, S_B, 95)
    W0 = 16
    for i in range(18):
        g(f'global_load_dwordx4 {vr(W0+4*i)}, v3, {pr(S_B)} {pol}')
        if i < 17: add_base(g, S_B, S_STR)
        if XPOS == i + 1: xloads()
    g('s_barrier')
    g.stamp(2)
    g(f's_cmp_lg_u32 s{S_WAVE}, 1')
    g('s_cbranch_scc1 L_notag1')
    emit_tag_publish(g)
    g.label('L_notag1')
    g(f's_waitcnt vmcnt({18 - XPOS})')
    emit_layernorm(g, XR, XF)
    make_masks(g, MK, V_N, 12)
    g(f'v_lshrrev_b32 v3, 3, v{V_N}')
    g('v_mul_u32_u24 v3, 576, v3')
    g(f'v_add_u32 v3, v3, v{V_G}')
    g(f'v_add_u32 v3, s{S_RS}, v3')
    g('v_lshlrev_b32 v3, 2, v3')
    XV = 136
    for i in range(18):
        g(f'ds_read_b32 v{XV+i}, v3 offset:{L_XD + 16*i}')
    ACC = 156; BT = 160
    for r in range(4): g(f'v_mov_b32 v{ACC+r}, 0')
    g('s_waitcnt lgkmcnt(0)')
    for i in range(18):
        b = BT + 4*(i & 1)
        for r in range(4):
            g(f'v_and_b32 v{b+r}, v{XV+i}, v{MK+r}')
        g(f's_waitcnt vmcnt({17 - i})')
        g.nop(1)
        g(f'v_mfma_f32_16x16x32_bf16 {vr(ACC)}, {vr(W0+4*i)}, {vr(b)}, {vr(ACC)}')
    g.stamp(3)
    get_tag_from_lds(g, 12, VTAG)
    if g.o.get('qwide'):
        g(f's_cmp_lt_u32 s{S_SLOT}, 18')
        g('s_cbranch_scc1 L_l1tall')
        tag_insert(g, 160, ACC, VTAG)
        g(f's_sub_u32 s{S_T0}, s{S_SLOT}, 18')
        g(f's_lshl_b32 s{S_T1}, s{S_XCD}, 3')
        g(f's_add_u32 s{S_T0}, s{S_T0}, s{S_T1}')
        g(f's_lshl_b32 s{S_T0}, s{S_T0}, 2')
        g(f's_add_u32 s{S_T0}, s{S_T0}, s{S_WAVE}')
        g(f's_lshl_b32 s{S_T0}, s{S_T0}, 10')
        set_ws_base(g, S_B, S_T0, WS_QW)
        g('v_lshlrev_b32 v3, 4, v0')
        g('v_add_u32 v4, 0x40000, v3')
        g(f'global_store_dwordx4 v4, {vr(160)}, {pr(S_B)}')
        g(f'global_store_dwordx4 v3, {vr(160)}, {pr(S_B)} sc1')
        g('s_branch L_l1pubdone')
        g.label('L_l1tall')
    g(f's_lshl_b32 s{S_T0}, s{S_WAVE}, 10')
    g('v_lshlrev_b32 v3, 4, v0')
    g(f'v_add_u32 v4, s{S_T0}, v3')
    g(f'ds_write_b128 v4, {vr(ACC)} offset:{L_Y1}')
    arrive_last(g, C_L1CNT, 3, 'L_l1pubdone')
    g('v_lshlrev_b32 v3, 4, v0')
    for w in range(4):
        g(f'ds_read_b128 {vr(124+4*w)}, v3 offset:{L_Y1 + 1024*w}')
    g(f's_lshl_b32 s{S_T0}, s{S_TILE}, 10')
    set_ws_base(g, S_B, S_T0, WS_L1)
    g('s_waitcnt lgkmcnt(0)')
    for j in range(1, 4):
        for r in range(4): g(f'v_add_f32 v{124+r}, v{124+r}, v{124+4*j+r}')
    tag_insert(g, 160, 124, VTAG)
    if g.o.get('qfast'):
        g(f'v_add_u32 v4, {WS_QALT}, v3')
        g(f's_cmp_lt_u32 s{S_TILE}, 144')
        g('s_cbranch_scc1 L_noqalt')
        g(f'global_store_dwordx4 v4, {vr(160)}, {pr(S_B)}')
        g.label('L_noqalt')
    pub_store(g, 'v3', vr(160), pr(S_B), True)
    g.label('L_l1pubdone')
    g.stamp(4)
    g(f's_cmp_lg_u32 s{S_WAVE}, 1')
    g('s_cbranch_scc1 L_noq1')
    emit_qpoll(g, g.o.get('qdelay', 0))
    g.label('L_noq1')
    g(f's_cmp_ge_u32 s{S_SLOT}, s90')
    g('s_cbranch_scc1 L_roleQtail')
    S_RB = S_TILE
    g(f's_add_u32 s{S_T2}, s91, s{S_SLOT}')
    g(f's_mul_i32 s{S_RB}, s{S_T2}, 171')
    g(f's_lshr_b32 s{S_RB}, s{S_RB}, 9')
    g(f's_mul_i32 s{S_T1}, s{S_RB}, 3')
    g(f's_sub_u32 s{S_CB}, s{S_T2}, s{S_T1}')
    def hpoll_here():
        g(f's_cmp_lg_u32 s{S_WAVE}, 0')
        g('s_cbranch_scc1 L_noh')
        if g.o.get('hlate', 0) >= 2:
            if g.o.get('hlate') == 100:
                lds_wait_ge(g, 'hv', C_QF, 1, 12, sleep=8)
            else:
                lds_wait_ge(g, 'hv', C_VISS, g.o.get('hlate') - 1, 12, sleep=8)
        emit_hpoll(g, S_RB)
        g.label('L_noh')
    if g.o.get('hlate', 0) != 1: hpoll_here()
    g(f's_mul_i32 s{S_T0}, s{S_RB}, 96')
    g(f's_mul_i32 s{S_T1}, s{S_WAVE}, 24')
    g(f's_add_u32 s{S_T0}, s{S_T0}, s{S_T1}')
    g(f's_mul_i32 s{S_T0}, s{S_T0}, 1152')
    g(f's_mul_i32 s{S_T1}, s{S_CB}, 384')
    g(f's_add_u32 s{S_T0}, s{S_T0}, s{S_T1}')
    g(f's_mov_b64 {pr(S_B)}, {pr(S_DOWN)}')
    add_base(g, S_B, S_T0)
    l2_lane_offsets(g)
    WD = 88
    if not g.o.get('early'):
        if g.o.get('fgateA'):
            lds_wait_ge(g, 'facnt', C_ACNT, g.o.get('fgateA'), 12, sleep=2)
        else:
            lds_wait_ge(g, 'viss', C_VISS, g.o.get('fgate', 8), 12, sleep=4)
    if g.o.get('hlate') == 1:
        g(f's_mov_b64 s[86:87], {pr(S_B)}')
        g('v_mov_b32 v56, v5'); g('v_mov_b32 v57, v6')
        hpoll_here()
        g(f's_mov_b64 {pr(S_B)}, s[86:87]')
        g('v_mov_b32 v5, v56'); g('v_mov_b32 v6, v57')
    if g.o.get('nolate'):
        g('s_branch L_end_stamp')
    if g.o.get('ggate'):
        count_in(g)
        global_gate(g, g.o.get('ggate'))
    if g.o.get('gg2'):
        count_in(g)
        go_wait(g)
    l2_issue(g, WD, 3)
    l2_prep(g, 48, S_RB, WS_F, 60, 62)
    lds_wait_ge(g, 'hf', C_HF, 1, 12)
    g(f'v_lshrrev_b32 v3, 3, v{V_N}')
    g('v_mul_u32_u24 v3, 96, v3')
    g(f'v_lshl_add_u32 v3, v{V_G}, 1, v3')
    g(f's_mul_i32 s{S_T0}, s{S_WAVE}, 24')
    g(f'v_add_u32 v3, s{S_T0}, v3')
    g('v_lshlrev_b32 v3, 2, v3')
    P = 16
    for i in range(3):
        g(f'ds_read_b64 v[{P+2*i}:{P+2*i+1}], v3 offset:{L_HD + 32*i}')
    l2_compute(g, WD, 3, P, 24, 40, waitvm=lambda i: 6 - 3*i)
    l2_finish(g, 24, 60, 62, 64)
    g('s_branch L_end_stamp')
    g.label('L_roleQtail')
    if g.o.get('ggate') or g.o.get('gg2'): count_in(g)
    if g.o.get('gg2'):
        sk = g.u('nodet')
        g(f's_cmp_lg_u32 s{S_WAVE}, 1')
        g(f's_cbranch_scc1 {sk}')
        g(f's_cmp_lg_u32 s{S_F}, 51')
        g(f's_cbranch_scc1 {sk}')
        detector(g, g.o.get('gg2'))
        g.label(sk)
    g(f's_and_b32 s{S_T0}, s{S_WAVE}, 1')
    if g.o.get('fin2'):
        g(f's_cmp_lg_u32 s{S_T0}, 0')
    else:
        g(f's_cmp_lg_u32 s{S_WAVE}, 0')
    g('s_cbranch_scc1 L_end_stamp')
    if not g.o.get('remap', True):
        g(f's_sub_u32 s{S_F}, s{S_SLOT}, 18')
        g(f's_lshl_b32 s{S_F}, s{S_F}, 3')
        g(f's_add_u32 s{S_F}, s{S_F}, s{S_XCD}')
    g(f's_cmp_ge_u32 s{S_F}, 36')
    g('s_cbranch_scc1 L_end_stamp')
    if g.o.get('fin2'):
        g(f's_cmp_eq_u32 s{S_WAVE}, 2')
        g('s_cbranch_scc1 L_ffg')
        emit_final(g)
        g('s_branch L_end_stamp')
        g.label('L_ffg')
        emit_ffgather(g)
    else:
        emit_final_old(g)
    g('s_branch L_end_stamp')
    g.label('L_roleO')
    emit_roleO(g)
    g('s_branch L_end_stamp')
    g.label('L_attn')
    emit_attn(g)
    g.label('L_end_stamp')
    if stamps:
        g.stamp(7)
        g('s_waitcnt lgkmcnt(0) vmcnt(0)')
        g('s_mov_b64 exec, -1')
        g('v_cmp_eq_u32_e32 vcc, 0, v0')
        g(f's_and_saveexec_b64 {pr(S_SV)}, vcc')
        g('s_cbranch_execz L_end')
        g(f's_mul_i32 s{S_T0}, s2, 12')
        g(f's_add_u32 s{S_T0}, s{S_T0}, s{S_WAVE}')
        g(f's_lshl_b32 s{S_T0}, s{S_T0}, 6')
        g(f's_add_u32 s{S_T0}, s{S_T0}, 0x{WS_STAMP:x}')
        add_base(g, S_WS, S_T0)
        g('v_mov_b32 v1, 0')
        for j in range(8):
            g(f'v_mov_b32 v2, s{64+2*j}'); g(f'v_mov_b32 v3, s{65+2*j}')
            g(f'global_store_dwordx2 v1, v[2:3], {pr(S_WS)} offset:{8*j}')
            g.nop(2)
    g.label('L_end')
    g('s_endpgm')
    return g


DOC = """
; ---------------------------------------------------------------------------------------------
;       slot 18..25  wq tile; 36 of these WGs also produce the final outputs
; consumers drop the tag bytes, so results never depend on the tag.  Write-through (sc1) copies
; ---------------------------------------------------------------------------------------------
"""

if __name__ == '__main__':
    ap = argparse.ArgumentParser()
    ap.add_argument('-o', default='k.s')
    ap.add_argument('--stamps', action='store_true')
    ap.add_argument('--pol', default='nt')
    ap.add_argument('--nopoll', default='')
    ap.add_argument('--nopub', action='store_true')
    ap.add_argument('--early', action='store_true')
    ap.add_argument('--dbl', action='store_true')
    ap.add_argument('--noremap', action='store_true')
    ap.add_argument('--fastA', action='store_true')
    ap.add_argument('--ffsl', type=int, default=2)
    ap.add_argument('--ownsl', type=int, default=4)
    ap.add_argument('--qwide', action='store_true')
    ap.add_argument('--fearly', action='store_true')
    ap.add_argument('--onecopy', action='store_true')
    ap.add_argument('--lremap', action='store_true')
    ap.add_argument('--qprobeO', type=int, default=0)
    ap.add_argument('--qmask', type=int, default=1)
    ap.add_argument('--hlate', type=int, default=0)
    ap.add_argument('--habk', default='')
    ap.add_argument('--abmask', type=int, default=3)
    ap.add_argument('--ybar', action='store_true')
    ap.add_argument('--touchB', action='store_true')
    ap.add_argument('--qfast', action='store_true')
    ap.add_argument('--xpos', type=int, default=0)
    ap.add_argument('--xpol', default='')
    ap.add_argument('--tlb', action='store_true')
    ap.add_argument('--gg2', type=int, default=0)
    ap.add_argument('--ogg2', action='store_true')
    ap.add_argument('--nolate', type=int, default=0)
    ap.add_argument('--fin2', action='store_true')
    ap.add_argument('--osplit', type=int, default=0)
    ap.add_argument('--skew', action='store_true')
    ap.add_argument('--qprobe', type=int, default=0)
    ap.add_argument('--fgateA', type=int, default=0)
    ap.add_argument('--ggate', type=int, default=0)
    ap.add_argument('--ogg', type=int, default=0)
    ap.add_argument('--warm', action='store_true')
    ap.add_argument('--ownwait', type=int, default=8)
    ap.add_argument('--ogate', type=int, default=8)
    ap.add_argument('--fgate', type=int, default=8)
    ap.add_argument('--oearly', type=int, default=0)
    ap.add_argument('--stO', action='store_true')
    ap.add_argument('--finpipe', type=int, default=0)
    ap.add_argument('--nokvil', action='store_true')
    ap.add_argument('--qdelay', type=int, default=0)
    ap.add_argument('--qdelayO', type=int, default=0)
    a = ap.parse_args()
    opts = {}
    if a.nopoll: opts['nopoll'] = a.nopoll.split(',')
    if a.early: opts['early'] = True
    opts['remap'] = not a.noremap; opts['fastA'] = a.fastA; opts['ffsl'] = a.ffsl; opts['ownsl'] = a.ownsl; opts['qwide'] = a.qwide; opts['fearly'] = a.fearly; opts['onecopy'] = a.onecopy; opts['lremap'] = a.lremap; opts['qprobeO'] = a.qprobeO; opts['qmask'] = a.qmask; opts['hlate'] = a.hlate; opts['abmask'] = a.abmask; opts['habk'] = tuple(int(x) for x in a.habk.split(',')) if a.habk else None; opts['ybar'] = a.ybar; opts['touchB'] = a.touchB; opts['qfast'] = a.qfast; opts['xpos'] = a.xpos; opts['xpol'] = a.xpol; opts['tlb'] = a.tlb; opts['gg2'] = a.gg2; opts['ogg2'] = a.ogg2; opts['nolate'] = a.nolate; opts['fin2'] = a.fin2; opts['osplit'] = a.osplit; opts['skew'] = a.skew; opts['qprobe'] = a.qprobe; opts['fgateA'] = a.fgateA; opts['ggate'] = a.ggate; opts['ogg'] = a.ogg; opts['warm'] = a.warm; opts['ownwait'] = a.ownwait; opts['ogate'] = a.ogate; opts['fgate'] = a.fgate; opts['oearly'] = a.oearly; opts['stO'] = a.stO; opts['finpipe'] = a.finpipe; opts['kvil'] = not a.nokvil
    opts['dbl'] = a.dbl; opts['qdelay'] = a.qdelay; opts['qdelayO'] = a.qdelayO
    pol = a.pol
    g = generate(a.stamps, a.pol, opts)
    if a.nopub:
        g.L = [l for l in g.L if not ('global_store_dwordx4' in l and 'sc1' in l)]
    open(a.o, 'w').write(header(256, 768, LDS_SIZE) + DOC.lstrip('\n') + '\n'.join(g.L) + '\n' + footer(168))
    print(a.o, len(g.L), 'lines')
```
